```python
import torch

def _softmax(x, axis=-1):
    return torch.softmax(x, dim=axis)
def _gelu(x):
    return torch.nn.functional.gelu(x, approximate="tanh")
def _silu(x):
    return torch.nn.functional.silu(x)
def _sigmoid(x):
    return torch.sigmoid(x)
def _layernorm(x, axis=-1, eps=1e-5):
    m = x.mean(dim=axis, keepdim=True)
    v = x.var(dim=axis, keepdim=True, unbiased=False)
    return (x - m) / torch.sqrt(v + eps)
def _scatter_add(tgt, idx, src, axis=0):
    return tgt.clone().index_add_(axis, idx, src)
def _segment_sum(src, seg, n):
    out = torch.zeros((n,) + src.shape[1:], dtype=src.dtype)
    return out.index_add_(0, seg, src)
def _pad(x, pw):
    flat = tuple(v for pair in reversed(pw) for v in pair)
    return torch.nn.functional.pad(x, flat)

kernel_name = 'recurrent_scan__sliding_local_dilated__dense_activation_relu__prompt'

def setup_inputs():

    _w = (lambda a: (lambda t: t.to(torch.bfloat16) if t.is_floating_point() else t)(torch.as_tensor(a)))
    def _A_setup():
        B, S, D = 1, 2048, 448
        return {
            "x": _w((lambda *s: torch.randn(*s, dtype=torch.bfloat16) * 0.05)(B, S, D)),
            "wqkv": _w((lambda *s: torch.randn(*s, dtype=torch.bfloat16) * 0.05)(D, 3 * D)),
            "wo": _w((lambda *s: torch.randn(*s, dtype=torch.bfloat16) * 0.05)(D, D)),
        }
    _A_in = _A_setup()

    def _B_setup():
        B, S, D, Dff = 1, 2048, 448, 1792
        return {
            "x": _w((lambda *s: torch.randn(*s, dtype=torch.bfloat16) * 0.05)(B, S, D)),
            "w1": _w((lambda *s: torch.randn(*s, dtype=torch.bfloat16) * 0.05)(D, Dff)),
            "w2": _w((lambda *s: torch.randn(*s, dtype=torch.bfloat16) * 0.05)(Dff, D)),
        }
    _B_in = _B_setup()

    return {
        "A_x": _A_in["x"],
        "A_wqkv": _A_in["wqkv"],
        "A_wo": _A_in["wo"],
        "B_x": _B_in["x"],
        "B_w1": _B_in["w1"],
        "B_w2": _B_in["w2"],
    }

def reference(A_x, A_wqkv, A_wo, B_x, B_w1, B_w2):
    def _A_ref(x, wqkv, wo):
        B, S, D = x.shape
        H = 16; Dh = D // H
        W, dil = 8, 2
        qkv = (lambda x, *d: x.permute(*d))((x @ wqkv).reshape(B, S, 3, H, Dh), 2, 0, 3, 1, 4)
        q, k, v = qkv[0], qkv[1], qkv[2]
        scale = Dh ** -0.5
        pos = torch.arange(S)
        off = torch.arange(W) * dil
        idx = pos[:, None] - off[None, :]
        mask = idx >= 0
        idx_c = torch.where(mask, idx, 0).reshape(-1)
        kg = k[:, :, idx_c, :].reshape(B, H, S, W, Dh)
        vg = v[:, :, idx_c, :].reshape(B, H, S, W, Dh)
        logits = torch.einsum("bhsd,bhswd->bhsw", q, kg) * scale
        logits = torch.where(mask[None, None, :, :], logits, -1e9)
        attn = _softmax(logits, axis=-1)
        o = torch.einsum("bhsw,bhswd->bhsd", attn, vg)
        return (lambda x, *d: x.permute(*d))(o, 0, 2, 1, 3).reshape(B, S, D) @ wo

    def _B_ref(x, w1, w2):
        h = torch.einsum("bsd,df->bsf", x, w1)
        zero = torch.zeros_like(h)
        h = torch.maximum(h, zero)
        return torch.einsum("bsf,fd->bsd", h, w2)

    x = A_x
    xn = _layernorm(x, axis=-1)
    s = _A_ref(xn, A_wqkv, A_wo)
    g = _silu(_B_ref(xn, B_w1, B_w2))
    return x + s * g
```

```python
import re

_REG = re.compile(r'^(-)?(v|a|s)(\d+)$')
_RNG = re.compile(r'^(-)?(v|a|s)\[(\d+):(\d+)\]$')


def regs_of(op):
    op = op.strip()
    if op.startswith('abs(') or op.startswith('|'):
        op = op.strip('|')
        op = op.replace('abs(', '').rstrip(')')
    m = _REG.match(op)
    if m:
        return {(m.group(2), int(m.group(3)))}
    m = _RNG.match(op)
    if m:
        return {(m.group(2), i) for i in range(int(m.group(3)), int(m.group(4)) + 1)}
    if op == 'vcc':
        return {('s', 'vcc')}
    if op == 'exec':
        return {('s', 'exec')}
    if op == 'm0':
        return {('s', 'm0')}
    return set()


TRANS = ('v_exp_f32', 'v_rcp_f32', 'v_rsq_f32', 'v_sqrt_f32', 'v_log_f32')


class Ins:
    def __init__(self, text):
        self.text = text
        t = text.split(';')[0].strip()
        self.label = None
        self.kind = 'other'
        self.w = set()
        self.r = set()
        self.mn = ''
        self.states = 1
        self.target = None
        if t.endswith(':'):
            self.label = t[:-1]
            self.kind = 'label'
            self.states = 0
            return
        if t.startswith('.') or not t:
            self.kind = 'dir'
            self.states = 0
            return
        parts = t.split(None, 1)
        mn = parts[0]
        self.mn = mn
        rest = parts[1] if len(parts) > 1 else ''
        rest = re.sub(r'\s+\w+:\[[^\]]*\]', '', rest)
        rest = re.sub(r'hwreg\([^)]*\)', '0', rest)
        ops = [o.strip() for o in rest.split(',')]
        last = ops[-1].split()
        mods = last[1:]
        ops[-1] = last[0] if last else ''
        self.mods = mods
        R = [regs_of(o) for o in ops]
        U = lambda xs: set().union(*xs) if xs else set()
        if mn == 's_nop':
            self.states = int(ops[0]) + 1
            self.kind = 'salu'
        elif mn.startswith('v_mfma'):
            self.kind = 'mfma'
            self.passes = 8 if '32x32x16' in mn else 4
            self.w = R[0]
            self.A, self.B, self.C = R[1], R[2], R[3]
            self.r = U(R[1:4])
        elif mn.startswith('v_'):
            self.kind = 'valu'
            self.w = R[0]
            self.r = U(R[1:])
            if mn.startswith('v_permlane'):
                self.w = R[0] | R[1]
                self.r = R[0] | R[1]
            if mn.startswith('v_fmac') or mn.startswith('v_dot2c'):
                self.r |= R[0]
            self.dpp = 'dpp' in mn or any(m.startswith(('row_', 'quad_perm')) for m in mods)
            if self.dpp:
                self.r |= R[0]
        elif mn.startswith('ds_'):
            self.kind = 'ds'
            if mn.startswith('ds_read') or '_rtn' in mn:
                self.w = R[0]
                self.r = U(R[1:])
            else:
                self.r = U(R)
        elif mn.startswith('buffer_') or mn.startswith('global_'):
            self.kind = 'vmem'
            self.lds = 'lds' in mods or '_lds_' in mn
            self.store = 'store' in mn
            if self.lds or self.store:
                self.r = U(R)
                if self.lds:
                    self.r = self.r | {('s', 'm0')}
                self.data = (R[0] if mn.startswith('buffer_') else R[1]) if self.store else set()
            else:
                self.w = R[0]
                self.r = U(R[1:])
            self.wide = self.store and ('x3' in mn or 'x4' in mn)
        elif mn.startswith('s_'):
            self.kind = 'salu'
            if mn in ('s_branch',) or mn.startswith('s_cbranch'):
                self.target = ops[0]
            elif mn.startswith('s_cmp') or mn.startswith('s_bitcmp') or mn in (
                    's_waitcnt', 's_barrier', 's_endpgm', 's_sleep', 's_setprio'):
                self.r = U(R)
            else:
                self.w = R[0]
                self.r = U(R[1:])
                if mn.startswith('s_bitset'):
                    self.r |= R[0]
        else:
            raise ValueError('unknown instruction: ' + text)


def vg(s):
    return {x for x in s if x[0] in 'va'}


def sg(s):
    return {x for x in s if x[0] == 's'}


def need(p, c):
    n = 0
    if p.kind == 'valu':
        pv = vg(p.w)
        ps = sg(p.w)
        if c.kind == 'mfma' and pv & c.r:
            n = max(n, 2)
        if c.kind == 'valu':
            if c.mn.startswith('v_permlane') and pv & c.r:
                n = max(n, 2)
            if c.dpp and pv & c.r:
                n = max(n, 2)
            if c.mn.startswith(('v_readfirstlane', 'v_readlane')) and pv & c.r:
                n = max(n, 1)
            if p.mn.startswith(TRANS) and pv & c.r:
                n = max(n, 1)
            if ps & c.r:
                n = max(n, 2)
        if c.kind == 'vmem' and ps & c.r:
            n = max(n, 5)
        if c.kind == 'salu' and ps & c.r:
            n = max(n, 1)
        if c.kind == 'salu' and c.mn.startswith('s_cbranch_vcc') and ('s', 'vcc') in ps:
            n = max(n, 1)
    if p.kind == 'mfma':
        big = 12 if p.passes == 8 else 8
        if c.kind == 'mfma':
            if p.w & (c.A | c.B):
                n = max(n, big)
            if p.w & c.C:
                if not (p.w == c.C and p.passes == c.passes):
                    n = max(n, p.passes + 2)
            if (p.w & c.w) and not (p.w & c.C):
                n = max(n, p.passes + 2)
        elif c.kind in ('valu', 'ds', 'vmem'):
            if p.w & (c.r | c.w):
                n = max(n, big)
            if c.kind == 'valu' and p.C & c.w:
                n = max(n, p.passes - 1)
    if p.kind == 'salu' and ('s', 'm0') in p.w and c.kind == 'vmem' and c.lds:
        n = max(n, 1)
    if p.kind == 'vmem' and getattr(p, 'wide', False):
        if p.data & c.w:
            n = max(n, 2 if c.kind in ('valu', 'mfma') else 1)
    return n


class Prog:
    def __init__(self):
        self.ins = []

    def __call__(self, text):
        for line in text.split('\n'):
            line = line.strip()
            if line and not line.startswith(';'):
                self.ins.append(Ins(line))

    def label(self, name):
        self.ins.append(Ins(name + ':'))

    def finalize(self):
        ins = self.ins
        out = []
        changed = True
        total = 0
        start = 0
        while changed or start:
            if not changed:
                start = 0
            changed = False
            labels = {x.label: i for i, x in enumerate(ins) if x.label}
            jumps = {}
            for i, x in enumerate(ins):
                if x.target:
                    jumps.setdefault(labels[x.target], []).append(i)
            for k in range(start, len(ins)):
                c = ins[k]
                if c.kind in ('label', 'dir'):
                    continue
                req = 0
                stack = [(k, 0)]
                seen = {}
                while stack:
                    j, d = stack.pop()
                    preds = []
                    if j > 0 and ins[j - 1].mn not in ('s_branch', 's_endpgm'):
                        preds.append(j - 1)
                    preds += jumps.get(j, [])
                    for q in preds:
                        if q in seen and seen[q] <= d:
                            continue
                        seen[q] = d
                        p = ins[q]
                        if p.kind not in ('label', 'dir'):
                            req = max(req, need(p, c) - d)
                        d2 = d + p.states
                        if d2 < 12:
                            stack.append((q, d2))
                if req > 0:
                    ins.insert(k, Ins('s_nop %d' % (req - 1)))
                    total += 1
                    changed = True
                    start = k + 1
                    break
        self.nops_inserted = total
        return '\n'.join(('' if x.kind == 'label' else '    ') + x.text for x in ins) + '\n'


class Q:
    def __init__(self, prog, name, mx):
        self.p = prog
        self.name = name
        self.mx = mx
        self.n = 0
        self.done = 0
        self.tags = {}

    def issue(self, tag=None):
        self.n += 1
        if tag is not None:
            self.tags[tag] = self.n
        return self.n

    def wait(self, tag):
        idx = self.tags[tag] if not isinstance(tag, int) else tag
        if idx <= self.done:
            return
        left = self.n - idx
        left = min(left, self.mx)
        self.p('s_waitcnt %s(%d)' % (self.name, left))
        self.done = self.n - left

    def all(self):
        if self.done < self.n:
            self.p('s_waitcnt %s(0)' % self.name)
        self.done = self.n

    def force0(self):
        self.p('s_waitcnt %s(0)' % self.name)
        self.done = self.n
```

```python
import sys
from asmlib import Prog, Q

NAME = 'recurrent_scan__sliding_local_dilated__dense_activation_relu__prompt'
OPT = dict(diag=0, pf_code=1, pf_w=1, la=6, hold=3)
for a in sys.argv[2:]:
    k, v = a.split('=')
    OPT[k] = int(v)
DIAG = OPT['diag']

WS_FLAGS = 4096
WS_STATS = 16384
WS_DIAG = 32768 * 0 + 0xA00000
WS_ACT = 65536
WS_BYTES = 0xB00000
NS = 144
LSTEPS = 19
CH0 = 4 * LSTEPS
CHN = 112 - CH0

XS = [0, 16384, 32768]
WSL = [49152, 77824, 106496]
HALO = 135168
SC = 131072
VSTR = 72
VREG = SC
KX = SC + 2 * 144 * VSTR
CS = 161536
SYNC = 163584
LSUM = SC
FINS = SC + 16384
FSTR = 144
LDS_BYTES = 163840
assert KX + 8192 <= CS

SX, SW, SWO, SW2, SWS, SOUT = 24, 28, 32, 36, 40, 44
sWAVE, sRB, sIDX, sISQ, sCG, sRT, sCT, sACT2, sTAG, sI = range(48, 58)
sT0, sT1, sT2, sT3 = 58, 59, 60, 61
sXO, sWO_, sMX, sMW, sHO, sMH = 62, 63, 64, 65, 66, 67
sA0, sA1 = 68, 69
sSPIN = 3
SPIN_MAX = 0x40000
sST = 70


def srd(b):
    return 's[%d:%d]' % (b, b + 3)


def vr(a, n=4):
    return 'v[%d:%d]' % (a, a + n - 1)


P = Prog()
stamp_n = {}


def stamp(k):
    if DIAG:
        P('s_memrealtime s[100:101]\ns_waitcnt lgkmcnt(0)\ns_mov_b32 s%d, s100' % (sST + k))


def mk_srd(b, ptr, size):
    P('s_mov_b32 s%d, s%d\ns_mov_b32 s%d, s%d\ns_mov_b32 s%d, 0x%x\ns_mov_b32 s%d, 0x20000'
      % (b, ptr, b + 1, ptr + 1, b + 2, size, b + 3))


def diag_dump():
    if DIAG:
        P('s_lshl_b32 s%d, s2, 3\ns_add_u32 s%d, s%d, s%d\ns_lshl_b32 s%d, s%d, 6\ns_add_u32 s%d, s%d, 0x%x'
          % (sT0, sT0, sT0, sWAVE, sT0, sT0, sT0, sT0, WS_DIAG))
        P('v_mov_b32 v1, 0')
        for k in range(16):
            P('v_mov_b32 v2, s%d\nbuffer_store_dword v2, v1, %s, s%d offen offset:%d' % (sST + k, srd(SWS), sT0, 4 * k))


def spin_guard(out):
    P(f's_add_u32 s{sSPIN}, s{sSPIN}, 1\ns_cmp_gt_u32 s{sSPIN}, {SPIN_MAX}\ns_cbranch_scc1 {out}')


def lds_poll(name, tmp, vsync, off):
    P.label(name)
    spin_guard(name + '_ok')
    P('ds_read_b128 %s, v%d offset:%d\ns_waitcnt lgkmcnt(0)' % (vr(tmp), vsync, off))
    P('v_and_b32 v%d, v%d, v%d\nv_and_b32 v%d, v%d, v%d\nv_and_b32 v%d, v%d, v%d'
      % (tmp, tmp, tmp + 1, tmp + 2, tmp + 2, tmp + 3, tmp, tmp, tmp + 2))
    P('v_cmp_eq_u32 vcc, 0, v%d\ns_cbranch_vccnz %s' % (tmp, name))
    P.label(name + '_ok')


def w2_tr_addr(d0, d1, t0, t1):
    P(f'''v_lshrrev_b32 v{t0}, 5, v0
v_lshlrev_b32 v{t0}, 2, v{t0}
v_bfe_u32 v{t1}, v0, 2, 2
v_add_u32 v{t0}, v{t0}, v{t1}
v_lshlrev_b32 v{t0}, 7, v{t0}
v_bfe_u32 v{t1}, v0, 4, 1
v_lshl_add_u32 v{t0}, v{t1}, 5, v{t0}
v_and_b32 v{t1}, 3, v0
v_lshl_add_u32 v{t0}, v{t1}, 3, v{t0}
v_bfe_u32 v{t1}, v0, 3, 1
v_lshl_add_u32 v{d0}, v{t1}, 6, v{t0}
v_xor_b32 v{d1}, 64, v{d0}''')


def q_tile_addr(d, sE, t0, t1, t2):
    e56 = ('s%d' % sE) if isinstance(sE, tuple) is False and sE >= 2 else str(56 * sE)
    P(f'''v_bfe_u32 v{t0}, v0, 4, 1
v_lshlrev_b32 v{t0}, 5, v{t0}
v_and_b32 v{t1}, 3, v0
v_lshl_add_u32 v{t0}, v{t1}, 3, v{t0}
v_add_u32 v{t0}, {e56}, v{t0}
v_bfe_u32 v{t1}, v0, 3, 1
v_lshlrev_b32 v{t1}, 6, v{t1}
v_xor_b32 v{t0}, v{t0}, v{t1}
v_lshrrev_b32 v{t1}, 5, v0
v_lshlrev_b32 v{t1}, 3, v{t1}
v_bfe_u32 v{t2}, v0, 2, 2
v_add_u32 v{t1}, v{t1}, v{t2}
v_lshl_add_u32 v{d}, v{t1}, 7, v{t0}''')


def h_tile_addr(d, t0, t1):
    P(f'''v_lshrrev_b32 v{t0}, 5, v0
v_lshlrev_b32 v{t0}, 3, v{t0}
v_bfe_u32 v{t1}, v0, 2, 2
v_add_u32 v{t0}, v{t0}, v{t1}
v_mul_u32_u24 v{t0}, 448, v{t0}
v_bfe_u32 v{t1}, v0, 4, 1
v_lshl_add_u32 v{t0}, v{t1}, 5, v{t0}
v_and_b32 v{t1}, 3, v0
v_lshl_add_u32 v{d}, v{t1}, 3, v{t0}''')


P(f'''s_cmp_ge_u32 s2, 256
s_cbranch_scc1 L_END
s_load_dwordx16 s[4:19], s[0:1], 0
s_load_dwordx2 s[20:21], s[0:1], 64
v_lshrrev_b32 v1, 6, v0
v_and_b32 v0, 63, v0
v_readfirstlane_b32 s{sWAVE}, v1
s_and_b32 s{sT0}, s2, 7
s_lshr_b32 s{sT1}, s2, 3
s_and_b32 s{sRB}, s{sT0}, 1
s_lshl_b32 s{sRB}, s{sRB}, 3
s_and_b32 s{sT2}, s{sT1}, 7
s_add_u32 s{sRB}, s{sRB}, s{sT2}
s_and_b32 s{sIDX}, s{sT0}, 6
s_bfe_u32 s{sT2}, s{sT1}, 0x10003
s_add_u32 s{sIDX}, s{sIDX}, s{sT2}
s_lshr_b32 s{sISQ}, s{sT1}, 4
s_lshl_b32 s{sCG}, s{sISQ}, 3
s_add_u32 s{sCG}, s{sCG}, s{sIDX}
s_lshl_b32 s{sRT}, s{sT0}, 2
s_and_b32 s{sT2}, s{sT1}, 3
s_add_u32 s{sRT}, s{sRT}, s{sT2}
s_lshr_b32 s{sCT}, s{sT1}, 2
s_mov_b32 s{sSPIN}, 0
s_and_b32 s{sI}, s{sWAVE}, 3''')
if DIAG:
    for k in range(16):
        P('s_mov_b32 s%d, 0' % (sST + k))
P(f'''s_cmp_ge_u32 s{sWAVE}, 4
s_cbranch_scc1 L_C''')

LW = 4
LACC = 156
LA = 220
LADR = 252
vX = 156
vW = 160
vH = 167
vCA = 168
vSEL = 172
vCACC = 176
vCF = 184
vLT = 220


def L_common_setup():
    P(f'''v_lshrrev_b32 v{vLT}, 3, v0
v_lshl_add_u32 v{vLT}, s{sI}, 3, v{vLT}
v_mul_u32_u24 v{vX}, 896, v{vLT}
v_lshrrev_b32 v{vLT}, 1, v{vLT}
v_xor_b32 v{vLT}, v{vLT}, v0
v_and_b32 v{vLT}, 7, v{vLT}
v_lshl_add_u32 v{vX}, v{vLT}, 4, v{vX}
v_add_u32 v{vX + 1}, 28672, v{vX}
v_add_u32 v{vX + 2}, 57344, v{vX}
v_add_u32 v{vX + 3}, 86016, v{vX}
s_mul_i32 s{sXO}, s{sRB}, 114688
s_lshl_b32 s{sMX}, s{sI}, 10''')


def dma(vm, voff, srdb, soff, m0base, m0imm, tag=None):
    P(f's_add_u32 m0, s{m0base}, {m0imm}')
    P(f'buffer_load_dwordx4 v{voff}, {srd(srdb)}, s{soff} offen lds')
    vm.issue(tag)


def L_phase1(isq):
    t = 'Q' if isq else 'H'
    vm = Q(P, 'vmcnt', 63)

    def issue_x(s):
        for n in range(4):
            dma(vm, vX + n, SX, sXO, sMX, XS[s % 3] + 4096 * n)
        P(f's_add_u32 s{sXO}, s{sXO}, 128')

    def issue_w(s):
        if isq:
            if s % 2 == 0:
                if s == 6:
                    P(f's_lshr_b32 s{sT0}, s{sI}, 1\ns_lshl_b32 s{sT1}, s{sT0}, 7\ns_sub_u32 s{sHO}, s{sHO}, s{sT1}')
                    P(f's_lshl_b32 s{sT1}, s{sT0}, 11\ns_sub_u32 s{sMH}, s{sMH}, s{sT1}')
                dma(vm, vH, SX, sHO, sMH, HALO + 2048 * s)
                P(f's_add_u32 s{sHO}, s{sHO}, 256')
            for n in range(6):
                dma(vm, vW + n, SW, sWO_, sMW, WSL[s % 3] + (n // 2) * 8192 + (n % 2) * 1024)
            P(f's_add_u32 s{sWO_}, s{sWO_}, {64 * 2688}')
        else:
            for n in range(7):
                dma(vm, vW + n, SW, sWO_, sMW, WSL[s % 3] + n * 1024)
            P(f's_add_u32 s{sWO_}, s{sWO_}, {64 * 3584}')
        vm.tags[('st', s)] = vm.n

    P('s_waitcnt lgkmcnt(0)')
    mk_srd(SX, 4, 2048 * 896)
    P(f's_load_dword s{sTAG}, s[20:21], 0')
    stamp(0)
    issue_x(0)
    if isq:
        mk_srd(SW, 6, 448 * 2688)
        P(f'''v_lshrrev_b32 v{vLT}, 3, v0
v_mul_u32_u24 v{vW}, 2688, v{vLT}
v_bfe_u32 v{vLT}, v0, 4, 1
v_lshlrev_b32 v{vLT}, 2, v{vLT}
v_xor_b32 v{vLT}, v{vLT}, v0
v_and_b32 v{vLT}, 7, v{vLT}
v_lshl_add_u32 v{vW}, v{vLT}, 4, v{vW}''')
        for n in range(1, 6):
            P(f'v_add_u32 v{vW + n}, {(n // 2) * 896 + (n % 2) * 8 * 2688}, v{vW}')
        P(f'''s_mul_i32 s{sWO_}, s{sI}, {16 * 2688}
s_mul_i32 s{sT0}, s{sIDX}, 112
s_add_u32 s{sWO_}, s{sWO_}, s{sT0}
s_lshl_b32 s{sMW}, s{sI}, 11
s_lshr_b32 s{sT0}, s{sI}, 1
s_mul_i32 s{sT1}, s{sT0}, {16 * 896}
v_subrev_u32 v{vH}, s{sT1}, v{vX}
s_mul_i32 s{sHO}, s{sRB}, 114688
s_max_u32 s{sHO}, s{sHO}, {16 * 896}
s_sub_u32 s{sHO}, s{sHO}, {16 * 896}
s_lshl_b32 s{sT1}, s{sT0}, 7
s_add_u32 s{sHO}, s{sHO}, s{sT1}
s_mov_b32 s{sMH}, s{sMX}''')
    else:
        mk_srd(SW, 12, 448 * 3584)
        P(f's_movk_i32 s{sT0}, 3136')
        for n in range(7):
            P(f'''v_add_u32 v{vLT}, {64 * n}, v0
v_mul_u32_u24 v{vLT + 1}, 2341, v{vLT}
v_lshrrev_b32 v{vLT + 1}, 16, v{vLT + 1}
v_lshlrev_b32 v{vLT}, 4, v{vLT}
v_mad_u32_u24 v{vW + n}, v{vLT + 1}, s{sT0}, v{vLT}''')
        P(f'''s_mul_i32 s{sWO_}, s{sI}, {16 * 3584}
s_mul_i32 s{sT0}, s{sIDX}, 448
s_add_u32 s{sWO_}, s{sWO_}, s{sT0}
s_mul_i32 s{sMW}, s{sI}, 7168''')
    issue_w(0)
    issue_x(1)
    issue_w(1)
    mk_srd(SWO, 8, 448 * 896)
    mk_srd(SW2, 14, 1792 * 896)
    mk_srd(SWS, 20, WS_BYTES)
    mk_srd(SOUT, 16, 2048 * 896)
    P(f'''v_lshrrev_b32 v{vLT}, 2, v0
v_xor_b32 v{vLT}, v{vLT}, v0
v_bfe_u32 v{vLT}, v{vLT}, 2, 1
v_add_u32 v{vLT}, -1, v{vLT}
v_and_b32 v{vSEL}, 0x3f803f80, v{vLT}
v_mov_b32 v{vSEL + 1}, v{vSEL}
v_mov_b32 v{vSEL + 2}, v{vSEL}
v_mov_b32 v{vSEL + 3}, v{vSEL}''')
    if isq:
        P(f's_and_b32 s{sT0}, s{sI}, 1\ns_mul_i32 s{sT0}, s{sT0}, 56')
        q_tile_addr(vCA, sT0, vLT, vLT + 1, vLT + 2)
        P(f'''s_lshr_b32 s{sT0}, s{sI}, 1
s_lshl_b32 s{sT0}, s{sT0}, 13
v_add_u32 v{vCA}, s{sT0}, v{vCA}''')
        second, nsec, rstr, kstr = 16384, 2, 128, 2048
    else:
        h_tile_addr(vCA, vLT, vLT + 1)
        P(f's_lshl_b32 s{sT0}, s{sI}, 6\nv_add_u32 v{vCA}, s{sT0}, v{vCA}')
        second, nsec, rstr, kstr = 256, 3, 448, 7168
    w2_tr_addr(LADR, LADR + 1, vLT, vLT + 1)
    P(f'''v_add_u32 v{LADR}, s{sMX}, v{LADR}
v_add_u32 v{LADR + 1}, s{sMX}, v{LADR + 1}
v_add_u32 v{LADR + 2}, 0x10000, v{LADR}
v_add_u32 v{LADR + 3}, 0x10000, v{LADR + 1}
v_lshrrev_b32 v{vLT}, 3, v0
v_mul_u32_u24 v2, 896, v{vLT}
v_bfe_u32 v{vLT}, v0, 4, 1
v_lshlrev_b32 v{vLT}, 2, v{vLT}
v_xor_b32 v{vLT}, v{vLT}, v0
v_and_b32 v{vLT}, 7, v{vLT}
v_lshl_add_u32 v2, v{vLT}, 4, v2
v_add_u32 v3, {8 * 896}, v2
v_lshlrev_b32 v1, 4, v0
s_mul_i32 s{sA0}, s{sI}, {LSTEPS * 16 * 896}
s_lshl_b32 s{sT0}, s{sCT}, 7
s_add_u32 s{sA0}, s{sA0}, s{sT0}
s_mul_i32 s{sA1}, s{sI}, {8 * 896}
s_add_u32 s{sA1}, s{sA1}, s{sT0}''')

    def csum(s):
        P(f'v_add_u32 v{vCA + 1}, {WSL[s % 3]}, v{vCA}')
        for u in range(2):
            if u == 1:
                P(f's_cmp_ge_u32 s{sI}, {nsec}\ns_cbranch_scc1 L_{t}cs{s}')
            for j in range(4):
                f = vCF + 16 * u + 4 * j
                o = u * second + j * kstr
                P(f'ds_read_b64_tr_b16 {vr(f, 2)}, v{vCA + 1} offset:{o}')
                P(f'ds_read_b64_tr_b16 {vr(f + 2, 2)}, v{vCA + 1} offset:{o + 4 * rstr}')
            P('s_waitcnt lgkmcnt(0)')
            for j in range(4):
                f = vCF + 16 * u + 4 * j
                c = '0' if (s == 0 and j == 0) else vr(vCACC + 4 * u)
                P(f'v_mfma_f32_16x16x32_bf16 {vr(vCACC + 4 * u)}, {vr(vSEL)}, {vr(f)}, {c}')
        P.label(f'L_{t}cs{s}')

    def csum_fin():
        P(f'''v_and_b32 v{vLT}, 31, v0
v_lshlrev_b32 v{vLT}, 3, v{vLT}
s_lshl_b32 s{sT0}, s{sI}, 8
s_add_u32 s{sT0}, s{sT0}, {CS}
v_add_u32 v{vLT}, s{sT0}, v{vLT}''')
        for u in range(2):
            a = vCACC + 4 * u
            b = vLT + 2 + 4 * u
            P(f'''v_cvt_pk_bf16_f32 v{b}, v{a}, v{a}
v_lshlrev_b32 v{b}, 16, v{b}
v_sub_f32 v{b + 2}, v{a}, v{b}
v_cvt_pk_bf16_f32 v{b}, v{a}, v{b + 2}
v_and_b32 v{b + 1}, 0xffff0000, v{b}
v_sub_f32 v{b + 1}, v{b + 2}, v{b + 1}
v_cvt_pk_bf16_f32 v{b + 1}, v{b + 1}, 0
ds_write_b64 v{vLT}, {vr(b, 2)} offset:{1024 * u}''')
        P('s_waitcnt lgkmcnt(0)')

    for s in range(5):
        vm.wait(('st', s))
        P('s_barrier')
        stamp(1 + s) if s in (0, 2, 4) else None
        csum(s)
        issue_x(s + 2)
        issue_w(s + 2)
    vm.wait(('st', 5))
    P('s_barrier')
    csum(5)
    P(f's_cmp_lt_u32 s{sCT}, 7\ns_cbranch_scc1 L_{t}act')
    P('s_waitcnt vmcnt(0)\ns_barrier')
    P(f's_mov_b32 s{sT3}, 1\ns_branch L_{t}cs6in')
    P.label(f'L_{t}act')
    w2 = W2Plan(vm)
    w2.free += [4, 5, 6, 7, 19, 20, 21, 22, 23, 24, 25]
    for k in range(5):
        w2.own(k)
    vm.wait(('st', 6))
    P('s_barrier')
    P(f's_mov_b32 s{sT3}, 0')
    P.label(f'L_{t}cs6in')
    stamp(6)
    csum(6)
    csum_fin()
    P(f's_cmp_eq_u32 s{sT3}, 0\ns_cbranch_scc1 L_P2L')
    P('s_barrier')
    P('s_branch L_EXIT')
    return w2


class W2Plan:
    def __init__(self, vm):
        self.vm = vm
        self.free = []
        self.loc = {}

    def own(self, k):
        g = [self.free.pop(0), self.free.pop(0)]
        self.loc[k] = g
        for a in range(2):
            dma(self.vm, 2 + a, SW2, sA0, sMX, 4096 * g[a], ('own', k))
        P(f's_add_u32 s{sA0}, s{sA0}, {16 * 896}')

    def stage(self, ks):
        self.vm.wait(('own', ks[-1]))
        for k in ks:
            for ch in range(2):
                for a in range(2):
                    o = 4096 * self.loc[k][a]
                    P(f'ds_read_b64_tr_b16 {vr(LW + 8 * k + 4 * ch + 2 * a, 2)}, v{LADR + ch + 2 * (o >> 16)} offset:{o & 0xffff}')
        P('s_waitcnt lgkmcnt(0)')
        for k in ks:
            self.free += self.loc[k]

    def cw(self, n):
        assert n in self.free
        self.free.remove(n)
        off = n * 28672 if n < 14 else (CH0 * 16 * 896 + (n - 14) * 28672)
        P(f's_add_u32 s{sT0}, s{sA1}, {off}')
        dma(self.vm, 2, SWO if n < 14 else SW2, sT0, sMX, 4096 * n, ('cw', n))


def flag_poll_issue(vm, vP, vPo, tag):
    P(f'buffer_load_dword v{vP}, v{vPo}, {srd(SWS)}, 0 offen sc1')
    vm.issue(tag)


def flag_poll_check(vm, name, vP, vPo, tag):
    vm.wait(tag)
    P(f'v_cmp_ne_u32 vcc, s{sTAG}, v{vP}\ns_cbranch_vccz {name}_ok')
    P.label(name)
    spin_guard(name + '_ok')
    P(f's_sleep 2\nbuffer_load_dword v{vP}, v{vPo}, {srd(SWS)}, 0 offen sc1\ns_waitcnt vmcnt(0)')
    P(f'v_cmp_ne_u32 vcc, s{sTAG}, v{vP}\ns_cbranch_vccnz {name}')
    P.label(name + '_ok')


def L_phase2(w2):
    vm = w2.vm
    P.label('L_P2L')
    P(f's_add_u32 s{sTAG}, s{sTAG}, 1')
    w2.free += [8, 9, 10, 11, 26, 27, 28, 29, 30, 31]
    for k in range(5, 10):
        w2.own(k)
    w2.stage([0, 1, 2])
    P('s_barrier')
    stamp(7)
    w2.free += [0, 1, 2, 3, 12, 13, 14, 15, 16, 17, 18]
    vP, vPo = LA, LA + 1
    P(f'''s_mul_i32 s{sT0}, s{sI}, {LSTEPS * 4682}
s_lshr_b32 s{sT1}, s{sT0}, 16
s_add_u32 s{sT0}, s{sT0}, {(LSTEPS - 1) * 4682}
s_lshr_b32 s{sT0}, s{sT0}, 16
v_lshrrev_b32 v{vPo}, 1, v0
v_add_u32 v{vPo}, s{sT1}, v{vPo}
v_min_u32 v{vPo}, s{sT0}, v{vPo}
v_lshlrev_b32 v{vPo}, 2, v{vPo}
v_and_b32 v{vP}, 1, v0
v_lshl_add_u32 v{vPo}, v{vP}, 7, v{vPo}
s_lshl_b32 s{sT0}, s{sRT}, 8
s_add_u32 s{sT0}, s{sT0}, {WS_FLAGS}
v_add_u32 v{vPo}, s{sT0}, v{vPo}''')
    for k in range(10, 13):
        w2.own(k)
    w2.stage([3, 4, 5, 6])
    for k in range(13, 16):
        w2.own(k)
    w2.stage([7, 8, 9])
    for k in range(16, 19):
        w2.own(k)
    w2.stage([10, 11, 12])
    done = 0

    def cws(n):
        nonlocal done
        for g in sorted(w2.free)[:n]:
            w2.cw(g)
            done += 1
    cws(6)
    w2.stage([13, 14, 15])
    cws(6)
    w2.stage([16, 17, 18])
    cws(10)
    flag_poll_issue(vm, vP, vPo, 'poll')
    cws(10)
    assert done == 32
    lastcw = vm.n
    stamp(8)
    flag_poll_check(vm, 'L_pollL', vP, vPo, 'poll')
    stamp(9)
    P(f'''s_mul_i32 s{sA0}, s{sRT}, {2 * NS * 1024}
s_mul_i32 s{sT0}, s{sI}, {LSTEPS * 1024}
s_add_u32 s{sA0}, s{sA0}, s{sT0}
s_add_u32 s{sA0}, s{sA0}, {WS_ACT}
s_add_u32 s{sA1}, s{sA0}, {NS * 1024}''')
    free = [LA + 4 * n for n in range(8)]
    aloc = {}
    nxt = 0

    def loads(maxsteps_ahead, cur):
        nonlocal nxt
        while nxt < LSTEPS and len(free) >= 2 and nxt - cur < maxsteps_ahead:
            aloc[nxt] = [free.pop(0), free.pop(0)]
            for th in range(2):
                P(f'buffer_load_dwordx4 {vr(aloc[nxt][th])}, v1, {srd(SWS)}, s{sA0 + th} offen offset:{(nxt % 4) * 1024} sc1')
                vm.issue(('a', nxt, th))
            if nxt % 4 == 3:
                P(f's_add_u32 s{sA0}, s{sA0}, 4096\ns_add_u32 s{sA1}, s{sA1}, 4096')
            nxt += 1
    loads(7, 0)
    vm.wait(lastcw)
    P('s_barrier')
    stamp(10)
    z = LACC
    P(f'''v_mov_b32 v{z}, 0
v_mov_b32 v{z + 1}, 0
v_mov_b32 v{z + 2}, 0
v_mov_b32 v{z + 3}, 0
s_lshl_b32 s{sT0}, s{sI}, 12
s_add_u32 s{sT0}, s{sT0}, {LSUM}
v_add_u32 v255, s{sT0}, v1''')
    for n in range(4):
        P(f'ds_write_b128 v255, {vr(z)} offset:{1024 * n}')
    P(f'''s_lshl_b32 s{sT0}, s{sI}, 2
s_add_u32 s{sT0}, s{sT0}, {SYNC}
v_mov_b32 v{LADR}, s{sT0}
v_mov_b32 v{LADR + 1}, 1
s_waitcnt lgkmcnt(0)
ds_write_b32 v{LADR}, v{LADR + 1} offset:16''')
    for k in range(LSTEPS):
        for th in range(2):
            vm.wait(('a', k, th))
            for ch in range(2):
                a = LACC + 32 * th + 16 * ch
                c = '0' if k == 0 else vr(a, 16)
                P(f'v_mfma_f32_32x32x16_bf16 {vr(a, 16)}, {vr(LW + 8 * k + 4 * ch)}, {vr(aloc[k][th])}, {c}')
        free.extend(aloc[k])
        free.extend([LW + 8 * k, LW + 8 * k + 4])
        loads(7, k + 1)
    stamp(11)
    fin_xload()
    P(f'v_mov_b32 v{LADR + 2}, {SYNC}')
    lds_poll('L_zc', 8, LADR + 2, 16)
    P(f'v_lshlrev_b32 v255, 2, v0\nv_add_u32 v255, {LSUM}, v255')
    for r in range(64):
        P(f'ds_add_f32 v255, v{LACC + r} offset:{256 * r}')
    P(f's_waitcnt lgkmcnt(0)\nds_write_b32 v{LADR}, v{LADR + 1} offset:32')
    stamp(12)
    P('s_branch L_FIN')


FX = 4


def fin_xload():
    P(f'''v_lshrrev_b32 v1, 3, v0
v_lshl_add_u32 v1, s{sWAVE}, 3, v1
v_mul_u32_u24 v3, 896, v1
v_and_b32 v2, 7, v0
v_lshl_add_u32 v3, v2, 4, v3
s_mul_i32 s{sT2}, s{sRT}, {64 * 896}
s_lshl_b32 s{sT0}, s{sCT}, 7
s_add_u32 s{sT2}, s{sT2}, s{sT0}
buffer_load_dwordx4 {vr(FX)}, v3, {srd(SX)}, s{sT2} offen''')


L_common_setup()
P(f's_cmp_eq_u32 s{sISQ}, 1\ns_cbranch_scc1 L_LQ')
w2h = L_phase1(False)
P.label('L_LQ')
w2q = L_phase1(True)
assert w2h.loc == w2q.loc and w2h.free == w2q.free
assert w2h.vm.n - w2h.vm.done == w2q.vm.n - w2q.vm.done
L_phase2(w2q)

CW = 112
CX = 144
CHX = 152
cXA = 160
cHA = 164
cWA = 168
cWB = 171
cST = 174
cSO = 178
cBE = 180
cR = 188
cM32 = 192
cM48 = 193
cL16 = 194
cCSA = 195
cBA, cBB, cBA0 = 200, 204, 208
cVW, cVWH, cVR, cKX, cSY, cOO = 212, 213, 214, 215, 216, 217
cT = 220

P.label('L_C')
P(f'''v_and_b32 v{cT}, 31, v0
v_lshrrev_b32 v{cT + 1}, 5, v0
v_mul_u32_u24 v{cT + 2}, 896, v{cT + 1}
v_lshl_add_u32 v{cT + 2}, v{cT}, 4, v{cT + 2}
v_cmp_gt_u32 vcc, 28, v{cT}
v_mov_b32 v{cT + 3}, 0x10000000
v_cndmask_b32 v{cT + 2}, v{cT + 3}, v{cT + 2}, vcc
v_cndmask_b32 v{cT + 3}, 0, 1.0, vcc
s_lshl_b32 s{sT0}, s{sRB}, 7
s_lshl_b32 s{sT1}, s{sCG}, 3
s_add_u32 s{sT0}, s{sT0}, s{sT1}
s_lshl_b32 s{sT1}, s{sI}, 1
s_add_u32 s{sT3}, s{sT0}, s{sT1}
s_mul_i32 s{sT0}, s{sT3}, 896
s_waitcnt lgkmcnt(0)''')
mk_srd(SX, 4, 2048 * 896)
P(f's_load_dword s{sTAG}, s[20:21], 0')
stamp(0)
P(f'''buffer_load_dwordx4 v[0+4:7], v{cT + 2}, {srd(SX)}, s{sT0} offen
buffer_load_dwordx4 v[8:11], v{cT + 2}, {srd(SX)}, s{sT0} offen offset:448'''.replace('0+4', '4'))
npf = 0
mk_srd(SWS, 20, WS_BYTES)
mk_srd(SOUT, 16, 2048 * 896)
if OPT['pf_code']:
    P('s_getpc_b64 s[22:23]')
    P.label('L_pc')
    P(f'''s_sub_u32 s22, s22, L_pc-{NAME}_kernel
s_subb_u32 s23, s23, 0
s_lshl_b32 s{sT1}, s{sI}, 13
v_lshlrev_b32 v{cT + 4}, 7, v0
v_add_u32 v{cT + 4}, s{sT1}, v{cT + 4}
v_min_u32 v{cT + 4}, L_END-{NAME}_kernel, v{cT + 4}
global_load_dword v{cT + 8}, v{cT + 4}, s[22:23]''')
    npf += 1
if OPT['pf_w']:
    mk_srd(SWO, 8, 448 * 896)
    mk_srd(SW2, 14, 1792 * 896)
    P(f'''s_lshl_b32 s{sT1}, s2, 2
s_add_u32 s{sT1}, s{sT1}, s{sI}
s_lshl_b32 s{sT1}, s{sT1}, 11
v_lshlrev_b32 v{cT + 5}, 7, v0
v_cmp_gt_u32 vcc, 16, v0
v_mov_b32 v{cT + 6}, 0x10000000
v_cndmask_b32 v{cT + 5}, v{cT + 6}, v{cT + 5}, vcc
buffer_load_dword v{cT + 7}, v{cT + 5}, {srd(SW2)}, s{sT1} offen
buffer_load_dword v{cT + 7}, v{cT + 5}, {srd(SWO)}, s{sT1} offen''')
    npf += 2
P(f'''v_mov_b32 v{cSY}, {SYNC}
v_mov_b32 v12, 0
v_lshlrev_b32 v13, 2, v0
v_add_u32 v13, {SYNC}, v13
ds_write_b32 v13, v12
v_lshlrev_b32 v{cL16}, 4, v0
v_lshrrev_b32 v{cM32}, 5, v0
v_add_u32 v{cM32}, -1, v{cM32}''')
P(f'''v_and_b32 v12, 31, v0
v_lshl_add_u32 v12, s{sI}, 5, v12
v_lshrrev_b32 v13, 1, v12
v_lshrrev_b32 v14, 5, v0
v_xor_b32 v13, v13, v14
v_and_b32 v13, 7, v13
v_lshlrev_b32 v13, 4, v13
v_lshl_add_u32 v{cXA}, v12, 7, v13
v_xor_b32 v{cXA + 1}, 32, v{cXA}
v_xor_b32 v{cXA + 2}, 64, v{cXA}
v_xor_b32 v{cXA + 3}, 96, v{cXA}
s_lshl_b32 s{sT1}, s{sRB}, 10
s_add_u32 s{sT1}, s{sT1}, {WS_STATS}
v_lshlrev_b32 v12, 3, v12
v_add_u32 v{cSO}, s{sT1}, v12
v_and_b32 v12, 31, v0
v_lshlrev_b32 v12, 3, v12
v_add_u32 v{cCSA}, {CS}, v12''')
P(f's_waitcnt vmcnt({npf})')
for n in range(8):
    P(f'v_lshlrev_b32 v{16 + 2 * n}, 16, v{4 + n}\nv_and_b32 v{17 + 2 * n}, 0xffff0000, v{4 + n}')
P('v_add_f32 v12, v16, v17\nv_add_f32 v13, v18, v19')
for n in range(2, 8):
    P(f'v_add_f32 v{12 + n % 2}, v{12 + n % 2}, v{16 + 2 * n}\nv_add_f32 v{12 + n % 2}, v{12 + n % 2}, v{17 + 2 * n}')
P('v_add_f32 v12, v12, v13')


def red32(a, t):
    for sh in (8, 4, 2, 1):
        P(f'v_add_f32_dpp v{a}, v{a}, v{a} row_ror:{sh} row_mask:0xf bank_mask:0xf')
    P(f'v_mov_b32 v{t}, v{a}\nv_permlane16_swap_b32 v{t}, v{a}\nv_add_f32 v{a}, v{a}, v{t}')


red32(12, 13)
P('v_mul_f32 v12, 0x3b124925, v12')
for n in range(16):
    P(f'v_sub_f32 v{16 + n}, v{16 + n}, v12')
P('v_mul_f32 v14, v16, v16\nv_mul_f32 v15, v17, v17')
for n in range(2, 16):
    P(f'v_fmac_f32 v{14 + n % 2}, v{16 + n}, v{16 + n}')
P(f'v_add_f32 v14, v14, v15\nv_mul_f32 v14, v14, v{cT + 3}')
red32(14, 13)
P(f'''v_mul_f32 v14, 0x3b124925, v14
v_cvt_pk_bf16_f32 v14, 0, v14
v_add_f32 v14, 0x3727c5ac, v14
v_cvt_pk_bf16_f32 v14, 0, v14
v_sqrt_f32 v14, v14
v_cvt_pk_bf16_f32 v14, v12, v14
s_waitcnt lgkmcnt(0)
s_add_u32 s{sTAG}, s{sTAG}, 1
v_mov_b32 v15, s{sTAG}
v_lshlrev_b32 v13, 3, v{cT + 1}
s_lshl_b32 s{sT3}, s{sT3}, 3
s_add_u32 s{sT3}, s{sT3}, {WS_STATS}
s_mov_b64 exec, 0x100000001
buffer_store_dwordx2 v[14:15], v13, {srd(SWS)}, s{sT3} offen sc1
s_mov_b64 exec, -1'''.replace('s_mov_b64 exec, 0x100000001', 's_mov_b32 exec_lo, 1\ns_mov_b32 exec_hi, 1'))
stamp(13)
P(f'''s_lshl_b32 s{sT0}, s{sRB}, 2
s_add_u32 s{sT0}, s{sT0}, s{sI}
s_mul_i32 s{sA0}, s{sT0}, {NS * 1024}
s_add_u32 s{sA0}, s{sA0}, {WS_ACT}
s_lshl_b32 s{sA1}, s{sT0}, 7
s_lshl_b32 s{sT1}, s{sCG}, 2
s_add_u32 s{sA1}, s{sA1}, s{sT1}
s_add_u32 s{sA1}, s{sA1}, {WS_FLAGS}
s_mov_b32 s{sXO}, s{sT0}
s_cmp_eq_u32 s{sISQ}, 1
s_cbranch_scc1 L_CQ''')


def C_phase1(isq):
    t = 'Q' if isq else 'H'
    lg = Q(P, 'lgkmcnt', 15)
    LA_, HOLD = OPT['la'], OPT['hold']
    if isq:
        q_tile_addr(cWB, 0, 12, 13, 14)
        q_tile_addr(cWB + 1, 1, 12, 13, 14)
        P(f'''s_bitcmp1_b32 s{sI}, 0
s_cselect_b64 vcc, -1, 0
s_lshr_b32 s{sT0}, s{sI}, 1
s_add_u32 s{sT0}, s{sT0}, 1
s_lshl_b32 s{sT0}, s{sT0}, 13
v_cndmask_b32 v{cWB + 2}, v{cWB}, v{cWB + 1}, vcc
v_add_u32 v{cWB + 2}, s{sT0}, v{cWB + 2}
s_lshl_b32 s{sT0}, s{sI}, 8
s_add_u32 s{sT0}, s{sT0}, 512
v_add_u32 v{cCSA + 1}, s{sT0}, v{cCSA}
v_and_b32 v12, 15, v0
v_lshrrev_b32 v13, 1, v12
v_lshrrev_b32 v14, 5, v0
v_xor_b32 v13, v13, v14
v_lshlrev_b32 v13, 4, v13
v_lshl_add_u32 v13, v12, 7, v13
v_add_u32 v{cHA}, {HALO}, v13
v_xor_b32 v{cHA + 1}, 32, v{cHA}
v_xor_b32 v{cHA + 2}, 64, v{cHA}
v_xor_b32 v{cHA + 3}, 96, v{cHA}
s_lshl_b32 s{sT1}, s{sRB}, 10
s_max_u32 s{sT1}, s{sT1}, 128
s_add_u32 s{sT1}, s{sT1}, {WS_STATS - 128}
v_lshlrev_b32 v13, 3, v12
v_add_u32 v{cSO + 1}, s{sT1}, v13
v_cmp_gt_u32 vcc, 48, v0
v_cndmask_b32 v{cM48}, 0, -1, vcc
v_lshrrev_b32 v13, 4, v0
v_lshlrev_b32 v13, 2, v13
v_sub_u32 v13, v12, v13
v_mov_b32 v15, 0xf149f2ca''')
        for r in range(4):
            for (d, add) in ((cBA, 16), (cBB, 0)):
                P(f'''v_add_u32 v14, {add - r}, v13
v_and_b32 v14, -15, v14
v_cmp_eq_u32 vcc, 0, v14
v_cndmask_b32 v{d + r}, v15, 0, vcc''')
        P(f's_cmp_eq_u32 s{sXO}, 0\ns_cselect_b64 vcc, -1, 0')
        for r in range(4):
            P(f'v_cndmask_b32 v{cBA0 + r}, v{cBA + r}, v15, vcc')
        P(f'''v_and_b32 v13, 31, v0
v_lshl_add_u32 v13, s{sI}, 5, v13
v_mul_u32_u24 v13, {VSTR}, v13
v_lshrrev_b32 v14, 5, v0
v_lshl_add_u32 v13, v14, 3, v13
v_add_u32 v{cVW}, {VREG + 16 * VSTR}, v13
v_mul_u32_u24 v13, {VSTR}, v12
v_lshl_add_u32 v13, v14, 3, v13
s_and_b32 s{sT0}, s{sI}, 1
s_mul_i32 s{sT0}, s{sT0}, {144 * VSTR}
s_add_u32 s{sT0}, s{sT0}, {VREG}
v_add_u32 v{cVWH}, s{sT0}, v13
v_lshrrev_b32 v13, 2, v0
v_lshl_add_u32 v13, s{sI}, 5, v13
v_mul_u32_u24 v13, {VSTR}, v13
v_and_b32 v14, 3, v0
v_lshl_add_u32 v13, v14, 3, v13
v_add_u32 v{cVR}, {VREG}, v13
s_lshl_b32 s{sT0}, s{sI}, 11
s_add_u32 s{sT0}, s{sT0}, {KX}
v_add_u32 v{cKX}, s{sT0}, v{cL16}
v_lshrrev_b32 v13, 4, v0
v_lshlrev_b32 v13, 9, v13
v_lshl_add_u32 v{cOO}, v12, 4, v13''')
        nb = 3
    else:
        h_tile_addr(cWB, 12, 13)
        nb = 1

    def set_slot(s):
        for b in range(nb):
            P(f'v_add_u32 v{cWA + b}, {WSL[s % 3]}, v{cWB + b}')

    def reads(n):
        slot = CW + 4 * (n % 8)
        if n >= 196:
            tl = n - 196
            if isq:
                u = [0, 2, 4, 1, 3, 5][tl] if tl < 6 else None
                if u is None:
                    P(f'ds_read_b64 {vr(slot, 2)}, v{cCSA + 1}')
                else:
                    P(f'ds_read_b64 {vr(slot, 2)}, v{cCSA} offset:{256 * u}')
            else:
                P(f'ds_read_b64 {vr(slot, 2)}, v{cCSA} offset:{256 * tl}')
            lg.issue(('w', n))
            return
        ks, tl = divmod(n, 7)
        s, j = divmod(ks, 4)
        if tl == 0:
            P(f'ds_read_b128 {vr(CX + 4 * (ks % 2))}, v{cXA + j} offset:{XS[s % 3]}')
            lg.issue()
        if isq:
            if tl == 6:
                P(f'ds_read_b128 {vr(CHX + 4 * (ks % 2))}, v{cHA + j} offset:{2048 * s}')
                lg.issue()
                a, o = cWA + 2, 0
            else:
                a, o = cWA + tl // 3, (tl % 3) * 8192
            o += j * 2048
            o2 = o + 512
        else:
            a, o = cWA, j * 7168 + tl * 64
            o2 = o + 4 * 448
        P(f'ds_read_b64_tr_b16 {vr(slot, 2)}, v{a} offset:{o}')
        lg.issue()
        P(f'ds_read_b64_tr_b16 {vr(slot + 2, 2)}, v{a} offset:{o2}')
        lg.issue(('w', n))

    def stats_issue():
        P(f'buffer_load_dwordx2 {vr(cST, 2)}, v{cSO}, {srd(SWS)}, 0 offen sc1')
        if isq:
            P(f'buffer_load_dwordx2 {vr(cST + 2, 2)}, v{cSO + 1}, {srd(SWS)}, 0 offen sc1')

    def stats_cmp():
        P(f's_waitcnt vmcnt(0)\nv_cmp_ne_u32 vcc, s{sTAG}, v{cST + 1}')
        if isq:
            P(f'v_cmp_ne_u32 s[{sT0}:{sT1}], s{sTAG}, v{cST + 3}\ns_or_b64 vcc, vcc, s[{sT0}:{sT1}]')

    def stats_check():
        stats_cmp()
        P(f's_cbranch_vccz L_{t}stok')
        P.label(f'L_{t}stre')
        spin_guard(f'L_{t}stok')
        P('s_sleep 2')
        stats_issue()
        stats_cmp()
        P(f's_cbranch_vccnz L_{t}stre')
        P.label(f'L_{t}stok')
        for u in range(2 if isq else 1):
            b, g = cBE + 4 * u, cST + 2 * u
            P(f'''v_and_b32 v{cR + 2 * u}, 0xffff0000, v{g}
v_and_b32 v{b + 1}, 0xffff, v{g}
v_rcp_f32 v{cR + 2 * u}, v{cR + 2 * u}
v_xor_b32 v{b + 1}, 0x8000, v{b + 1}
v_and_b32 v{b + 1}, v{b + 1}, v{cM32}
v_lshl_or_b32 v{b}, v{b + 1}, 16, v{b + 1}
v_mov_b32 v{b + 2}, 0
v_mov_b32 v{b + 3}, 0''')

    NT = 203
    set_slot(0)
    P('s_waitcnt lgkmcnt(0)\ns_barrier')
    stamp(1)
    nr = 0
    while nr < LA_:
        reads(nr)
        nr += 1
    for n in range(NT):
        ks, tl = divmod(n, 7)
        lg.wait(('w', n))
        if n < 196:
            xb = (CHX if (isq and tl == 6) else CX) + 4 * (ks % 2)
        else:
            xb = cBE + (4 if (isq and tl == 6) else 0)
        c = '0' if ks == 0 else vr(16 * tl, 16)
        P(f'v_mfma_f32_32x32x16_bf16 {vr(16 * tl, 16)}, {vr(CW + 4 * (n % 8))}, {vr(xb)}, {c}')
        if n == 28 * 5 + 2:
            stats_issue()
        if n == 28 * 6 + 8:
            stats_check()
        if nr < NT:
            if nr % 28 == 0 and nr > 0 and nr <= 196:
                if (nr - n - 1) <= LA_ - HOLD:
                    s = nr // 28
                    if s < 7:
                        set_slot(s)
                    lg.all()
                    P('s_barrier')
                    if s in (2, 4, 6, 7):
                        stamp({2: 3, 4: 5, 6: 6, 7: 7}[s])
                    while nr < NT and nr <= n + LA_:
                        reads(nr)
                        nr += 1
            else:
                while nr < NT and nr <= n + LA_ and not (nr % 28 == 0 and nr <= 196):
                    reads(nr)
                    nr += 1
    stamp(8)

    def scale_pack(tl, r):
        a = 16 * tl
        for i in range(8):
            P(f'v_pk_mul_f32 {vr(a + 2 * i, 2)}, {vr(a + 2 * i, 2)}, {vr(r, 2)} op_sel_hi:[1,0]')
        for i in range(8):
            P(f'v_cvt_pk_bf16_f32 v{a + i}, v{a + 2 * i}, v{a + 2 * i + 1}')

    def swaps(tl):
        for i in range(4):
            P(f'v_permlane16_swap_b32 v{16 * tl + i}, v{16 * tl + 4 + i}')

    if not isq:
        P(f's_mul_i32 s{sT0}, s{sIDX}, {14 * 1024}\ns_add_u32 s{sT0}, s{sT0}, s{sA0}')
        for tl in range(7):
            scale_pack(tl, cR)
            for i in range(8):
                P(f'v_pk_max_i16 v{16 * tl + i}, v{16 * tl + i}, 0')
            for j in range(2):
                P(f'buffer_store_dwordx4 {vr(16 * tl + 4 * j)}, v{cL16}, {srd(SWS)}, s{sT0} offen offset:{(2 * tl + j) % 4 * 1024} sc1')
            if tl % 2 == 1:
                P(f's_add_u32 s{sT0}, s{sT0}, 4096')
        P('s_branch L_CFLAG')
        return
    for e in range(2):
        scale_pack(3 * e + 1, cR)
        scale_pack(3 * e + 2, cR)
        swaps(3 * e + 1)
        for q in range(4):
            P(f'ds_write_b64 v{cVW}, {vr(16 * (3 * e + 2) + 2 * q, 2)} offset:{e * 144 * VSTR + 16 * q}')
    scale_pack(6, cR + 2)
    P(f's_cmp_eq_u32 s{sI}, 3\ns_cbranch_scc1 L_nokx')
    for e in range(2):
        P(f'ds_write_b128 v{cKX}, {vr(16 * (3 * e + 1) + 4)} offset:{2048 + 1024 * e}')
    P.label('L_nokx')
    P(f's_cmp_ge_u32 s{sI}, 2\ns_cbranch_scc1 L_halov')
    swaps(6)
    P(f'''s_mul_i32 s{sT0}, s{sI}, 1024
v_subrev_u32 v{cT}, s{sT0}, v{cKX}
ds_write_b128 v{cT}, {vr(96)}
s_branch L_halod''')
    P.label('L_halov')
    for q in range(4):
        P(f'ds_write_b64 v{cVWH}, {vr(96 + 2 * q, 2)} offset:{16 * q}')
    P.label('L_halod')
    P(f'''v_lshl_add_u32 v{cT}, s{sI}, 2, v{cSY}
v_mov_b32 v{cT + 1}, 1
s_waitcnt lgkmcnt(0)
ds_write_b32 v{cT}, v{cT + 1}''')
    for e in range(2):
        scale_pack(3 * e, cR)
        P(f'v_and_b32 v{48 * e + 6}, v{48 * e + 6}, v{cM32}\nv_and_b32 v{48 * e + 7}, v{48 * e + 7}, v{cM32}')
        swaps(3 * e)
    lds_poll('L_attp', cT, cSY, 0)
    KP = 112
    VO = 120
    S = 220
    for e in range(2):
        P(f'ds_read_b128 {vr(KP + 4 * e)}, v{cKX} offset:{1024 * e}')
    for e in range(2):
        for dt in range(2):
            for kt in range(3):
                P(f'ds_read_b64_tr_b16 {vr(VO + 12 * e + 6 * dt + 2 * kt, 2)}, v{cVR} offset:{e * 144 * VSTR + kt * 16 * VSTR + 32 * dt}')
    units = [(0, 1), (1, 1), (0, 0), (1, 0)]
    for u, (e, tq) in enumerate(units):
        qop = vr(48 * e + 4 * tq)
        kb = vr(48 * e + 16 + 4 * tq)
        P(f'v_mfma_f32_16x16x32_bf16 {vr(S + 8 * u + 4)}, {kb}, {qop}, {vr(cBB)}')
    for u, (e, tq) in enumerate(units):
        qop = vr(48 * e + 4 * tq)
        if u == 2:
            P('s_waitcnt lgkmcnt(12)')
        ka = vr(48 * e + 16) if tq else vr(KP + 4 * e)
        P(f'v_mfma_f32_16x16x32_bf16 {vr(S + 8 * u)}, {ka}, {qop}, {vr(cBA if tq else cBA0)}')
    M = 8
    P(f's_mov_b32 s{sT1}, 0x3e8b9a4d')
    U = range(4)
    for u in U:
        P(f'v_max3_f32 v{M + u}, v{S + 8 * u + 4}, v{S + 8 * u + 5}, v{S + 8 * u + 6}')
    for u in U:
        P(f'v_max3_f32 v{M + u}, v{M + u}, v{S + 8 * u + 7}, v{S + 8 * u}')
    for u in U:
        P(f'v_max3_f32 v{M + u}, v{M + u}, v{S + 8 * u + 1}, v{S + 8 * u + 2}')
    for u in U:
        P(f'v_max_f32 v{M + u}, v{M + u}, v{S + 8 * u + 3}')

    def xl(op):
        for sw in ('16', '32'):
            for u in U:
                P(f'v_mov_b32 v{M + 4 + u}, v{M + u}')
            for u in U:
                P(f'v_permlane{sw}_swap_b32 v{M + 4 + u}, v{M + u}')
            for u in U:
                P(f'{op} v{M + u}, v{M + u}, v{M + 4 + u}')
    xl('v_max_f32')
    for u in U:
        P(f'v_mul_f32 v{M + u}, s{sT1}, v{M + u}')
    for u in U:
        for i in range(8):
            P(f'v_fma_f32 v{S + 8 * u + i}, v{S + 8 * u + i}, s{sT1}, -v{M + u}')
        for i in range(8):
            P(f'v_exp_f32 v{S + 8 * u + i}, v{S + 8 * u + i}')
    for u in U:
        P(f'v_add_f32 v{M + u}, v{S + 8 * u}, v{S + 8 * u + 1}')
    for i in range(2, 8):
        for u in U:
            P(f'v_add_f32 v{M + u}, v{M + u}, v{S + 8 * u + i}')
    xl('v_add_f32')
    RI = 24
    for u in U:
        P(f'v_rcp_f32 v{RI + 2 * u}, v{M + u}')
    for u in U:
        for i in range(4):
            P(f'v_pk_mul_f32 {vr(S + 8 * u + 2 * i, 2)}, {vr(S + 8 * u + 2 * i, 2)}, {vr(RI + 2 * u, 2)} op_sel_hi:[1,0]')
        for i in range(4):
            P(f'v_cvt_pk_bf16_f32 v{S + 8 * u + i}, v{S + 8 * u + 2 * i}, v{S + 8 * u + 2 * i + 1}')
    P('s_waitcnt lgkmcnt(0)')
    O = 32
    for u, (e, tq) in enumerate(units):
        for dt in range(2):
            P(f'v_mfma_f32_16x16x32_bf16 {vr(O + 8 * u + 4 * dt)}, {vr(VO + 12 * e + 6 * dt + 2 * tq)}, {vr(S + 8 * u)}, 0')
    P(f'''s_lshl_b32 s{sT0}, s{sIDX}, 12
s_add_u32 s{sT0}, s{sT0}, s{sA0}
s_add_u32 s{sT0}, s{sT0}, {112 * 1024}''')
    for u, (e, tq) in enumerate(units):
        for i in range(4):
            P(f'v_cvt_pk_bf16_f32 v{O + 8 * u + i}, v{O + 8 * u + 2 * i}, v{O + 8 * u + 2 * i + 1}')
        P(f'v_and_b32 v{O + 8 * u + 2}, v{O + 8 * u + 2}, v{cM48}\nv_and_b32 v{O + 8 * u + 3}, v{O + 8 * u + 3}, v{cM48}')
        P(f'buffer_store_dwordx4 {vr(O + 8 * u)}, v{cOO}, {srd(SWS)}, s{sT0} offen offset:{2048 * e + 256 * tq} sc1')


C_phase1(False)
P.label('L_CQ')
C_phase1(True)
P.label('L_CFLAG')
stamp(9)
P(f'''v_lshrrev_b32 v0, 4, v{cL16}
v_mov_b32 v1, 0
v_mov_b32 v2, s{sTAG}
s_waitcnt vmcnt(0)
s_mov_b64 exec, 1
buffer_store_dword v2, v1, {srd(SWS)}, s{sA1} offen sc1
s_mov_b64 exec, -1''')
stamp(10)
P(f'''s_cmp_lt_u32 s{sCT}, 7
s_cbranch_scc1 L_P2C
s_cmp_lg_u32 s2, 255
s_cbranch_scc1 L_EXIT
s_cmp_lg_u32 s{sWAVE}, 4
s_cbranch_scc1 L_EXIT
v_lshlrev_b32 v3, 7, v0
v_add_u32 v3, {WS_FLAGS}, v3''')
P.label('L_bump')
spin_guard('L_EXIT')
P('s_sleep 8')
for n in range(4):
    P(f'buffer_load_dwordx4 {vr(4 + 4 * n)}, v3, {srd(SWS)}, 0 offen offset:{16 * n} sc1')
P('s_waitcnt vmcnt(0)')
for n in range(16):
    P(f'v_xor_b32 v{4 + n}, v{4 + n}, v2')
for n in range(1, 16):
    P(f'v_or_b32 v4, v4, v{4 + n}')
P(f'''v_cmp_ne_u32 vcc, 0, v4
s_cbranch_vccnz L_bump
s_mov_b64 exec, 1
buffer_store_dword v2, v1, {srd(SWS)}, 0 offen sc1
s_mov_b64 exec, -1
s_branch L_EXIT''')

CACC = 16
CWR = 48
CAR = 80
NAR = 20
cA2 = 160
cP, cPo = 164, 165
P.label('L_P2C')
w2_tr_addr(cA2, cA2 + 1, 12, 13)
P(f'''s_and_b32 s{sT3}, s{sI}, 1
s_lshl_b32 s{sT0}, s{sRT}, 1
s_add_u32 s{sT0}, s{sT0}, s{sT3}
s_mul_i32 s{sA0}, s{sT0}, {NS * 1024}
s_lshl_b32 s{sT0}, s{sT0}, 7
s_add_u32 s{sT0}, s{sT0}, {WS_FLAGS}
s_cmp_ge_u32 s{sI}, 2
s_cselect_b32 s{sT1}, {CH0 // 14}, 8
s_cselect_b32 s{sT2}, 7, 15
v_add_u32 v{cPo}, s{sT1}, v0
v_min_u32 v{cPo}, s{sT2}, v{cPo}
v_lshlrev_b32 v{cPo}, 2, v{cPo}
v_add_u32 v{cPo}, s{sT0}, v{cPo}
s_cselect_b32 s{sT1}, 0, {CHN * 1024}
s_add_u32 s{sA0}, s{sA0}, s{sT1}
s_add_u32 s{sA0}, s{sA0}, {WS_ACT + CH0 * 1024}''')
fin_xload()
P('s_barrier')
stamp(11)
vmC = Q(P, 'vmcnt', 63)
flag_poll_issue(vmC, cP, cPo, 'poll')
flag_poll_check(vmC, 'L_pollC', cP, cPo, 'poll')
stamp(12)
P(f's_cmp_ge_u32 s{sI}, 2\ns_cbranch_scc1 L_P2H')


def C_phase2(kind):
    vm = Q(P, 'vmcnt', 63)
    lg = Q(P, 'lgkmcnt', 15)
    steps = 32 if kind == 0 else CHN
    base = [0]

    def aload(k):
        P(f'buffer_load_dwordx4 {vr(CAR + 4 * (k % NAR))}, v{cL16}, {srd(SWS)}, s{sA0} offen offset:{(k % 4) * 1024} sc1')
        vm.issue(('a', k))
        if k % 4 == 3:
            P(f's_add_u32 s{sA0}, s{sA0}, 4096')

    def wread(k):
        if kind == 0:
            o = (28 * (k // 2) + 8 * (k % 2)) * 128
            o2 = o + 16 * 128
        else:
            o = (448 + 16 * k) * 128
            o2 = o + 8 * 128
        if o2 - base[0] > 65535:
            d = o - base[0]
            P(f'v_add_u32 v{cA2}, {d}, v{cA2}\nv_add_u32 v{cA2 + 1}, {d}, v{cA2 + 1}')
            base[0] = o
        for ch in range(2):
            f = CWR + 8 * (k % 4) + 4 * ch
            P(f'ds_read_b64_tr_b16 {vr(f, 2)}, v{cA2 + ch} offset:{o - base[0]}')
            lg.issue()
            P(f'ds_read_b64_tr_b16 {vr(f + 2, 2)}, v{cA2 + ch} offset:{o2 - base[0]}')
            lg.issue(('w', k, ch))
    for k in range(NAR - 1):
        aload(k)
    for k in range(3):
        wread(k)
    for k in range(steps):
        vm.wait(('a', k))
        for ch in range(2):
            lg.wait(('w', k, ch))
            a = CACC + 16 * ch
            c = '0' if k == 0 else vr(a, 16)
            P(f'v_mfma_f32_32x32x16_bf16 {vr(a, 16)}, {vr(CWR + 8 * (k % 4) + 4 * ch)}, {vr(CAR + 4 * (k % NAR))}, {c}')
        if k + 3 < steps:
            wread(k + 3)
        if k + NAR - 1 < steps:
            aload(k + NAR - 1)
    stamp(13 if False else 14)
    P(f'''v_and_b32 v12, 31, v0
v_mul_u32_u24 v12, {FSTR}, v12
v_lshrrev_b32 v13, 5, v0
v_lshl_add_u32 v12, v13, 3, v12''')
    if kind == 0:
        P(f's_mul_i32 s{sT0}, s{sT3}, {32 * FSTR}\ns_add_u32 s{sT0}, s{sT0}, {FINS}')
    else:
        P(f's_lshl_b32 s{sT0}, s{sT3}, 13\ns_add_u32 s{sT0}, s{sT0}, {LSUM}')
        lds_poll('L_ldp', 8, cSY, 32)
        P(f'v_lshlrev_b32 v13, 2, v0\nv_add_u32 v13, s{sT0}, v13')
        for r in range(16):
            P(f'ds_read2st64_b32 {vr(CWR + 2 * r, 2)}, v13 offset0:{2 * r} offset1:{2 * r + 1}')
        P('s_waitcnt lgkmcnt(0)')
        for r in range(16):
            P(f'v_pk_add_f32 {vr(CACC + 2 * r, 2)}, {vr(CACC + 2 * r, 2)}, {vr(CWR + 2 * r, 2)}')
    P(f'v_add_u32 v12, s{sT0}, v12')
    for r in range(16):
        P(f'v_cvt_pk_bf16_f32 v{CACC + r}, v{CACC + 2 * r}, v{CACC + 2 * r + 1}')
    for q in range(8):
        P(f'ds_write_b64 v12, {vr(CACC + 2 * q, 2)} offset:{16 * q}')


C_phase2(0)
P('s_branch L_FIN')
P.label('L_P2H')
C_phase2(1)

P.label('L_FIN')
P(f'''v_mul_u32_u24 v9, {FSTR}, v1
v_lshl_add_u32 v9, v2, 4, v9
s_lshr_b32 s{sT0}, s{sWAVE}, 2
s_mul_i32 s{sT0}, s{sT0}, {8192 - 32 * FSTR}
s_add_u32 s{sT0}, s{sT0}, {LSUM}
v_add_u32 v10, s{sT0}, v9
v_add_u32 v9, {FINS}, v9
s_mov_b32 s{sT1}, 0xbfb8aa3b
s_waitcnt lgkmcnt(0)
s_barrier
ds_read_b128 v[12:15], v10
ds_read_b128 v[16:19], v9
s_waitcnt vmcnt(0)''')
F, S_, X_, E_ = 20, 28, 36, 44
for n in range(4):
    P(f'v_lshlrev_b32 v{X_ + 2 * n}, 16, v{FX + n}\nv_and_b32 v{X_ + 2 * n + 1}, 0xffff0000, v{FX + n}')
P('s_waitcnt lgkmcnt(1)')
for n in range(4):
    P(f'v_lshlrev_b32 v{F + 2 * n}, 16, v{12 + n}\nv_and_b32 v{F + 2 * n + 1}, 0xffff0000, v{12 + n}')
for n in range(8):
    P(f'v_mul_f32 v{E_ + n}, s{sT1}, v{F + n}')
for n in range(8):
    P(f'v_exp_f32 v{E_ + n}, v{E_ + n}')
P('s_waitcnt lgkmcnt(0)')
for n in range(4):
    P(f'v_lshlrev_b32 v{S_ + 2 * n}, 16, v{16 + n}\nv_and_b32 v{S_ + 2 * n + 1}, 0xffff0000, v{16 + n}')
for n in range(8):
    P(f'v_add_f32 v{E_ + n}, 1.0, v{E_ + n}')
for n in range(8):
    P(f'v_rcp_f32 v{E_ + n}, v{E_ + n}')
for n in range(8):
    P(f'v_mul_f32 v{F + n}, v{F + n}, v{E_ + n}')
for n in range(8):
    P(f'v_fmac_f32 v{X_ + n}, v{S_ + n}, v{F + n}')
for n in range(4):
    P(f'v_cvt_pk_bf16_f32 v{12 + n}, v{X_ + 2 * n}, v{X_ + 2 * n + 1}')
P(f'buffer_store_dwordx4 v[12:15], v3, {srd(SOUT)}, s{sT2} offen')
P.label('L_EXIT')
if DIAG:
    P('s_waitcnt vmcnt(0)')
    stamp(15)
    diag_dump()
P.label('L_END')
P('s_endpgm')

body = P.finalize()
ref = open('cdna_kernels/%s.s.ref' % NAME).read()
hdr = [l for l in ref.split('\n') if l.startswith(';') and '@launch' not in l]
out = '\n'.join(hdr) + '\n; @launch grid=(256,1,1) block=(512,1,1) lds=%d\n' % LDS_BYTES
out += f'''.amdgcn_target "amdgcn-amd-amdhsa--gfx950"
.text
.globl {NAME}_kernel
.p2align 8
.type {NAME}_kernel,@function
{NAME}_kernel:
{body}.section .rodata,"a"
.p2align 6
.amdhsa_kernel {NAME}_kernel
  .amdhsa_next_free_vgpr 256
  .amdhsa_next_free_sgpr 102
  .amdhsa_accum_offset 256
  .amdhsa_group_segment_fixed_size 0
  .amdhsa_kernarg_size 72
  .amdhsa_user_sgpr_count 2
  .amdhsa_user_sgpr_kernarg_segment_ptr 1
  .amdhsa_system_sgpr_workgroup_id_x 1
.end_amdhsa_kernel
'''
open(sys.argv[1], 'w').write(out)
print('instructions', len(P.ins), 'nops inserted', P.nops_inserted)
```

```python
import sys
from asmlib import Prog, Q

NAME = 'recurrent_scan__sliding_local_dilated__dense_activation_relu__prompt'
OPT = dict(diag=0, pf_code=1, pf_w=1, la=6, hold=3, prio=1, osc1=1, lahead=7)
for a in sys.argv[2:]:
    k, v = a.split('=')
    OPT[k] = int(v)
DIAG = OPT['diag']

WS_FLAGS = 4096
WS_STATS = 16384
WS_DIAG = 32768 * 0 + 0xA00000
WS_ACT = 65536
WS_BYTES = 0xB00000
NS = 144
LSTEPS = 20
CH0 = 4 * LSTEPS
CHN = 112 - CH0

XS = [0, 16384, 32768]
WSL = [49152, 77824, 106496]
HALO = 135168
NGRP = 14 + CHN // 2
SC = NGRP * 4096
VSTR = 72
VREG = SC
KX = SC + 2 * 144 * VSTR
CS = 161536
SYNC = 163584
XB = SC
LDS_BYTES = 163840
assert KX + 8192 <= CS

SX, SW, SWO, SW2, SWS, SOUT = 24, 28, 32, 36, 40, 44
sWAVE, sRB, sIDX, sISQ, sCG, sRT, sCT, sACT2, sTAG, sI = range(48, 58)
sT0, sT1, sT2, sT3 = 58, 59, 60, 61
sXO, sWO_, sMX, sMW, sHO, sMH = 62, 63, 64, 65, 66, 67
sA0, sA1 = 68, 69
sSPIN = 3
SPIN_MAX = 0x40000
sST = 70


def srd(b):
    return 's[%d:%d]' % (b, b + 3)


def vr(a, n=4):
    return 'v[%d:%d]' % (a, a + n - 1)


P = Prog()
stamp_n = {}


def stamp(k):
    if DIAG:
        P('s_memrealtime s[%d:%d]' % (sST + 2 * k, sST + 2 * k + 1))


def cstamp(k):
    if DIAG:
        P('s_memtime s[%d:%d]' % (sST + 2 * k, sST + 2 * k + 1))


def mk_srd(b, ptr, size):
    P('s_mov_b32 s%d, s%d\ns_mov_b32 s%d, s%d\ns_mov_b32 s%d, 0x%x\ns_mov_b32 s%d, 0x20000'
      % (b, ptr, b + 1, ptr + 1, b + 2, size, b + 3))


def diag_dump():
    if DIAG:
        P('s_lshl_b32 s%d, s2, 3\ns_add_u32 s%d, s%d, s%d\ns_lshl_b32 s%d, s%d, 6\ns_add_u32 s%d, s%d, 0x%x'
          % (sT0, sT0, sT0, sWAVE, sT0, sT0, sT0, sT0, WS_DIAG))
        P('v_mov_b32 v1, 0\ns_waitcnt lgkmcnt(0)')
        for k in range(16):
            P('v_mov_b32 v2, s%d\nbuffer_store_dword v2, v1, %s, s%d offen offset:%d' % (sST + 2 * k, srd(SWS), sT0, 4 * k))


def spin_guard(out):
    P(f's_add_u32 s{sSPIN}, s{sSPIN}, 1\ns_cmp_gt_u32 s{sSPIN}, {SPIN_MAX}\ns_cbranch_scc1 {out}')


def lds_poll(name, tmp, vsync, off):
    P.label(name)
    spin_guard(name + '_ok')
    P('ds_read_b128 %s, v%d offset:%d\ns_waitcnt lgkmcnt(0)' % (vr(tmp), vsync, off))
    P('v_and_b32 v%d, v%d, v%d\nv_and_b32 v%d, v%d, v%d\nv_and_b32 v%d, v%d, v%d'
      % (tmp, tmp, tmp + 1, tmp + 2, tmp + 2, tmp + 3, tmp, tmp, tmp + 2))
    P('v_cmp_eq_u32 vcc, 0, v%d\ns_cbranch_vccnz %s' % (tmp, name))
    P.label(name + '_ok')


def w2_tr_addr(d0, d1, t0, t1):
    P(f'''v_lshrrev_b32 v{t0}, 5, v0
v_lshlrev_b32 v{t0}, 2, v{t0}
v_bfe_u32 v{t1}, v0, 2, 2
v_add_u32 v{t0}, v{t0}, v{t1}
v_lshlrev_b32 v{t0}, 7, v{t0}
v_bfe_u32 v{t1}, v0, 4, 1
v_lshl_add_u32 v{t0}, v{t1}, 5, v{t0}
v_and_b32 v{t1}, 3, v0
v_lshl_add_u32 v{t0}, v{t1}, 3, v{t0}
v_bfe_u32 v{t1}, v0, 3, 1
v_lshl_add_u32 v{d0}, v{t1}, 6, v{t0}
v_xor_b32 v{d1}, 64, v{d0}''')


def q_tile_addr(d, sE, t0, t1, t2):
    e56 = ('s%d' % sE) if isinstance(sE, tuple) is False and sE >= 2 else str(56 * sE)
    P(f'''v_bfe_u32 v{t0}, v0, 4, 1
v_lshlrev_b32 v{t0}, 5, v{t0}
v_and_b32 v{t1}, 3, v0
v_lshl_add_u32 v{t0}, v{t1}, 3, v{t0}
v_add_u32 v{t0}, {e56}, v{t0}
v_bfe_u32 v{t1}, v0, 3, 1
v_lshlrev_b32 v{t1}, 6, v{t1}
v_xor_b32 v{t0}, v{t0}, v{t1}
v_lshrrev_b32 v{t1}, 5, v0
v_lshlrev_b32 v{t1}, 3, v{t1}
v_bfe_u32 v{t2}, v0, 2, 2
v_add_u32 v{t1}, v{t1}, v{t2}
v_lshl_add_u32 v{d}, v{t1}, 7, v{t0}''')


def h_tile_addr(d, t0, t1):
    P(f'''v_lshrrev_b32 v{t0}, 5, v0
v_lshlrev_b32 v{t0}, 3, v{t0}
v_bfe_u32 v{t1}, v0, 2, 2
v_add_u32 v{t0}, v{t0}, v{t1}
v_mul_u32_u24 v{t0}, 448, v{t0}
v_bfe_u32 v{t1}, v0, 4, 1
v_lshl_add_u32 v{t0}, v{t1}, 5, v{t0}
v_and_b32 v{t1}, 3, v0
v_lshl_add_u32 v{d}, v{t1}, 3, v{t0}''')


P(f'''s_cmp_ge_u32 s2, 256
s_cbranch_scc1 L_END
s_load_dwordx16 s[4:19], s[0:1], 0
s_load_dwordx2 s[20:21], s[0:1], 64
v_lshrrev_b32 v1, 6, v0
v_and_b32 v0, 63, v0
v_readfirstlane_b32 s{sWAVE}, v1
s_and_b32 s{sT0}, s2, 7
s_lshr_b32 s{sT1}, s2, 3
s_and_b32 s{sRB}, s{sT0}, 1
s_lshl_b32 s{sRB}, s{sRB}, 3
s_and_b32 s{sT2}, s{sT1}, 7
s_add_u32 s{sRB}, s{sRB}, s{sT2}
s_and_b32 s{sIDX}, s{sT0}, 6
s_bfe_u32 s{sT2}, s{sT1}, 0x10003
s_add_u32 s{sIDX}, s{sIDX}, s{sT2}
s_lshr_b32 s{sISQ}, s{sT1}, 4
s_lshl_b32 s{sCG}, s{sISQ}, 3
s_add_u32 s{sCG}, s{sCG}, s{sIDX}
s_lshl_b32 s{sRT}, s{sT0}, 2
s_and_b32 s{sT2}, s{sT1}, 3
s_add_u32 s{sRT}, s{sRT}, s{sT2}
s_lshr_b32 s{sCT}, s{sT1}, 2
s_mov_b32 s{sSPIN}, 0
s_and_b32 s{sI}, s{sWAVE}, 3''')
if DIAG:
    for k in range(16):
        P('s_mov_b32 s%d, 0' % (sST + 2 * k))
P(f'''s_cmp_ge_u32 s{sWAVE}, 4
s_cbranch_scc1 L_C''')

LW = 4
LACC = 164
LA = 228
LADR = 252
vX = 164
vW = 168
vH = 175
vCA = 176
vSEL = 180
vCACC = 184
vCF = 192
vLT = 228


def L_common_setup():
    P(f'''v_lshrrev_b32 v{vLT}, 3, v0
v_lshl_add_u32 v{vLT}, s{sI}, 3, v{vLT}
v_mul_u32_u24 v{vX}, 896, v{vLT}
v_lshrrev_b32 v{vLT}, 1, v{vLT}
v_xor_b32 v{vLT}, v{vLT}, v0
v_and_b32 v{vLT}, 7, v{vLT}
v_lshl_add_u32 v{vX}, v{vLT}, 4, v{vX}
v_add_u32 v{vX + 1}, 28672, v{vX}
v_add_u32 v{vX + 2}, 57344, v{vX}
v_add_u32 v{vX + 3}, 86016, v{vX}
s_mul_i32 s{sXO}, s{sRB}, 114688
s_lshl_b32 s{sMX}, s{sI}, 10''')


def dma(vm, voff, srdb, soff, m0base, m0imm, tag=None):
    P(f's_add_u32 m0, s{m0base}, {m0imm}')
    P(f'buffer_load_dwordx4 v{voff}, {srd(srdb)}, s{soff} offen lds')
    vm.issue(tag)


def L_phase1(isq):
    t = 'Q' if isq else 'H'
    vm = Q(P, 'vmcnt', 63)

    def gen_x(s):
        for n in range(4):
            dma(vm, vX + n, SX, sXO, sMX, XS[s % 3] + 4096 * n)
            if n == 3:
                P(f's_add_u32 s{sXO}, s{sXO}, 128')
            yield

    def gen_w(s):
        if isq:
            if s % 2 == 0:
                if s == 6:
                    P(f's_lshr_b32 s{sT0}, s{sI}, 1\ns_lshl_b32 s{sT1}, s{sT0}, 7\ns_sub_u32 s{sHO}, s{sHO}, s{sT1}')
                    P(f's_lshl_b32 s{sT1}, s{sT0}, 11\ns_sub_u32 s{sMH}, s{sMH}, s{sT1}')
                dma(vm, vH, SX, sHO, sMH, HALO + 2048 * s)
                P(f's_add_u32 s{sHO}, s{sHO}, 256')
                yield
            for n in range(6):
                dma(vm, vW + n, SW, sWO_, sMW, WSL[s % 3] + (n // 2) * 8192 + (n % 2) * 1024, ('st', s))
                if n == 5:
                    P(f's_add_u32 s{sWO_}, s{sWO_}, {64 * 2688}')
                yield
        else:
            for n in range(7):
                dma(vm, vW + n, SW, sWO_, sMW, WSL[s % 3] + n * 1024, ('st', s))
                if n == 6:
                    P(f's_add_u32 s{sWO_}, s{sWO_}, {64 * 3584}')
                yield

    def issue_x(s):
        for _ in gen_x(s):
            pass

    def issue_w(s):
        for _ in gen_w(s):
            pass

    P('s_waitcnt lgkmcnt(0)')
    mk_srd(SX, 4, 2048 * 896)
    stamp(0)
    issue_x(0)
    if isq:
        mk_srd(SW, 6, 448 * 2688)
        P(f'''v_lshrrev_b32 v{vLT}, 3, v0
v_mul_u32_u24 v{vW}, 2688, v{vLT}
v_bfe_u32 v{vLT}, v0, 4, 1
v_lshlrev_b32 v{vLT}, 2, v{vLT}
v_xor_b32 v{vLT}, v{vLT}, v0
v_and_b32 v{vLT}, 7, v{vLT}
v_lshl_add_u32 v{vW}, v{vLT}, 4, v{vW}''')
        for n in range(1, 6):
            P(f'v_add_u32 v{vW + n}, {(n // 2) * 896 + (n % 2) * 8 * 2688}, v{vW}')
        P(f'''s_mul_i32 s{sWO_}, s{sI}, {16 * 2688}
s_mul_i32 s{sT0}, s{sIDX}, 112
s_add_u32 s{sWO_}, s{sWO_}, s{sT0}
s_lshl_b32 s{sMW}, s{sI}, 11
s_lshr_b32 s{sT0}, s{sI}, 1
s_mul_i32 s{sT1}, s{sT0}, {16 * 896}
v_subrev_u32 v{vH}, s{sT1}, v{vX}
s_mul_i32 s{sHO}, s{sRB}, 114688
s_max_u32 s{sHO}, s{sHO}, {16 * 896}
s_sub_u32 s{sHO}, s{sHO}, {16 * 896}
s_lshl_b32 s{sT1}, s{sT0}, 7
s_add_u32 s{sHO}, s{sHO}, s{sT1}
s_mov_b32 s{sMH}, s{sMX}''')
    else:
        mk_srd(SW, 12, 448 * 3584)
        P(f's_movk_i32 s{sT0}, 3136')
        for n in range(7):
            P(f'''v_add_u32 v{vLT}, {64 * n}, v0
v_mul_u32_u24 v{vLT + 1}, 2341, v{vLT}
v_lshrrev_b32 v{vLT + 1}, 16, v{vLT + 1}
v_lshlrev_b32 v{vLT}, 4, v{vLT}
v_mad_u32_u24 v{vW + n}, v{vLT + 1}, s{sT0}, v{vLT}''')
        P(f'''s_mul_i32 s{sWO_}, s{sI}, {16 * 3584}
s_mul_i32 s{sT0}, s{sIDX}, 448
s_add_u32 s{sWO_}, s{sWO_}, s{sT0}
s_mul_i32 s{sMW}, s{sI}, 7168''')
    issue_w(0)
    issue_x(1)
    issue_w(1)
    P(f's_load_dword s{sTAG}, s[20:21], 0')
    mk_srd(SWO, 8, 448 * 896)
    mk_srd(SW2, 14, 1792 * 896)
    mk_srd(SWS, 20, WS_BYTES)
    mk_srd(SOUT, 16, 2048 * 896)
    P(f'''v_lshrrev_b32 v{vLT}, 2, v0
v_xor_b32 v{vLT}, v{vLT}, v0
v_bfe_u32 v{vLT}, v{vLT}, 2, 1
v_add_u32 v{vLT}, -1, v{vLT}
v_and_b32 v{vSEL}, 0x3f803f80, v{vLT}
v_mov_b32 v{vSEL + 1}, v{vSEL}
v_mov_b32 v{vSEL + 2}, v{vSEL}
v_mov_b32 v{vSEL + 3}, v{vSEL}''')
    if isq:
        P(f's_and_b32 s{sT0}, s{sI}, 1\ns_mul_i32 s{sT0}, s{sT0}, 56')
        q_tile_addr(vCA, sT0, vLT, vLT + 1, vLT + 2)
        P(f'''s_lshr_b32 s{sT0}, s{sI}, 1
s_lshl_b32 s{sT0}, s{sT0}, 13
v_add_u32 v{vCA}, s{sT0}, v{vCA}''')
        second, nsec, rstr, kstr = 16384, 2, 128, 2048
    else:
        h_tile_addr(vCA, vLT, vLT + 1)
        P(f's_lshl_b32 s{sT0}, s{sI}, 6\nv_add_u32 v{vCA}, s{sT0}, v{vCA}')
        second, nsec, rstr, kstr = 256, 3, 448, 7168
    w2_tr_addr(LADR, LADR + 1, vLT, vLT + 1)
    P(f'''s_and_b32 s{sT0}, s{sI}, 1
s_lshl_b32 s{sT0}, s{sT0}, 6
v_xor_b32 v{LADR}, s{sT0}, v{LADR}
v_xor_b32 v{LADR + 1}, s{sT0}, v{LADR + 1}
s_cmp_lt_u32 s{sI}, {nsec}
s_cselect_b64 vcc, -1, 0
v_add_u32 v{LADR}, s{sMX}, v{LADR}
v_add_u32 v{LADR + 1}, s{sMX}, v{LADR + 1}
v_add_u32 v{LADR + 2}, 0x10000, v{LADR}
v_add_u32 v{LADR + 3}, 0x10000, v{LADR + 1}
v_lshrrev_b32 v{vLT}, 3, v0
v_mul_u32_u24 v2, 896, v{vLT}
v_bfe_u32 v{vLT}, v0, 4, 1
v_lshlrev_b32 v{vLT}, 2, v{vLT}
v_xor_b32 v{vLT}, v{vLT}, v0
v_and_b32 v{vLT}, 7, v{vLT}
v_lshl_add_u32 v2, v{vLT}, 4, v2
v_add_u32 v3, {8 * 896}, v2
v_lshlrev_b32 v1, 4, v0
s_mul_i32 s{sA0}, s{sI}, {LSTEPS * 16 * 896}
s_lshl_b32 s{sT0}, s{sCT}, 7
s_add_u32 s{sA0}, s{sA0}, s{sT0}
s_mul_i32 s{sA1}, s{sI}, {8 * 896}
s_add_u32 s{sA1}, s{sA1}, s{sT0}''')

    def csum(s, g=iter(()), sfx=''):
        def adv(n):
            for _ in range(n):
                next(g, None)

        def rd(u):
            for j in range(4):
                f = vCF + 16 * u + 4 * j
                o = u * second + j * kstr
                P(f'ds_read_b64_tr_b16 {vr(f, 2)}, v{vCA + 1} offset:{o}')
                P(f'ds_read_b64_tr_b16 {vr(f + 2, 2)}, v{vCA + 1} offset:{o + 4 * rstr}')

        def mm(u, js):
            for j in (js if not OPT.get('nocs') else ()):
                f = vCF + 16 * u + 4 * j
                c = '0' if (s == 0 and j == 0) else vr(vCACC + 4 * u)
                P(f'v_mfma_f32_16x16x32_bf16 {vr(vCACC + 4 * u)}, {vr(vSEL)}, {vr(f)}, {c}')

        def opt(fn, k):
            P(f's_cbranch_vccz L_{t}cs{s}{sfx}_{k}')
            fn()
            P.label(f'L_{t}cs{s}{sfx}_{k}')
        adv(1)
        P(f'v_add_u32 v{vCA + 1}, {WSL[s % 3]}, v{vCA}')
        rd(0)
        adv(2)
        opt(lambda: rd(1), 0)
        adv(2)
        P('s_waitcnt lgkmcnt(0)')
        mm(0, (0, 1))
        adv(1)
        mm(0, (2, 3))
        adv(1)
        opt(lambda: mm(1, (0, 1)), 1)
        adv(1)
        opt(lambda: mm(1, (2, 3)), 2)
        adv(100)

    def csum_fin():
        P(f'''v_and_b32 v{vLT}, 31, v0
v_lshlrev_b32 v{vLT}, 3, v{vLT}
s_lshl_b32 s{sT0}, s{sI}, 8
s_add_u32 s{sT0}, s{sT0}, {CS}
v_add_u32 v{vLT}, s{sT0}, v{vLT}''')
        for u in range(2):
            a = vCACC + 4 * u
            b = vLT + 2 + 4 * u
            P(f'''v_cvt_pk_bf16_f32 v{b}, v{a}, v{a}
v_lshlrev_b32 v{b}, 16, v{b}
v_sub_f32 v{b + 2}, v{a}, v{b}
v_cvt_pk_bf16_f32 v{b}, v{a}, v{b + 2}
v_and_b32 v{b + 1}, 0xffff0000, v{b}
v_sub_f32 v{b + 1}, v{b + 2}, v{b + 1}
v_cvt_pk_bf16_f32 v{b + 1}, v{b + 1}, 0
ds_write_b64 v{vLT}, {vr(b, 2)} offset:{1024 * u}''')
        P('s_waitcnt lgkmcnt(0)')

    import itertools
    for s in range(5):
        stamp(13) if s == 4 else None
        vm.wait(('st', s))
        stamp(14) if s == 4 else None
        P('s_barrier')
        stamp({0: 1, 3: 3, 4: 5}[s]) if s in (0, 3, 4) else None
        csum(s, itertools.chain(gen_x(s + 2), gen_w(s + 2)))
    vm.wait(('st', 5))
    P('s_barrier')
    P(f's_cmp_lt_u32 s{sCT}, 7\ns_cbranch_scc1 L_{t}act')
    csum(5, sfx='i')
    P('s_waitcnt vmcnt(0)\ns_barrier')
    csum(6, sfx='i')
    csum_fin()
    P('s_barrier')
    P('s_branch L_EXIT')
    P.label(f'L_{t}act')
    w2 = W2Plan(vm)
    w2.free += [4, 5, 6, 7, 19, 20, 21, 22, 23, 24, 25]
    csum(5, w2.gen_own(range(5)))
    vm.wait(('st', 6))
    P('s_barrier')
    stamp(6)
    w2.free += [8, 9, 10, 11] + list(range(26, NGRP))
    csum(6, w2.gen_own(range(5, 9)))
    csum_fin()
    if not isq:
        P('s_branch L_P2L')
    return w2


class W2Plan:
    def __init__(self, vm):
        self.vm = vm
        self.free = []
        self.loc = {}

    def gen_own(self, ks):
        for k in ks:
            g = [self.free.pop(0), self.free.pop(0)]
            self.loc[k] = g
            for a in range(2):
                dma(self.vm, 2 + a, SW2, sA0, sMX, 4096 * g[a], ('own', k))
                if a == 1:
                    P(f's_add_u32 s{sA0}, s{sA0}, {16 * 896}')
                yield

    def own(self, k):
        for _ in self.gen_own([k]):
            pass

    def stage(self, ks):
        self.vm.wait(('own', ks[-1]))
        for k in ks:
            for ch in range(2):
                for a in range(2):
                    o = 4096 * self.loc[k][a]
                    P(f'ds_read_b64_tr_b16 {vr(LW + 8 * k + 4 * ch + 2 * a, 2)}, v{LADR + ch + 2 * (o >> 16)} offset:{o & 0xffff}')
        P('s_waitcnt lgkmcnt(0)')
        for k in ks:
            self.free += self.loc[k]

    def cw(self, n):
        assert n in self.free
        self.free.remove(n)
        off = n * 28672 if n < 14 else (CH0 * 16 * 896 + (n - 14) * 28672)
        P(f's_add_u32 s{sT0}, s{sA1}, {off}')
        dma(self.vm, 2, SWO if n < 14 else SW2, sT0, sMX, 4096 * n, ('cw', n))


def flag_poll_issue(vm, vP, vPo, tag):
    P(f'buffer_load_dword v{vP}, v{vPo}, {srd(SWS)}, 0 offen sc1')
    vm.issue(tag)


def flag_poll_check(vm, name, vP, vPo, tag):
    vm.wait(tag)
    P(f'v_cmp_ne_u32 vcc, s{sTAG}, v{vP}\ns_cbranch_vccz {name}_ok')
    P.label(name)
    spin_guard(name + '_ok')
    P(f's_sleep 2\nbuffer_load_dword v{vP}, v{vPo}, {srd(SWS)}, 0 offen sc1\ns_waitcnt vmcnt(0)')
    P(f'v_cmp_ne_u32 vcc, s{sTAG}, v{vP}\ns_cbranch_vccnz {name}')
    P.label(name + '_ok')


def L_phase2(w2):
    vm = w2.vm
    P.label('L_P2L')
    P(f's_add_u32 s{sTAG}, s{sTAG}, 1')
    P('s_barrier')
    stamp(7)
    w2.free += [0, 1, 2, 3, 12, 13, 14, 15, 16, 17, 18]
    vP, vPo = LA, LA + 1
    P(f'''s_mul_i32 s{sT0}, s{sI}, {LSTEPS * 4682}
s_lshr_b32 s{sT1}, s{sT0}, 16
s_add_u32 s{sT0}, s{sT0}, {(LSTEPS - 1) * 4682}
s_lshr_b32 s{sT0}, s{sT0}, 16
v_lshrrev_b32 v{vPo}, 1, v0
v_add_u32 v{vPo}, s{sT1}, v{vPo}
v_min_u32 v{vPo}, s{sT0}, v{vPo}
v_lshlrev_b32 v{vPo}, 2, v{vPo}
v_and_b32 v{vP}, 1, v0
v_lshl_add_u32 v{vPo}, v{vP}, 7, v{vPo}
s_lshl_b32 s{sT0}, s{sRT}, 8
s_add_u32 s{sT0}, s{sT0}, {WS_FLAGS}
v_add_u32 v{vPo}, s{sT0}, v{vPo}''')
    for k in range(9, 12):
        w2.own(k)
    w2.stage([0, 1, 2])
    w2.own(12)
    w2.stage([3, 4, 5])
    for k in range(13, 15):
        w2.own(k)
    w2.stage([6, 7, 8])
    for k in range(15, 18):
        w2.own(k)
    w2.stage([9, 10, 11])
    for k in range(18, 20):
        w2.own(k)
    done = 0

    def cws(n):
        nonlocal done
        for g in sorted(w2.free)[:n]:
            w2.cw(g)
            done += 1
    cws(2)
    w2.stage([12, 13, 14])
    cws(6)
    w2.stage([15, 16, 17])
    cws(4)
    w2.stage([18, 19])
    cws(8)
    flag_poll_issue(vm, vP, vPo, 'poll')
    cws(10)
    assert done == NGRP
    lastcw = vm.n
    stamp(8)
    flag_poll_check(vm, 'L_pollL', vP, vPo, 'poll')
    stamp(9)
    P(f'''s_mul_i32 s{sA0}, s{sRT}, {2 * NS * 1024}
s_mul_i32 s{sT0}, s{sI}, {LSTEPS * 1024}
s_add_u32 s{sA0}, s{sA0}, s{sT0}
s_add_u32 s{sA0}, s{sA0}, {WS_ACT}
s_cmp_ge_u32 s{sI}, 2
s_cselect_b32 s{sT0}, {NS * 1024}, 0
s_cselect_b32 s{sT1}, 0, {NS * 1024}
s_add_u32 s{sA1}, s{sA0}, s{sT1}
s_add_u32 s{sA0}, s{sA0}, s{sT0}''')
    free = [LA + 4 * n for n in range(6)]
    aloc = {}
    nxt = 0

    def loads(maxsteps_ahead, cur):
        nonlocal nxt
        while nxt < LSTEPS and len(free) >= 2 and nxt - cur < maxsteps_ahead:
            aloc[nxt] = [free.pop(0), free.pop(0)]
            for th in range(2):
                P(f'buffer_load_dwordx4 {vr(aloc[nxt][th])}, v1, {srd(SWS)}, s{sA0 + th} offen offset:{(nxt % 4) * 1024} sc1')
                vm.issue(('a', nxt, th))
            if nxt % 4 == 3:
                P(f's_add_u32 s{sA0}, s{sA0}, 4096\ns_add_u32 s{sA1}, s{sA1}, 4096')
            nxt += 1
    loads(OPT['lahead'], 0)
    vm.wait(lastcw)
    P('s_barrier')
    stamp(10)
    for k in range(LSTEPS):
        for th in range(2):
            vm.wait(('a', k, th))
            for ch in range(2):
                a = LACC + 32 * th + 16 * ch
                c = '0' if k == 0 else vr(a, 16)
                P(f'v_mfma_f32_32x32x16_bf16 {vr(a, 16)}, {vr(LW + 8 * k + 4 * ch)}, {vr(aloc[k][th])}, {c}')
        free.extend(aloc[k])
        free.extend([LW + 8 * k, LW + 8 * k + 4])
        loads(OPT['lahead'], k + 1)
    stamp(11)
    vA0, vA2, vA3, vF, vOne, vSy = 8, 9, 10, 11, 12, 13
    P(f'''s_lshl_b32 s{sT0}, s{sI}, 13
v_add_u32 v{vA0}, s{sT0}, v1
v_xor_b32 v{vA2}, 0x4000, v{vA0}
v_xor_b32 v{vA3}, 0x6000, v{vA0}
v_add_u32 v{vA0}, {XB}, v{vA0}
v_add_u32 v{vA2}, {XB}, v{vA2}
v_add_u32 v{vA3}, {XB}, v{vA3}
v_mov_b32 v{vSy}, {SYNC}
v_lshl_add_u32 v{vF}, s{sI}, 2, v{vSy}
v_mov_b32 v{vOne}, 1''')
    for n in range(8):
        P(f'ds_write_b128 v{vA0}, {vr(LACC + 32 + 4 * n)} offset:{1024 * n}')
    fin_xload()
    P(f's_waitcnt lgkmcnt(0)\nds_write_b32 v{vF}, v{vOne} offset:16')
    lds_poll('L_r1', 16, vSy, 16)
    T = 20
    for n in (4, 5, 6, 7, 0, 1, 2, 3):
        P(f'ds_read_b128 {vr(T + 4 * n)}, v{vA2} offset:{1024 * n}')
    P('s_waitcnt lgkmcnt(4)')
    for r in range(8, 16):
        P(f'v_pk_add_f32 {vr(LACC + 2 * r, 2)}, {vr(LACC + 2 * r, 2)}, {vr(T + 2 * r, 2)}')
    P('s_waitcnt lgkmcnt(0)')
    for n in range(4):
        P(f'ds_write_b128 v{vA2}, {vr(LACC + 16 + 4 * n)} offset:{1024 * n}')
    for r in range(8):
        P(f'v_pk_add_f32 {vr(LACC + 2 * r, 2)}, {vr(LACC + 2 * r, 2)}, {vr(T + 2 * r, 2)}')
    P(f's_waitcnt lgkmcnt(0)\nds_write_b32 v{vF}, v{vOne} offset:48')
    lds_poll('L_r2', 16, vSy, 48)
    for n in range(4):
        P(f'ds_read_b128 {vr(T + 4 * n)}, v{vA3} offset:{1024 * n}')
    P('s_waitcnt lgkmcnt(0)')
    for r in range(8):
        P(f'v_pk_add_f32 {vr(LACC + 2 * r, 2)}, {vr(LACC + 2 * r, 2)}, {vr(T + 2 * r, 2)}')
    for n in range(4):
        P(f'ds_write_b128 v{vA2}, {vr(LACC + 4 * n)} offset:{4096 + 1024 * n}')
    P(f's_waitcnt lgkmcnt(0)\nds_write_b32 v{vF}, v{vOne} offset:32')
    stamp(12)
    P('s_branch L_FIN')


FX = 4


def fin_xload():
    P(f'''v_lshrrev_b32 v1, 3, v0
v_lshl_add_u32 v1, s{sWAVE}, 3, v1
v_mul_u32_u24 v3, 896, v1
v_and_b32 v2, 7, v0
v_lshl_add_u32 v3, v2, 4, v3
s_mul_i32 s{sT2}, s{sRT}, {64 * 896}
s_lshl_b32 s{sT0}, s{sCT}, 7
s_add_u32 s{sT2}, s{sT2}, s{sT0}
buffer_load_dwordx4 {vr(FX)}, v3, {srd(SX)}, s{sT2} offen''')


L_common_setup()
P(f's_cmp_eq_u32 s{sISQ}, 1\ns_cbranch_scc1 L_LQ')
w2h = L_phase1(False)
P.label('L_LQ')
w2q = L_phase1(True)
assert w2h.loc == w2q.loc and w2h.free == w2q.free
assert w2h.vm.n - w2h.vm.done == w2q.vm.n - w2q.vm.done
L_phase2(w2q)

CW = 112
CX = 144
CHX = 152
cXA = 160
cHA = 164
cWA = 168
cWB = 171
cST = 174
cSO = 178
cBE = 180
cR = 188
cM32 = 192
cM48 = 193
cL16 = 194
cCSA = 195
cBA, cBB, cBA0 = 200, 204, 208
cVW, cVWH, cVR, cKX, cSY, cOO = 212, 213, 214, 215, 216, 217
cT = 220

P.label('L_C')
P(f'''v_and_b32 v{cT}, 31, v0
v_lshrrev_b32 v{cT + 1}, 5, v0
v_mul_u32_u24 v{cT + 2}, 896, v{cT + 1}
v_lshl_add_u32 v{cT + 2}, v{cT}, 4, v{cT + 2}
v_cmp_gt_u32 vcc, 28, v{cT}
v_mov_b32 v{cT + 3}, 0x10000000
v_cndmask_b32 v{cT + 2}, v{cT + 3}, v{cT + 2}, vcc
v_cndmask_b32 v{cT + 3}, 0, 1.0, vcc
s_lshl_b32 s{sT0}, s{sRB}, 7
s_lshl_b32 s{sT1}, s{sCG}, 3
s_add_u32 s{sT0}, s{sT0}, s{sT1}
s_lshl_b32 s{sT1}, s{sI}, 1
s_add_u32 s{sT3}, s{sT0}, s{sT1}
s_mul_i32 s{sT0}, s{sT3}, 896
s_waitcnt lgkmcnt(0)''')
mk_srd(SX, 4, 2048 * 896)
stamp(0)
P(f'''buffer_load_dwordx4 v[0+4:7], v{cT + 2}, {srd(SX)}, s{sT0} offen
buffer_load_dwordx4 v[8:11], v{cT + 2}, {srd(SX)}, s{sT0} offen offset:448'''.replace('0+4', '4'))
P(f's_load_dword s{sTAG}, s[20:21], 0')
npf = 0
mk_srd(SWS, 20, WS_BYTES)
mk_srd(SOUT, 16, 2048 * 896)
if OPT['pf_code']:
    P('s_getpc_b64 s[22:23]')
    P.label('L_pc')
    P(f'''s_sub_u32 s22, s22, L_pc-{NAME}_kernel
s_subb_u32 s23, s23, 0
s_bfe_u32 s{sT1}, s2, 0x10003
s_lshl_b32 s{sT1}, s{sT1}, 2
s_add_u32 s{sT1}, s{sT1}, s{sI}
s_lshl_b32 s{sT1}, s{sT1}, 13
v_lshlrev_b32 v{cT + 4}, 7, v0
v_add_u32 v{cT + 4}, s{sT1}, v{cT + 4}
v_min_u32 v{cT + 4}, L_END-{NAME}_kernel, v{cT + 4}
global_load_dword v{cT + 8}, v{cT + 4}, s[22:23]''')
    npf += 1
if OPT['pf_w']:
    mk_srd(SWO, 8, 448 * 896)
    mk_srd(SW2, 14, 1792 * 896)
    P(f'''s_lshl_b32 s{sT1}, s2, 2
s_add_u32 s{sT1}, s{sT1}, s{sI}
s_lshl_b32 s{sT1}, s{sT1}, 11
v_lshlrev_b32 v{cT + 5}, 7, v0
v_cmp_gt_u32 vcc, 16, v0
v_mov_b32 v{cT + 6}, 0x10000000
v_cndmask_b32 v{cT + 5}, v{cT + 6}, v{cT + 5}, vcc
buffer_load_dword v{cT + 7}, v{cT + 5}, {srd(SW2)}, s{sT1} offen
buffer_load_dword v{cT + 7}, v{cT + 5}, {srd(SWO)}, s{sT1} offen''')
    npf += 2
P(f'''v_mov_b32 v{cSY}, {SYNC}
v_mov_b32 v12, 0
v_lshlrev_b32 v13, 2, v0
v_add_u32 v13, {SYNC}, v13
ds_write_b32 v13, v12
v_lshlrev_b32 v{cL16}, 4, v0
v_lshrrev_b32 v{cM32}, 5, v0
v_add_u32 v{cM32}, -1, v{cM32}''')
P(f'''v_and_b32 v12, 31, v0
v_lshl_add_u32 v12, s{sI}, 5, v12
v_lshrrev_b32 v13, 1, v12
v_lshrrev_b32 v14, 5, v0
v_xor_b32 v13, v13, v14
v_and_b32 v13, 7, v13
v_lshlrev_b32 v13, 4, v13
v_lshl_add_u32 v{cXA}, v12, 7, v13
v_xor_b32 v{cXA + 1}, 32, v{cXA}
v_xor_b32 v{cXA + 2}, 64, v{cXA}
v_xor_b32 v{cXA + 3}, 96, v{cXA}
s_lshl_b32 s{sT1}, s{sRB}, 10
s_add_u32 s{sT1}, s{sT1}, {WS_STATS}
v_lshlrev_b32 v12, 3, v12
v_add_u32 v{cSO}, s{sT1}, v12
v_and_b32 v12, 31, v0
v_lshlrev_b32 v12, 3, v12
v_add_u32 v{cCSA}, {CS}, v12''')
P(f'''s_lshl_b32 s{sT0}, s{sRB}, 2
s_add_u32 s{sT0}, s{sT0}, s{sI}
s_mul_i32 s{sA0}, s{sT0}, {NS * 1024}
s_add_u32 s{sA0}, s{sA0}, {WS_ACT}
s_lshl_b32 s{sA1}, s{sT0}, 7
s_lshl_b32 s{sT1}, s{sCG}, 2
s_add_u32 s{sA1}, s{sA1}, s{sT1}
s_add_u32 s{sA1}, s{sA1}, {WS_FLAGS}
s_mov_b32 s{sXO}, s{sT0}
s_cmp_eq_u32 s{sISQ}, 1
s_cbranch_scc1 L_CQ''')


def red32(a, t):
    for sh in (8, 4, 2, 1):
        P(f'v_add_f32_dpp v{a}, v{a}, v{a} row_ror:{sh} row_mask:0xf bank_mask:0xf')
    P(f'v_mov_b32 v{t}, v{a}\nv_permlane16_swap_b32 v{t}, v{a}\nv_add_f32 v{a}, v{a}, v{t}')


def stats_compute():
    P(f's_waitcnt vmcnt({npf})')
    for n in range(8):
        P(f'v_lshlrev_b32 v{16 + 2 * n}, 16, v{4 + n}\nv_and_b32 v{17 + 2 * n}, 0xffff0000, v{4 + n}')
    P('v_add_f32 v12, v16, v17\nv_add_f32 v13, v18, v19')
    for n in range(2, 8):
        P(f'v_add_f32 v{12 + n % 2}, v{12 + n % 2}, v{16 + 2 * n}\nv_add_f32 v{12 + n % 2}, v{12 + n % 2}, v{17 + 2 * n}')
    P('v_add_f32 v12, v12, v13')


    red32(12, 13)
    P('v_mul_f32 v12, 0x3b124925, v12')
    for n in range(16):
        P(f'v_sub_f32 v{16 + n}, v{16 + n}, v12')
    P('v_mul_f32 v14, v16, v16\nv_mul_f32 v15, v17, v17')
    for n in range(2, 16):
        P(f'v_fmac_f32 v{14 + n % 2}, v{16 + n}, v{16 + n}')
    P(f'v_add_f32 v14, v14, v15\nv_mul_f32 v14, v14, v{cT + 3}')
    red32(14, 13)
    P(f'''v_mul_f32 v14, 0x3b124925, v14
v_cvt_pk_bf16_f32 v14, 0, v14
v_add_f32 v14, 0x3727c5ac, v14
v_cvt_pk_bf16_f32 v14, 0, v14
v_sqrt_f32 v14, v14
v_cvt_pk_bf16_f32 v14, v12, v14
s_waitcnt lgkmcnt(0)
s_add_u32 s{sTAG}, s{sTAG}, 1
v_mov_b32 v15, s{sTAG}
v_lshlrev_b32 v13, 3, v{cT + 1}
s_lshl_b32 s{sT3}, s{sT3}, 3
s_add_u32 s{sT3}, s{sT3}, {WS_STATS}
s_mov_b64 exec, 0x100000001
buffer_store_dwordx2 v[14:15], v13, {srd(SWS)}, s{sT3} offen sc1
s_mov_b64 exec, -1'''.replace('s_mov_b64 exec, 0x100000001', 's_mov_b32 exec_lo, 1\ns_mov_b32 exec_hi, 1'))
    stamp(13)


def C_phase1(isq):
    t = 'Q' if isq else 'H'
    lg = Q(P, 'lgkmcnt', 15)
    LA_, HOLD = OPT['la'], OPT['hold']
    if isq:
        q_tile_addr(cWB, 0, 12, 13, 14)
        q_tile_addr(cWB + 1, 1, 12, 13, 14)
        P(f'''s_bitcmp1_b32 s{sI}, 0
s_cselect_b64 vcc, -1, 0
s_lshr_b32 s{sT0}, s{sI}, 1
s_add_u32 s{sT0}, s{sT0}, 1
s_lshl_b32 s{sT0}, s{sT0}, 13
v_cndmask_b32 v{cWB + 2}, v{cWB}, v{cWB + 1}, vcc
v_add_u32 v{cWB + 2}, s{sT0}, v{cWB + 2}
s_lshl_b32 s{sT0}, s{sI}, 8
s_add_u32 s{sT0}, s{sT0}, 512
v_add_u32 v{cCSA + 1}, s{sT0}, v{cCSA}
v_and_b32 v12, 15, v0
v_lshrrev_b32 v13, 1, v12
v_lshrrev_b32 v14, 5, v0
v_xor_b32 v13, v13, v14
v_lshlrev_b32 v13, 4, v13
v_lshl_add_u32 v13, v12, 7, v13
v_add_u32 v{cHA}, {HALO}, v13
v_xor_b32 v{cHA + 1}, 32, v{cHA}
v_xor_b32 v{cHA + 2}, 64, v{cHA}
v_xor_b32 v{cHA + 3}, 96, v{cHA}
s_lshl_b32 s{sT1}, s{sRB}, 10
s_max_u32 s{sT1}, s{sT1}, 128
s_add_u32 s{sT1}, s{sT1}, {WS_STATS - 128}
v_lshlrev_b32 v13, 3, v12
v_add_u32 v{cSO + 1}, s{sT1}, v13
v_cmp_gt_u32 vcc, 48, v0
v_cndmask_b32 v{cM48}, 0, -1, vcc
v_lshrrev_b32 v13, 4, v0
v_lshlrev_b32 v13, 2, v13
v_sub_u32 v13, v12, v13
v_mov_b32 v15, 0xf149f2ca''')
        for r in range(4):
            for (d, add) in ((cBA, 16), (cBB, 0)):
                P(f'''v_add_u32 v14, {add - r}, v13
v_and_b32 v14, -15, v14
v_cmp_eq_u32 vcc, 0, v14
v_cndmask_b32 v{d + r}, v15, 0, vcc''')
        P(f's_cmp_eq_u32 s{sXO}, 0\ns_cselect_b64 vcc, -1, 0')
        for r in range(4):
            P(f'v_cndmask_b32 v{cBA0 + r}, v{cBA + r}, v15, vcc')
        P(f'''v_and_b32 v13, 31, v0
v_lshl_add_u32 v13, s{sI}, 5, v13
v_mul_u32_u24 v13, {VSTR}, v13
v_lshrrev_b32 v14, 5, v0
v_lshl_add_u32 v13, v14, 3, v13
v_add_u32 v{cVW}, {VREG + 16 * VSTR}, v13
v_mul_u32_u24 v13, {VSTR}, v12
v_lshl_add_u32 v13, v14, 3, v13
s_and_b32 s{sT0}, s{sI}, 1
s_mul_i32 s{sT0}, s{sT0}, {144 * VSTR}
s_add_u32 s{sT0}, s{sT0}, {VREG}
v_add_u32 v{cVWH}, s{sT0}, v13
v_lshrrev_b32 v13, 2, v0
v_lshl_add_u32 v13, s{sI}, 5, v13
v_mul_u32_u24 v13, {VSTR}, v13
v_and_b32 v14, 3, v0
v_lshl_add_u32 v13, v14, 3, v13
v_add_u32 v{cVR}, {VREG}, v13
s_lshl_b32 s{sT0}, s{sI}, 11
s_add_u32 s{sT0}, s{sT0}, {KX}
v_add_u32 v{cKX}, s{sT0}, v{cL16}
v_lshrrev_b32 v13, 4, v0
v_lshlrev_b32 v13, 9, v13
v_lshl_add_u32 v{cOO}, v12, 4, v13''')
        nb = 3
    else:
        h_tile_addr(cWB, 12, 13)
        nb = 1

    def set_slot(s):
        for b in range(nb):
            P(f'v_add_u32 v{cWA + b}, {WSL[s % 3]}, v{cWB + b}')

    def reads(n):
        slot = CW + 4 * (n % 8)
        if n >= 196:
            tl = n - 196
            if isq:
                u = [0, 2, 4, 1, 3, 5][tl] if tl < 6 else None
                if u is None:
                    P(f'ds_read_b64 {vr(slot, 2)}, v{cCSA + 1}')
                else:
                    P(f'ds_read_b64 {vr(slot, 2)}, v{cCSA} offset:{256 * u}')
            else:
                P(f'ds_read_b64 {vr(slot, 2)}, v{cCSA} offset:{256 * tl}')
            lg.issue(('w', n))
            return
        ks, tl = divmod(n, 7)
        s, j = divmod(ks, 4)
        if tl == 0:
            P(f'ds_read_b128 {vr(CX + 4 * (ks % 2))}, v{cXA + j} offset:{XS[s % 3]}')
            lg.issue()
        if isq:
            if tl == 6:
                P(f'ds_read_b128 {vr(CHX + 4 * (ks % 2))}, v{cHA + j} offset:{2048 * s}')
                lg.issue()
                a, o = cWA + 2, 0
            else:
                a, o = cWA + tl // 3, (tl % 3) * 8192
            o += j * 2048
            o2 = o + 512
        else:
            a, o = cWA, j * 7168 + tl * 64
            o2 = o + 4 * 448
        P(f'ds_read_b64_tr_b16 {vr(slot, 2)}, v{a} offset:{o}')
        lg.issue()
        P(f'ds_read_b64_tr_b16 {vr(slot + 2, 2)}, v{a} offset:{o2}')
        lg.issue(('w', n))

    def stats_issue():
        P(f'buffer_load_dwordx2 {vr(cST, 2)}, v{cSO}, {srd(SWS)}, 0 offen sc1')
        if isq:
            P(f'buffer_load_dwordx2 {vr(cST + 2, 2)}, v{cSO + 1}, {srd(SWS)}, 0 offen sc1')

    def stats_cmp():
        P(f's_waitcnt vmcnt(0)\nv_cmp_ne_u32 vcc, s{sTAG}, v{cST + 1}')
        if isq:
            P(f'v_cmp_ne_u32 s[{sT0}:{sT1}], s{sTAG}, v{cST + 3}\ns_or_b64 vcc, vcc, s[{sT0}:{sT1}]')

    def stats_check():
        stats_cmp()
        P(f's_cbranch_vccz L_{t}stok')
        P.label(f'L_{t}stre')
        spin_guard(f'L_{t}stok')
        P('s_sleep 2')
        stats_issue()
        stats_cmp()
        P(f's_cbranch_vccnz L_{t}stre')
        P.label(f'L_{t}stok')
        for u in range(2 if isq else 1):
            b, g = cBE + 4 * u, cST + 2 * u
            P(f'''v_and_b32 v{cR + 2 * u}, 0xffff0000, v{g}
v_and_b32 v{b + 1}, 0xffff, v{g}
v_rcp_f32 v{cR + 2 * u}, v{cR + 2 * u}
v_xor_b32 v{b + 1}, 0x8000, v{b + 1}
v_and_b32 v{b + 1}, v{b + 1}, v{cM32}
v_lshl_or_b32 v{b}, v{b + 1}, 16, v{b + 1}
v_mov_b32 v{b + 2}, 0
v_mov_b32 v{b + 3}, 0''')

    NT = 203
    set_slot(0)
    stats_compute()
    P('s_waitcnt lgkmcnt(0)\ns_barrier')
    stamp(1)
    cstamp(2)
    nr = 0
    while nr < LA_:
        reads(nr)
        nr += 1
    for n in range(NT):
        ks, tl = divmod(n, 7)
        lg.wait(('w', n))
        if n < 196:
            xb = (CHX if (isq and tl == 6) else CX) + 4 * (ks % 2)
        else:
            xb = cBE + (4 if (isq and tl == 6) else 0)
        c = '0' if ks == 0 else vr(16 * tl, 16)
        P(f'v_mfma_f32_32x32x16_bf16 {vr(16 * tl, 16)}, {vr(CW + 4 * (n % 8))}, {vr(xb)}, {c}')
        if n == 28 * 5 + 2:
            stats_issue()
        if n == 28 * 6 + 8:
            stats_check()
        if nr < NT:
            if nr % 28 == 0 and nr > 0 and nr <= 196:
                if (nr - n - 1) <= LA_ - HOLD:
                    s = nr // 28
                    if s < 7:
                        set_slot(s)
                    lg.all()
                    if s == 4:
                        stamp(3)
                    P('s_barrier')
                    if s in (4, 6, 7):
                        stamp({4: 5, 6: 6, 7: 7}[s])
                    while nr < NT and nr <= n + LA_:
                        reads(nr)
                        nr += 1
            else:
                while nr < NT and nr <= n + LA_ and not (nr % 28 == 0 and nr <= 196):
                    reads(nr)
                    nr += 1
    if OPT['prio']:
        P('s_setprio %d' % OPT['prio'])
    stamp(8)
    cstamp(4)

    def scale_pack(tl, r):
        a = 16 * tl
        for i in range(8):
            P(f'v_pk_mul_f32 {vr(a + 2 * i, 2)}, {vr(a + 2 * i, 2)}, {vr(r, 2)} op_sel_hi:[1,0]')
        for i in range(8):
            P(f'v_cvt_pk_bf16_f32 v{a + i}, v{a + 2 * i}, v{a + 2 * i + 1}')

    def swaps(tl):
        for i in range(4):
            P(f'v_permlane16_swap_b32 v{16 * tl + i}, v{16 * tl + 4 + i}')

    if not isq:
        P(f's_mul_i32 s{sT0}, s{sIDX}, {14 * 1024}\ns_add_u32 s{sT0}, s{sT0}, s{sA0}')
        for tl in range(7):
            scale_pack(tl, cR)
            for i in range(8):
                P(f'v_pk_max_i16 v{16 * tl + i}, v{16 * tl + i}, 0')
            for j in range(2):
                P(f'buffer_store_dwordx4 {vr(16 * tl + 4 * j)}, v{cL16}, {srd(SWS)}, s{sT0} offen offset:{(2 * tl + j) % 4 * 1024} sc1')
            if tl % 2 == 1:
                P(f's_add_u32 s{sT0}, s{sT0}, 4096')
        P('s_branch L_CFLAG')
        return
    for e in range(2):
        scale_pack(3 * e + 1, cR)
        scale_pack(3 * e + 2, cR)
        swaps(3 * e + 1)
        for q in range(4):
            P(f'ds_write_b64 v{cVW}, {vr(16 * (3 * e + 2) + 2 * q, 2)} offset:{e * 144 * VSTR + 16 * q}')
    scale_pack(6, cR + 2)
    P(f's_cmp_eq_u32 s{sI}, 3\ns_cbranch_scc1 L_nokx')
    for e in range(2):
        P(f'ds_write_b128 v{cKX}, {vr(16 * (3 * e + 1) + 4)} offset:{2048 + 1024 * e}')
    P.label('L_nokx')
    P(f's_cmp_ge_u32 s{sI}, 2\ns_cbranch_scc1 L_halov')
    swaps(6)
    P(f'''s_mul_i32 s{sT0}, s{sI}, 1024
v_subrev_u32 v{cT}, s{sT0}, v{cKX}
ds_write_b128 v{cT}, {vr(96)}
s_branch L_halod''')
    P.label('L_halov')
    for q in range(4):
        P(f'ds_write_b64 v{cVWH}, {vr(96 + 2 * q, 2)} offset:{16 * q}')
    P.label('L_halod')
    P(f'''v_lshl_add_u32 v{cT}, s{sI}, 2, v{cSY}
v_mov_b32 v{cT + 1}, 1
s_waitcnt lgkmcnt(0)
ds_write_b32 v{cT}, v{cT + 1}''')
    for e in range(2):
        scale_pack(3 * e, cR)
        P(f'v_and_b32 v{48 * e + 6}, v{48 * e + 6}, v{cM32}\nv_and_b32 v{48 * e + 7}, v{48 * e + 7}, v{cM32}')
        swaps(3 * e)
    lds_poll('L_attp', cT, cSY, 0)
    KP = 112
    VO = 120
    S = 220
    for e in range(2):
        P(f'ds_read_b128 {vr(KP + 4 * e)}, v{cKX} offset:{1024 * e}')
    for e in range(2):
        for dt in range(2):
            for kt in range(3):
                P(f'ds_read_b64_tr_b16 {vr(VO + 12 * e + 6 * dt + 2 * kt, 2)}, v{cVR} offset:{e * 144 * VSTR + kt * 16 * VSTR + 32 * dt}')
    units = [(0, 1), (1, 1), (0, 0), (1, 0)]
    for u, (e, tq) in enumerate(units):
        qop = vr(48 * e + 4 * tq)
        kb = vr(48 * e + 16 + 4 * tq)
        P(f'v_mfma_f32_16x16x32_bf16 {vr(S + 8 * u + 4)}, {kb}, {qop}, {vr(cBB)}')
    for u, (e, tq) in enumerate(units):
        qop = vr(48 * e + 4 * tq)
        if u == 2:
            P('s_waitcnt lgkmcnt(12)')
        ka = vr(48 * e + 16) if tq else vr(KP + 4 * e)
        P(f'v_mfma_f32_16x16x32_bf16 {vr(S + 8 * u)}, {ka}, {qop}, {vr(cBA if tq else cBA0)}')
    M = 8
    P(f's_mov_b32 s{sT1}, 0x3e8b9a4d')
    U = range(4)
    for u in U:
        P(f'v_max3_f32 v{M + u}, v{S + 8 * u + 4}, v{S + 8 * u + 5}, v{S + 8 * u + 6}')
    for u in U:
        P(f'v_max3_f32 v{M + u}, v{M + u}, v{S + 8 * u + 7}, v{S + 8 * u}')
    for u in U:
        P(f'v_max3_f32 v{M + u}, v{M + u}, v{S + 8 * u + 1}, v{S + 8 * u + 2}')
    for u in U:
        P(f'v_max_f32 v{M + u}, v{M + u}, v{S + 8 * u + 3}')

    def xl(op):
        for sw in ('16', '32'):
            for u in U:
                P(f'v_mov_b32 v{M + 4 + u}, v{M + u}')
            for u in U:
                P(f'v_permlane{sw}_swap_b32 v{M + 4 + u}, v{M + u}')
            for u in U:
                P(f'{op} v{M + u}, v{M + u}, v{M + 4 + u}')
    xl('v_max_f32')
    for u in U:
        P(f'v_mul_f32 v{M + u}, s{sT1}, v{M + u}')
    for u in U:
        for i in range(8):
            P(f'v_fma_f32 v{S + 8 * u + i}, v{S + 8 * u + i}, s{sT1}, -v{M + u}')
        for i in range(8):
            P(f'v_exp_f32 v{S + 8 * u + i}, v{S + 8 * u + i}')
    for u in U:
        P(f'v_add_f32 v{M + u}, v{S + 8 * u}, v{S + 8 * u + 1}')
    for i in range(2, 8):
        for u in U:
            P(f'v_add_f32 v{M + u}, v{M + u}, v{S + 8 * u + i}')
    xl('v_add_f32')
    RI = 24
    for u in U:
        P(f'v_rcp_f32 v{RI + 2 * u}, v{M + u}')
    for u in U:
        for i in range(4):
            P(f'v_pk_mul_f32 {vr(S + 8 * u + 2 * i, 2)}, {vr(S + 8 * u + 2 * i, 2)}, {vr(RI + 2 * u, 2)} op_sel_hi:[1,0]')
        for i in range(4):
            P(f'v_cvt_pk_bf16_f32 v{S + 8 * u + i}, v{S + 8 * u + 2 * i}, v{S + 8 * u + 2 * i + 1}')
    P('s_waitcnt lgkmcnt(0)')
    O = 32
    for u, (e, tq) in enumerate(units):
        for dt in range(2):
            P(f'v_mfma_f32_16x16x32_bf16 {vr(O + 8 * u + 4 * dt)}, {vr(VO + 12 * e + 6 * dt + 2 * tq)}, {vr(S + 8 * u)}, 0')
    P(f'''s_lshl_b32 s{sT0}, s{sIDX}, 12
s_add_u32 s{sT0}, s{sT0}, s{sA0}
s_add_u32 s{sT0}, s{sT0}, {112 * 1024}''')
    for u, (e, tq) in enumerate(units):
        for i in range(4):
            P(f'v_cvt_pk_bf16_f32 v{O + 8 * u + i}, v{O + 8 * u + 2 * i}, v{O + 8 * u + 2 * i + 1}')
        P(f'v_and_b32 v{O + 8 * u + 2}, v{O + 8 * u + 2}, v{cM48}\nv_and_b32 v{O + 8 * u + 3}, v{O + 8 * u + 3}, v{cM48}')
        P(f'buffer_store_dwordx4 {vr(O + 8 * u)}, v{cOO}, {srd(SWS)}, s{sT0} offen offset:{2048 * e + 256 * tq} sc1')


C_phase1(False)
P.label('L_CQ')
C_phase1(True)
P.label('L_CFLAG')
stamp(9)
P(f'''v_lshrrev_b32 v0, 4, v{cL16}
v_mov_b32 v1, 0
v_mov_b32 v2, s{sTAG}
s_waitcnt vmcnt(0)
s_mov_b64 exec, 1
buffer_store_dword v2, v1, {srd(SWS)}, s{sA1} offen sc1
s_mov_b64 exec, -1''')
stamp(10)
P(f'''s_cmp_lt_u32 s{sCT}, 7
s_cbranch_scc1 L_P2C
s_cmp_lg_u32 s2, 255
s_cbranch_scc1 L_EXIT
s_cmp_lg_u32 s{sWAVE}, 4
s_cbranch_scc1 L_EXIT
v_lshlrev_b32 v3, 7, v0
v_add_u32 v3, {WS_FLAGS}, v3''')
P.label('L_bump')
spin_guard('L_EXIT')
P('s_sleep 8')
for n in range(4):
    P(f'buffer_load_dwordx4 {vr(4 + 4 * n)}, v3, {srd(SWS)}, 0 offen offset:{16 * n} sc1')
P('s_waitcnt vmcnt(0)')
for n in range(16):
    P(f'v_xor_b32 v{4 + n}, v{4 + n}, v2')
for n in range(1, 16):
    P(f'v_or_b32 v4, v4, v{4 + n}')
P(f'''v_cmp_ne_u32 vcc, 0, v4
s_cbranch_vccnz L_bump
s_mov_b64 exec, 1
buffer_store_dword v2, v1, {srd(SWS)}, 0 offen sc1
s_mov_b64 exec, -1
s_branch L_EXIT''')

CACC = 16
CWR = 48
CAR = 80
NAR = 20
cA2 = 160
cP, cPo = 164, 165
P.label('L_P2C')
if OPT['prio']:
    P('s_setprio 0')
w2_tr_addr(cA2, cA2 + 1, 12, 13)
P(f'''s_and_b32 s{sT3}, s{sI}, 1
s_lshl_b32 s{sT0}, s{sRT}, 1
s_add_u32 s{sT0}, s{sT0}, s{sT3}
s_mul_i32 s{sA0}, s{sT0}, {NS * 1024}
s_lshl_b32 s{sT0}, s{sT0}, 7
s_add_u32 s{sT0}, s{sT0}, {WS_FLAGS}
s_cmp_ge_u32 s{sI}, 2
s_cselect_b32 s{sT1}, {CH0 // 14}, 8
s_cselect_b32 s{sT2}, 7, 15
v_add_u32 v{cPo}, s{sT1}, v0
v_min_u32 v{cPo}, s{sT2}, v{cPo}
v_lshlrev_b32 v{cPo}, 2, v{cPo}
v_add_u32 v{cPo}, s{sT0}, v{cPo}
s_cselect_b32 s{sT1}, 0, {CHN * 1024}
s_add_u32 s{sA0}, s{sA0}, s{sT1}
s_add_u32 s{sA0}, s{sA0}, {WS_ACT + CH0 * 1024}''')
fin_xload()
P('s_barrier')
stamp(11)
vmC = Q(P, 'vmcnt', 63)
flag_poll_issue(vmC, cP, cPo, 'poll')
flag_poll_check(vmC, 'L_pollC', cP, cPo, 'poll')
stamp(12)
P(f's_cmp_ge_u32 s{sI}, 2\ns_cbranch_scc1 L_P2H')


def C_phase2(kind):
    vm = Q(P, 'vmcnt', 63)
    lg = Q(P, 'lgkmcnt', 15)
    steps = 32 if kind == 0 else CHN
    base = [0]

    def aload(k):
        P(f'buffer_load_dwordx4 {vr(CAR + 4 * (k % NAR))}, v{cL16}, {srd(SWS)}, s{sA0} offen offset:{(k % 4) * 1024} sc1')
        vm.issue(('a', k))
        if k % 4 == 3:
            P(f's_add_u32 s{sA0}, s{sA0}, 4096')

    def wread(k):
        if kind == 0:
            o = (28 * (k // 2) + 8 * (k % 2)) * 128
            o2 = o + 16 * 128
        else:
            o = (448 + 16 * k) * 128
            o2 = o + 8 * 128
        if o2 - base[0] > 65535:
            d = o - base[0]
            P(f'v_add_u32 v{cA2}, {d}, v{cA2}\nv_add_u32 v{cA2 + 1}, {d}, v{cA2 + 1}')
            base[0] = o
        for ch in range(2):
            f = CWR + 8 * (k % 4) + 4 * ch
            P(f'ds_read_b64_tr_b16 {vr(f, 2)}, v{cA2 + ch} offset:{o - base[0]}')
            lg.issue()
            P(f'ds_read_b64_tr_b16 {vr(f + 2, 2)}, v{cA2 + ch} offset:{o2 - base[0]}')
            lg.issue(('w', k, ch))
    for k in range(NAR - 1):
        aload(k)
    for k in range(3):
        wread(k)
    for k in range(steps):
        vm.wait(('a', k))
        for ch in range(2):
            lg.wait(('w', k, ch))
            a = CACC + 16 * ch
            c = '0' if k == 0 else vr(a, 16)
            P(f'v_mfma_f32_32x32x16_bf16 {vr(a, 16)}, {vr(CWR + 8 * (k % 4) + 4 * ch)}, {vr(CAR + 4 * (k % NAR))}, {c}')
        if k + 3 < steps:
            wread(k + 3)
        if k + NAR - 1 < steps:
            aload(k + NAR - 1)
    stamp(13 if False else 14)
    P(f'''v_and_b32 v12, 31, v0
v_lshlrev_b32 v12, 7, v12
v_and_b32 v13, 7, v0
v_lshl_add_u32 v12, v13, 4, v12
v_lshrrev_b32 v13, 5, v0
v_lshl_add_u32 v12, v13, 3, v12
s_lshl_b32 s{sT0}, s{sI}, 13
s_add_u32 s{sT0}, s{sT0}, {XB}
v_add_u32 v12, s{sT0}, v12''')
    for q in range(1, 8):
        P(f'v_xor_b32 v{CAR + q}, {16 * q}, v12')
    if kind == 0:
        for r in range(16):
            P(f'v_cvt_pk_bf16_f32 v{CACC + r}, v{CACC + 2 * r}, v{CACC + 2 * r + 1}')
    lds_poll('L_ldp%d' % kind, 8, cSY, 32)
    if kind == 1:
        P(f'''s_xor_b32 s{sT0}, s{sT3}, 1
s_lshl_b32 s{sT0}, s{sT0}, 14
s_add_u32 s{sT0}, s{sT0}, {XB + 4096}
v_add_u32 v13, s{sT0}, v{cL16}''')
        for n in range(8):
            P(f'ds_read_b128 {vr(CWR + 4 * n)}, v13 offset:{(n // 4) * 8192 + (n % 4) * 1024}')
        P('s_waitcnt lgkmcnt(0)')
        for r in range(16):
            P(f'v_pk_add_f32 {vr(CACC + 2 * r, 2)}, {vr(CACC + 2 * r, 2)}, {vr(CWR + 2 * r, 2)}')
        for r in range(16):
            P(f'v_cvt_pk_bf16_f32 v{CACC + r}, v{CACC + 2 * r}, v{CACC + 2 * r + 1}')
    for q in range(8):
        P(f'ds_write_b64 v{CAR + q if q else 12}, {vr(CACC + 2 * q, 2)}')


C_phase2(0)
P('s_branch L_FIN')
P.label('L_P2H')
C_phase2(1)

P.label('L_FIN')
P(f'''v_xor_b32 v9, v1, v2
v_and_b32 v9, 7, v9
v_lshlrev_b32 v9, 4, v9
v_and_b32 v10, 31, v1
v_lshl_add_u32 v9, v10, 7, v9
s_lshr_b32 s{sT0}, s{sWAVE}, 2
s_lshl_b32 s{sT0}, s{sT0}, 13
s_add_u32 s{sT0}, s{sT0}, {XB}
v_add_u32 v9, s{sT0}, v9
s_mov_b32 s{sT1}, 0xbfb8aa3b
s_waitcnt lgkmcnt(0)
s_barrier
ds_read_b128 v[12:15], v9 offset:16384
ds_read_b128 v[16:19], v9
s_waitcnt vmcnt(0)''')
F, S_, X_, E_ = 20, 28, 36, 44
for n in range(4):
    P(f'v_lshlrev_b32 v{X_ + 2 * n}, 16, v{FX + n}\nv_and_b32 v{X_ + 2 * n + 1}, 0xffff0000, v{FX + n}')
P('s_waitcnt lgkmcnt(1)')
for n in range(4):
    P(f'v_lshlrev_b32 v{F + 2 * n}, 16, v{12 + n}\nv_and_b32 v{F + 2 * n + 1}, 0xffff0000, v{12 + n}')
for n in range(8):
    P(f'v_mul_f32 v{E_ + n}, s{sT1}, v{F + n}')
for n in range(8):
    P(f'v_exp_f32 v{E_ + n}, v{E_ + n}')
P('s_waitcnt lgkmcnt(0)')
for n in range(4):
    P(f'v_lshlrev_b32 v{S_ + 2 * n}, 16, v{16 + n}\nv_and_b32 v{S_ + 2 * n + 1}, 0xffff0000, v{16 + n}')
for n in range(8):
    P(f'v_add_f32 v{E_ + n}, 1.0, v{E_ + n}')
for n in range(8):
    P(f'v_rcp_f32 v{E_ + n}, v{E_ + n}')
for n in range(8):
    P(f'v_mul_f32 v{F + n}, v{F + n}, v{E_ + n}')
for n in range(8):
    P(f'v_fmac_f32 v{X_ + n}, v{S_ + n}, v{F + n}')
for n in range(4):
    P(f'v_cvt_pk_bf16_f32 v{12 + n}, v{X_ + 2 * n}, v{X_ + 2 * n + 1}')
P(f'buffer_store_dwordx4 v[12:15], v3, {srd(SOUT)}, s{sT2} offen' + (' sc1' if OPT['osc1'] else ''))
P.label('L_EXIT')
if DIAG:
    P('s_waitcnt vmcnt(0)')
    stamp(15)
    diag_dump()
P.label('L_END')
P('s_endpgm')

body = P.finalize()
ref = open('cdna_kernels/%s.s.ref' % NAME).read()
hdr = [l for l in ref.split('\n') if l.startswith(';') and '@launch' not in l]
out = '\n'.join(hdr) + '\n; @launch grid=(256,1,1) block=(512,1,1) lds=%d\n' % LDS_BYTES
out += f'''.amdgcn_target "amdgcn-amd-amdhsa--gfx950"
.text
.globl {NAME}_kernel
.p2align 8
.type {NAME}_kernel,@function
{NAME}_kernel:
{body}.section .rodata,"a"
.p2align 6
.amdhsa_kernel {NAME}_kernel
  .amdhsa_next_free_vgpr 256
  .amdhsa_next_free_sgpr 102
  .amdhsa_accum_offset 256
  .amdhsa_group_segment_fixed_size 0
  .amdhsa_kernarg_size 72
  .amdhsa_user_sgpr_count 2
  .amdhsa_user_sgpr_kernarg_segment_ptr 1
  .amdhsa_system_sgpr_workgroup_id_x 1
.end_amdhsa_kernel
'''
open(sys.argv[1], 'w').write(out)
print('instructions', len(P.ins), 'nops inserted', P.nops_inserted)
```

```python
import sys
from asmlib import Prog, Q

NAME = 'recurrent_scan__sliding_local_dilated__dense_activation_relu__prompt'
OPT = dict(diag=0, pf_code=1, pf_w=1, la=6, hold=3, prio=1, osc1=1, lahead=7)
for a in sys.argv[2:]:
    k, v = a.split('=')
    OPT[k] = int(v)
PROBE = OPT.get('probe')
DIAG = OPT['diag'] or PROBE is not None

WS_FLAGS = 4096
WS_STATS = 16384
WS_DIAG = 32768 * 0 + 0xA00000
WS_ACT = 65536
WS_BYTES = 0xB00000
NS = 144
LSTEPS = 20
CH0 = 4 * LSTEPS
CHN = 112 - CH0

XS = [0, 16384, 32768]
WSL = [49152, 77824, 106496]
HALO = 135168
NGRP = 14 + CHN // 2
SC = NGRP * 4096
VSTR = 72
VREG = SC
KX = SC + 2 * 144 * VSTR
CS = 161536
SYNC = 163584
XB = SC
LDS_BYTES = 163840
assert KX + 8192 <= CS

SX, SW, SWO, SW2, SWS, SOUT = 24, 28, 32, 36, 40, 44
sWAVE, sRB, sIDX, sISQ, sCG, sRT, sCT, sACT2, sTAG, sI = range(48, 58)
sT0, sT1, sT2, sT3 = 58, 59, 60, 61
sXO, sWO_, sMX, sMW, sHO, sMH = 62, 63, 64, 65, 66, 67
sA0, sA1 = 68, 69
sSPIN = 3
SPIN_MAX = 0x40000
sST = 70


def srd(b):
    return 's[%d:%d]' % (b, b + 3)


def vr(a, n=4):
    return 'v[%d:%d]' % (a, a + n - 1)


P = Prog()
stamp_n = {}


def stamp(k):
    if DIAG:
        P('s_memrealtime s[%d:%d]' % (sST + 2 * k, sST + 2 * k + 1))


def cstamp(k):
    if DIAG and PROBE is None:
        P('s_memtime s[%d:%d]' % (sST + 2 * k, sST + 2 * k + 1))


def mk_srd(b, ptr, size):
    P('s_mov_b32 s%d, s%d\ns_mov_b32 s%d, s%d\ns_mov_b32 s%d, 0x%x\ns_mov_b32 s%d, 0x20000'
      % (b, ptr, b + 1, ptr + 1, b + 2, size, b + 3))


def diag_dump():
    if PROBE is not None:
        a, b = divmod(PROBE, 100)
        P(f'''s_waitcnt lgkmcnt(0)
s_cmp_lt_u32 s{sWAVE}, 4
s_cbranch_scc1 L_END
s_cmp_ge_u32 s{sCT}, 7
s_cbranch_scc1 L_END
s_sub_u32 s{sT0}, s{sST + 2 * b}, s{sST + 2 * a}
s_min_u32 s{sT0}, s{sT0}, 5000
s_lshl_b32 s{sT0}, s{sT0}, 2''')
        P.label('L_probe')
        P(f'''s_memrealtime s[{sT2}:{sT3}]
s_waitcnt lgkmcnt(0)
s_sub_u32 s{sT1}, s{sT2}, s{sST + 30}
s_cmp_lt_u32 s{sT1}, s{sT0}
s_cbranch_scc1 L_probe''')
    elif DIAG:
        P('s_lshl_b32 s%d, s2, 3\ns_add_u32 s%d, s%d, s%d\ns_lshl_b32 s%d, s%d, 6\ns_add_u32 s%d, s%d, 0x%x'
          % (sT0, sT0, sT0, sWAVE, sT0, sT0, sT0, sT0, WS_DIAG))
        P('v_mov_b32 v1, 0\ns_waitcnt lgkmcnt(0)')
        for k in range(16):
            P('v_mov_b32 v2, s%d\nbuffer_store_dword v2, v1, %s, s%d offen offset:%d' % (sST + 2 * k, srd(SWS), sT0, 4 * k))


def spin_guard(out):
    P(f's_add_u32 s{sSPIN}, s{sSPIN}, 1\ns_cmp_gt_u32 s{sSPIN}, {SPIN_MAX}\ns_cbranch_scc1 {out}')


def lds_poll(name, tmp, vsync, off):
    P.label(name)
    spin_guard(name + '_ok')
    P('ds_read_b128 %s, v%d offset:%d\ns_waitcnt lgkmcnt(0)' % (vr(tmp), vsync, off))
    P('v_and_b32 v%d, v%d, v%d\nv_and_b32 v%d, v%d, v%d\nv_and_b32 v%d, v%d, v%d'
      % (tmp, tmp, tmp + 1, tmp + 2, tmp + 2, tmp + 3, tmp, tmp, tmp + 2))
    P('v_cmp_eq_u32 vcc, 0, v%d\ns_cbranch_vccnz %s' % (tmp, name))
    P.label(name + '_ok')


def w2_tr_addr(d0, d1, t0, t1):
    P(f'''v_lshrrev_b32 v{t0}, 5, v0
v_lshlrev_b32 v{t0}, 2, v{t0}
v_bfe_u32 v{t1}, v0, 2, 2
v_add_u32 v{t0}, v{t0}, v{t1}
v_lshlrev_b32 v{t0}, 7, v{t0}
v_bfe_u32 v{t1}, v0, 4, 1
v_lshl_add_u32 v{t0}, v{t1}, 5, v{t0}
v_and_b32 v{t1}, 3, v0
v_lshl_add_u32 v{t0}, v{t1}, 3, v{t0}
v_bfe_u32 v{t1}, v0, 3, 1
v_lshl_add_u32 v{d0}, v{t1}, 6, v{t0}
v_xor_b32 v{d1}, 64, v{d0}''')


def q_tile_addr(d, sE, t0, t1, t2):
    e56 = ('s%d' % sE) if isinstance(sE, tuple) is False and sE >= 2 else str(56 * sE)
    P(f'''v_bfe_u32 v{t0}, v0, 4, 1
v_lshlrev_b32 v{t0}, 5, v{t0}
v_and_b32 v{t1}, 3, v0
v_lshl_add_u32 v{t0}, v{t1}, 3, v{t0}
v_add_u32 v{t0}, {e56}, v{t0}
v_bfe_u32 v{t1}, v0, 3, 1
v_lshlrev_b32 v{t1}, 6, v{t1}
v_xor_b32 v{t0}, v{t0}, v{t1}
v_lshrrev_b32 v{t1}, 5, v0
v_lshlrev_b32 v{t1}, 3, v{t1}
v_bfe_u32 v{t2}, v0, 2, 2
v_add_u32 v{t1}, v{t1}, v{t2}
v_lshl_add_u32 v{d}, v{t1}, 7, v{t0}''')


def h_tile_addr(d, t0, t1):
    P(f'''v_lshrrev_b32 v{t0}, 5, v0
v_lshlrev_b32 v{t0}, 3, v{t0}
v_bfe_u32 v{t1}, v0, 2, 2
v_add_u32 v{t0}, v{t0}, v{t1}
v_mul_u32_u24 v{t0}, 448, v{t0}
v_bfe_u32 v{t1}, v0, 4, 1
v_lshl_add_u32 v{t0}, v{t1}, 5, v{t0}
v_and_b32 v{t1}, 3, v0
v_lshl_add_u32 v{d}, v{t1}, 3, v{t0}''')


P(f'''s_cmp_ge_u32 s2, 256
s_cbranch_scc1 L_END
s_load_dwordx16 s[4:19], s[0:1], 0
s_load_dwordx2 s[20:21], s[0:1], 64
v_lshrrev_b32 v1, 6, v0
v_and_b32 v0, 63, v0
v_readfirstlane_b32 s{sWAVE}, v1
s_and_b32 s{sT0}, s2, 7
s_lshr_b32 s{sT1}, s2, 3
s_and_b32 s{sRB}, s{sT0}, 1
s_lshl_b32 s{sRB}, s{sRB}, 3
s_and_b32 s{sT2}, s{sT1}, 7
s_add_u32 s{sRB}, s{sRB}, s{sT2}
s_and_b32 s{sIDX}, s{sT0}, 6
s_bfe_u32 s{sT2}, s{sT1}, 0x10003
s_add_u32 s{sIDX}, s{sIDX}, s{sT2}
s_lshr_b32 s{sISQ}, s{sT1}, 4
s_lshl_b32 s{sCG}, s{sISQ}, 3
s_add_u32 s{sCG}, s{sCG}, s{sIDX}
s_lshl_b32 s{sRT}, s{sT0}, 2
s_and_b32 s{sT2}, s{sT1}, 3
s_add_u32 s{sRT}, s{sRT}, s{sT2}
s_lshr_b32 s{sCT}, s{sT1}, 2
s_mov_b32 s{sSPIN}, 0
s_and_b32 s{sI}, s{sWAVE}, 3''')
if DIAG:
    for k in range(16):
        P('s_mov_b32 s%d, 0' % (sST + 2 * k))
if PROBE is not None:
    stamp(2)
P(f'''s_cmp_ge_u32 s{sWAVE}, 4
s_cbranch_scc1 L_C''')

LW = 4
LACC = 164
LA = 228
LADR = 252
vX = 164
vW = 168
vH = 175
vCA = 176
vSEL = 180
vCACC = 184
vCF = 192
vLT = 228


def L_common_setup():
    P(f'''v_lshrrev_b32 v{vLT}, 3, v0
v_lshl_add_u32 v{vLT}, s{sI}, 3, v{vLT}
v_mul_u32_u24 v{vX}, 896, v{vLT}
v_lshrrev_b32 v{vLT}, 1, v{vLT}
v_xor_b32 v{vLT}, v{vLT}, v0
v_and_b32 v{vLT}, 7, v{vLT}
v_lshl_add_u32 v{vX}, v{vLT}, 4, v{vX}
v_add_u32 v{vX + 1}, 28672, v{vX}
v_add_u32 v{vX + 2}, 57344, v{vX}
v_add_u32 v{vX + 3}, 86016, v{vX}
s_mul_i32 s{sXO}, s{sRB}, 114688
s_lshl_b32 s{sMX}, s{sI}, 10''')


def dma(vm, voff, srdb, soff, m0base, m0imm, tag=None):
    P(f's_add_u32 m0, s{m0base}, {m0imm}')
    P(f'buffer_load_dwordx4 v{voff}, {srd(srdb)}, s{soff} offen lds')
    vm.issue(tag)


def L_phase1(isq):
    t = 'Q' if isq else 'H'
    vm = Q(P, 'vmcnt', 63)

    def gen_x(s):
        for n in range(4):
            dma(vm, vX + n, SX, sXO, sMX, XS[s % 3] + 4096 * n)
            if n == 3:
                P(f's_add_u32 s{sXO}, s{sXO}, 128')
            yield

    def gen_w(s):
        if isq:
            if s % 2 == 0:
                if s == 6:
                    P(f's_lshr_b32 s{sT0}, s{sI}, 1\ns_lshl_b32 s{sT1}, s{sT0}, 7\ns_sub_u32 s{sHO}, s{sHO}, s{sT1}')
                    P(f's_lshl_b32 s{sT1}, s{sT0}, 11\ns_sub_u32 s{sMH}, s{sMH}, s{sT1}')
                dma(vm, vH, SX, sHO, sMH, HALO + 2048 * s)
                P(f's_add_u32 s{sHO}, s{sHO}, 256')
                yield
            for n in range(6):
                dma(vm, vW + n, SW, sWO_, sMW, WSL[s % 3] + (n // 2) * 8192 + (n % 2) * 1024, ('st', s))
                if n == 5:
                    P(f's_add_u32 s{sWO_}, s{sWO_}, {64 * 2688}')
                yield
        else:
            for n in range(7):
                dma(vm, vW + n, SW, sWO_, sMW, WSL[s % 3] + n * 1024, ('st', s))
                if n == 6:
                    P(f's_add_u32 s{sWO_}, s{sWO_}, {64 * 3584}')
                yield

    def issue_x(s):
        for _ in gen_x(s):
            pass

    def issue_w(s):
        for _ in gen_w(s):
            pass

    P('s_waitcnt lgkmcnt(0)')
    mk_srd(SX, 4, 2048 * 896)
    stamp(0)
    issue_x(0)
    if isq:
        mk_srd(SW, 6, 448 * 2688)
        P(f'''v_lshrrev_b32 v{vLT}, 3, v0
v_mul_u32_u24 v{vW}, 2688, v{vLT}
v_bfe_u32 v{vLT}, v0, 4, 1
v_lshlrev_b32 v{vLT}, 2, v{vLT}
v_xor_b32 v{vLT}, v{vLT}, v0
v_and_b32 v{vLT}, 7, v{vLT}
v_lshl_add_u32 v{vW}, v{vLT}, 4, v{vW}''')
        for n in range(1, 6):
            P(f'v_add_u32 v{vW + n}, {(n // 2) * 896 + (n % 2) * 8 * 2688}, v{vW}')
        P(f'''s_mul_i32 s{sWO_}, s{sI}, {16 * 2688}
s_mul_i32 s{sT0}, s{sIDX}, 112
s_add_u32 s{sWO_}, s{sWO_}, s{sT0}
s_lshl_b32 s{sMW}, s{sI}, 11
s_lshr_b32 s{sT0}, s{sI}, 1
s_mul_i32 s{sT1}, s{sT0}, {16 * 896}
v_subrev_u32 v{vH}, s{sT1}, v{vX}
s_mul_i32 s{sHO}, s{sRB}, 114688
s_max_u32 s{sHO}, s{sHO}, {16 * 896}
s_sub_u32 s{sHO}, s{sHO}, {16 * 896}
s_lshl_b32 s{sT1}, s{sT0}, 7
s_add_u32 s{sHO}, s{sHO}, s{sT1}
s_mov_b32 s{sMH}, s{sMX}''')
    else:
        mk_srd(SW, 12, 448 * 3584)
        P(f's_movk_i32 s{sT0}, 3136')
        for n in range(7):
            P(f'''v_add_u32 v{vLT}, {64 * n}, v0
v_mul_u32_u24 v{vLT + 1}, 2341, v{vLT}
v_lshrrev_b32 v{vLT + 1}, 16, v{vLT + 1}
v_lshlrev_b32 v{vLT}, 4, v{vLT}
v_mad_u32_u24 v{vW + n}, v{vLT + 1}, s{sT0}, v{vLT}''')
        P(f'''s_mul_i32 s{sWO_}, s{sI}, {16 * 3584}
s_mul_i32 s{sT0}, s{sIDX}, 448
s_add_u32 s{sWO_}, s{sWO_}, s{sT0}
s_mul_i32 s{sMW}, s{sI}, 7168''')
    issue_w(0)
    issue_x(1)
    issue_w(1)
    P(f's_load_dword s{sTAG}, s[20:21], 0')
    mk_srd(SWO, 8, 448 * 896)
    mk_srd(SW2, 14, 1792 * 896)
    mk_srd(SWS, 20, WS_BYTES)
    mk_srd(SOUT, 16, 2048 * 896)
    P(f'''v_lshrrev_b32 v{vLT}, 2, v0
v_xor_b32 v{vLT}, v{vLT}, v0
v_bfe_u32 v{vLT}, v{vLT}, 2, 1
v_add_u32 v{vLT}, -1, v{vLT}
v_and_b32 v{vSEL}, 0x3f803f80, v{vLT}
v_mov_b32 v{vSEL + 1}, v{vSEL}
v_mov_b32 v{vSEL + 2}, v{vSEL}
v_mov_b32 v{vSEL + 3}, v{vSEL}''')
    if isq:
        P(f's_and_b32 s{sT0}, s{sI}, 1\ns_mul_i32 s{sT0}, s{sT0}, 56')
        q_tile_addr(vCA, sT0, vLT, vLT + 1, vLT + 2)
        P(f'''s_lshr_b32 s{sT0}, s{sI}, 1
s_lshl_b32 s{sT0}, s{sT0}, 13
v_add_u32 v{vCA}, s{sT0}, v{vCA}''')
        second, nsec, rstr, kstr = 16384, 2, 128, 2048
    else:
        h_tile_addr(vCA, vLT, vLT + 1)
        P(f's_lshl_b32 s{sT0}, s{sI}, 6\nv_add_u32 v{vCA}, s{sT0}, v{vCA}')
        second, nsec, rstr, kstr = 256, 3, 448, 7168
    w2_tr_addr(LADR, LADR + 1, vLT, vLT + 1)
    P(f'''s_and_b32 s{sT0}, s{sI}, 1
s_lshl_b32 s{sT0}, s{sT0}, 6
v_xor_b32 v{LADR}, s{sT0}, v{LADR}
v_xor_b32 v{LADR + 1}, s{sT0}, v{LADR + 1}
s_cmp_lt_u32 s{sI}, {nsec}
s_cselect_b64 vcc, -1, 0
v_add_u32 v{LADR}, s{sMX}, v{LADR}
v_add_u32 v{LADR + 1}, s{sMX}, v{LADR + 1}
v_add_u32 v{LADR + 2}, 0x10000, v{LADR}
v_add_u32 v{LADR + 3}, 0x10000, v{LADR + 1}
v_lshrrev_b32 v{vLT}, 3, v0
v_mul_u32_u24 v2, 896, v{vLT}
v_bfe_u32 v{vLT}, v0, 4, 1
v_lshlrev_b32 v{vLT}, 2, v{vLT}
v_xor_b32 v{vLT}, v{vLT}, v0
v_and_b32 v{vLT}, 7, v{vLT}
v_lshl_add_u32 v2, v{vLT}, 4, v2
v_add_u32 v3, {8 * 896}, v2
v_lshlrev_b32 v1, 4, v0
s_mul_i32 s{sA0}, s{sI}, {LSTEPS * 16 * 896}
s_lshl_b32 s{sT0}, s{sCT}, 7
s_add_u32 s{sA0}, s{sA0}, s{sT0}
s_mul_i32 s{sA1}, s{sI}, {8 * 896}
s_add_u32 s{sA1}, s{sA1}, s{sT0}''')

    def csum(s, g=iter(()), sfx=''):
        def adv(n):
            for _ in range(n):
                next(g, None)

        def rd(u):
            for j in range(4):
                f = vCF + 16 * u + 4 * j
                o = u * second + j * kstr
                P(f'ds_read_b64_tr_b16 {vr(f, 2)}, v{vCA + 1} offset:{o}')
                P(f'ds_read_b64_tr_b16 {vr(f + 2, 2)}, v{vCA + 1} offset:{o + 4 * rstr}')

        def mm(u, js):
            for j in (js if not OPT.get('nocs') else ()):
                f = vCF + 16 * u + 4 * j
                c = '0' if (s == 0 and j == 0) else vr(vCACC + 4 * u)
                P(f'v_mfma_f32_16x16x32_bf16 {vr(vCACC + 4 * u)}, {vr(vSEL)}, {vr(f)}, {c}')

        def opt(fn, k):
            P(f's_cbranch_vccz L_{t}cs{s}{sfx}_{k}')
            fn()
            P.label(f'L_{t}cs{s}{sfx}_{k}')
        adv(1)
        P(f'v_add_u32 v{vCA + 1}, {WSL[s % 3]}, v{vCA}')
        rd(0)
        adv(2)
        opt(lambda: rd(1), 0)
        adv(2)
        P('s_waitcnt lgkmcnt(0)')
        mm(0, (0, 1))
        adv(1)
        mm(0, (2, 3))
        adv(1)
        opt(lambda: mm(1, (0, 1)), 1)
        adv(1)
        opt(lambda: mm(1, (2, 3)), 2)
        adv(100)

    def csum_fin():
        P(f'''v_and_b32 v{vLT}, 31, v0
v_lshlrev_b32 v{vLT}, 3, v{vLT}
s_lshl_b32 s{sT0}, s{sI}, 8
s_add_u32 s{sT0}, s{sT0}, {CS}
v_add_u32 v{vLT}, s{sT0}, v{vLT}''')
        for u in range(2):
            a = vCACC + 4 * u
            b = vLT + 2 + 4 * u
            P(f'''v_cvt_pk_bf16_f32 v{b}, v{a}, v{a}
v_lshlrev_b32 v{b}, 16, v{b}
v_sub_f32 v{b + 2}, v{a}, v{b}
v_cvt_pk_bf16_f32 v{b}, v{a}, v{b + 2}
v_and_b32 v{b + 1}, 0xffff0000, v{b}
v_sub_f32 v{b + 1}, v{b + 2}, v{b + 1}
v_cvt_pk_bf16_f32 v{b + 1}, v{b + 1}, 0
ds_write_b64 v{vLT}, {vr(b, 2)} offset:{1024 * u}''')
        P('s_waitcnt lgkmcnt(0)')

    import itertools
    for s in range(5):
        stamp(13) if s == 4 else None
        vm.wait(('st', s))
        stamp(14) if s == 4 else None
        P('s_barrier')
        stamp({0: 1, 3: 3, 4: 5}[s]) if s in (0, 3, 4) else None
        csum(s, itertools.chain(gen_x(s + 2), gen_w(s + 2)))
    vm.wait(('st', 5))
    P('s_barrier')
    P(f's_cmp_lt_u32 s{sCT}, 7\ns_cbranch_scc1 L_{t}act')
    csum(5, sfx='i')
    P('s_waitcnt vmcnt(0)\ns_barrier')
    csum(6, sfx='i')
    csum_fin()
    P('s_barrier')
    P('s_branch L_EXIT')
    P.label(f'L_{t}act')
    w2 = W2Plan(vm)
    w2.free += [4, 5, 6, 7, 19, 20, 21, 22, 23, 24, 25]
    csum(5, w2.gen_own(range(5)))
    vm.wait(('st', 6))
    P('s_barrier')
    stamp(6)
    w2.free += [8, 9, 10, 11] + list(range(26, NGRP))
    csum(6, w2.gen_own(range(5, 9)))
    csum_fin()
    if not isq:
        P('s_branch L_P2L')
    return w2


class W2Plan:
    def __init__(self, vm):
        self.vm = vm
        self.free = []
        self.loc = {}

    def gen_own(self, ks):
        for k in ks:
            g = [self.free.pop(0), self.free.pop(0)]
            self.loc[k] = g
            for a in range(2):
                dma(self.vm, 2 + a, SW2, sA0, sMX, 4096 * g[a], ('own', k))
                if a == 1:
                    P(f's_add_u32 s{sA0}, s{sA0}, {16 * 896}')
                yield

    def own(self, k):
        for _ in self.gen_own([k]):
            pass

    def stage(self, ks):
        self.vm.wait(('own', ks[-1]))
        for k in ks:
            for ch in range(2):
                for a in range(2):
                    o = 4096 * self.loc[k][a]
                    P(f'ds_read_b64_tr_b16 {vr(LW + 8 * k + 4 * ch + 2 * a, 2)}, v{LADR + ch + 2 * (o >> 16)} offset:{o & 0xffff}')
        P('s_waitcnt lgkmcnt(0)')
        for k in ks:
            self.free += self.loc[k]

    def cw(self, n):
        assert n in self.free
        self.free.remove(n)
        off = n * 28672 if n < 14 else (CH0 * 16 * 896 + (n - 14) * 28672)
        P(f's_add_u32 s{sT0}, s{sA1}, {off}')
        dma(self.vm, 2, SWO if n < 14 else SW2, sT0, sMX, 4096 * n, ('cw', n))


def flag_poll_issue(vm, vP, vPo, tag):
    P(f'buffer_load_dword v{vP}, v{vPo}, {srd(SWS)}, 0 offen sc1')
    vm.issue(tag)


def flag_poll_check(vm, name, vP, vPo, tag):
    vm.wait(tag)
    P(f'v_cmp_ne_u32 vcc, s{sTAG}, v{vP}\ns_cbranch_vccz {name}_ok')
    P.label(name)
    spin_guard(name + '_ok')
    P(f's_sleep 2\nbuffer_load_dword v{vP}, v{vPo}, {srd(SWS)}, 0 offen sc1\ns_waitcnt vmcnt(0)')
    P(f'v_cmp_ne_u32 vcc, s{sTAG}, v{vP}\ns_cbranch_vccnz {name}')
    P.label(name + '_ok')


def L_phase2(w2):
    vm = w2.vm
    P.label('L_P2L')
    P(f's_add_u32 s{sTAG}, s{sTAG}, 1')
    P('s_barrier')
    stamp(7)
    w2.free += [0, 1, 2, 3, 12, 13, 14, 15, 16, 17, 18]
    vP, vPo = LA, LA + 1
    P(f'''s_mul_i32 s{sT0}, s{sI}, {LSTEPS * 4682}
s_lshr_b32 s{sT1}, s{sT0}, 16
s_add_u32 s{sT0}, s{sT0}, {(LSTEPS - 1) * 4682}
s_lshr_b32 s{sT0}, s{sT0}, 16
v_lshrrev_b32 v{vPo}, 1, v0
v_add_u32 v{vPo}, s{sT1}, v{vPo}
v_min_u32 v{vPo}, s{sT0}, v{vPo}
v_lshlrev_b32 v{vPo}, 2, v{vPo}
v_and_b32 v{vP}, 1, v0
v_lshl_add_u32 v{vPo}, v{vP}, 7, v{vPo}
s_lshl_b32 s{sT0}, s{sRT}, 8
s_add_u32 s{sT0}, s{sT0}, {WS_FLAGS}
v_add_u32 v{vPo}, s{sT0}, v{vPo}''')
    for k in range(9, 12):
        w2.own(k)
    w2.stage([0, 1, 2])
    w2.own(12)
    w2.stage([3, 4, 5])
    for k in range(13, 15):
        w2.own(k)
    w2.stage([6, 7, 8])
    for k in range(15, 18):
        w2.own(k)
    w2.stage([9, 10, 11])
    for k in range(18, 20):
        w2.own(k)
    done = 0

    def cws(n):
        nonlocal done
        for g in sorted(w2.free)[:n]:
            w2.cw(g)
            done += 1
    cws(2)
    w2.stage([12, 13, 14])
    cws(6)
    w2.stage([15, 16, 17])
    cws(4)
    w2.stage([18, 19])
    cws(8)
    flag_poll_issue(vm, vP, vPo, 'poll')
    cws(10)
    assert done == NGRP
    lastcw = vm.n
    stamp(8)
    flag_poll_check(vm, 'L_pollL', vP, vPo, 'poll')
    stamp(9)
    P(f'''s_mul_i32 s{sA0}, s{sRT}, {2 * NS * 1024}
s_mul_i32 s{sT0}, s{sI}, {LSTEPS * 1024}
s_add_u32 s{sA0}, s{sA0}, s{sT0}
s_add_u32 s{sA0}, s{sA0}, {WS_ACT}
s_cmp_ge_u32 s{sI}, 2
s_cselect_b32 s{sT0}, {NS * 1024}, 0
s_cselect_b32 s{sT1}, 0, {NS * 1024}
s_add_u32 s{sA1}, s{sA0}, s{sT1}
s_add_u32 s{sA0}, s{sA0}, s{sT0}''')
    free = [LA + 4 * n for n in range(6)]
    aloc = {}
    nxt = 0

    def loads(maxsteps_ahead, cur):
        nonlocal nxt
        while nxt < LSTEPS and len(free) >= 2 and nxt - cur < maxsteps_ahead:
            aloc[nxt] = [free.pop(0), free.pop(0)]
            for th in range(2):
                P(f'buffer_load_dwordx4 {vr(aloc[nxt][th])}, v1, {srd(SWS)}, s{sA0 + th} offen offset:{(nxt % 4) * 1024} sc1')
                vm.issue(('a', nxt, th))
            if nxt % 4 == 3:
                P(f's_add_u32 s{sA0}, s{sA0}, 4096\ns_add_u32 s{sA1}, s{sA1}, 4096')
            nxt += 1
    loads(OPT['lahead'], 0)
    vm.wait(lastcw)
    P('s_barrier')
    stamp(10)
    for k in range(LSTEPS):
        for th in range(2):
            vm.wait(('a', k, th))
            for ch in range(2):
                a = LACC + 32 * th + 16 * ch
                c = '0' if k == 0 else vr(a, 16)
                P(f'v_mfma_f32_32x32x16_bf16 {vr(a, 16)}, {vr(LW + 8 * k + 4 * ch)}, {vr(aloc[k][th])}, {c}')
        free.extend(aloc[k])
        free.extend([LW + 8 * k, LW + 8 * k + 4])
        loads(OPT['lahead'], k + 1)
    stamp(11)
    vA0, vA2, vA3, vF, vOne, vSy = 8, 9, 10, 11, 12, 13
    P(f'''s_lshl_b32 s{sT0}, s{sI}, 13
v_add_u32 v{vA0}, s{sT0}, v1
v_xor_b32 v{vA2}, 0x4000, v{vA0}
v_xor_b32 v{vA3}, 0x6000, v{vA0}
v_add_u32 v{vA0}, {XB}, v{vA0}
v_add_u32 v{vA2}, {XB}, v{vA2}
v_add_u32 v{vA3}, {XB}, v{vA3}
v_mov_b32 v{vSy}, {SYNC}
v_lshl_add_u32 v{vF}, s{sI}, 2, v{vSy}
v_mov_b32 v{vOne}, 1''')
    for n in range(8):
        P(f'ds_write_b128 v{vA0}, {vr(LACC + 32 + 4 * n)} offset:{1024 * n}')
    fin_xload()
    P(f's_waitcnt lgkmcnt(0)\nds_write_b32 v{vF}, v{vOne} offset:16')
    lds_poll('L_r1', 16, vSy, 16)
    T = 20
    for n in (4, 5, 6, 7, 0, 1, 2, 3):
        P(f'ds_read_b128 {vr(T + 4 * n)}, v{vA2} offset:{1024 * n}')
    P('s_waitcnt lgkmcnt(4)')
    for r in range(8, 16):
        P(f'v_pk_add_f32 {vr(LACC + 2 * r, 2)}, {vr(LACC + 2 * r, 2)}, {vr(T + 2 * r, 2)}')
    P('s_waitcnt lgkmcnt(0)')
    for n in range(4):
        P(f'ds_write_b128 v{vA2}, {vr(LACC + 16 + 4 * n)} offset:{1024 * n}')
    for r in range(8):
        P(f'v_pk_add_f32 {vr(LACC + 2 * r, 2)}, {vr(LACC + 2 * r, 2)}, {vr(T + 2 * r, 2)}')
    P(f's_waitcnt lgkmcnt(0)\nds_write_b32 v{vF}, v{vOne} offset:48')
    lds_poll('L_r2', 16, vSy, 48)
    for n in range(4):
        P(f'ds_read_b128 {vr(T + 4 * n)}, v{vA3} offset:{1024 * n}')
    P('s_waitcnt lgkmcnt(0)')
    for r in range(8):
        P(f'v_pk_add_f32 {vr(LACC + 2 * r, 2)}, {vr(LACC + 2 * r, 2)}, {vr(T + 2 * r, 2)}')
    for n in range(4):
        P(f'ds_write_b128 v{vA2}, {vr(LACC + 4 * n)} offset:{4096 + 1024 * n}')
    P(f's_waitcnt lgkmcnt(0)\nds_write_b32 v{vF}, v{vOne} offset:32')
    stamp(12)
    P('s_branch L_FIN')


FX = 4


def fin_xload():
    P(f'''v_lshrrev_b32 v1, 3, v0
v_lshl_add_u32 v1, s{sWAVE}, 3, v1
v_mul_u32_u24 v3, 896, v1
v_and_b32 v2, 7, v0
v_lshl_add_u32 v3, v2, 4, v3
s_mul_i32 s{sT2}, s{sRT}, {64 * 896}
s_lshl_b32 s{sT0}, s{sCT}, 7
s_add_u32 s{sT2}, s{sT2}, s{sT0}
buffer_load_dwordx4 {vr(FX)}, v3, {srd(SX)}, s{sT2} offen''')


L_common_setup()
P(f's_cmp_eq_u32 s{sISQ}, 1\ns_cbranch_scc1 L_LQ')
w2h = L_phase1(False)
P.label('L_LQ')
w2q = L_phase1(True)
assert w2h.loc == w2q.loc and w2h.free == w2q.free
assert w2h.vm.n - w2h.vm.done == w2q.vm.n - w2q.vm.done
L_phase2(w2q)

CW = 112
CX = 144
CHX = 152
cXA = 160
cHA = 164
cWA = 168
cWB = 171
cST = 174
cSO = 178
cBE = 180
cR = 188
cM32 = 192
cM48 = 193
cL16 = 194
cCSA = 195
cBA, cBB, cBA0 = 200, 204, 208
cVW, cVWH, cVR, cKX, cSY, cOO = 212, 213, 214, 215, 216, 217
cT = 220

P.label('L_C')
P(f'''v_and_b32 v{cT}, 31, v0
v_lshrrev_b32 v{cT + 1}, 5, v0
v_mul_u32_u24 v{cT + 2}, 896, v{cT + 1}
v_lshl_add_u32 v{cT + 2}, v{cT}, 4, v{cT + 2}
v_cmp_gt_u32 vcc, 28, v{cT}
v_mov_b32 v{cT + 3}, 0x10000000
v_cndmask_b32 v{cT + 2}, v{cT + 3}, v{cT + 2}, vcc
v_cndmask_b32 v{cT + 3}, 0, 1.0, vcc
s_lshl_b32 s{sT0}, s{sRB}, 7
s_lshl_b32 s{sT1}, s{sCG}, 3
s_add_u32 s{sT0}, s{sT0}, s{sT1}
s_lshl_b32 s{sT1}, s{sI}, 1
s_add_u32 s{sT3}, s{sT0}, s{sT1}
s_mul_i32 s{sT0}, s{sT3}, 896
s_waitcnt lgkmcnt(0)''')
mk_srd(SX, 4, 2048 * 896)
stamp(0)
P(f'''buffer_load_dwordx4 v[0+4:7], v{cT + 2}, {srd(SX)}, s{sT0} offen
buffer_load_dwordx4 v[8:11], v{cT + 2}, {srd(SX)}, s{sT0} offen offset:448'''.replace('0+4', '4'))
P(f's_load_dword s{sTAG}, s[20:21], 0')
npf = 0
mk_srd(SWS, 20, WS_BYTES)
mk_srd(SOUT, 16, 2048 * 896)
if OPT['pf_code']:
    P('s_getpc_b64 s[22:23]')
    P.label('L_pc')
    P(f'''s_sub_u32 s22, s22, L_pc-{NAME}_kernel
s_subb_u32 s23, s23, 0
s_bfe_u32 s{sT1}, s2, 0x10003
s_lshl_b32 s{sT1}, s{sT1}, 2
s_add_u32 s{sT1}, s{sT1}, s{sI}
s_lshl_b32 s{sT1}, s{sT1}, 13
v_lshlrev_b32 v{cT + 4}, 7, v0
v_add_u32 v{cT + 4}, s{sT1}, v{cT + 4}
v_min_u32 v{cT + 4}, L_END-{NAME}_kernel, v{cT + 4}
global_load_dword v{cT + 8}, v{cT + 4}, s[22:23]''')
    npf += 1
if OPT['pf_w']:
    mk_srd(SWO, 8, 448 * 896)
    mk_srd(SW2, 14, 1792 * 896)
    P(f'''s_lshl_b32 s{sT1}, s2, 2
s_add_u32 s{sT1}, s{sT1}, s{sI}
s_lshl_b32 s{sT1}, s{sT1}, 11
v_lshlrev_b32 v{cT + 5}, 7, v0
v_cmp_gt_u32 vcc, 16, v0
v_mov_b32 v{cT + 6}, 0x10000000
v_cndmask_b32 v{cT + 5}, v{cT + 6}, v{cT + 5}, vcc
buffer_load_dword v{cT + 7}, v{cT + 5}, {srd(SW2)}, s{sT1} offen
buffer_load_dword v{cT + 7}, v{cT + 5}, {srd(SWO)}, s{sT1} offen''')
    npf += 2
if OPT.get('pf_tlb'):
    sh = OPT['pf_tlb']
    P(f'''v_lshl_add_u32 v{cT + 9}, s{sI}, 6, v0
v_lshlrev_b32 v{cT + 9}, {sh}, v{cT + 9}
buffer_load_dword v{cT + 7}, v{cT + 9}, {srd(SWS)}, 0 offen sc1
buffer_load_dword v{cT + 7}, v{cT + 9}, {srd(SOUT)}, 0 offen sc1''')
    npf += 2
P(f'''v_mov_b32 v{cSY}, {SYNC}
v_mov_b32 v12, 0
v_lshlrev_b32 v13, 2, v0
v_add_u32 v13, {SYNC}, v13
ds_write_b32 v13, v12
v_lshlrev_b32 v{cL16}, 4, v0
v_lshrrev_b32 v{cM32}, 5, v0
v_add_u32 v{cM32}, -1, v{cM32}''')
P(f'''v_and_b32 v12, 31, v0
v_lshl_add_u32 v12, s{sI}, 5, v12
v_lshrrev_b32 v13, 1, v12
v_lshrrev_b32 v14, 5, v0
v_xor_b32 v13, v13, v14
v_and_b32 v13, 7, v13
v_lshlrev_b32 v13, 4, v13
v_lshl_add_u32 v{cXA}, v12, 7, v13
v_xor_b32 v{cXA + 1}, 32, v{cXA}
v_xor_b32 v{cXA + 2}, 64, v{cXA}
v_xor_b32 v{cXA + 3}, 96, v{cXA}
s_lshl_b32 s{sT1}, s{sRB}, 10
s_add_u32 s{sT1}, s{sT1}, {WS_STATS}
v_lshlrev_b32 v12, 3, v12
v_add_u32 v{cSO}, s{sT1}, v12
v_and_b32 v12, 31, v0
v_lshlrev_b32 v12, 3, v12
v_add_u32 v{cCSA}, {CS}, v12''')
P(f'''s_lshl_b32 s{sT0}, s{sRB}, 2
s_add_u32 s{sT0}, s{sT0}, s{sI}
s_mul_i32 s{sA0}, s{sT0}, {NS * 1024}
s_add_u32 s{sA0}, s{sA0}, {WS_ACT}
s_lshl_b32 s{sA1}, s{sT0}, 7
s_lshl_b32 s{sT1}, s{sCG}, 2
s_add_u32 s{sA1}, s{sA1}, s{sT1}
s_add_u32 s{sA1}, s{sA1}, {WS_FLAGS}
s_mov_b32 s{sXO}, s{sT0}
s_cmp_eq_u32 s{sISQ}, 1
s_cbranch_scc1 L_CQ''')


def red32(a, t):
    for sh in (8, 4, 2, 1):
        P(f'v_add_f32_dpp v{a}, v{a}, v{a} row_ror:{sh} row_mask:0xf bank_mask:0xf')
    P(f'v_mov_b32 v{t}, v{a}\nv_permlane16_swap_b32 v{t}, v{a}\nv_add_f32 v{a}, v{a}, v{t}')


def stats_compute():
    P(f's_waitcnt vmcnt({npf})')
    for n in range(8):
        P(f'v_lshlrev_b32 v{16 + 2 * n}, 16, v{4 + n}\nv_and_b32 v{17 + 2 * n}, 0xffff0000, v{4 + n}')
    P('v_add_f32 v12, v16, v17\nv_add_f32 v13, v18, v19')
    for n in range(2, 8):
        P(f'v_add_f32 v{12 + n % 2}, v{12 + n % 2}, v{16 + 2 * n}\nv_add_f32 v{12 + n % 2}, v{12 + n % 2}, v{17 + 2 * n}')
    P('v_add_f32 v12, v12, v13')


    red32(12, 13)
    P('v_mul_f32 v12, 0x3b124925, v12')
    for n in range(16):
        P(f'v_sub_f32 v{16 + n}, v{16 + n}, v12')
    P('v_mul_f32 v14, v16, v16\nv_mul_f32 v15, v17, v17')
    for n in range(2, 16):
        P(f'v_fmac_f32 v{14 + n % 2}, v{16 + n}, v{16 + n}')
    P(f'v_add_f32 v14, v14, v15\nv_mul_f32 v14, v14, v{cT + 3}')
    red32(14, 13)
    P(f'''v_mul_f32 v14, 0x3b124925, v14
v_cvt_pk_bf16_f32 v14, 0, v14
v_add_f32 v14, 0x3727c5ac, v14
v_cvt_pk_bf16_f32 v14, 0, v14
v_sqrt_f32 v14, v14
v_cvt_pk_bf16_f32 v14, v12, v14
s_waitcnt lgkmcnt(0)
s_add_u32 s{sTAG}, s{sTAG}, 1
v_mov_b32 v15, s{sTAG}
v_lshlrev_b32 v13, 3, v{cT + 1}
s_lshl_b32 s{sT3}, s{sT3}, 3
s_add_u32 s{sT3}, s{sT3}, {WS_STATS}
s_mov_b64 exec, 0x100000001
buffer_store_dwordx2 v[14:15], v13, {srd(SWS)}, s{sT3} offen sc1
s_mov_b64 exec, -1'''.replace('s_mov_b64 exec, 0x100000001', 's_mov_b32 exec_lo, 1\ns_mov_b32 exec_hi, 1'))
    stamp(13)


def C_phase1(isq):
    t = 'Q' if isq else 'H'
    lg = Q(P, 'lgkmcnt', 15)
    LA_, HOLD = OPT['la'], OPT['hold']
    if isq:
        q_tile_addr(cWB, 0, 12, 13, 14)
        q_tile_addr(cWB + 1, 1, 12, 13, 14)
        P(f'''s_bitcmp1_b32 s{sI}, 0
s_cselect_b64 vcc, -1, 0
s_lshr_b32 s{sT0}, s{sI}, 1
s_add_u32 s{sT0}, s{sT0}, 1
s_lshl_b32 s{sT0}, s{sT0}, 13
v_cndmask_b32 v{cWB + 2}, v{cWB}, v{cWB + 1}, vcc
v_add_u32 v{cWB + 2}, s{sT0}, v{cWB + 2}
s_lshl_b32 s{sT0}, s{sI}, 8
s_add_u32 s{sT0}, s{sT0}, 512
v_add_u32 v{cCSA + 1}, s{sT0}, v{cCSA}
v_and_b32 v12, 15, v0
v_lshrrev_b32 v13, 1, v12
v_lshrrev_b32 v14, 5, v0
v_xor_b32 v13, v13, v14
v_lshlrev_b32 v13, 4, v13
v_lshl_add_u32 v13, v12, 7, v13
v_add_u32 v{cHA}, {HALO}, v13
v_xor_b32 v{cHA + 1}, 32, v{cHA}
v_xor_b32 v{cHA + 2}, 64, v{cHA}
v_xor_b32 v{cHA + 3}, 96, v{cHA}
s_lshl_b32 s{sT1}, s{sRB}, 10
s_max_u32 s{sT1}, s{sT1}, 128
s_add_u32 s{sT1}, s{sT1}, {WS_STATS - 128}
v_lshlrev_b32 v13, 3, v12
v_add_u32 v{cSO + 1}, s{sT1}, v13
v_cmp_gt_u32 vcc, 48, v0
v_cndmask_b32 v{cM48}, 0, -1, vcc
v_lshrrev_b32 v13, 4, v0
v_lshlrev_b32 v13, 2, v13
v_sub_u32 v13, v12, v13
v_mov_b32 v15, 0xf149f2ca''')
        for r in range(4):
            for (d, add) in ((cBA, 16), (cBB, 0)):
                P(f'''v_add_u32 v14, {add - r}, v13
v_and_b32 v14, -15, v14
v_cmp_eq_u32 vcc, 0, v14
v_cndmask_b32 v{d + r}, v15, 0, vcc''')
        P(f's_cmp_eq_u32 s{sXO}, 0\ns_cselect_b64 vcc, -1, 0')
        for r in range(4):
            P(f'v_cndmask_b32 v{cBA0 + r}, v{cBA + r}, v15, vcc')
        P(f'''v_and_b32 v13, 31, v0
v_lshl_add_u32 v13, s{sI}, 5, v13
v_mul_u32_u24 v13, {VSTR}, v13
v_lshrrev_b32 v14, 5, v0
v_lshl_add_u32 v13, v14, 3, v13
v_add_u32 v{cVW}, {VREG + 16 * VSTR}, v13
v_mul_u32_u24 v13, {VSTR}, v12
v_lshl_add_u32 v13, v14, 3, v13
s_and_b32 s{sT0}, s{sI}, 1
s_mul_i32 s{sT0}, s{sT0}, {144 * VSTR}
s_add_u32 s{sT0}, s{sT0}, {VREG}
v_add_u32 v{cVWH}, s{sT0}, v13
v_lshrrev_b32 v13, 2, v0
v_lshl_add_u32 v13, s{sI}, 5, v13
v_mul_u32_u24 v13, {VSTR}, v13
v_and_b32 v14, 3, v0
v_lshl_add_u32 v13, v14, 3, v13
v_add_u32 v{cVR}, {VREG}, v13
s_lshl_b32 s{sT0}, s{sI}, 11
s_add_u32 s{sT0}, s{sT0}, {KX}
v_add_u32 v{cKX}, s{sT0}, v{cL16}
v_lshrrev_b32 v13, 4, v0
v_lshlrev_b32 v13, 9, v13
v_lshl_add_u32 v{cOO}, v12, 4, v13''')
        nb = 3
    else:
        h_tile_addr(cWB, 12, 13)
        nb = 1

    def set_slot(s):
        for b in range(nb):
            P(f'v_add_u32 v{cWA + b}, {WSL[s % 3]}, v{cWB + b}')

    def reads(n):
        slot = CW + 4 * (n % 8)
        if n >= 196:
            tl = n - 196
            if isq:
                u = [0, 2, 4, 1, 3, 5][tl] if tl < 6 else None
                if u is None:
                    P(f'ds_read_b64 {vr(slot, 2)}, v{cCSA + 1}')
                else:
                    P(f'ds_read_b64 {vr(slot, 2)}, v{cCSA} offset:{256 * u}')
            else:
                P(f'ds_read_b64 {vr(slot, 2)}, v{cCSA} offset:{256 * tl}')
            lg.issue(('w', n))
            return
        ks, tl = divmod(n, 7)
        s, j = divmod(ks, 4)
        if tl == 0:
            P(f'ds_read_b128 {vr(CX + 4 * (ks % 2))}, v{cXA + j} offset:{XS[s % 3]}')
            lg.issue()
        if isq:
            if tl == 6:
                P(f'ds_read_b128 {vr(CHX + 4 * (ks % 2))}, v{cHA + j} offset:{2048 * s}')
                lg.issue()
                a, o = cWA + 2, 0
            else:
                a, o = cWA + tl // 3, (tl % 3) * 8192
            o += j * 2048
            o2 = o + 512
        else:
            a, o = cWA, j * 7168 + tl * 64
            o2 = o + 4 * 448
        P(f'ds_read_b64_tr_b16 {vr(slot, 2)}, v{a} offset:{o}')
        lg.issue()
        P(f'ds_read_b64_tr_b16 {vr(slot + 2, 2)}, v{a} offset:{o2}')
        lg.issue(('w', n))

    def stats_issue():
        P(f'buffer_load_dwordx2 {vr(cST, 2)}, v{cSO}, {srd(SWS)}, 0 offen sc1')
        if isq:
            P(f'buffer_load_dwordx2 {vr(cST + 2, 2)}, v{cSO + 1}, {srd(SWS)}, 0 offen sc1')

    def stats_cmp():
        P(f's_waitcnt vmcnt(0)\nv_cmp_ne_u32 vcc, s{sTAG}, v{cST + 1}')
        if isq:
            P(f'v_cmp_ne_u32 s[{sT0}:{sT1}], s{sTAG}, v{cST + 3}\ns_or_b64 vcc, vcc, s[{sT0}:{sT1}]')

    def stats_check():
        stats_cmp()
        P(f's_cbranch_vccz L_{t}stok')
        P.label(f'L_{t}stre')
        spin_guard(f'L_{t}stok')
        P('s_sleep 2')
        stats_issue()
        stats_cmp()
        P(f's_cbranch_vccnz L_{t}stre')
        P.label(f'L_{t}stok')
        for u in range(2 if isq else 1):
            b, g = cBE + 4 * u, cST + 2 * u
            P(f'''v_and_b32 v{cR + 2 * u}, 0xffff0000, v{g}
v_and_b32 v{b + 1}, 0xffff, v{g}
v_rcp_f32 v{cR + 2 * u}, v{cR + 2 * u}
v_xor_b32 v{b + 1}, 0x8000, v{b + 1}
v_and_b32 v{b + 1}, v{b + 1}, v{cM32}
v_lshl_or_b32 v{b}, v{b + 1}, 16, v{b + 1}
v_mov_b32 v{b + 2}, 0
v_mov_b32 v{b + 3}, 0''')

    NT = 203
    set_slot(0)
    stats_compute()
    P('s_waitcnt lgkmcnt(0)\ns_barrier')
    stamp(1)
    cstamp(2)
    nr = 0
    while nr < LA_:
        reads(nr)
        nr += 1
    for n in range(NT):
        ks, tl = divmod(n, 7)
        lg.wait(('w', n))
        if n < 196:
            xb = (CHX if (isq and tl == 6) else CX) + 4 * (ks % 2)
        else:
            xb = cBE + (4 if (isq and tl == 6) else 0)
        c = '0' if ks == 0 else vr(16 * tl, 16)
        P(f'v_mfma_f32_32x32x16_bf16 {vr(16 * tl, 16)}, {vr(CW + 4 * (n % 8))}, {vr(xb)}, {c}')
        if n == 28 * 5 + 2:
            stats_issue()
        if n == 28 * 6 + 8:
            stats_check()
        if nr < NT:
            if nr % 28 == 0 and nr > 0 and nr <= 196:
                if (nr - n - 1) <= LA_ - HOLD:
                    s = nr // 28
                    if s < 7:
                        set_slot(s)
                    lg.all()
                    if s == 4:
                        stamp(3)
                    P('s_barrier')
                    if s in (4, 6, 7):
                        stamp({4: 5, 6: 6, 7: 7}[s])
                    while nr < NT and nr <= n + LA_:
                        reads(nr)
                        nr += 1
            else:
                while nr < NT and nr <= n + LA_ and not (nr % 28 == 0 and nr <= 196):
                    reads(nr)
                    nr += 1
    if OPT['prio']:
        P('s_setprio %d' % OPT['prio'])
    stamp(8)
    cstamp(4)

    def scale_pack(tl, r):
        a = 16 * tl
        for i in range(8):
            P(f'v_pk_mul_f32 {vr(a + 2 * i, 2)}, {vr(a + 2 * i, 2)}, {vr(r, 2)} op_sel_hi:[1,0]')
        for i in range(8):
            P(f'v_cvt_pk_bf16_f32 v{a + i}, v{a + 2 * i}, v{a + 2 * i + 1}')

    def swaps(tl):
        for i in range(4):
            P(f'v_permlane16_swap_b32 v{16 * tl + i}, v{16 * tl + 4 + i}')

    if not isq:
        P(f's_mul_i32 s{sT0}, s{sIDX}, {14 * 1024}\ns_add_u32 s{sT0}, s{sT0}, s{sA0}')
        for tl in range(7):
            scale_pack(tl, cR)
            for i in range(8):
                P(f'v_pk_max_i16 v{16 * tl + i}, v{16 * tl + i}, 0')
            for j in range(2):
                P(f'buffer_store_dwordx4 {vr(16 * tl + 4 * j)}, v{cL16}, {srd(SWS)}, s{sT0} offen offset:{(2 * tl + j) % 4 * 1024} sc1')
            if tl % 2 == 1:
                P(f's_add_u32 s{sT0}, s{sT0}, 4096')
        P('s_branch L_CFLAG')
        return
    for e in range(2):
        scale_pack(3 * e + 1, cR)
        scale_pack(3 * e + 2, cR)
        swaps(3 * e + 1)
        for q in range(4):
            P(f'ds_write_b64 v{cVW}, {vr(16 * (3 * e + 2) + 2 * q, 2)} offset:{e * 144 * VSTR + 16 * q}')
    scale_pack(6, cR + 2)
    P(f's_cmp_eq_u32 s{sI}, 3\ns_cbranch_scc1 L_nokx')
    for e in range(2):
        P(f'ds_write_b128 v{cKX}, {vr(16 * (3 * e + 1) + 4)} offset:{2048 + 1024 * e}')
    P.label('L_nokx')
    P(f's_cmp_ge_u32 s{sI}, 2\ns_cbranch_scc1 L_halov')
    swaps(6)
    P(f'''s_mul_i32 s{sT0}, s{sI}, 1024
v_subrev_u32 v{cT}, s{sT0}, v{cKX}
ds_write_b128 v{cT}, {vr(96)}
s_branch L_halod''')
    P.label('L_halov')
    for q in range(4):
        P(f'ds_write_b64 v{cVWH}, {vr(96 + 2 * q, 2)} offset:{16 * q}')
    P.label('L_halod')
    P(f'''v_lshl_add_u32 v{cT}, s{sI}, 2, v{cSY}
v_mov_b32 v{cT + 1}, 1
s_waitcnt lgkmcnt(0)
ds_write_b32 v{cT}, v{cT + 1}''')
    for e in range(2):
        scale_pack(3 * e, cR)
        P(f'v_and_b32 v{48 * e + 6}, v{48 * e + 6}, v{cM32}\nv_and_b32 v{48 * e + 7}, v{48 * e + 7}, v{cM32}')
        swaps(3 * e)
    lds_poll('L_attp', cT, cSY, 0)
    KP = 112
    VO = 120
    S = 220
    for e in range(2):
        P(f'ds_read_b128 {vr(KP + 4 * e)}, v{cKX} offset:{1024 * e}')
    for e in range(2):
        for dt in range(2):
            for kt in range(3):
                P(f'ds_read_b64_tr_b16 {vr(VO + 12 * e + 6 * dt + 2 * kt, 2)}, v{cVR} offset:{e * 144 * VSTR + kt * 16 * VSTR + 32 * dt}')
    units = [(0, 1), (1, 1), (0, 0), (1, 0)]
    for u, (e, tq) in enumerate(units):
        qop = vr(48 * e + 4 * tq)
        kb = vr(48 * e + 16 + 4 * tq)
        P(f'v_mfma_f32_16x16x32_bf16 {vr(S + 8 * u + 4)}, {kb}, {qop}, {vr(cBB)}')
    for u, (e, tq) in enumerate(units):
        qop = vr(48 * e + 4 * tq)
        if u == 2:
            P('s_waitcnt lgkmcnt(12)')
        ka = vr(48 * e + 16) if tq else vr(KP + 4 * e)
        P(f'v_mfma_f32_16x16x32_bf16 {vr(S + 8 * u)}, {ka}, {qop}, {vr(cBA if tq else cBA0)}')
    M = 8
    P(f's_mov_b32 s{sT1}, 0x3e8b9a4d')
    U = range(4)
    for u in U:
        P(f'v_max3_f32 v{M + u}, v{S + 8 * u + 4}, v{S + 8 * u + 5}, v{S + 8 * u + 6}')
    for u in U:
        P(f'v_max3_f32 v{M + u}, v{M + u}, v{S + 8 * u + 7}, v{S + 8 * u}')
    for u in U:
        P(f'v_max3_f32 v{M + u}, v{M + u}, v{S + 8 * u + 1}, v{S + 8 * u + 2}')
    for u in U:
        P(f'v_max_f32 v{M + u}, v{M + u}, v{S + 8 * u + 3}')

    def xl(op):
        for sw in ('16', '32'):
            for u in U:
                P(f'v_mov_b32 v{M + 4 + u}, v{M + u}')
            for u in U:
                P(f'v_permlane{sw}_swap_b32 v{M + 4 + u}, v{M + u}')
            for u in U:
                P(f'{op} v{M + u}, v{M + u}, v{M + 4 + u}')
    xl('v_max_f32')
    for u in U:
        P(f'v_mul_f32 v{M + u}, s{sT1}, v{M + u}')
    for u in U:
        for i in range(8):
            P(f'v_fma_f32 v{S + 8 * u + i}, v{S + 8 * u + i}, s{sT1}, -v{M + u}')
        for i in range(8):
            P(f'v_exp_f32 v{S + 8 * u + i}, v{S + 8 * u + i}')
    for u in U:
        P(f'v_add_f32 v{M + u}, v{S + 8 * u}, v{S + 8 * u + 1}')
    for i in range(2, 8):
        for u in U:
            P(f'v_add_f32 v{M + u}, v{M + u}, v{S + 8 * u + i}')
    xl('v_add_f32')
    RI = 24
    for u in U:
        P(f'v_rcp_f32 v{RI + 2 * u}, v{M + u}')
    for u in U:
        for i in range(4):
            P(f'v_pk_mul_f32 {vr(S + 8 * u + 2 * i, 2)}, {vr(S + 8 * u + 2 * i, 2)}, {vr(RI + 2 * u, 2)} op_sel_hi:[1,0]')
        for i in range(4):
            P(f'v_cvt_pk_bf16_f32 v{S + 8 * u + i}, v{S + 8 * u + 2 * i}, v{S + 8 * u + 2 * i + 1}')
    P('s_waitcnt lgkmcnt(0)')
    O = 32
    for u, (e, tq) in enumerate(units):
        for dt in range(2):
            P(f'v_mfma_f32_16x16x32_bf16 {vr(O + 8 * u + 4 * dt)}, {vr(VO + 12 * e + 6 * dt + 2 * tq)}, {vr(S + 8 * u)}, 0')
    P(f'''s_lshl_b32 s{sT0}, s{sIDX}, 12
s_add_u32 s{sT0}, s{sT0}, s{sA0}
s_add_u32 s{sT0}, s{sT0}, {112 * 1024}''')
    for u, (e, tq) in enumerate(units):
        for i in range(4):
            P(f'v_cvt_pk_bf16_f32 v{O + 8 * u + i}, v{O + 8 * u + 2 * i}, v{O + 8 * u + 2 * i + 1}')
        P(f'v_and_b32 v{O + 8 * u + 2}, v{O + 8 * u + 2}, v{cM48}\nv_and_b32 v{O + 8 * u + 3}, v{O + 8 * u + 3}, v{cM48}')
        P(f'buffer_store_dwordx4 {vr(O + 8 * u)}, v{cOO}, {srd(SWS)}, s{sT0} offen offset:{2048 * e + 256 * tq} sc1')


C_phase1(False)
P.label('L_CQ')
C_phase1(True)
P.label('L_CFLAG')
stamp(9)
P(f'''v_lshrrev_b32 v0, 4, v{cL16}
v_mov_b32 v1, 0
v_mov_b32 v2, s{sTAG}
s_waitcnt vmcnt(0)
s_mov_b64 exec, 1
buffer_store_dword v2, v1, {srd(SWS)}, s{sA1} offen sc1
s_mov_b64 exec, -1''')
stamp(10)
P(f'''s_cmp_lt_u32 s{sCT}, 7
s_cbranch_scc1 L_P2C
s_cmp_lg_u32 s2, 255
s_cbranch_scc1 L_EXIT
s_cmp_lg_u32 s{sWAVE}, 4
s_cbranch_scc1 L_EXIT
v_lshlrev_b32 v3, 7, v0
v_add_u32 v3, {WS_FLAGS}, v3''')
P.label('L_bump')
spin_guard('L_EXIT')
P('s_sleep 8')
for n in range(4):
    P(f'buffer_load_dwordx4 {vr(4 + 4 * n)}, v3, {srd(SWS)}, 0 offen offset:{16 * n} sc1')
P('s_waitcnt vmcnt(0)')
for n in range(16):
    P(f'v_xor_b32 v{4 + n}, v{4 + n}, v2')
for n in range(1, 16):
    P(f'v_or_b32 v4, v4, v{4 + n}')
P(f'''v_cmp_ne_u32 vcc, 0, v4
s_cbranch_vccnz L_bump
s_mov_b64 exec, 1
buffer_store_dword v2, v1, {srd(SWS)}, 0 offen sc1
s_mov_b64 exec, -1
s_branch L_EXIT''')

CACC = 16
CWR = 48
CAR = 80
NAR = 20
cA2 = 160
cP, cPo = 164, 165
P.label('L_P2C')
if OPT['prio']:
    P('s_setprio 0')
w2_tr_addr(cA2, cA2 + 1, 12, 13)
P(f'''s_and_b32 s{sT3}, s{sI}, 1
s_lshl_b32 s{sT0}, s{sRT}, 1
s_add_u32 s{sT0}, s{sT0}, s{sT3}
s_mul_i32 s{sA0}, s{sT0}, {NS * 1024}
s_lshl_b32 s{sT0}, s{sT0}, 7
s_add_u32 s{sT0}, s{sT0}, {WS_FLAGS}
s_cmp_ge_u32 s{sI}, 2
s_cselect_b32 s{sT1}, {CH0 // 14}, 8
s_cselect_b32 s{sT2}, 7, 15
v_add_u32 v{cPo}, s{sT1}, v0
v_min_u32 v{cPo}, s{sT2}, v{cPo}
v_lshlrev_b32 v{cPo}, 2, v{cPo}
v_add_u32 v{cPo}, s{sT0}, v{cPo}
s_cselect_b32 s{sT1}, 0, {CHN * 1024}
s_add_u32 s{sA0}, s{sA0}, s{sT1}
s_add_u32 s{sA0}, s{sA0}, {WS_ACT + CH0 * 1024}''')
fin_xload()
P('s_barrier')
stamp(11)
vmC = Q(P, 'vmcnt', 63)
flag_poll_issue(vmC, cP, cPo, 'poll')
flag_poll_check(vmC, 'L_pollC', cP, cPo, 'poll')
stamp(12)
P(f's_cmp_ge_u32 s{sI}, 2\ns_cbranch_scc1 L_P2H')


def C_phase2(kind):
    vm = Q(P, 'vmcnt', 63)
    lg = Q(P, 'lgkmcnt', 15)
    steps = 32 if kind == 0 else CHN
    base = [0]

    def aload(k):
        P(f'buffer_load_dwordx4 {vr(CAR + 4 * (k % NAR))}, v{cL16}, {srd(SWS)}, s{sA0} offen offset:{(k % 4) * 1024} sc1')
        vm.issue(('a', k))
        if k % 4 == 3:
            P(f's_add_u32 s{sA0}, s{sA0}, 4096')

    def wread(k):
        if kind == 0:
            o = (28 * (k // 2) + 8 * (k % 2)) * 128
            o2 = o + 16 * 128
        else:
            o = (448 + 16 * k) * 128
            o2 = o + 8 * 128
        if o2 - base[0] > 65535:
            d = o - base[0]
            P(f'v_add_u32 v{cA2}, {d}, v{cA2}\nv_add_u32 v{cA2 + 1}, {d}, v{cA2 + 1}')
            base[0] = o
        for ch in range(2):
            f = CWR + 8 * (k % 4) + 4 * ch
            P(f'ds_read_b64_tr_b16 {vr(f, 2)}, v{cA2 + ch} offset:{o - base[0]}')
            lg.issue()
            P(f'ds_read_b64_tr_b16 {vr(f + 2, 2)}, v{cA2 + ch} offset:{o2 - base[0]}')
            lg.issue(('w', k, ch))
    for k in range(NAR - 1):
        aload(k)
    for k in range(3):
        wread(k)
    for k in range(steps):
        vm.wait(('a', k))
        for ch in range(2):
            lg.wait(('w', k, ch))
            a = CACC + 16 * ch
            c = '0' if k == 0 else vr(a, 16)
            P(f'v_mfma_f32_32x32x16_bf16 {vr(a, 16)}, {vr(CWR + 8 * (k % 4) + 4 * ch)}, {vr(CAR + 4 * (k % NAR))}, {c}')
        if k + 3 < steps:
            wread(k + 3)
        if k + NAR - 1 < steps:
            aload(k + NAR - 1)
    stamp(13 if False else 14)
    P(f'''v_and_b32 v12, 31, v0
v_lshlrev_b32 v12, 7, v12
v_and_b32 v13, 7, v0
v_lshl_add_u32 v12, v13, 4, v12
v_lshrrev_b32 v13, 5, v0
v_lshl_add_u32 v12, v13, 3, v12
s_lshl_b32 s{sT0}, s{sI}, 13
s_add_u32 s{sT0}, s{sT0}, {XB}
v_add_u32 v12, s{sT0}, v12''')
    for q in range(1, 8):
        P(f'v_xor_b32 v{CAR + q}, {16 * q}, v12')
    if kind == 0:
        for r in range(16):
            P(f'v_cvt_pk_bf16_f32 v{CACC + r}, v{CACC + 2 * r}, v{CACC + 2 * r + 1}')
    lds_poll('L_ldp%d' % kind, 8, cSY, 32)
    if kind == 1:
        P(f'''s_xor_b32 s{sT0}, s{sT3}, 1
s_lshl_b32 s{sT0}, s{sT0}, 14
s_add_u32 s{sT0}, s{sT0}, {XB + 4096}
v_add_u32 v13, s{sT0}, v{cL16}''')
        for n in range(8):
            P(f'ds_read_b128 {vr(CWR + 4 * n)}, v13 offset:{(n // 4) * 8192 + (n % 4) * 1024}')
        P('s_waitcnt lgkmcnt(0)')
        for r in range(16):
            P(f'v_pk_add_f32 {vr(CACC + 2 * r, 2)}, {vr(CACC + 2 * r, 2)}, {vr(CWR + 2 * r, 2)}')
        for r in range(16):
            P(f'v_cvt_pk_bf16_f32 v{CACC + r}, v{CACC + 2 * r}, v{CACC + 2 * r + 1}')
    for q in range(8):
        P(f'ds_write_b64 v{CAR + q if q else 12}, {vr(CACC + 2 * q, 2)}')


C_phase2(0)
P('s_branch L_FIN')
P.label('L_P2H')
C_phase2(1)

P.label('L_FIN')
P(f'''v_xor_b32 v9, v1, v2
v_and_b32 v9, 7, v9
v_lshlrev_b32 v9, 4, v9
v_and_b32 v10, 31, v1
v_lshl_add_u32 v9, v10, 7, v9
s_lshr_b32 s{sT0}, s{sWAVE}, 2
s_lshl_b32 s{sT0}, s{sT0}, 13
s_add_u32 s{sT0}, s{sT0}, {XB}
v_add_u32 v9, s{sT0}, v9
s_mov_b32 s{sT1}, 0xbfb8aa3b
s_waitcnt lgkmcnt(0)
s_barrier
ds_read_b128 v[12:15], v9 offset:16384
ds_read_b128 v[16:19], v9
s_waitcnt vmcnt(0)''')
F, S_, X_, E_ = 20, 28, 36, 44
for n in range(4):
    P(f'v_lshlrev_b32 v{X_ + 2 * n}, 16, v{FX + n}\nv_and_b32 v{X_ + 2 * n + 1}, 0xffff0000, v{FX + n}')
P('s_waitcnt lgkmcnt(1)')
for n in range(4):
    P(f'v_lshlrev_b32 v{F + 2 * n}, 16, v{12 + n}\nv_and_b32 v{F + 2 * n + 1}, 0xffff0000, v{12 + n}')
for n in range(8):
    P(f'v_mul_f32 v{E_ + n}, s{sT1}, v{F + n}')
for n in range(8):
    P(f'v_exp_f32 v{E_ + n}, v{E_ + n}')
P('s_waitcnt lgkmcnt(0)')
for n in range(4):
    P(f'v_lshlrev_b32 v{S_ + 2 * n}, 16, v{16 + n}\nv_and_b32 v{S_ + 2 * n + 1}, 0xffff0000, v{16 + n}')
for n in range(8):
    P(f'v_add_f32 v{E_ + n}, 1.0, v{E_ + n}')
for n in range(8):
    P(f'v_rcp_f32 v{E_ + n}, v{E_ + n}')
for n in range(8):
    P(f'v_mul_f32 v{F + n}, v{F + n}, v{E_ + n}')
for n in range(8):
    P(f'v_fmac_f32 v{X_ + n}, v{S_ + n}, v{F + n}')
for n in range(4):
    P(f'v_cvt_pk_bf16_f32 v{12 + n}, v{X_ + 2 * n}, v{X_ + 2 * n + 1}')
P(f'buffer_store_dwordx4 v[12:15], v3, {srd(SOUT)}, s{sT2} offen' + (' sc1' if OPT['osc1'] else ''))
P.label('L_EXIT')
if DIAG:
    P('s_waitcnt vmcnt(0)')
    stamp(15)
    diag_dump()
P.label('L_END')
P('s_endpgm')

body = P.finalize()
ref = open('cdna_kernels/%s.s.ref' % NAME).read()
hdr = [l for l in ref.split('\n') if l.startswith(';') and '@launch' not in l]
out = '\n'.join(hdr) + '\n; @launch grid=(256,1,1) block=(512,1,1) lds=%d\n' % LDS_BYTES
out += f'''.amdgcn_target "amdgcn-amd-amdhsa--gfx950"
.text
.globl {NAME}_kernel
.p2align 8
.type {NAME}_kernel,@function
{NAME}_kernel:
{body}.section .rodata,"a"
.p2align 6
.amdhsa_kernel {NAME}_kernel
  .amdhsa_next_free_vgpr 256
  .amdhsa_next_free_sgpr 102
  .amdhsa_accum_offset 256
  .amdhsa_group_segment_fixed_size 0
  .amdhsa_kernarg_size 72
  .amdhsa_user_sgpr_count 2
  .amdhsa_user_sgpr_kernarg_segment_ptr 1
  .amdhsa_system_sgpr_workgroup_id_x 1
.end_amdhsa_kernel
'''
open(sys.argv[1], 'w').write(out)
print('instructions', len(P.ins), 'nops inserted', P.nops_inserted)
```

```python
import sys
import itertools
from asmlib import Prog, Q

NAME = 'recurrent_scan__sliding_local_dilated__dense_activation_relu__prompt'
OPT = dict(diag=0, pf_code=1, pf_w=4, la=5, hold=2, wstep=2, prio=1, osc1=1, lahead=14, tm=1, rot=7,
           nfill=2, st_it=1, cs_it=5, wb0h=4, wb0q=5, fla=4, psl=4, wbn=2, clate=1, lpause=0, ds=0, lsl=4, qfirst=0, sfill=1, hw=7, pre5=0, cap=7, dst=0, relu=0, q5=8, h5=16, tch=0, map2=0, n5=2, nobf=0, pl=6, pa=14, spf=0, ipf=0, ipw=7, kh=0x58ffff, kq=0x47ffff, k0=2, sfn=5, stc=1)
for a in sys.argv[2:]:
    k, v = a.split('=')
    OPT[k] = int(v, 0)
PROBE = OPT.get('probe')
DIAG = OPT['diag'] or PROBE is not None

WS_FLAGS = 4096
WS_STATS = 16384
WS_CSUM = 32768
WS_ACT = 262144
WS_DIAG = 0xA00000
WS_BYTES = 0xB00000
NS = 72
LST = 10
CH0 = 4 * LST
CHN = 56 - CH0

XS = [0, 16384, 32768]
WSL = {0: [49152, 77824, 106496], 1: [49152, 73728, 98304]}
NGRP = 14 + CHN
SC = NGRP * 4096
HALO = SC
WIN = 137216
NWIN = 4
ST = WIN + 20480
CS = 161792
SYNC = 163584
VSTR = 72
VREG = SC
KX = SC + 2 * 144 * VSTR
XB = SC
LDS_BYTES = 163840

sSPIN = 3
SPIN_MAX = 0x40000
SX, SW, SWO, SW2, SWS, SOUT = 24, 28, 32, 36, 40, 44
sWAVE, sRB, sIDX, sISQ, sCG, sRT, sCT, sROT, sTAG, sI = range(48, 58)
sT0, sT1, sT2, sT3 = 58, 59, 60, 61
sXO, sWO_, sMX, sMW, sHO, sKB = 62, 63, 64, 65, 66, 67
sA0, sA1 = 68, 69
sPUB = 22
sAB = 62
sST = 70

P = Prog()


def srd(b):
    return 's[%d:%d]' % (b, b + 3)


def vr(a, n=4):
    return 'v[%d:%d]' % (a, a + n - 1)


MUTE = False


def stamp(k):
    if DIAG and not MUTE:
        P('s_memrealtime s[%d:%d]' % (sST + 2 * k, sST + 2 * k + 1))


def cstamp(k):
    if DIAG and PROBE is None:
        P('s_memtime s[%d:%d]' % (sST + 2 * k, sST + 2 * k + 1))


def mk_srd(b, ptr, size):
    P('s_mov_b32 s%d, s%d\ns_mov_b32 s%d, s%d\ns_mov_b32 s%d, 0x%x\ns_mov_b32 s%d, 0x20000'
      % (b, ptr, b + 1, ptr + 1, b + 2, size, b + 3))


def diag_dump():
    if PROBE is not None:
        a, b = divmod(PROBE, 100)
        P(f'''s_waitcnt lgkmcnt(0)
s_cmp_lt_u32 s{sWAVE}, 4
s_cbranch_scc1 L_END
s_cmp_ge_u32 s{sCT}, 7
s_cbranch_scc1 L_END
s_sub_u32 s{sT0}, s{sST + 2 * b}, s{sST + 2 * a}
s_min_u32 s{sT0}, s{sT0}, 5000
s_lshl_b32 s{sT0}, s{sT0}, 2''')
        P.label('L_probe')
        P(f'''s_memrealtime s[{sT2}:{sT3}]
s_waitcnt lgkmcnt(0)
s_sub_u32 s{sT1}, s{sT2}, s{sST + 30}
s_cmp_lt_u32 s{sT1}, s{sT0}
s_cbranch_scc1 L_probe''')
    elif DIAG:
        P('s_lshl_b32 s%d, s2, 3\ns_add_u32 s%d, s%d, s%d\ns_lshl_b32 s%d, s%d, 6\ns_add_u32 s%d, s%d, 0x%x'
          % (sT0, sT0, sT0, sWAVE, sT0, sT0, sT0, sT0, WS_DIAG))
        P('v_mov_b32 v1, 0\ns_waitcnt lgkmcnt(0)')
        for k in range(16):
            P('v_mov_b32 v2, s%d\nbuffer_store_dword v2, v1, %s, s%d offen offset:%d' % (sST + 2 * k, srd(SWS), sT0, 4 * k))


def spin_guard(out):
    P(f's_add_u32 s{sSPIN}, s{sSPIN}, 1\ns_cmp_gt_u32 s{sSPIN}, {SPIN_MAX}\ns_cbranch_scc1 {out}')


def lds_cmp(tmp, val):
    P(f'v_min3_u32 v{tmp}, v{tmp}, v{tmp + 1}, v{tmp + 2}\nv_min_u32 v{tmp}, v{tmp}, v{tmp + 3}\nv_cmp_gt_u32 vcc, {val}, v{tmp}')


def lds_poll(name, tmp, vsync, off, val, sleep=0):
    P(f'ds_read_b128 {vr(tmp)}, v{vsync} offset:{off}\ns_waitcnt lgkmcnt(0)')
    lds_cmp(tmp, val)
    P(f's_cbranch_vccz {name}_ok')
    lds_spin(name, tmp, vsync, off, val, sleep)
    P.label(name + '_ok')


def lds_spin(name, tmp, vsync, off, val, sleep):
    P.label(name)
    spin_guard(name + '_ok')
    if sleep:
        P(f's_sleep {sleep}')
    P(f'ds_read_b128 {vr(tmp)}, v{vsync} offset:{off}\ns_waitcnt lgkmcnt(0)')
    lds_cmp(tmp, val)
    P(f's_cbranch_vccnz {name}')


def lds_signal(vaddr, tmp, val):
    P(f'v_mov_b32 v{tmp}, {val}\nds_write_b32 v{vaddr}, v{tmp}')


def w2_tr_addr(d, hi_shift, t0, t1):
    P(f'''v_bfe_u32 v{t0}, v0, 2, 3
v_lshlrev_b32 v{t0}, 7, v{t0}
v_lshrrev_b32 v{t1}, 5, v0
v_lshl_add_u32 v{t0}, v{t1}, {hi_shift}, v{t0}
v_and_b32 v{t1}, 3, v0
v_lshl_add_u32 v{t0}, v{t1}, 3, v{t0}
v_bfe_u32 v{t1}, v0, 3, 2
v_lshl_add_u32 v{d}, v{t1}, 5, v{t0}
v_xor_b32 v{d + 1}, 32, v{d}
v_xor_b32 v{d + 2}, 64, v{d}
v_xor_b32 v{d + 3}, 96, v{d}''')


def q_addr_parts(trow, tmask, tc, t):
    P(f'''v_lshrrev_b32 v{trow}, 4, v0
v_lshlrev_b32 v{trow}, 3, v{trow}
v_bfe_u32 v{t}, v0, 2, 2
v_add_u32 v{trow}, v{trow}, v{t}
v_lshlrev_b32 v{trow}, 7, v{trow}
v_bfe_u32 v{tmask}, v0, 3, 2
v_lshlrev_b32 v{tmask}, 5, v{tmask}
v_and_b32 v{tc}, 3, v0
v_lshlrev_b32 v{tc}, 3, v{tc}''')


def q_addr(d, boff, trow, tmask, tc):
    P(f'v_add_u32 v{d}, {boff}, v{tc}\nv_xor_b32 v{d}, v{d}, v{tmask}\nv_add_u32 v{d}, v{d}, v{trow}')


def h_addr(d, t0, t1):
    P(f'''v_lshrrev_b32 v{t0}, 4, v0
v_lshlrev_b32 v{t0}, 3, v{t0}
v_bfe_u32 v{t1}, v0, 2, 2
v_add_u32 v{t0}, v{t0}, v{t1}
v_mul_u32_u24 v{t0}, 448, v{t0}
v_bfe_u32 v{t1}, v0, 4, 1
v_lshl_add_u32 v{t0}, v{t1}, 5, v{t0}
v_and_b32 v{t1}, 3, v0
v_lshl_add_u32 v{d}, v{t1}, 3, v{t0}''')


def mfma(d, a, b, c):
    return f'v_mfma_f32_16x16x32_bf16 {vr(d)}, {vr(a)}, {vr(b)}, ' + ('0' if c is None else vr(c))


P(f'''s_cmp_ge_u32 s2, 256
s_cbranch_scc1 L_END
s_load_dwordx16 s[4:19], s[0:1], 0
s_load_dwordx2 s[20:21], s[0:1], 64
v_lshrrev_b32 v1, 6, v0
v_and_b32 v0, 63, v0
v_readfirstlane_b32 s{sWAVE}, v1
s_and_b32 s{sT0}, s2, 7
s_lshr_b32 s{sT1}, s2, 3
s_and_b32 s{sRB}, s{sT0}, 1
s_lshl_b32 s{sRB}, s{sRB}, 3
s_and_b32 s{sT2}, s{sT1}, 7
s_add_u32 s{sRB}, s{sRB}, s{sT2}
s_and_b32 s{sIDX}, s{sT0}, 6
s_bfe_u32 s{sT2}, s{sT1}, 0x10003
s_add_u32 s{sIDX}, s{sIDX}, s{sT2}
s_lshr_b32 s{sISQ}, s{sT1}, 4
s_xor_b32 s{sISQ}, s{sISQ}, {OPT['qfirst']}
s_lshl_b32 s{sCG}, s{sISQ}, 3
s_add_u32 s{sCG}, s{sCG}, s{sIDX}
s_lshl_b32 s{sRT}, s{sT0}, 2
s_and_b32 s{sT2}, s{sT1}, 3
s_add_u32 s{sRT}, s{sRT}, s{sT2}
s_lshr_b32 s{sCT}, s{sT1}, 2
MAP2
s_lshr_b32 s{sROT}, s{sT1}, 3
ROTC
s_mov_b32 s{sSPIN}, 0
s_and_b32 s{sI}, s{sWAVE}, 3'''.replace('ROTC', f'''s_add_u32 s{sROT}, s{sROT}, s{sRB}
s_and_b32 s{sROT}, s{sROT}, 3
s_lshl_b32 s{sROT}, s{sROT}, 1
s_lshr_b32 s{sPUB}, s{sRB}, 2''' if OPT['rot'] == 1 else f'''s_lshl_b32 s{sROT}, s{sROT}, 1
s_add_u32 s{sROT}, s{sROT}, s{sRB}
s_mul_i32 s{sT2}, s{sROT}, 9363
s_lshr_b32 s{sT2}, s{sT2}, 16
s_mul_i32 s{sT2}, s{sT2}, 7
s_sub_u32 s{sROT}, s{sROT}, s{sT2}
s_and_b32 s{sPUB}, s{sROT}, 1
s_cmp_ge_u32 s{sRB}, 7
s_cselect_b32 s{sPUB}, 1, s{sPUB}''').replace('MAP2', '' if not OPT['map2'] else f'''s_lshr_b32 s{sRT}, s{sT0}, 1
s_lshl_b32 s{sRT}, s{sRT}, 3
s_and_b32 s{sT2}, s{sT0}, 1
s_lshl_b32 s{sT2}, s{sT2}, 2
s_lshr_b32 s{sCT}, s{sT1}, 3
s_add_u32 s{sCT}, s{sCT}, s{sT2}
s_and_b32 s{sT3}, s{sT1}, 7
s_cmp_ge_u32 s{sT1}, 24
s_cselect_b32 s{sCT}, 3, s{sCT}
s_cselect_b32 s{sT2}, s{sT2}, 0
s_add_u32 s{sT3}, s{sT3}, s{sT2}
s_and_b32 s{sT3}, s{sT3}, 7
s_add_u32 s{sRT}, s{sRT}, s{sT3}
s_cmp_ge_u32 s{sT1}, 28
s_cselect_b32 s{sCT}, 7, s{sCT}'''))
if DIAG:
    for k in range(16):
        P('s_mov_b32 s%d, 0' % (sST + 2 * k))
if PROBE is not None:
    stamp(2)
P(f'''s_cmp_ge_u32 s{sWAVE}, 4
s_cbranch_scc1 L_C''')

LW, LACC, LA, LADR = 4, 164, 228, 252
vX, vW, vH, vCA, vGA, vGS = 164, 168, 175, 176, 178, 179
vSEL, vCACC, vCF, vLT = 180, 196, 200, 232
vAD1, vAD2 = 180, 184
vS = 124
vSY, vSG, vPT = 244, 245, 248


def dma(vm, voff, srdb, soff, m0base, m0imm, tag=None):
    P(f's_add_u32 m0, s{m0base}, {m0imm}')
    P(f'buffer_load_dwordx4 v{voff}, {srd(srdb)}, s{soff} offen lds')
    vm.issue(tag)


def red32(a, t):
    for sh in (8, 4, 2, 1):
        P(f'v_add_f32_dpp v{a}, v{a}, v{a} row_ror:{sh} row_mask:0xf bank_mask:0xf')
    P(f'v_mov_b32 v{t}, v{a}\nv_permlane16_swap_b32 v{t}, v{a}\nv_add_f32 v{a}, v{a}, v{t}')


def stats_rows():
    P(f'''v_and_b32 v{vS}, 31, v0
v_lshrrev_b32 v{vS + 1}, 5, v0
v_mul_u32_u24 v{vS + 2}, 896, v{vS + 1}
v_lshl_add_u32 v{vS + 2}, v{vS}, 4, v{vS + 2}
v_cmp_gt_u32 vcc, 28, v{vS}
v_mov_b32 v{vS + 3}, 0x10000000
v_cndmask_b32 v{vS + 2}, v{vS + 3}, v{vS + 2}, vcc
v_cndmask_b32 v{vS + 3}, 0, 1.0, vcc
s_lshl_b32 s{sT0}, s{sRB}, 7
s_lshl_b32 s{sT1}, s{sCG}, 3
s_add_u32 s{sT0}, s{sT0}, s{sT1}
s_lshl_b32 s{sT1}, s{sI}, 1
s_add_u32 s{sT3}, s{sT0}, s{sT1}
s_mul_i32 s{sT2}, s{sT3}, 896''')


def stats_load(vm):
    for u in range(2):
        P(f'buffer_load_dwordx4 {vr(vS + 4 + 4 * u)}, v{vS + 2}, {srd(SX)}, s{sT2} offen offset:{448 * u}')
        vm.issue('stats')

def stats_body():
    n0 = len(P.ins)
    a, d = vS + 12, vS + 16
    for n in range(8):
        P(f'v_lshlrev_b32 v{d + 2 * n}, 16, v{vS + 4 + n}\nv_and_b32 v{d + 1 + 2 * n}, 0xffff0000, v{vS + 4 + n}')
    P(f'v_add_f32 v{a}, v{d}, v{d + 1}\nv_add_f32 v{a + 1}, v{d + 2}, v{d + 3}')
    for n in range(4, 16):
        P(f'v_add_f32 v{a + n % 2}, v{a + n % 2}, v{d + n}')
    P(f'v_add_f32 v{a}, v{a}, v{a + 1}')
    red32(a, a + 1)
    P(f'v_mul_f32 v{a}, 0x3b124925, v{a}')
    for n in range(16):
        P(f'v_sub_f32 v{d + n}, v{d + n}, v{a}')
    P(f'v_mul_f32 v{a + 2}, v{d}, v{d}\nv_mul_f32 v{a + 3}, v{d + 1}, v{d + 1}')
    for n in range(2, 16):
        P(f'v_fmac_f32 v{a + 2 + n % 2}, v{d + n}, v{d + n}')
    P(f'v_add_f32 v{a + 2}, v{a + 2}, v{a + 3}\nv_mul_f32 v{a + 2}, v{a + 2}, v{vS + 3}')
    red32(a + 2, a + 1)
    P(f'''v_mul_f32 v{a + 2}, 0x3b124925, v{a + 2}
v_cvt_pk_bf16_f32 v{a + 2}, 0, v{a + 2}
v_add_f32 v{a + 2}, 0x3727c5ac, v{a + 2}
v_cvt_pk_bf16_f32 v{a + 2}, 0, v{a + 2}
v_sqrt_f32 v{a + 2}, v{a + 2}
v_cvt_pk_bf16_f32 v{a + 2}, v{a}, v{a + 2}
v_mov_b32 v{a + 3}, s{sTAG}
v_lshlrev_b32 v{a + 1}, 3, v{vS + 1}''')
    out = [x.text for x in P.ins[n0:]]
    del P.ins[n0:]
    return out

def stats_store(vm):
    a = vS + 12
    P(f'''s_lshl_b32 s{sT3}, s{sT3}, 3
s_add_u32 s{sT3}, s{sT3}, {WS_STATS}
s_mov_b32 exec_lo, 1
s_mov_b32 exec_hi, 1
buffer_store_dwordx2 {vr(a + 2, 2)}, v{a + 1}, {srd(SWS)}, s{sT3} offen sc1
s_mov_b64 exec, -1''')
    vm.issue()


class W2Plan:
    def __init__(self, vm):
        self.vm = vm
        self.free = set()
        self.loc = {}
        self.pending = []
        self.winok = True
        self.ncw = 0

    def add(self, groups):
        self.free |= {4096 * g for g in groups}

    def pair(self, win):
        c = sorted(a for a in self.free if a + 4096 in self.free)
        cw_ = [a for a in c if a >= WIN and (a - WIN) % 8192 == 0]
        a = cw_[0] if cw_ else c[0]
        self.free -= {a, a + 4096}
        return a

    def has_pair(self):
        return any(a + 4096 in self.free for a in self.free)

    def gen_own(self, hs, win=False):
        for h in hs:
            a = self.loc[h] = self.pair(win)
            for u in range(2):
                dma(self.vm, 2 + u, SX if OPT.get('x4') else SW2, sA0, sMX, a + 4096 * u, ('own', h))
                if u == 1:
                    P(f's_add_u32 s{sA0}, s{sA0}, {16 * 896}')
                yield

    def own(self, hs, win=False):
        for _ in self.gen_own(hs, win):
            pass

    def sync(self):
        if self.pending:
            P('s_waitcnt lgkmcnt(0)')
            for h in self.pending:
                self.free |= {a for a in (self.loc[h], self.loc[h] + 4096) if a < WIN or self.winok}
            self.pending = []

    def stage(self, hs):
        self.vm.wait(('own', hs[-1]))
        self.sync()
        for h in hs:
            o = self.loc[h]
            base = (LADR, vAD1, vAD2)[o >> 16]
            for ct in range(4):
                P(f'ds_read_b64_tr_b16 {vr(LW + 8 * (h & ~1) + 4 * ct + 2 * (h & 1), 2)}, v{base + ct} offset:{o & 0xffff}')
        self.pending = list(hs)

    def cws(self, n, prefer_single=False):
        c = sorted(a for a in self.free if a < SC)
        for a in c[:n]:
            g = a // 4096
            self.free.remove(a)
            off = g * 28672 if (g < 14 or OPT.get('x4')) else (CH0 * 32 * 896 + (g - 14) * 28672)
            if NGRP - self.ncw == OPT['pa']:
                flag_poll_issue(self.vm, vP2, vPo, 'polla')
            if NGRP - self.ncw == OPT['pl']:
                flag_poll_issue(self.vm, vP, vPo, 'poll')
            P(f's_add_u32 s{sT0}, s{sA1}, {off}')
            dma(self.vm, 2, SX if OPT.get('x4') else SWO if g < 14 else SW2, sT0, sMX, a, ('cw', g))
            self.ncw += 1


def flag_poll_issue(vm, vP, vPo, tag):
    P(f'buffer_load_dword v{vP}, v{vPo}, {srd(SWS)}, 0 offen sc1')
    vm.issue(tag)


def flag_poll_check(vm, name, vP, vPo, tag):
    vm.wait(tag)
    P(f'v_cmp_ne_u32 vcc, s{sTAG}, v{vP}\ns_cbranch_vccz {name}_ok')
    P.label(name)
    spin_guard(name + '_ok')
    P(f's_sleep {OPT["psl"]}\nbuffer_load_dword v{vP}, v{vPo}, {srd(SWS)}, 0 offen sc1\ns_waitcnt vmcnt(0)')
    P(f'v_cmp_ne_u32 vcc, s{sTAG}, v{vP}\ns_cbranch_vccnz {name}')
    P.label(name + '_ok')


P(f'''v_lshrrev_b32 v{vLT}, 3, v0
v_lshl_add_u32 v{vLT}, s{sI}, 3, v{vLT}
v_mul_u32_u24 v{vX}, 896, v{vLT}
v_lshrrev_b32 v{vLT}, 1, v{vLT}
v_xor_b32 v{vLT}, v{vLT}, v0
v_and_b32 v{vLT}, 7, v{vLT}
v_lshl_add_u32 v{vX}, v{vLT}, 4, v{vX}
v_add_u32 v{vX + 1}, 28672, v{vX}
v_add_u32 v{vX + 2}, 57344, v{vX}
v_add_u32 v{vX + 3}, 86016, v{vX}
s_mul_i32 s{sXO}, s{sRB}, 114688
s_lshl_b32 s{sT0}, s{sROT}, 7
s_add_u32 s{sXO}, s{sXO}, s{sT0}
s_mov_b32 s{sKB}, s{sROT}
s_lshl_b32 s{sMX}, s{sI}, 10
s_cmp_eq_u32 s{sISQ}, 1
s_cbranch_scc1 L_LQ''')


vP, vP2, vPo = 188, 189, 190


def poll_addr():
    P(f'''s_mul_i32 s{sT0}, s{sI}, {LST * 9363}
s_lshr_b32 s{sT1}, s{sT0}, 16
s_add_u32 s{sT0}, s{sT0}, {(LST - 1) * 9363}
s_lshr_b32 s{sT0}, s{sT0}, 16''')
    poll_addr2(f's{sT1}', f's{sT0}')


def poll_addr2(first, last):
    P(f'''v_lshrrev_b32 v{vPo}, 1, v0
v_add_u32 v{vPo}, {first}, v{vPo}
v_min_u32 v{vPo}, {last}, v{vPo}
v_lshlrev_b32 v{vPo}, 2, v{vPo}
v_and_b32 v{vP}, 1, v0
v_lshl_add_u32 v{vPo}, v{vP}, 7, v{vPo}
s_lshl_b32 s{sT0}, s{sRT}, 8
s_add_u32 s{sT0}, s{sT0}, {WS_FLAGS}
v_add_u32 v{vPo}, s{sT0}, v{vPo}''')


def L_phase1(isq):
    t = 'Q' if isq else 'H'
    vm = Q(P, 'vmcnt', 63)
    wstr = 2688 if isq else 3584
    wsl = WSL[isq]
    globals()['MUTE'] = False

    def gen_st(s):
        for n in range(4):
            dma(vm, vX + n, SX, sXO, sMX, XS[s % 3] + 4096 * n)
            yield
        if isq and s % 2 == 0:
            if s < 6:
                P(f'''s_lshr_b32 s{sT0}, s{sI}, 1
s_add_u32 s{sT0}, s{sT0}, s{sKB}
s_cmp_eq_u32 s{sT0}, 7
s_cselect_b32 s{sT0}, 0, s{sT0}
s_lshl_b32 s{sT0}, s{sT0}, 7
s_add_u32 s{sT0}, s{sT0}, s{sHO}''')
                dma(vm, vH, SX, sT0, sMX, HALO + 2048 * s)
            else:
                P(f'''s_lshl_b32 s{sT0}, s{sKB}, 7
s_add_u32 s{sT0}, s{sT0}, s{sHO}
s_and_b32 s{sT1}, s{sMX}, 1024''')
                dma(vm, vH, SX, sT0, sT1, HALO + 2048 * s)
            yield
        nw = 6 if isq else 7
        for n in range(nw):
            o = (n // 2) * 8192 + (n % 2) * 1024 if isq else n * 1024
            dma(vm, vW + n, SW, sWO_, sMW, wsl[s % 3] + o, ('st', s))
            if n == nw - 1 and s < 6:
                P(f'''s_add_u32 s{sKB}, s{sKB}, 1
s_cmp_eq_u32 s{sKB}, 7
s_cselect_b32 s{sKB}, 0, s{sKB}
s_cselect_b32 s{sT0}, {7 * 128}, 0
s_cselect_b32 s{sT1}, {7 * 64 * wstr}, 0
s_add_u32 s{sXO}, s{sXO}, 128
s_add_u32 s{sWO_}, s{sWO_}, {64 * wstr}
s_sub_u32 s{sXO}, s{sXO}, s{sT0}
s_sub_u32 s{sWO_}, s{sWO_}, s{sT1}''')
            yield

    def run(g, n=1000):
        for _ in range(n):
            if next(g, 'end') == 'end':
                break

    if isq:
        P(f'''v_lshrrev_b32 v{vLT}, 3, v0
v_mul_u32_u24 v{vW}, 2688, v{vLT}
v_bfe_u32 v{vLT}, v0, 4, 1
v_lshlrev_b32 v{vLT}, 1, v{vLT}
v_xor_b32 v{vLT}, v{vLT}, v0
v_and_b32 v{vLT}, 7, v{vLT}
v_lshlrev_b32 v{vLT}, 4, v{vLT}
v_xor_b32 v{vLT + 1}, 64, v{vLT}
v_add_u32 v{vW + 1}, {8 * 2688}, v{vW}
v_add_u32 v{vW}, v{vW}, v{vLT}
v_add_u32 v{vW + 1}, v{vW + 1}, v{vLT + 1}''')
        for n in range(2, 6):
            P(f'v_add_u32 v{vW + n}, {(n // 2) * 896}, v{vW + n % 2}')
        P(f'''s_mul_i32 s{sT0}, s{sIDX}, 112
s_lshl_b32 s{sMW}, s{sI}, 11
s_lshr_b32 s{sT1}, s{sI}, 1
s_mul_i32 s{sT1}, s{sT1}, {16 * 896}
v_subrev_u32 v{vH}, s{sT1}, v{vX}
s_mul_i32 s{sHO}, s{sRB}, 114688
s_max_u32 s{sHO}, s{sHO}, {16 * 896}
s_sub_u32 s{sHO}, s{sHO}, {16 * 896}''')
    else:
        P(f's_movk_i32 s{sT0}, 3136')
        for n in range(7):
            P(f'''v_add_u32 v{vLT}, {64 * n}, v0
v_mul_u32_u24 v{vLT + 1}, 2341, v{vLT}
v_lshrrev_b32 v{vLT + 1}, 16, v{vLT + 1}
v_lshlrev_b32 v{vLT}, 4, v{vLT}
v_mad_u32_u24 v{vW + n}, v{vLT + 1}, s{sT0}, v{vLT}''')
            if n == 3:
                P(f'v_and_b32 v{vLT + 1}, 8, v{vLT + 1}\nv_lshlrev_b32 v{vLT + 1}, 2, v{vLT + 1}\nv_xor_b32 v{vW + n}, v{vW + n}, v{vLT + 1}')
            elif n > 3:
                P(f'v_xor_b32 v{vW + n}, 32, v{vW + n}')
        P(f's_mul_i32 s{sT0}, s{sIDX}, 448\ns_mul_i32 s{sMW}, s{sI}, 7168')
    P(f'''s_lshl_b32 s{sT1}, s{sROT}, 2
s_add_u32 s{sT1}, s{sT1}, s{sI}
s_mul_i32 s{sWO_}, s{sT1}, {16 * wstr}
s_add_u32 s{sWO_}, s{sWO_}, s{sT0}''')
    P('s_waitcnt lgkmcnt(0)')
    mk_srd(SX, 4, 2048 * 896)
    mk_srd(SW, 6 if isq else 12, 448 * wstr)
    stamp(0)
    KS = [int(c, 16) for c in '%06x' % OPT['kq' if isq else 'kh']]
    gens = [gen_st(s) for s in range(7)]
    run(gens[0])
    run(gens[1], min(KS[0], OPT['k0']))
    P(f's_load_dword s{sTAG}, s[20:21], 0')
    mk_srd(SWO, 8, 448 * 896)
    mk_srd(SW2, 14, 1792 * 896)
    mk_srd(SWS, 20, WS_BYTES)
    mk_srd(SOUT, 16, 2048 * 896)
    if not OPT['stc']:
        stats_rows()
    P(f'v_bfe_u32 v{vLT}, v0, 2, 2\nv_mov_b32 v{vLT + 1}, 0x3f803f80')
    for m in range(4):
        P(f'v_cmp_eq_u32 vcc, {m}, v{vLT}\nv_cndmask_b32 v{vSEL + 4 * m}, 0, v{vLT + 1}, vcc')
        for r in range(1, 4):
            P(f'v_mov_b32 v{vSEL + 4 * m + r}, v{vSEL + 4 * m}')
    if isq:
        q_addr_parts(vLT, vLT + 1, vLT + 2, vLT + 3)
        P(f'''s_lshr_b32 s{sT0}, s{sI}, 1
s_mul_i32 s{sT0}, s{sT0}, 56
s_and_b32 s{sT1}, s{sI}, 1
s_lshl_b32 s{sT1}, s{sT1}, 5
s_add_u32 s{sT0}, s{sT0}, s{sT1}''')
        q_addr(vCA, f's{sT0}', vLT, vLT + 1, vLT + 2)
        ntile, tstr, rstr, kstr = 3, 8192, 128, 4096
    else:
        h_addr(vCA, vLT, vLT + 1)
        P(f'''s_and_b32 s{sT0}, s{sI}, 1
s_lshl_b32 s{sT0}, s{sT0}, 5
v_xor_b32 v{vCA}, s{sT0}, v{vCA}
s_lshr_b32 s{sT0}, s{sI}, 1
s_lshl_b32 s{sT0}, s{sT0}, 6
v_add_u32 v{vCA}, s{sT0}, v{vCA}''')
        ntile, tstr, rstr, kstr = 4, 128, 448, 32 * 448
    w2_tr_addr(LADR, 12, vLT, vLT + 1)
    for ct in range(4):
        P(f'v_add_u32 v{LADR + ct}, s{sMX}, v{LADR + ct}')
    P(f'''v_lshrrev_b32 v{vLT}, 3, v0
v_mul_u32_u24 v2, 896, v{vLT}
v_and_b32 v{vLT}, 6, v{vLT}
v_xor_b32 v{vLT}, v{vLT}, v0
v_and_b32 v{vLT}, 7, v{vLT}
v_lshl_add_u32 v2, v{vLT}, 4, v2
v_add_u32 v3, {8 * 896}, v2
v_lshlrev_b32 v1, 4, v0
s_mul_i32 s{sA0}, s{sI}, {LST * 32 * 896}
s_lshl_b32 s{sT0}, s{sCT}, 7
s_cmp_lt_u32 s{sCT}, 7
s_cselect_b32 s{sT0}, s{sT0}, 0x40000000
s_add_u32 s{sA0}, s{sA0}, s{sT0}
s_mul_i32 s{sA1}, s{sI}, {8 * 896}
s_add_u32 s{sA1}, s{sA1}, s{sT0}
X4
v_lshl_add_u32 v{vGA}, s{sI}, 6, v0
v_min_u32 v{vGS}, 143, v{vGA}
v_lshlrev_b32 v{vGA}, 3, v{vGA}
v_mov_b32 v{vSY}, {SYNC}
v_lshl_add_u32 v{vSG}, s{sI}, 2, v{vSY}'''.replace('X4', '' if not OPT.get('x4') else f'''s_lshr_b32 s{sT1}, s{sRB}, 3
s_mul_i32 s{sT1}, s{sT1}, {1024 * 896}
s_mul_i32 s{sA0}, s{sI}, {160 * 896}
s_add_u32 s{sA0}, s{sA0}, s{sT0}
s_add_u32 s{sA0}, s{sA0}, s{sT1}
s_add_u32 s{sA1}, s{sA1}, s{sT1}'''))
    run(gens[1], KS[0] - min(KS[0], OPT['k0']))

    def csum_part(s):
        lab = f'L_{t}cs{s}'
        P(f's_cmp_lg_u32 s{sPUB}, 0\ns_cbranch_scc1 {lab}')
        if s == 1:
            P(f's_cmp_eq_u32 s{sROT}, 6\ns_cbranch_scc1 {lab}b')
        P(f'v_add_u32 v{vCA + 1}, {wsl[s]}, v{vCA}')
        for kk in range(2):
            for m in range(ntile):
                f = vCF + 16 * kk + 4 * m
                o = m * tstr + kk * kstr
                P(f'ds_read_b64_tr_b16 {vr(f, 2)}, v{vCA + 1} offset:{o}')
                P(f'ds_read_b64_tr_b16 {vr(f + 2, 2)}, v{vCA + 1} offset:{o + 4 * rstr}')
        P('s_waitcnt lgkmcnt(0)')
        for kk in range(2):
            for m in range(ntile):
                P(mfma(vCACC, vSEL + 4 * m, vCF + 16 * kk + 4 * m, None if (s, kk, m) == (0, 0, 0) else vCACC))
        if s == 1:
            P.label(lab + 'b')
        P.label(lab)
        if s == 1:
            P(f'''s_lshl_b32 s{sT0}, s{sCG}, 13
s_lshl_b32 s{sT1}, s{sROT}, 10
s_add_u32 s{sT0}, s{sT0}, s{sT1}
s_lshl_b32 s{sT1}, s{sI}, 7
s_add_u32 s{sT0}, s{sT0}, s{sT1}
s_add_u32 s{sT0}, s{sT0}, {WS_CSUM}
s_cmp_lg_u32 s{sPUB}, 0
s_cselect_b32 s{sT0}, 0x40000000, s{sT0}
v_lshrrev_b32 v{vLT}, 4, v0
v_lshlrev_b32 v{vLT}, 9, v{vLT}
v_and_b32 v{vLT + 1}, 15, v0
v_lshl_add_u32 v{vLT}, v{vLT + 1}, 3, v{vLT}
v_mov_b32 v{vCACC + 1}, s{sTAG}
buffer_store_dwordx2 {vr(vCACC, 2)}, v{vLT}, {srd(SWS)}, s{sT0} offen sc1''')
            vm.issue()

    def gather_issue(count=True):
        for pi in range(4):
            P(f'buffer_load_dwordx2 {vr(vCF + 2 * pi, 2)}, v{vGA}, {srd(SWS)}, s{sT2 + pi // 2} offen offset:{2048 * (pi % 2)} sc1')
            if count:
                vm.issue('gather')
        P(f'''s_lshl_b32 s{sT0}, s{sRB}, 7
s_sub_u32 s{sT0}, s{sT0}, 16
v_add_u32 v{vCF + 10}, s{sT0}, v{vGS}
v_max_i32 v{vCF + 10}, 0, v{vCF + 10}
v_lshlrev_b32 v{vCF + 10}, 3, v{vCF + 10}
s_movk_i32 s{sT0}, {WS_STATS}
buffer_load_dwordx2 {vr(vCF + 8, 2)}, v{vCF + 10}, {srd(SWS)}, s{sT0} offen sc1''')
        if count:
            vm.issue('gather')

    def gather_start():
        P(f'''s_lshl_b32 s{sT2}, s{sCG}, 13
s_add_u32 s{sT2}, s{sT2}, {WS_CSUM}
s_add_u32 s{sT3}, s{sT2}, 4096''')
        gather_issue()

    def gather_cmp():
        for pi in range(5):
            P(f'v_xor_b32 v{vLT + pi}, s{sTAG}, v{vCF + 2 * pi + 1}')
        P(f'''v_or3_b32 v{vLT}, v{vLT}, v{vLT + 1}, v{vLT + 4}
v_or3_b32 v{vLT}, v{vLT}, v{vLT + 2}, v{vLT + 3}
v_cmp_ne_u32 vcc, 0, v{vLT}''')

    def gather_fin():
        vm.wait('gather')
        gather_cmp()
        P(f's_cbranch_vccz L_{t}gok')
        P.label(f'L_{t}gre')
        spin_guard(f'L_{t}gok')
        P('s_sleep 1')
        gather_issue(False)
        P('s_waitcnt vmcnt(0)')
        gather_cmp()
        P(f's_cbranch_vccnz L_{t}gre')
        P.label(f'L_{t}gok')
        a, b = vCF, vLT + 2
        P(f'''v_add_f32 v{a}, v{a}, v{a + 2}
v_add_f32 v{a + 4}, v{a + 4}, v{a + 6}
v_add_f32 v{a}, v{a}, v{a + 4}
v_mul_f32 v{a}, 0x3e800000, v{a}
v_and_b32 v{a + 14}, 0xffff0000, v{a + 8}
v_and_b32 v{a + 13}, 0xffff, v{a + 8}
v_rcp_f32 v{a + 14}, v{a + 14}
v_xor_b32 v{a + 13}, 0x8000, v{a + 13}
v_lshl_or_b32 v{a + 12}, v{a + 13}, 16, v{a + 13}
v_mul_f32 v{a + 15}, 0x3e8b9a4d, v{a + 14}
v_lshlrev_b32 v{a + 10}, 4, v{vGS}
v_add_u32 v{a + 10}, {ST}, v{a + 10}
ds_write_b128 v{a + 10}, {vr(a + 12)}
v_cvt_pk_bf16_f32 v{b}, 0, v{a}
v_sub_f32 v{b + 2}, v{a}, v{b}
v_cvt_pk_bf16_f32 v{b}, v{a}, v{b + 2}
v_and_b32 v{b + 1}, 0xffff0000, v{b}
v_sub_f32 v{b + 1}, v{b + 2}, v{b + 1}
v_cvt_pk_bf16_f32 v{b + 1}, v{b + 1}, 0
v_add_u32 v{vLT}, {CS}, v{vGA}
v_cmp_gt_u32 vcc, {224 * 8}, v{vGA}
s_mov_b64 exec, vcc
ds_write_b64 v{vLT}, {vr(b, 2)}
s_mov_b64 exec, -1
s_waitcnt lgkmcnt(0)''')

    def pf_w():
        P(f'''s_lshl_b32 s{sT1}, s2, 2
s_add_u32 s{sT1}, s{sT1}, s{sI}
s_lshl_b32 s{sT1}, s{sT1}, 11
v_lshlrev_b32 v{vLT + 8}, 7, v0
s_mov_b64 exec, 0xffff
buffer_load_dword v{vLT + 9}, v{vLT + 8}, {srd(SW2)}, s{sT1} offen
buffer_load_dword v{vLT + 9}, v{vLT + 8}, {srd(SWO)}, s{sT1} offen
s_mov_b64 exec, -1''')
        vm.issue()
        vm.issue()

    def touch(r):
        P(f'''s_lshr_b32 s{sT1}, s2, 3
s_lshl_b32 s{sT1}, s{sT1}, 2
s_add_u32 s{sT1}, s{sT1}, s{sI}''')
        if r < 4:
            P(f'''s_add_u32 s{sT0}, s2, {r}
s_and_b32 s{sT0}, s{sT0}, 3
s_lshl_b32 s{sT0}, s{sT0}, 7
s_add_u32 s{sT1}, s{sT1}, s{sT0}''')
        P(f'''s_mul_i32 s{sT1}, s{sT1}, {25 * 128}
v_lshlrev_b32 v{vLT + 8}, 7, v0
s_mov_b64 exec, 0x1ffffff
buffer_load_dword v{vLT + 9}, v{vLT + 8}, {srd(SW2 if r < 4 else SWO)}, s{sT1} offen
s_mov_b64 exec, -1''')
        vm.issue()

    nspf = 0

    def spf(n):
        nonlocal nspf
        if nspf == 0:
            P(f'''s_lshl_b32 s23, s2, 2
s_add_u32 s23, s23, s{sI}
s_mul_i32 s10, s23, {25 * 64}
s_mul_i32 s11, s23, {7 * 64}''')
        for _ in range(n):
            if nspf < 25:
                P(f's_buffer_load_dword s23, {srd(SW2)}, s10 offset:{64 * nspf}')
            elif nspf < 32:
                P(f's_buffer_load_dword s23, {srd(SWO)}, s11 offset:{64 * (nspf - 25)}')
            nspf += 1

    spn = [int(c, 16) for c in '%05x' % OPT['spf']]
    tch = [int(c) for c in '%05d' % OPT['tch']]
    ntch = 0
    P(f's_waitcnt lgkmcnt(0)\ns_add_u32 s{sTAG}, s{sTAG}, 1')
    w2 = W2Plan(vm)
    w2.free |= {WIN + 4096 * n for n in range(NWIN)}
    wb0 = OPT['wb0q'] if isq else OPT['wb0h']
    nown = 0
    nstg = 0

    def own(n, win=False):
        nonlocal nown
        n = min(n, 2 * LST - nown)
        w2.own(range(nown, nown + n), win)
        nown += n

    def stage(n):
        nonlocal nstg
        n = min(n, nown - nstg)
        if n > 0:
            w2.stage(list(range(nstg, nstg + n)))
        nstg += n

    def cwait(v):
        lds_poll(f'L_{t}cp{v}', vPT, vSY, 16, v, OPT['lsl'])

    fin = set()
    sfill = []
    for s in range(5):
        if OPT['ds'] == 3:
            stamp(1 + 3 * s)
            vm.wait(('st', s))
            stamp(2 + 3 * s)
            P('s_barrier')
            stamp(3 + 3 * s) if s < 4 else None
        else:
            stamp(13) if s == 4 else None
            vm.wait(('st', s))
            stamp(14) if s == 4 else None
            P('s_barrier')
            stamp({0: 1, 3: 3, 4: 5}[s]) if s in (0, 3, 4) else None
        def extras(st):
            nonlocal ntch
            if st == 1 and not OPT['stc']:
                stats_load(vm)
            if OPT['pf_w'] == st:
                pf_w()
            if st >= 2:
                for _ in range(tch[st - 2]):
                    touch(ntch)
                    ntch += 1

        def stream():
            for st, lim in ((s + 1, 99), (s + 2, KS[s + 1])):
                if st in fin:
                    continue
                k = 0
                while k < lim:
                    if next(gens[st], 'end') == 'end':
                        fin.add(st)
                        extras(st)
                        break
                    k += 1
                    yield
        g = stream()
        if s < 2:
            run(g, 5)
            csum_part(s)
        if spn[s]:
            spf(spn[s])
        if s == OPT['st_it'] and not OPT['stc']:
            run(g, 2)
            vm.wait('stats')
            sfill = stats_body()
        while next(g, 'end') != 'end':
            for _ in range(OPT['sfn']):
                if sfill:
                    P(sfill.pop(0))
        if s == OPT['st_it'] + 1 and not OPT['stc']:
            while sfill:
                P(sfill.pop(0))
            stats_store(vm)
        if s == OPT['cs_it']:
            gather_start()
        if s == 4 and OPT['cs_it'] < 4:
            gather_fin()
        if s == 1:
            for ct in range(4):
                P(f'v_add_u32 v{vAD1 + ct}, 0x10000, v{LADR + ct}\nv_add_u32 v{vAD2 + ct}, 0x20000, v{LADR + ct}')
        if s >= wb0:
            stage(3)
            w2.sync()
            own(OPT['wbn'], True)
    global MUTE
    MUTE = OPT['ds'] == 3

    def progress(total):
        left = total
        while left > 0:
            isown = nown < 2 * LST
            if not (w2.has_pair() if isown else any(a < SC for a in w2.free)):
                if w2.pending:
                    w2.sync()
                elif nstg < nown:
                    stage(1)
                else:
                    break
                continue
            if isown:
                own(1)
                left -= 2
            else:
                w2.cws(1)
                left -= 1
            if nstg < nown and vm.n - vm.tags[('own', nstg)] >= OPT['hw']:
                stage(1)
            if OPT['cap'] and vm.n - vm.done > OPT['cap']:
                vm.wait(vm.n - OPT['cap'])
    vm.wait(('st', 5))
    stamp(2)
    P('s_barrier')
    stamp(4)
    w2.add([4, 5, 6, 7] + (list(range(18, 24)) if isq else list(range(19, 26))))
    if OPT['cs_it'] == 5:
        gather_start()
    nwin = nown
    if isq:
        w2.winok = False
        w2.free = {a for a in w2.free if a < WIN}
    own(OPT['n5'])
    if OPT['cs_it'] >= 4:
        gather_fin()
    vm.wait(('st', 6))
    lds_signal(vSG, 246, 7)
    P(f's_cmp_lt_u32 s{sCT}, 7\ns_cbranch_scc1 L_{t}act\ns_waitcnt vmcnt(0)')
    lds_signal(vSG, 246, 8)
    P('s_branch L_IDLE')
    P.label(f'L_{t}act')
    poll_addr()
    if isq:
        own(1)
        stage(nwin - nstg)
        own(1)
        w2.sync()
        lds_signal(vSG, 246, 8)
        progress(OPT['q5'])
    else:
        progress(OPT['h5'])
    stamp(6)
    cwait(6)
    w2.add([8, 9, 10, 11] + list(range(24 if isq else 26, NGRP)))
    if OPT['lpause'] & (2 if isq else 1):
        cwait(9)
    progress(100)
    cwait(7)
    stamp(7)
    w2.add([0, 1, 2, 3] + list(range(12, 18 if isq else 19)))
    progress(100)
    assert nown == 2 * LST and nstg == nown and not w2.pending
    assert w2.ncw == NGRP, w2.ncw
    if not isq:
        P('s_branch L_P2L')
    return vm


FX = 4


def fin_xload():
    P(f'''v_lshrrev_b32 v1, 3, v0
v_lshl_add_u32 v1, s{sWAVE}, 3, v1
v_mul_u32_u24 v3, 896, v1
v_and_b32 v2, 7, v0
v_lshl_add_u32 v3, v2, 4, v3
s_mul_i32 s{sT2}, s{sRT}, {64 * 896}
s_lshl_b32 s{sT0}, s{sCT}, 7
s_add_u32 s{sT2}, s{sT2}, s{sT0}
buffer_load_dwordx4 {vr(FX)}, v3, {srd(SX)}, s{sT2} offen
v_lshlrev_b32 v9, 3, v1
s_lshl_b32 s{sT0}, s{sRT}, 9
s_add_u32 s{sT0}, s{sT0}, {WS_STATS}
buffer_load_dword v8, v9, {srd(SWS)}, s{sT0} offen sc1''')


def L_phase2(vm):
    P.label('L_P2L')
    lastcw = vm.n
    stamp(8)
    vm.done = 0
    vm.wait('polla')
    P(f'v_cmp_ne_u32 vcc, s{sTAG}, v{vP2}\ns_cbranch_vccz L_pollL_ok')
    d0 = vm.done
    flag_poll_check(vm, 'L_pollL', vP, vPo, 'poll')
    vm.done = d0
    stamp(9)
    sB = [62, 63, 65, 66]
    P(f'''s_mul_i32 s{sT0}, s{sRT}, {4 * NS * 1024}
s_mul_i32 s{sT1}, s{sI}, {LST * 1024}
s_add_u32 s{sT0}, s{sT0}, s{sT1}
s_add_u32 s{sT0}, s{sT0}, {WS_ACT}''')
    for q in range(4):
        P(f's_xor_b32 s{sT1}, s{sI}, {q}\ns_mul_i32 s{sT1}, s{sT1}, {NS * 1024}\ns_add_u32 s{sB[q]}, s{sT0}, s{sT1}')
    P(f'v_mov_b32 v2, v{vSY}\nv_mov_b32 v3, v{vSG}')
    free = [LA + 4 * n for n in range(7)]
    aloc = {}
    nxt = 0

    def loads(cur):
        nonlocal nxt
        while nxt < 4 * LST and free and nxt - cur < OPT['lahead']:
            k, q = divmod(nxt, 4)
            aloc[nxt] = free.pop(0)
            P(f'buffer_load_dwordx4 {vr(aloc[nxt])}, v1, {srd(SWS)}, s{sB[q]} offen offset:{(k % 4) * 1024} sc1')
            vm.issue(('a', nxt))
            if k % 4 == 3:
                P(f's_add_u32 s{sB[q]}, s{sB[q]}, 4096')
            nxt += 1
    loads(0)
    vm.wait(lastcw)
    lds_signal(3, LACC, 9)
    P('s_waitcnt lgkmcnt(0)')
    stamp(10)
    for n in range(4 * LST):
        k, q = divmod(n, 4)
        vm.wait(('a', n))
        for ct in range(4):
            a = LACC + 16 * q + 4 * ct
            P(mfma(a, LW + 16 * k + 4 * ct, aloc[n], None if k == 0 else a))
            if ct == 0 and n > 0:
                loads(n)
        free.append(aloc[n])
        if q == 3:
            free.extend(LW + 16 * k + 4 * ct for ct in range(4))
    stamp(11)
    vA0, vA2, vA3, vF, vOne, vSy = 10, 11, 12, 3, 14, 2
    P(f'''s_lshl_b32 s{sT0}, s{sI}, 13
v_add_u32 v{vA0}, s{sT0}, v1
v_xor_b32 v{vA2}, 0x4000, v{vA0}
v_xor_b32 v{vA3}, 0x6000, v{vA0}
v_add_u32 v{vA0}, {XB}, v{vA0}
v_add_u32 v{vA2}, {XB}, v{vA2}
v_add_u32 v{vA3}, {XB}, v{vA3}''')
    if OPT['nobf']:
        P('s_branch L_nobf')
    lds_poll('L_attd', 16, vSy, 16, 9, 1)
    for n in range(8):
        P(f'ds_write_b128 v{vA0}, {vr(LACC + 32 + 4 * n)} offset:{1024 * n}')
    P('s_waitcnt lgkmcnt(0)')
    lds_signal(vF, vOne, 10)
    lds_poll('L_r1', 16, vSy, 0, 10, 1)
    T = 20
    for n in (4, 5, 6, 7, 0, 1, 2, 3):
        P(f'ds_read_b128 {vr(T + 4 * n)}, v{vA2} offset:{1024 * n}')
    P('s_waitcnt lgkmcnt(4)')
    for r in range(16, 32):
        P(f'v_add_f32 v{LACC + r}, v{LACC + r}, v{T + r}')
    P('s_waitcnt lgkmcnt(0)')
    for n in range(4):
        P(f'ds_write_b128 v{vA2}, {vr(LACC + 16 + 4 * n)} offset:{1024 * n}')
    P('s_waitcnt lgkmcnt(0)')
    lds_signal(vF, vOne, 11)
    for r in range(16):
        P(f'v_add_f32 v{LACC + r}, v{LACC + r}, v{T + r}')
    lds_poll('L_r2', 16, vSy, 0, 11, 1)
    for n in range(4):
        P(f'ds_read_b128 {vr(T + 4 * n)}, v{vA3} offset:{1024 * n}')
    for n in range(4):
        P(f's_waitcnt lgkmcnt({3 - n + n})')
        for r in range(4 * n, 4 * n + 4):
            P(f'v_add_f32 v{LACC + r}, v{LACC + r}, v{T + r}')
        P(f'ds_write_b128 v{vA2}, {vr(LACC + 4 * n)} offset:{4096 + 1024 * n}')
    P('s_waitcnt lgkmcnt(0)')
    P.label('L_nobf')
    lds_signal(vF, vOne, 12)
    P('s_waitcnt lgkmcnt(0)')
    fin_xload()
    stamp(12)
    P('s_branch L_FIN')


vmh = L_phase1(0)
P.label('L_LQ')
vmq = L_phase1(1)
assert vmh.n - vmh.tags['poll'] == vmq.n - vmq.tags['poll']
assert vmh.n - vmh.tags['polla'] == vmq.n - vmq.tags['polla']
L_phase2(vmq)

P.label('L_IDLE')
if OPT['ipf'] & 1:
    P(f'''s_and_b32 s{sT1}, s{sRT}, 3
s_lshl_b32 s{sT1}, s{sT1}, 2
s_add_u32 s{sT1}, s{sT1}, s{sI}
s_mul_i32 s{sT2}, s{sT1}, {56 * 128}
s_add_u32 s{sT3}, s{sT2}, {CH0 * 32 * 896}
v_min_u32 v4, 55, v0
v_lshlrev_b32 v4, 7, v4''')
    for n in range(4):
        P(f'''buffer_load_dword v5, v4, {srd(SWO)}, s{sT2} offen
buffer_load_dword v5, v4, {srd(SW2)}, s{sT3} offen
s_add_u32 s{sT2}, s{sT2}, {16 * 56 * 128}
s_add_u32 s{sT3}, s{sT3}, {16 * 56 * 128}''')
if OPT['ipf'] & 2:
    lds_poll('L_idw', vPT, vSY, 16, OPT['ipw'], 8)
    P(f'''v_lshrrev_b32 v4, 4, v0
v_mul_u32_u24 v4, {NS * 1024}, v4
v_and_b32 v5, 15, v0
v_lshl_add_u32 v4, v5, 7, v4
s_mul_i32 s{sT2}, s{sRT}, {4 * NS * 1024}
s_add_u32 s{sT2}, s{sT2}, {WS_ACT}''')
    vmI = Q(P, 'vmcnt', 63)
    for part in range(3):
        if part == 0:
            poll_addr()
        else:
            poll_addr2(*((CH0 // 7, 7), (8, 15))[part - 1])
        flag_poll_issue(vmI, vP, vPo, part + 100)
        vmI.tags['p'] = vmI.n
        flag_poll_check(vmI, 'L_ipoll%d' % part, vP, vPo, 'p')
        P(f's_mul_i32 s{sT3}, s{sI}, {(LST, 4, 4)[part] * 1024}\ns_add_u32 s{sT3}, s{sT3}, s{sT2}')
        if part:
            P(f's_add_u32 s{sT3}, s{sT3}, {(CH0, 56)[part - 1] * 1024}')
        for n in range((5, 2, 2)[part]):
            P(f'buffer_load_dword v5, v4, {srd(SWS)}, s{sT3} offen sc1\ns_add_u32 s{sT3}, s{sT3}, 2048')
            vmI.issue()
P('s_branch L_EXIT')

CW = 112
CX = 144
CHX = 168
cXA = 180
cHA = 182
cWA = 184
cWB = 190
cST = 196
cSO = 202
cBE = 204
cR = 196
cM16, cM48, cL16, cCSA, cCSH = 221, 222, 223, 224, 225
cVW, cVWH, cVR, cKX, cSY, cSG = 226, 227, 228, 229, 230, 231
cF = 252
cBA, cBB, cBA0 = 232, 236, 240
cT = 244

MUTE = False
P.label('L_C')
vmS = Q(P, 'vmcnt', 63)
if OPT['stc']:
    vS = 16
    P('s_setprio 1')
    stats_rows()
    P('s_waitcnt lgkmcnt(0)')
    mk_srd(SX, 4, 2048 * 896)
    stats_load(vmS)
    P(f's_setprio 0\ns_load_dword s{sTAG}, s[20:21], 0')
P(f'''v_mov_b32 v{cSY}, {SYNC}
v_lshl_add_u32 v{cSG}, s{sI}, 2, v{cSY}
v_add_u32 v{cSG}, 16, v{cSG}
v_mov_b32 v12, 0
v_lshlrev_b32 v13, 2, v0
v_add_u32 v13, {SYNC}, v13
ds_write_b32 v13, v12
v_lshlrev_b32 v{cL16}, 4, v0
v_and_b32 v11, 15, v0
v_lshrrev_b32 v10, 4, v0
v_lshrrev_b32 v13, 1, v11
v_xor_b32 v13, v13, v10
v_lshlrev_b32 v13, 4, v13
v_lshl_add_u32 v13, v11, 7, v13
s_lshl_b32 s{sT0}, s{sI}, 12
v_add_u32 v{cXA}, s{sT0}, v13
v_xor_b32 v{cXA + 1}, 64, v{cXA}
v_add_u32 v{cHA}, {HALO}, v13
v_xor_b32 v{cHA + 1}, 64, v{cHA}
v_lshlrev_b32 v12, 3, v11
v_add_u32 v{cCSA}, {CS}, v12
v_lshlrev_b32 v12, 4, v11
v_add_u32 v{cSO + 1}, {ST}, v12
s_lshl_b32 s{sT0}, s{sI}, 9
v_add_u32 v{cSO}, s{sT0}, v{cSO + 1}
v_mov_b32 v{cBE + 2}, 0
v_mov_b32 v{cBE + 3}, 0
v_mov_b32 v{cBE + 6}, 0
v_mov_b32 v{cBE + 7}, 0
v_mov_b32 v{cBE + 10}, 0
v_mov_b32 v{cBE + 11}, 0
s_lshl_b32 s{sXO}, s{sRB}, 2
s_add_u32 s{sXO}, s{sXO}, s{sI}
s_mul_i32 s{sA0}, s{sXO}, {2 * NS * 1024}
s_add_u32 s{sA0}, s{sA0}, {WS_ACT}
s_lshl_b32 s{sA1}, s{sXO}, 7
s_lshl_b32 s{sT1}, s{sCG}, 2
s_add_u32 s{sA1}, s{sA1}, s{sT1}
s_add_u32 s{sA1}, s{sA1}, {WS_FLAGS}''')
if OPT['pf_code']:
    P('s_getpc_b64 s[22:23]')
    P.label('L_pc')
    P(f'''s_sub_u32 s22, s22, L_pc-{NAME}_kernel
s_subb_u32 s23, s23, 0
s_bfe_u32 s{sT1}, s2, 0x30003
s_lshl_b32 s{sT1}, s{sT1}, 2
s_add_u32 s{sT1}, s{sT1}, s{sI}
s_lshl_b32 s{sT1}, s{sT1}, 11
v_lshlrev_b32 v{cT + 4}, 7, v11
v_add_u32 v{cT + 4}, s{sT1}, v{cT + 4}
v_min_u32 v{cT + 4}, L_END-{NAME}_kernel, v{cT + 4}
s_mov_b64 exec, 0xffff
global_load_dword v{cT + 5}, v{cT + 4}, s[22:23]
s_mov_b64 exec, -1''')
    vmS.issue()
if not OPT['stc']:
    P('s_waitcnt lgkmcnt(0)')
    P(f's_load_dword s{sTAG}, s[20:21], 0')
    mk_srd(SX, 4, 2048 * 896)
stamp(0)
mk_srd(SWS, 20, WS_BYTES)
mk_srd(SOUT, 16, 2048 * 896)
P(f's_cmp_eq_u32 s{sISQ}, 1\ns_cbranch_scc1 L_CQ')


SLOW = []


def C_phase1(isq):
    t = 'Q' if isq else 'H'
    lg = Q(P, 'lgkmcnt', 15)
    LA_, HOLD, WSTEP, TM = OPT['la'], OPT['hold'], OPT['wstep'], OPT['tm']
    wsl = WSL[isq]
    if isq:
        q_addr_parts(12, 13, 14, 15)
        for e in range(2):
            for t01 in range(2):
                q_addr(cWB + 2 * e + t01, 56 * e + 32 * t01, 12, 13, 14)
        P(f'''s_bitcmp1_b32 s{sI}, 0
s_cselect_b64 vcc, -1, 0
s_lshr_b32 s{sT0}, s{sI}, 1
s_add_u32 s{sT0}, s{sT0}, 1
s_lshl_b32 s{sT0}, s{sT0}, 13
v_cndmask_b32 v{cWB + 4}, v{cWB}, v{cWB + 2}, vcc
v_cndmask_b32 v{cWB + 5}, v{cWB + 1}, v{cWB + 3}, vcc
v_add_u32 v{cWB + 4}, s{sT0}, v{cWB + 4}
v_add_u32 v{cWB + 5}, s{sT0}, v{cWB + 5}
s_lshl_b32 s{sT0}, s{sI}, 8
s_add_u32 s{sT0}, s{sT0}, 512
v_add_u32 v{cCSH}, s{sT0}, v{cCSA}
v_cmp_gt_u32 vcc, 48, v0
v_cndmask_b32 v{cM48}, 0, -1, vcc
v_lshlrev_b32 v13, 2, v10
v_sub_u32 v13, v11, v13
v_mov_b32 v15, 0xf149f2ca''')
        for r in range(4):
            for (d, add) in ((cBA, 16), (cBB, 0)):
                P(f'''v_add_u32 v14, {add - r}, v13
v_and_b32 v14, -15, v14
v_cmp_eq_u32 vcc, 0, v14
v_cndmask_b32 v{d + r}, v15, 0, vcc''')
        P(f's_cmp_eq_u32 s{sXO}, 0\ns_cselect_b64 vcc, -1, 0')
        for r in range(4):
            P(f'v_cndmask_b32 v{cBA0 + r}, v{cBA + r}, v15, vcc')
        P(f'''v_mul_u32_u24 v13, {VSTR}, v11
v_lshl_add_u32 v13, v10, 3, v13
s_mul_i32 s{sT0}, s{sI}, {32 * VSTR}
s_add_u32 s{sT1}, s{sT0}, {VREG + 16 * VSTR}
v_add_u32 v{cVW}, s{sT1}, v13
s_and_b32 s{sT1}, s{sI}, 1
s_mul_i32 s{sT1}, s{sT1}, {144 * VSTR}
s_add_u32 s{sT1}, s{sT1}, {VREG}
v_add_u32 v{cVWH}, s{sT1}, v13
v_lshrrev_b32 v13, 2, v0
v_mul_u32_u24 v13, {VSTR}, v13
v_and_b32 v14, 3, v0
v_lshl_add_u32 v13, v14, 3, v13
s_add_u32 s{sT0}, s{sT0}, {VREG}
v_add_u32 v{cVR}, s{sT0}, v13
s_lshl_b32 s{sT0}, s{sI}, 11
s_add_u32 s{sT0}, s{sT0}, {KX}
v_add_u32 v{cKX}, s{sT0}, v{cL16}''')
        nb = 6
        pairs = [(1, 0), (2, 0), (1, 1), (2, 1), (0, 0), (0, 1)]
        tiles = [(pi, t01) for pi in range(4) for t01 in range(2)] + [('H', 0), ('H', 1)] + \
                [(pi, t01) for pi in range(4, 6) for t01 in range(2)]
    else:
        h_addr(cWB, 12, 13)
        P(f'v_xor_b32 v{cWB + 1}, 32, v{cWB}')
        nb = 2
        tiles = [(pi, t01) for pi in range(7) for t01 in range(2)]

    def set_slot(s):
        for b in range(nb):
            P(f'v_add_u32 v{cWA + b}, {wsl[s % 3]}, v{cWB + b}')

    def xbuf(ks):
        return 2 if (TM and ks == 13) else ks % 2

    units = []

    def unit(tile, ks):
        pi, t01 = tile
        u = dict(tile=tile, ks=ks, pre=[])
        if ks == 'E':
            u['stage'] = 6
            if pi == 'H':
                u['rd'] = [('b64', cCSH, 128 * t01)]
            elif isq:
                sg, e = pairs[pi]
                u['rd'] = [('b64', cCSA, 128 * (4 * sg + 2 * e + t01))]
            else:
                u['rd'] = [('b64', cCSA, 128 * (2 * pi + t01))]
        else:
            s, kk = divmod(ks, 2)
            u['stage'] = s
            if pi == 'H':
                a, o, o2 = cWA + 4 + t01, kk * 4096, 512
            elif isq:
                sg, e = pairs[pi]
                a, o, o2 = cWA + 2 * e + t01, sg * 8192 + kk * 4096, 512
            else:
                a, o, o2 = cWA + t01, pi * 64 + kk * 32 * 448, 4 * 448
            u['rd'] = [('tr', a, o), ('tr', a, o + o2)]
        if pi == 'H':
            u['mm'] = [(96 + 4 * t01, cBE + 8 if ks == 'E' else CHX + 4 * xbuf(ks))]
        else:
            u['mm'] = [(16 * pi + 8 * tt + 4 * t01, cBE + 4 * tt if ks == 'E' else CX + 8 * xbuf(ks) + 4 * tt)
                       for tt in range(2)]
        return u
    seen_x, seen_h = set(), set()
    order = []
    for ks in range(12 if TM else 14):
        order += [(tl, ks) for tl in tiles]
    if TM:
        for tl in tiles:
            order += [(tl, 12), (tl, 13), (tl, 'E')]
    else:
        order += [(tl, 'E') for tl in tiles]
    for tl, ks in order:
        u = unit(tl, ks)
        if ks != 'E':
            s, kk = divmod(ks, 2)
            if tl[0] == 'H':
                if ks not in seen_h:
                    seen_h.add(ks)
                    u['pre'].append(f'ds_read_b128 {vr(CHX + 4 * xbuf(ks))}, v{cHA + kk} offset:{2048 * s}')
            elif ks not in seen_x:
                seen_x.add(ks)
                for tt in range(2):
                    u['pre'].append(f'ds_read_b128 {vr(CX + 8 * xbuf(ks) + 4 * tt)}, v{cXA + kk} offset:{XS[s % 3] + 2048 * tt}')
        elif 'E' not in seen_x:
            seen_x.add('E')
            for tt in range(2):
                u['pre'].append(f'ds_read_b64 {vr(cBE + 4 * tt, 2)}, v{cSO} offset:{256 + 256 * tt}')
                if isq:
                    u['pre'].append(f'ds_read_b64 {vr(cR + 2 * tt, 2)}, v{cSO} offset:{256 + 256 * tt + 8}')
        elif tl == ('H', 0):
            u['pre'].append(f'ds_read_b64 {vr(cBE + 8, 2)}, v{cSO + 1}')
            u['pre'].append(f'ds_read_b64 {vr(cR + 4, 2)}, v{cSO + 1} offset:8')
        units.append(u)
    NU = len(units)
    last_ring = max(n for n, u in enumerate(units) if u['ks'] != 'E')
    done_at = {}
    for n, u in enumerate(units):
        done_at[u['tile'][0]] = n

    def rd_list(n):
        u = units[n]
        slot = CW + 4 * (n % 8)
        out = list(u['pre'])
        for j, (kind, a, o) in enumerate(u['rd']):
            if kind == 'tr':
                out.append(f'ds_read_b64_tr_b16 {vr(slot + 2 * j, 2)}, v{a} offset:{o}')
            else:
                out.append(f'ds_read_b64 {vr(slot, 2)}, v{a} offset:{o}')
        return out

    def pack(b):
        return [f'v_cvt_pk_bf16_f32 v{b + i}, v{b + 2 * i}, v{b + 2 * i + 1}' for i in range(4)]

    def scale(b, r):
        return [f'v_mul_f32 v{b + i}, v{b + i}, v{r}' for i in range(8)]

    def epi(pi):
        out = []
        if not isq:
            for tt in range(2):
                b = 16 * pi + 8 * tt
                if OPT['relu'] == 0:
                    out += [f'v_max_f32 v{b + i}, 0, v{b + i}' for i in range(8)]
                out += pack(b)
                if OPT['relu'] == 1:
                    out += [f'v_pk_max_i16 v{b + i}, v{b + i}, 0' for i in range(4)]
                if not OPT.get('x1'):
                    out.append(f'buffer_store_dwordx4 {vr(b)}, v{cL16}, {srd(SWS)}, s{sT2 + tt} offen offset:{(pi % 4) * 1024} sc1')
            if pi == 3:
                out += [f's_add_u32 s{sT2}, s{sT2}, 4096', f's_add_u32 s{sT3}, s{sT3}, 4096']
        elif pi == 'H':
            out += scale(96, cR + 4) + pack(96)
        else:
            sg, e = pairs[pi]
            for tt in range(2):
                b = 16 * pi + 8 * tt
                if sg:
                    out += scale(b, cR + 2 * tt)
                out += pack(b)
                if sg == 0:
                    out += [f'v_and_b32 v{b + i}, v{b + i}, v{cM48}' for i in (2, 3)]
        return out

    set_slot(0)
    P(f's_waitcnt lgkmcnt(0)\ns_add_u32 s{sTAG}, s{sTAG}, 1')
    if OPT['stc']:
        vmS.done = 0
        vmS.wait('stats')
        for x in stats_body():
            P(x)
        stats_store(Q(P, 'vmcnt', 63))
        stamp(13)
    if not isq:
        P(f'''s_mul_i32 s{sT2}, s{sIDX}, {7 * 1024}
s_add_u32 s{sT2}, s{sT2}, s{sA0}
s_add_u32 s{sT3}, s{sT2}, {NS * 1024}''')
    P('s_barrier')
    stamp(1)
    cstamp(2)
    pend = []
    fill = []
    nr = 0
    cur_stage = 0
    b7_done = False

    def queue_reads(n):
        l = rd_list(n)
        for j, x in enumerate(l):
            pend.append((x, ('w', n) if j == len(l) - 1 else None))

    def flush(k=1000):
        while pend and k > 0:
            x, tag = pend.pop(0)
            P(x)
            lg.issue(tag)
            k -= 1

    slow = []
    deferred = []
    last_of = {}
    first_of = {}
    for n, u in enumerate(units):
        if u['ks'] != 'E':
            last_of[u['stage']] = n
        first_of.setdefault(u['stage'], n)
    while nr < LA_:
        queue_reads(nr)
        nr += 1
    flush()
    ups = len(tiles) * 2
    for n in range(NU):
        u = units[n]
        w = n
        if n % WSTEP == 0:
            while w + 1 < min(n + WSTEP, NU) and ('w', w + 1) in lg.tags:
                w += 1
        lg.wait(('w', w))
        for j, (acc, b) in enumerate(u['mm']):
            P(mfma(acc, CW + 4 * (n % 8), b, None if u['ks'] == 0 else acc))
            if j == 0 and nr < NU and units[nr]['stage'] != cur_stage and units[nr]['stage'] <= 5:
                if nr - n <= LA_ - HOLD:
                    cur_stage = units[nr]['stage']
                    set_slot(cur_stage)
                    if HOLD:
                        lg.all()
                    stamp(3) if cur_stage == 4 else None
                    P('s_barrier')
                    stamp(5) if cur_stage == 4 else None
                    while nr <= n + LA_:
                        queue_reads(nr)
                        nr += 1
                    flush()
            elif j == 0 and nr < NU:
                s1 = units[nr]['stage']
                if s1 != cur_stage:
                    cur_stage = s1
                    set_slot(s1)
                    if OPT['ds'] == 2:
                        stamp({5: 9, 6: 13}[s1])
                    lg.wait(('f', s1))
                    lds_cmp(cF, s1 + 1)
                    P(f's_cbranch_vccnz L_{t}w{s1}')
                    P.label(f'L_{t}w{s1}_ok')
                    slow.append(s1)
                    stamp(6) if s1 == 6 else None
                    stamp(10) if (s1 == 5 and OPT['ds'] == 2) else None
                queue_reads(nr)
                if nr + OPT['fla'] == first_of[6]:
                    pend.append((f'ds_read_b128 {vr(cF)}, v{cSY}', ('f', units[nr + OPT['fla']]['stage'])))
                nr += 1
            last = j == len(u['mm']) - 1
            flush(1000 if last else (len(pend) + 1) // 2)
            for _ in range(OPT['nfill'] if n >= 6 * ups else OPT['sfill']):
                if fill:
                    P(fill.pop(0))
        if n == last_of[u['stage']] and u['stage'] >= 5:
            lds_signal(cSG, cT + 7, u['stage'] + 1)
            lg.issue()
            stamp(7) if u['stage'] == 6 else None
        if n == (NU - 1 if (OPT['dst'] or isq) else 6 * ups) and OPT['prio']:
            P('s_setprio %d' % OPT['prio'])
        for pi, dn in done_at.items():
            if dn == n - 2:
                for x in epi(pi):
                    (deferred if (OPT['dst'] and (not x.startswith('v_') or x.startswith('v_pk'))) else fill).append(x)
    SLOW.extend((t, s1) for s1 in slow)
    stamp(8)
    cstamp(4)
    for pi, dn in done_at.items():
        if dn >= NU - 2:
            fill += epi(pi)
    if not isq:
        tail = epi(6)
        while fill and fill[0] != tail[0]:
            P(fill.pop(0))
        for x in deferred:
            P(x)
            if fill and fill[0].startswith('v_'):
                P(fill.pop(0))
        while fill:
            P(fill.pop(0))
        P('s_branch L_CFLAG')
        return
    qstart = epi(4)[0]
    while fill and fill[0] != qstart and qstart in fill:
        P(fill.pop(0))
    lds_poll('L_scrc', cF, cSY, 16, 7)
    lds_poll('L_scrl', cF, cSY, 0, 8)
    stamp(3) if OPT['ds'] == 1 else None
    for e in range(2):
        for tt in range(2):
            for t01 in range(2):
                P(f'ds_write_b64 v{cVW}, {vr(16 * (2 * e + 1) + 8 * tt + 2 * t01, 2)} offset:{e * 144 * VSTR + tt * 16 * VSTR + 32 * t01}')
    P(f's_cmp_eq_u32 s{sI}, 3\ns_cbranch_scc1 L_nokx')
    for e in range(2):
        P(f'ds_write_b128 v{cKX}, {vr(32 * e + 8)} offset:{2048 + 1024 * e}')
    P.label('L_nokx')
    P(f'''s_cmp_ge_u32 s{sI}, 2
s_cbranch_scc1 L_halov
s_lshl_b32 s{sT0}, s{sI}, 10
v_subrev_u32 v{cT}, s{sT0}, v{cKX}
ds_write_b128 v{cT}, {vr(96)}
s_branch L_halod''')
    P.label('L_halov')
    for t01 in range(2):
        P(f'ds_write_b64 v{cVWH}, {vr(96 + 2 * t01, 2)} offset:{32 * t01}')
    P.label('L_halod')
    while fill:
        P(fill.pop(0))
    P('s_waitcnt lgkmcnt(0)')
    lds_signal(cSG, cT + 1, 8)
    KP, VO, S = 104, 112, 144
    au = [(0, 1), (1, 1), (0, 0), (1, 0)]
    for n, (e, tq) in enumerate(au):
        P(mfma(S + 8 * n + 4, 32 * e + 8 * tq, 64 + 16 * e + 8 * tq, cBB))
    for n, (e, tq) in enumerate(au[:2]):
        P(mfma(S + 8 * n, 32 * e, 64 + 16 * e + 8 * tq, cBA))
    stamp(5) if OPT['ds'] == 1 else None
    lds_poll('L_attp', cF, cSY, 16, 8)
    stamp(6) if OPT['ds'] == 1 else None
    for e in range(2):
        P(f'ds_read_b128 {vr(KP + 4 * e)}, v{cKX} offset:{1024 * e}')
    for e in range(2):
        for dt in range(2):
            for kt in range(3):
                P(f'ds_read_b64_tr_b16 {vr(VO + 12 * e + 6 * dt + 2 * kt, 2)}, v{cVR} offset:{e * 144 * VSTR + kt * 16 * VSTR + 32 * dt}')
    P('s_waitcnt lgkmcnt(12)')
    for n, (e, tq) in list(enumerate(au))[2:]:
        P(mfma(S + 8 * n, KP + 4 * e, 64 + 16 * e + 8 * tq, cBA0))
    M = cT
    U = range(4)
    for n in U:
        P(f'v_max3_f32 v{M + n}, v{S + 8 * n + 4}, v{S + 8 * n + 5}, v{S + 8 * n + 6}')
    for n in U:
        P(f'v_max3_f32 v{M + n}, v{M + n}, v{S + 8 * n + 7}, v{S + 8 * n}')
    for n in U:
        P(f'v_max3_f32 v{M + n}, v{M + n}, v{S + 8 * n + 1}, v{S + 8 * n + 2}')
    for n in U:
        P(f'v_max_f32 v{M + n}, v{M + n}, v{S + 8 * n + 3}')

    def xl(op):
        for sw in ('16', '32'):
            for n in U:
                P(f'v_mov_b32 v{M + 4 + n}, v{M + n}')
            for n in U:
                P(f'v_permlane{sw}_swap_b32 v{M + 4 + n}, v{M + n}')
            for n in U:
                P(f'{op} v{M + n}, v{M + n}, v{M + 4 + n}')
    xl('v_max_f32')
    for n in U:
        P(f'v_mul_f32 v{M + n}, v{cR + 1 + 2 * au[n][1]}, v{M + n}')
    for n in U:
        for i in range(8):
            P(f'v_fma_f32 v{S + 8 * n + i}, v{S + 8 * n + i}, v{cR + 1 + 2 * au[n][1]}, -v{M + n}')
        for i in range(8):
            P(f'v_exp_f32 v{S + 8 * n + i}, v{S + 8 * n + i}')
    stamp(7) if OPT['ds'] == 1 else None
    RI = 16
    for n in U:
        P(f'v_pk_add_f32 {vr(RI + 2 * n, 2)}, {vr(S + 8 * n, 2)}, {vr(S + 8 * n + 2, 2)}')
    for i in (4, 6):
        for n in U:
            P(f'v_pk_add_f32 {vr(RI + 2 * n, 2)}, {vr(RI + 2 * n, 2)}, {vr(S + 8 * n + i, 2)}')
    for n in U:
        P(f'v_add_f32 v{M + n}, v{RI + 2 * n}, v{RI + 2 * n + 1}')
    xl('v_add_f32')
    for n in U:
        P(f'v_rcp_f32 v{RI + 2 * n}, v{M + n}')
    P(f'''s_lshl_b32 s{sT2}, s{sIDX}, 11
s_add_u32 s{sT2}, s{sT2}, s{sA0}
s_add_u32 s{sT2}, s{sT2}, {56 * 1024}
s_add_u32 s{sT3}, s{sT2}, {NS * 1024}
s_waitcnt lgkmcnt(0)''')
    O = 64
    for n, (e, tq) in enumerate(au):
        for i in range(4):
            P(f'v_pk_mul_f32 {vr(S + 8 * n + 2 * i, 2)}, {vr(S + 8 * n + 2 * i, 2)}, {vr(RI + 2 * n, 2)} op_sel_hi:[1,0]')
        for x in pack(S + 8 * n):
            P(x)
        if n:
            ep, tp = au[n - 1]
            for dt in range(2):
                P(mfma(O + 8 * (n - 1) + 4 * dt, VO + 12 * ep + 6 * dt + 2 * tp, S + 8 * (n - 1), None))
    for dt in range(2):
        P(mfma(O + 24 + 4 * dt, VO + 12 * au[3][0] + 6 * dt + 2 * au[3][1], S + 24, None))
    stamp(13) if OPT['ds'] == 1 else None
    for n, (e, tq) in enumerate(au):
        for x in pack(O + 8 * n):
            P(x)
        P(f'v_and_b32 v{O + 8 * n + 2}, v{O + 8 * n + 2}, v{cM48}\nv_and_b32 v{O + 8 * n + 3}, v{O + 8 * n + 3}, v{cM48}')
        P(f'buffer_store_dwordx4 {vr(O + 8 * n)}, v{cL16}, {srd(SWS)}, s{sT2 + tq} offen offset:{1024 * e} sc1')


C_phase1(0)
P.label('L_CQ')
C_phase1(1)
P.label('L_CFLAG')
_st = stamp
if OPT['ds'] == 2:
    def stamp(k):
        if k >= 14:
            _st(k)
stamp(9)
lds_signal(cSG, cT + 1, 9)
P(f'''v_lshrrev_b32 v0, 4, v{cL16}
v_mov_b32 v1, 0
v_mov_b32 v2, s{sTAG}
s_waitcnt vmcnt(0)
s_mov_b64 exec, 1
buffer_store_dword v2, v1, {srd(SWS)}, s{sA1} offen sc1
s_mov_b64 exec, -1''')
stamp(10)
P(f'''s_cmp_lt_u32 s{sCT}, 7
s_cbranch_scc1 L_P2C
s_cmp_lg_u32 s2, 255
s_cbranch_scc1 L_EXIT
s_cmp_lg_u32 s{sWAVE}, 4
s_cbranch_scc1 L_EXIT
v_lshlrev_b32 v3, 7, v0
v_add_u32 v3, {WS_FLAGS}, v3''')
P.label('L_bump')
spin_guard('L_EXIT')
P('s_sleep 8')
for n in range(4):
    P(f'buffer_load_dwordx4 {vr(4 + 4 * n)}, v3, {srd(SWS)}, 0 offen offset:{16 * n} sc1')
P('s_waitcnt vmcnt(0)')
for n in range(16):
    P(f'v_xor_b32 v{4 + n}, v{4 + n}, v2')
for n in range(1, 16):
    P(f'v_or_b32 v4, v4, v{4 + n}')
P(f'''v_cmp_ne_u32 vcc, 0, v4
s_cbranch_vccnz L_bump
s_mov_b64 exec, 1
buffer_store_dword v2, v1, {srd(SWS)}, 0 offen sc1
s_mov_b64 exec, -1
s_branch L_EXIT''')

for t_, s_ in SLOW:
    lds_spin(f'L_{t_}w{s_}', cF, cSY, 0, s_ + 1, 0)
    P(f's_branch L_{t_}w{s_}_ok')

CACC = 16
CWR = 48
CAR = 80
NAR = 20
cA2 = 160
cP, cPo = 164, 165
cRA = 168
P.label('L_P2C')
if OPT['prio']:
    P('s_setprio 0')
w2_tr_addr(cA2, 10, 12, 13)
P(f'''s_and_b32 s{sT3}, s{sI}, 1
s_lshl_b32 s{sT0}, s{sRT}, 1
s_add_u32 s{sT0}, s{sT0}, s{sT3}
s_mul_i32 s{sA0}, s{sT0}, {2 * NS * 1024}
s_lshl_b32 s{sT0}, s{sT0}, 7
s_add_u32 s{sT0}, s{sT0}, {WS_FLAGS}
s_cmp_ge_u32 s{sI}, 2
s_cselect_b32 s{sT1}, {CH0 // 7}, 8
s_cselect_b32 s{sT2}, 7, 15
v_add_u32 v{cPo}, s{sT1}, v0
v_min_u32 v{cPo}, s{sT2}, v{cPo}
v_lshlrev_b32 v{cPo}, 2, v{cPo}
v_add_u32 v{cPo}, s{sT0}, v{cPo}
s_cselect_b32 s{sT1}, 0, {CHN * 1024}
s_add_u32 s{sA0}, s{sA0}, s{sT1}
s_add_u32 s{sA0}, s{sA0}, {WS_ACT + CH0 * 1024}
s_add_u32 s{sA1}, s{sA0}, {NS * 1024}
v_and_b32 v12, 15, v0
v_lshlrev_b32 v12, 7, v12
v_lshrrev_b32 v13, 5, v0
v_xor_b32 v13, v13, v0
v_and_b32 v13, 7, v13
v_lshl_add_u32 v12, v13, 4, v12
v_bfe_u32 v13, v0, 4, 1
v_lshl_add_u32 v12, v13, 3, v12
s_lshl_b32 s{sT0}, s{sI}, 13
s_add_u32 s{sT0}, s{sT0}, {XB}
v_add_u32 v{cRA}, s{sT0}, v12
v_xor_b32 v{cRA + 1}, 32, v{cRA}
v_xor_b32 v{cRA + 2}, 64, v{cRA}
v_xor_b32 v{cRA + 3}, 96, v{cRA}''')
if OPT['clate']:
    lds_poll('L_cwl', 12, cSY, 0, 9, 2)
    stamp(11)
vmC = Q(P, 'vmcnt', 63)
flag_poll_issue(vmC, cP, cPo, 'poll')
flag_poll_check(vmC, 'L_pollC', cP, cPo, 'poll')
stamp(12)
fin_xload()
P(f's_cmp_ge_u32 s{sI}, 2\ns_cbranch_scc1 L_P2H')


def C_phase2(kind):
    vm = Q(P, 'vmcnt', 63)
    lg = Q(P, 'lgkmcnt', 15)
    steps = 16
    base = [0]
    LW2 = 6

    def aload(n):
        k, tt = divmod(n, 2)
        P(f'buffer_load_dwordx4 {vr(CAR + 4 * (n % NAR))}, v{cL16}, {srd(SWS)}, s{sA0 + tt} offen offset:{(k % 4) * 1024} sc1')
        vm.issue(('a', n))
        if k % 4 == 3:
            P(f's_add_u32 s{sA0 + tt}, s{sA0 + tt}, 4096')

    def wread(n, j):
        k, ct = divmod(n, 4)
        o = (28 * k if kind == 0 else 448 + 32 * k) * 128
        x = 2 if (kind == 0 and k % 2) else 0
        if o + 2048 - base[0] > 65535:
            assert ct == 0 and j == 0
            d = o - base[0]
            for c in range(4):
                P(f'v_add_u32 v{cA2 + c}, {d}, v{cA2 + c}')
            base[0] = o
        P(f'ds_read_b64_tr_b16 {vr(CWR + 4 * (n % 8) + 2 * j, 2)}, v{cA2 + (ct ^ x)} offset:{o - base[0] + 2048 * j}')
        lg.issue(('w', n))
    na = 0
    while na < NAR - 2:
        aload(na)
        na += 1
    if not OPT['clate']:
        lds_poll('L_cwl%d' % kind, 12, cSY, 0, 9, 2)
        stamp(11)
    for n in range(LW2):
        wread(n, 0)
        wread(n, 1)
    for n in range(4 * steps):
        k, ct = divmod(n, 4)
        if ct == 0:
            vm.wait(('a', 2 * k + 1))
        if n % 2 == 0:
            lg.wait(('w', n + 1))
        for tt in range(2):
            a = CACC + 16 * tt + 4 * ct
            P(mfma(a, CWR + 4 * (n % 8), CAR + 4 * ((2 * k + tt) % NAR), None if k == 0 else a))
            if n + LW2 < 4 * steps:
                wread(n + LW2, tt)
        if ct in (1, 2) and na < 2 * steps:
            aload(na)
            na += 1
    stamp(14)
    if kind == 0:
        for r in range(16):
            P(f'v_cvt_pk_bf16_f32 v{CACC + r}, v{CACC + 2 * r}, v{CACC + 2 * r + 1}')
    lds_poll('L_ldp%d' % kind, 12, cSY, 0, 12)
    if kind == 1:
        P(f'''s_xor_b32 s{sT0}, s{sT3}, 1
s_lshl_b32 s{sT0}, s{sT0}, 14
s_add_u32 s{sT0}, s{sT0}, {XB + 4096}
v_add_u32 v13, s{sT0}, v{cL16}''')
        for n in range(8):
            P(f'ds_read_b128 {vr(CWR + 4 * n)}, v13 offset:{(n // 4) * 8192 + (n % 4) * 1024}')
        for n in range(8):
            P(f's_waitcnt lgkmcnt({7 - n})')
            for r in (2 * n, 2 * n + 1):
                P(f'v_pk_add_f32 {vr(CACC + 2 * r, 2)}, {vr(CACC + 2 * r, 2)}, {vr(CWR + 2 * r, 2)}')
            for r in (2 * n, 2 * n + 1):
                P(f'v_cvt_pk_bf16_f32 v{CACC + r}, v{CACC + 2 * r}, v{CACC + 2 * r + 1}')
    for n in range(8):
        P(f'ds_write_b64 v{cRA + n % 4}, {vr(CACC + 2 * n, 2)} offset:{2048 * (n // 4)}')


C_phase2(0)
P('s_branch L_FIN')
P.label('L_P2H')
C_phase2(1)

P.label('L_FIN')
F, S_, X_, E_ = 20, 28, 36, 44
P(f'''v_xor_b32 v9, v1, v2
v_and_b32 v9, 7, v9
v_lshlrev_b32 v9, 4, v9
v_and_b32 v10, 31, v1
v_lshl_add_u32 v9, v10, 7, v9
s_lshr_b32 s{sT0}, s{sWAVE}, 2
s_lshl_b32 s{sT0}, s{sT0}, 13
s_add_u32 s{sT0}, s{sT0}, {XB}
v_add_u32 v9, s{sT0}, v9
s_waitcnt vmcnt(0) lgkmcnt(0)
v_and_b32 v8, 0xffff0000, v8
v_rcp_f32 v8, v8
s_barrier
ds_read_b128 v[12:15], v9 offset:16384
ds_read_b128 v[16:19], v9
v_mul_f32 v10, 0xbfb8aa3b, v8''')
for n in range(4):
    P(f'v_lshlrev_b32 v{X_ + 2 * n}, 16, v{FX + n}\nv_and_b32 v{X_ + 2 * n + 1}, 0xffff0000, v{FX + n}')
P('s_waitcnt lgkmcnt(1)')
for n in range(4):
    P(f'v_lshlrev_b32 v{F + 2 * n}, 16, v{12 + n}\nv_and_b32 v{F + 2 * n + 1}, 0xffff0000, v{12 + n}')
for n in range(8):
    P(f'v_mul_f32 v{E_ + n}, v10, v{F + n}')
for n in range(8):
    P(f'v_exp_f32 v{E_ + n}, v{E_ + n}')
P('s_waitcnt lgkmcnt(0)')
for n in range(4):
    P(f'v_lshlrev_b32 v{S_ + 2 * n}, 16, v{16 + n}\nv_and_b32 v{S_ + 2 * n + 1}, 0xffff0000, v{16 + n}')
for n in range(8):
    P(f'v_add_f32 v{E_ + n}, 1.0, v{E_ + n}')
for n in range(8):
    P(f'v_rcp_f32 v{E_ + n}, v{E_ + n}')
for n in range(8):
    P(f'v_mul_f32 v{F + n}, v{F + n}, v8')
for n in range(8):
    P(f'v_mul_f32 v{F + n}, v{F + n}, v{E_ + n}')
for n in range(8):
    P(f'v_fmac_f32 v{X_ + n}, v{S_ + n}, v{F + n}')
for n in range(4):
    P(f'v_cvt_pk_bf16_f32 v{12 + n}, v{X_ + 2 * n}, v{X_ + 2 * n + 1}')
P(f'buffer_store_dwordx4 v[12:15], v3, {srd(SOUT)}, s{sT2} offen' + (' sc1' if OPT['osc1'] else ''))
P.label('L_EXIT')
if DIAG:
    P('s_waitcnt vmcnt(0)')
    stamp(15)
    diag_dump()
P.label('L_END')
P('s_endpgm')

body = P.finalize()
ref = open('cdna_kernels/%s.s.ref' % NAME).read()
hdr = [l for l in ref.split('\n') if l.startswith(';') and '@launch' not in l]
out = '\n'.join(hdr) + '\n; @launch grid=(256,1,1) block=(512,1,1) lds=%d\n' % LDS_BYTES
out += f'''.amdgcn_target "amdgcn-amd-amdhsa--gfx950"
.text
.globl {NAME}_kernel
.p2align 8
.type {NAME}_kernel,@function
{NAME}_kernel:
{body}.section .rodata,"a"
.p2align 6
.amdhsa_kernel {NAME}_kernel
  .amdhsa_next_free_vgpr 256
  .amdhsa_next_free_sgpr 102
  .amdhsa_accum_offset 256
  .amdhsa_group_segment_fixed_size 0
  .amdhsa_kernarg_size 72
  .amdhsa_user_sgpr_count 2
  .amdhsa_user_sgpr_kernarg_segment_ptr 1
  .amdhsa_system_sgpr_workgroup_id_x 1
.end_amdhsa_kernel
'''
open(sys.argv[1], 'w').write(out)
print('instructions', len(P.ins), 'nops inserted', P.nops_inserted)
```

```python
import sys
import itertools
from asmlib import Prog, Q

NAME = 'recurrent_scan__sliding_local_dilated__dense_activation_relu__prompt'
OPT = dict(diag=0, pf_code=1, pf_w=4, la=5, hold=2, wstep=2, prio=1, osc1=1, lahead=20, tm=1,
           nfill=2, cs_it=5, fla=4, ds=0, lsl=4, hw=7, cap=7, relu=0, n5=2, p5=12,
           kh=0x58ffff, kq=0x47ffff, k0=2, sfn=5, gk=5, ssl=1, nt=0, fs=7, fl=32, swarm=1, w4=2, lpause=1, pe=4, lpl=8, cprio=1, fwarm=1, xh=1, qf=1, qhold=0, la0=20, gate=10, sk=4, xl=0, ipf=2)
for a in sys.argv[2:]:
    k, v = a.split('=')
    OPT[k] = int(v, 0)
PROBE = OPT.get('probe')
DIAG = OPT['diag'] or PROBE is not None

WS_FLAGS = 0x980000
FS = OPT['fs']
WS_STATS = 16384
WS_CSUM = 32768
WS_ACT = 262144
WS_XCH = 0xA00000
WS_DIAG = 0xE00000
WS_BYTES = 0xF00000
NS = 72
LST = 7

XS = [0, 16384, 32768]
WSL = [49152, 77824, 106496]
WO = 77824
NGRP = 14
HALO = 135168
WIN = 135168
ST = 157696
CS = 161792
SYNC = 163584
VSTR = 72
VREG = 135168
KX = 65536
DUMPF = 0
DUMPO = 77824
STILE = [65536, 143360]
LDS_BYTES = 163840

sSPIN = 3
SPIN_MAX = 0x40000
SX, SW, SWO, SW2, SWS, SOUT = 24, 28, 32, 36, 40, 44
sWAVE, sRB, sIDX, sISQ, sCG, sRT, sCT, sROT, sTAG, sI = range(48, 58)
sT0, sT1, sT2, sT3 = 58, 59, 60, 61
sXO, sWO_, sMX, sMW, sHO, sKB = 62, 63, 64, 65, 66, 67
sA0, sA1 = 68, 69
sPUB = 22
sST = 70

P = Prog()


def srd(b):
    return 's[%d:%d]' % (b, b + 3)


def vr(a, n=4):
    return 'v[%d:%d]' % (a, a + n - 1)


MUTE = False


def stamp(k):
    if DIAG and not MUTE:
        P('s_memrealtime s[%d:%d]' % (sST + 2 * k, sST + 2 * k + 1))


def cstamp(k):
    if DIAG and PROBE is None:
        P('s_memtime s[%d:%d]' % (sST + 2 * k, sST + 2 * k + 1))


def mk_srd(b, ptr, size):
    P('s_mov_b32 s%d, s%d\ns_mov_b32 s%d, s%d\ns_mov_b32 s%d, 0x%x\ns_mov_b32 s%d, 0x20000'
      % (b, ptr, b + 1, ptr + 1, b + 2, size, b + 3))


def diag_dump():
    if PROBE is not None:
        a, b = divmod(PROBE, 100)
        P(f'''s_waitcnt lgkmcnt(0)
s_cmp_lt_u32 s{sWAVE}, 4
s_cbranch_scc1 L_END
s_cmp_ge_u32 s{sCT}, 7
s_cbranch_scc1 L_END
s_sub_u32 s{sT0}, s{sST + 2 * b}, s{sST + 2 * a}
s_min_u32 s{sT0}, s{sT0}, 5000
s_lshl_b32 s{sT0}, s{sT0}, 2''')
        P.label('L_probe')
        P(f'''s_memrealtime s[{sT2}:{sT3}]
s_waitcnt lgkmcnt(0)
s_sub_u32 s{sT1}, s{sT2}, s{sST + 30}
s_cmp_lt_u32 s{sT1}, s{sT0}
s_cbranch_scc1 L_probe''')
    elif DIAG:
        P('s_lshl_b32 s%d, s2, 3\ns_add_u32 s%d, s%d, s%d\ns_lshl_b32 s%d, s%d, 6\ns_add_u32 s%d, s%d, 0x%x'
          % (sT0, sT0, sT0, sWAVE, sT0, sT0, sT0, sT0, WS_DIAG))
        P('v_mov_b32 v1, 0\ns_waitcnt lgkmcnt(0)')
        for k in range(16):
            P('v_mov_b32 v2, s%d\nbuffer_store_dword v2, v1, %s, s%d offen offset:%d' % (sST + 2 * k, srd(SWS), sT0, 4 * k))


def spin_guard(out):
    P(f's_add_u32 s{sSPIN}, s{sSPIN}, 1\ns_cmp_gt_u32 s{sSPIN}, {SPIN_MAX}\ns_cbranch_scc1 {out}')


def lds_cmp(tmp, val):
    P(f'v_min3_u32 v{tmp}, v{tmp}, v{tmp + 1}, v{tmp + 2}\nv_min_u32 v{tmp}, v{tmp}, v{tmp + 3}\nv_cmp_gt_u32 vcc, {val}, v{tmp}')


def lds_poll(name, tmp, vsync, off, val, sleep=0):
    P(f'ds_read_b128 {vr(tmp)}, v{vsync} offset:{off}\ns_waitcnt lgkmcnt(0)')
    lds_cmp(tmp, val)
    P(f's_cbranch_vccz {name}_ok')
    lds_spin(name, tmp, vsync, off, val, sleep)
    P.label(name + '_ok')


def lds_spin(name, tmp, vsync, off, val, sleep):
    P.label(name)
    spin_guard(name + '_ok')
    if sleep:
        P(f's_sleep {sleep}')
    P(f'ds_read_b128 {vr(tmp)}, v{vsync} offset:{off}\ns_waitcnt lgkmcnt(0)')
    lds_cmp(tmp, val)
    P(f's_cbranch_vccnz {name}')


def lds_signal(vaddr, tmp, val):
    P(f'v_mov_b32 v{tmp}, {val}\nds_write_b32 v{vaddr}, v{tmp}')


def w2_tr_addr(d, hi_shift, t0, t1):
    P(f'''v_bfe_u32 v{t0}, v0, 2, 3
v_lshlrev_b32 v{t0}, 7, v{t0}
v_lshrrev_b32 v{t1}, 5, v0
v_lshl_add_u32 v{t0}, v{t1}, {hi_shift}, v{t0}
v_and_b32 v{t1}, 3, v0
v_lshl_add_u32 v{t0}, v{t1}, 3, v{t0}
v_bfe_u32 v{t1}, v0, 3, 2
v_lshl_add_u32 v{d}, v{t1}, 5, v{t0}
v_xor_b32 v{d + 1}, 32, v{d}
v_xor_b32 v{d + 2}, 64, v{d}
v_xor_b32 v{d + 3}, 96, v{d}''')


def q_addr_parts(trow, tmask, tc, t):
    P(f'''v_lshrrev_b32 v{trow}, 4, v0
v_lshlrev_b32 v{trow}, 3, v{trow}
v_bfe_u32 v{t}, v0, 2, 2
v_add_u32 v{trow}, v{trow}, v{t}
v_lshlrev_b32 v{trow}, 7, v{trow}
v_bfe_u32 v{tmask}, v0, 3, 2
v_lshlrev_b32 v{tmask}, 5, v{tmask}
v_and_b32 v{tc}, 3, v0
v_lshlrev_b32 v{tc}, 3, v{tc}''')


def q_addr(d, boff, trow, tmask, tc):
    P(f'v_add_u32 v{d}, {boff}, v{tc}\nv_xor_b32 v{d}, v{d}, v{tmask}\nv_add_u32 v{d}, v{d}, v{trow}')


def h_addr(d, t0, t1):
    P(f'''v_lshrrev_b32 v{t0}, 4, v0
v_lshlrev_b32 v{t0}, 3, v{t0}
v_bfe_u32 v{t1}, v0, 2, 2
v_add_u32 v{t0}, v{t0}, v{t1}
v_mul_u32_u24 v{t0}, 448, v{t0}
v_bfe_u32 v{t1}, v0, 4, 1
v_lshl_add_u32 v{t0}, v{t1}, 5, v{t0}
v_and_b32 v{t1}, 3, v0
v_lshl_add_u32 v{d}, v{t1}, 3, v{t0}''')


def mfma(d, a, b, c):
    return f'v_mfma_f32_16x16x32_bf16 {vr(d)}, {vr(a)}, {vr(b)}, ' + ('0' if c is None else vr(c))


P(f'''s_cmp_ge_u32 s2, 256
s_cbranch_scc1 L_END
s_load_dwordx16 s[4:19], s[0:1], 0
s_load_dwordx2 s[20:21], s[0:1], 64
v_lshrrev_b32 v1, 6, v0
v_and_b32 v0, 63, v0
v_readfirstlane_b32 s{sWAVE}, v1
s_and_b32 s{sT0}, s2, 7
s_lshr_b32 s{sT1}, s2, 3
s_and_b32 s{sRB}, s{sT0}, 1
s_lshl_b32 s{sRB}, s{sRB}, 3
s_and_b32 s{sT2}, s{sT1}, 7
s_add_u32 s{sRB}, s{sRB}, s{sT2}
s_and_b32 s{sIDX}, s{sT0}, 6
s_bfe_u32 s{sT2}, s{sT1}, 0x10003
s_add_u32 s{sIDX}, s{sIDX}, s{sT2}
s_lshr_b32 s{sISQ}, s{sT1}, 4
s_lshl_b32 s{sCG}, s{sISQ}, 3
s_add_u32 s{sCG}, s{sCG}, s{sIDX}
s_mul_i32 s{sT2}, s{sT1}, 9363
s_lshr_b32 s{sT2}, s{sT2}, 16
s_mul_i32 s{sT3}, s{sT2}, 7
s_sub_u32 s{sT3}, s{sT1}, s{sT3}
s_cmp_ge_u32 s{sT1}, 28
s_cselect_b32 s{sCT}, 7, s{sT3}
s_lshl_b32 s{sT2}, s{sT2}, 1
s_and_b32 s{sRT}, s{sT0}, 6
s_lshl_b32 s{sRT}, s{sRT}, 2
s_add_u32 s{sRT}, s{sRT}, s{sT2}
s_and_b32 s{sT2}, s{sT0}, 1
s_add_u32 s{sRT}, s{sRT}, s{sT2}
s_lshr_b32 s{sROT}, s{sT1}, 3
s_lshl_b32 s{sROT}, s{sROT}, 1
s_add_u32 s{sROT}, s{sROT}, s{sRB}
s_mul_i32 s{sT2}, s{sROT}, 9363
s_lshr_b32 s{sT2}, s{sT2}, 16
s_mul_i32 s{sT2}, s{sT2}, 7
s_sub_u32 s{sROT}, s{sROT}, s{sT2}
s_and_b32 s{sPUB}, s{sROT}, 1
s_cmp_ge_u32 s{sRB}, 7
s_cselect_b32 s{sPUB}, 1, s{sPUB}
s_mov_b32 s{sSPIN}, 0
s_and_b32 s{sI}, s{sWAVE}, 3''')
if DIAG:
    for k in range(16):
        P('s_mov_b32 s%d, 0' % (sST + 2 * k))
if PROBE is not None:
    stamp(2)
P(f'''s_cmp_ge_u32 s{sWAVE}, 4
s_cbranch_scc1 L_C''')

LW, LACC, LA, LADR = 24, 136, 168, 252
vX, vW, vH, vCA, vGA, vGS = 164, 168, 175, 176, 178, 179
vSEL, vCACC, vCF, vLT = 180, 196, 200, 232
vAD1, vAD2 = 180, 184
vS = 124
vSY, vSG, vPT = 244, 245, 248


def dma(vm, voff, srdb, soff, m0base, m0imm, tag=None, nt=False):
    P(f's_add_u32 m0, s{m0base}, {m0imm}')
    P(f'buffer_load_dwordx4 v{voff}, {srd(srdb)}, s{soff} offen {"nt " if nt else ""}lds')
    vm.issue(tag)


def red32(a, t):
    for sh in (8, 4, 2, 1):
        P(f'v_add_f32_dpp v{a}, v{a}, v{a} row_ror:{sh} row_mask:0xf bank_mask:0xf')
    P(f'v_mov_b32 v{t}, v{a}\nv_permlane16_swap_b32 v{t}, v{a}\nv_add_f32 v{a}, v{a}, v{t}')


def stats_rows():
    P(f'''v_and_b32 v{vS}, 31, v0
v_lshrrev_b32 v{vS + 1}, 5, v0
v_mul_u32_u24 v{vS + 2}, 896, v{vS + 1}
v_lshl_add_u32 v{vS + 2}, v{vS}, 4, v{vS + 2}
v_cmp_gt_u32 vcc, 28, v{vS}
v_mov_b32 v{vS + 3}, 0x10000000
v_cndmask_b32 v{vS + 2}, v{vS + 3}, v{vS + 2}, vcc
v_cndmask_b32 v{vS + 3}, 0, 1.0, vcc
s_lshl_b32 s{sT0}, s{sRB}, 7
s_lshl_b32 s{sT1}, s{sCG}, 3
s_add_u32 s{sT0}, s{sT0}, s{sT1}
s_lshl_b32 s{sT1}, s{sI}, 1
s_add_u32 s{sT3}, s{sT0}, s{sT1}
s_mul_i32 s{sT2}, s{sT3}, 896''')


def stats_load(vm):
    for u in range(2):
        P(f'buffer_load_dwordx4 {vr(vS + 4 + 4 * u)}, v{vS + 2}, {srd(SX)}, s{sT2} offen offset:{448 * u}')
        vm.issue('stats')

def stats_body():
    n0 = len(P.ins)
    a, d = vS + 12, vS + 16
    for n in range(8):
        P(f'v_lshlrev_b32 v{d + 2 * n}, 16, v{vS + 4 + n}\nv_and_b32 v{d + 1 + 2 * n}, 0xffff0000, v{vS + 4 + n}')
    P(f'v_add_f32 v{a}, v{d}, v{d + 1}\nv_add_f32 v{a + 1}, v{d + 2}, v{d + 3}')
    for n in range(4, 16):
        P(f'v_add_f32 v{a + n % 2}, v{a + n % 2}, v{d + n}')
    P(f'v_add_f32 v{a}, v{a}, v{a + 1}')
    red32(a, a + 1)
    P(f'v_mul_f32 v{a}, 0x3b124925, v{a}')
    for n in range(16):
        P(f'v_sub_f32 v{d + n}, v{d + n}, v{a}')
    P(f'v_mul_f32 v{a + 2}, v{d}, v{d}\nv_mul_f32 v{a + 3}, v{d + 1}, v{d + 1}')
    for n in range(2, 16):
        P(f'v_fmac_f32 v{a + 2 + n % 2}, v{d + n}, v{d + n}')
    P(f'v_add_f32 v{a + 2}, v{a + 2}, v{a + 3}\nv_mul_f32 v{a + 2}, v{a + 2}, v{vS + 3}')
    red32(a + 2, a + 1)
    P(f'''v_mul_f32 v{a + 2}, 0x3b124925, v{a + 2}
v_cvt_pk_bf16_f32 v{a + 2}, 0, v{a + 2}
v_add_f32 v{a + 2}, 0x3727c5ac, v{a + 2}
v_cvt_pk_bf16_f32 v{a + 2}, 0, v{a + 2}
v_sqrt_f32 v{a + 2}, v{a + 2}
v_cvt_pk_bf16_f32 v{a + 2}, v{a}, v{a + 2}
v_mov_b32 v{a + 3}, s{sTAG}
v_lshlrev_b32 v{a + 1}, 3, v{vS + 1}''')
    out = [x.text for x in P.ins[n0:]]
    del P.ins[n0:]
    return out

def stats_store(vm):
    a = vS + 12
    P(f'''s_lshl_b32 s{sT3}, s{sT3}, 3
s_add_u32 s{sT3}, s{sT3}, {WS_STATS}
s_mov_b32 exec_lo, 1
s_mov_b32 exec_hi, 1
buffer_store_dwordx2 {vr(a + 2, 2)}, v{a + 1}, {srd(SWS)}, s{sT3} offen sc1
s_mov_b64 exec, -1''')
    vm.issue()


sFB = 23
BL = '\n'.join(f's_buffer_load_dword s{4 + g}, {srd(SWS)}, s{sFB} offset:{g << FS} glc' for g in range(4))


def of_addr(d, t0, t1):
    P(f'''s_lshr_b32 s{d}, s{sRT}, 1
s_lshl_b32 s{d}, s{d}, 14
s_lshr_b32 s{t0}, s{sI}, 1
s_lshl_b32 s{t0}, s{t0}, 12
s_add_u32 s{d}, s{d}, s{t0}
s_and_b32 s{t0}, s{sRT}, 1
s_lshl_b32 s{t0}, s{t0}, 1
s_and_b32 s{t1}, s{sI}, 1
s_add_u32 s{t0}, s{t0}, s{t1}
s_lshl_b32 s{t0}, s{t0}, {FS}
s_add_u32 s{d}, s{d}, s{t0}
s_add_u32 s{d}, s{d}, {WS_FLAGS + 8192}''')


def xh_addr(d):
    P(f'''s_mul_i32 s{d}, s{sRT}, 7
s_add_u32 s{d}, s{d}, s{sCT}
s_lshl_b32 s{d}, s{d}, 4
s_add_u32 s{d}, s{d}, s{sWAVE}
s_lshl_b32 s{d}, s{d}, 10
s_add_u32 s{d}, s{d}, {WS_XCH + 8192 + 1020}''')


class W2Plan:
    def __init__(self, vm):
        self.vm = vm
        self.pairs = []
        self.grp = set()
        self.loc = {}
        self.pending = []
        self.ncw = 0

    def wopair(self):
        c = [g for g in (0, 2, 4) if g in self.grp and g + 1 in self.grp]
        return c[0] if c else None

    def has_pair(self):
        return bool(self.pairs) or self.wopair() is not None

    def own(self, hs):
        for h in hs:
            if self.pairs:
                a = self.pairs.pop(0)
            else:
                g = self.wopair()
                self.grp -= {g, g + 1}
                a = WO + 4096 * g
            self.loc[h] = a
            for u in range(2):
                dma(self.vm, 2 + u, SW2, sA0, sMX, a + 4096 * u, ('own', h))
            P(f's_add_u32 s{sA0}, s{sA0}, {16 * 896}')

    def sync(self):
        if self.pending:
            P('s_waitcnt lgkmcnt(0)')
            for h in self.pending:
                a = self.loc[h]
                if WO <= a < WO + 4096 * NGRP:
                    self.grp |= {(a - WO) // 4096, (a - WO) // 4096 + 1}
                else:
                    self.pairs.append(a)
            self.pending = []

    def stage(self, hs):
        self.vm.wait(('own', hs[-1]))
        self.sync()
        for h in hs:
            o = self.loc[h]
            base = (LADR, vAD1, vAD2)[o >> 16]
            for ct in range(4):
                P(f'ds_read_b64_tr_b16 {vr(LW + 8 * (h & ~1) + 4 * ct + 2 * (h & 1), 2)}, v{base + ct} offset:{o & 0xffff}')
        self.pending = list(hs)

    def cw(self):
        if NGRP - self.ncw == OPT['pe']:
            P(BL)
        g = max(self.grp)
        self.grp.remove(g)
        P(f's_add_u32 s{sT0}, s{sA1}, {g * 28672}')
        dma(self.vm, 2, SWO, sT0, sMX, WO + 4096 * g, ('cw', g))
        self.ncw += 1


def spoll(name, loads, nreg):
    P.label(name)
    P(loads)
    P.label(name + '_w')
    P('s_waitcnt lgkmcnt(0)')
    for n in range(nreg):
        P(f's_xor_b32 s{4 + n}, s{4 + n}, s{sTAG}')
    if nreg == 1:
        pass
    elif nreg == 2:
        P('s_or_b32 s4, s4, s5')
    elif nreg == 4:
        P('s_or_b64 s[4:5], s[4:5], s[6:7]')
    else:
        P('s_or_b64 s[4:5], s[4:5], s[6:7]\ns_or_b64 s[8:9], s[8:9], s[10:11]\ns_or_b64 s[4:5], s[4:5], s[8:9]')
    P(f's_cbranch_scc0 {name}_ok')
    spin_guard(name + '_ok')
    P(f's_sleep {OPT["ssl"]}\ns_branch {name}')
    P.label(name + '_ok')


P(f'''v_lshrrev_b32 v{vLT}, 3, v0
v_lshl_add_u32 v{vLT}, s{sI}, 3, v{vLT}
v_mul_u32_u24 v{vX}, 896, v{vLT}
v_lshrrev_b32 v{vLT}, 1, v{vLT}
v_xor_b32 v{vLT}, v{vLT}, v0
v_and_b32 v{vLT}, 7, v{vLT}
v_lshl_add_u32 v{vX}, v{vLT}, 4, v{vX}
v_add_u32 v{vX + 1}, 28672, v{vX}
v_add_u32 v{vX + 2}, 57344, v{vX}
v_add_u32 v{vX + 3}, 86016, v{vX}
s_mul_i32 s{sXO}, s{sRB}, 114688
s_lshl_b32 s{sT0}, s{sROT}, 7
s_add_u32 s{sXO}, s{sXO}, s{sT0}
s_mov_b32 s{sKB}, s{sROT}
s_lshl_b32 s{sMX}, s{sI}, 10
s_cmp_eq_u32 s{sISQ}, {1 - OPT['qf']}
s_cbranch_scc1 L_LQ''')


def L_phase1(isq):
    t = 'Q' if isq else 'H'
    vm = Q(P, 'vmcnt', 63)
    wstr = 2688 if isq else 3584
    wsl = WSL
    globals()['MUTE'] = False

    def gen_st(s):
        for n in range(4):
            dma(vm, vX + n, SX, sXO, sMX, XS[s % 3] + 4096 * n, nt=(OPT['nt'] & 1 and s < 1))
            yield
        if isq and s % 2 == 0:
            if s < 6:
                P(f'''s_lshr_b32 s{sT0}, s{sI}, 1
s_add_u32 s{sT0}, s{sT0}, s{sKB}
s_cmp_eq_u32 s{sT0}, 7
s_cselect_b32 s{sT0}, 0, s{sT0}
s_lshl_b32 s{sT0}, s{sT0}, 7
s_add_u32 s{sT0}, s{sT0}, s{sHO}''')
                dma(vm, vH, SX, sT0, sMX, HALO + 2048 * s)
            else:
                P(f'''s_lshl_b32 s{sT0}, s{sKB}, 7
s_add_u32 s{sT0}, s{sT0}, s{sHO}
s_and_b32 s{sT1}, s{sMX}, 1024''')
                dma(vm, vH, SX, sT0, sT1, HALO + 2048 * s)
            yield
        nw = 6 if isq else 7
        for n in range(nw):
            o = (n // 2) * 8192 + (n % 2) * 1024 if isq else n * 1024
            dma(vm, vW + n, SW, sWO_, sMW, wsl[s % 3] + o, ('st', s), nt=(OPT['nt'] & 2 and s < 1))
            if n == nw - 1 and s < 6:
                P(f'''s_add_u32 s{sKB}, s{sKB}, 1
s_cmp_eq_u32 s{sKB}, 7
s_cselect_b32 s{sKB}, 0, s{sKB}
s_cselect_b32 s{sT0}, {7 * 128}, 0
s_cselect_b32 s{sT1}, {7 * 64 * wstr}, 0
s_add_u32 s{sXO}, s{sXO}, 128
s_add_u32 s{sWO_}, s{sWO_}, {64 * wstr}
s_sub_u32 s{sXO}, s{sXO}, s{sT0}
s_sub_u32 s{sWO_}, s{sWO_}, s{sT1}''')
            yield

    def run(g, n=1000):
        for _ in range(n):
            if next(g, 'end') == 'end':
                break

    if isq:
        P(f'''v_lshrrev_b32 v{vLT}, 3, v0
v_mul_u32_u24 v{vW}, 2688, v{vLT}
v_bfe_u32 v{vLT}, v0, 4, 1
v_lshlrev_b32 v{vLT}, 1, v{vLT}
v_xor_b32 v{vLT}, v{vLT}, v0
v_and_b32 v{vLT}, 7, v{vLT}
v_lshlrev_b32 v{vLT}, 4, v{vLT}
v_xor_b32 v{vLT + 1}, 64, v{vLT}
v_add_u32 v{vW + 1}, {8 * 2688}, v{vW}
v_add_u32 v{vW}, v{vW}, v{vLT}
v_add_u32 v{vW + 1}, v{vW + 1}, v{vLT + 1}''')
        for n in range(2, 6):
            P(f'v_add_u32 v{vW + n}, {(n // 2) * 896}, v{vW + n % 2}')
        P(f'''s_mul_i32 s{sT0}, s{sIDX}, 112
s_lshl_b32 s{sMW}, s{sI}, 11
s_lshr_b32 s{sT1}, s{sI}, 1
s_mul_i32 s{sT1}, s{sT1}, {16 * 896}
v_subrev_u32 v{vH}, s{sT1}, v{vX}
s_mul_i32 s{sHO}, s{sRB}, 114688
s_max_u32 s{sHO}, s{sHO}, {16 * 896}
s_sub_u32 s{sHO}, s{sHO}, {16 * 896}''')
    else:
        P(f's_movk_i32 s{sT0}, 3136')
        for n in range(7):
            P(f'''v_add_u32 v{vLT}, {64 * n}, v0
v_mul_u32_u24 v{vLT + 1}, 2341, v{vLT}
v_lshrrev_b32 v{vLT + 1}, 16, v{vLT + 1}
v_lshlrev_b32 v{vLT}, 4, v{vLT}
v_mad_u32_u24 v{vW + n}, v{vLT + 1}, s{sT0}, v{vLT}''')
            if n == 3:
                P(f'v_and_b32 v{vLT + 1}, 8, v{vLT + 1}\nv_lshlrev_b32 v{vLT + 1}, 2, v{vLT + 1}\nv_xor_b32 v{vW + n}, v{vW + n}, v{vLT + 1}')
            elif n > 3:
                P(f'v_xor_b32 v{vW + n}, 32, v{vW + n}')
        P(f's_mul_i32 s{sT0}, s{sIDX}, 448\ns_mul_i32 s{sMW}, s{sI}, 7168')
    P(f'''s_lshl_b32 s{sT1}, s{sROT}, 2
s_add_u32 s{sT1}, s{sT1}, s{sI}
s_mul_i32 s{sWO_}, s{sT1}, {16 * wstr}
s_add_u32 s{sWO_}, s{sWO_}, s{sT0}''')
    P('s_waitcnt lgkmcnt(0)')
    mk_srd(SX, 4, 2048 * 896)
    mk_srd(SW, 6 if isq else 12, 448 * wstr)
    stamp(0)
    KS = [int(c, 16) for c in '%06x' % OPT['kq' if isq else 'kh']]
    gens = [gen_st(s) for s in range(7)]
    run(gens[0])
    run(gens[1], min(KS[0], OPT['k0']))
    P(f's_load_dword s{sTAG}, s[20:21], 0')
    mk_srd(SWO, 8, 448 * 896)
    mk_srd(SW2, 14, 1792 * 896)
    mk_srd(SWS, 20, WS_BYTES)
    mk_srd(SOUT, 16, 2048 * 896)
    P(f'v_bfe_u32 v{vLT}, v0, 2, 2\nv_mov_b32 v{vLT + 1}, 0x3f803f80')
    for m in range(4):
        P(f'v_cmp_eq_u32 vcc, {m}, v{vLT}\nv_cndmask_b32 v{vSEL + 4 * m}, 0, v{vLT + 1}, vcc')
        for r in range(1, 4):
            P(f'v_mov_b32 v{vSEL + 4 * m + r}, v{vSEL + 4 * m}')
    if isq:
        q_addr_parts(vLT, vLT + 1, vLT + 2, vLT + 3)
        P(f'''s_lshr_b32 s{sT0}, s{sI}, 1
s_mul_i32 s{sT0}, s{sT0}, 56
s_and_b32 s{sT1}, s{sI}, 1
s_lshl_b32 s{sT1}, s{sT1}, 5
s_add_u32 s{sT0}, s{sT0}, s{sT1}''')
        q_addr(vCA, f's{sT0}', vLT, vLT + 1, vLT + 2)
        ntile, tstr, rstr, kstr = 3, 8192, 128, 4096
    else:
        h_addr(vCA, vLT, vLT + 1)
        P(f'''s_and_b32 s{sT0}, s{sI}, 1
s_lshl_b32 s{sT0}, s{sT0}, 5
v_xor_b32 v{vCA}, s{sT0}, v{vCA}
s_lshr_b32 s{sT0}, s{sI}, 1
s_lshl_b32 s{sT0}, s{sT0}, 6
v_add_u32 v{vCA}, s{sT0}, v{vCA}''')
        ntile, tstr, rstr, kstr = 4, 128, 448, 32 * 448
    w2_tr_addr(LADR, 12, vLT, vLT + 1)
    for ct in range(4):
        P(f'v_add_u32 v{LADR + ct}, s{sMX}, v{LADR + ct}')
    P(f'''v_lshrrev_b32 v{vLT}, 3, v0
v_mul_u32_u24 v2, 896, v{vLT}
v_and_b32 v{vLT}, 6, v{vLT}
v_xor_b32 v{vLT}, v{vLT}, v0
v_and_b32 v{vLT}, 7, v{vLT}
v_lshl_add_u32 v2, v{vLT}, 4, v2
v_add_u32 v3, {8 * 896}, v2
v_lshlrev_b32 v1, 4, v0
s_and_b32 s{sT0}, s{sRT}, 1
s_lshl_b32 s{sT0}, s{sT0}, 2
s_add_u32 s{sT0}, s{sT0}, s{sI}
s_mul_i32 s{sA0}, s{sT0}, {LST * 32 * 896}
s_lshr_b32 s{sFB}, s{sRT}, 1
s_lshl_b32 s{sFB}, s{sFB}, 4
s_add_u32 s{sFB}, s{sFB}, s{sT0}
s_lshl_b32 s{sFB}, s{sFB}, 10
s_add_u32 s{sFB}, s{sFB}, {WS_FLAGS}
s_lshl_b32 s{sT0}, s{sCT}, 7
s_cmp_lt_u32 s{sCT}, 7
s_cselect_b32 s{sT0}, s{sT0}, 0x40000000
s_add_u32 s{sA0}, s{sA0}, s{sT0}
s_mul_i32 s{sA1}, s{sI}, {8 * 896}
s_add_u32 s{sA1}, s{sA1}, s{sT0}
v_lshl_add_u32 v{vGA}, s{sI}, 6, v0
v_min_u32 v{vGS}, 143, v{vGA}
v_lshlrev_b32 v{vGA}, 3, v{vGA}
v_mov_b32 v{vSY}, {SYNC}
v_lshl_add_u32 v{vSG}, s{sI}, 2, v{vSY}''')
    run(gens[1], KS[0] - min(KS[0], OPT['k0']))

    def csum_part(s):
        lab = f'L_{t}cs{s}'
        P(f's_cmp_lg_u32 s{sPUB}, 0\ns_cbranch_scc1 {lab}')
        if s == 1:
            P(f's_cmp_eq_u32 s{sROT}, 6\ns_cbranch_scc1 {lab}b')
        P(f'v_add_u32 v{vCA + 1}, {wsl[s]}, v{vCA}')
        if not isq:
            P(f's_and_b32 s{sT0}, s{sI}, 2\ns_lshl_b32 s{sT0}, s{sT0}, 6\nv_subrev_u32 v{vLT + 4}, s{sT0}, v{vCA + 1}')
        for kk in range(2):
            for m in range(ntile):
                f = vCF + 16 * kk + 4 * m
                o = m * tstr + kk * kstr
                va = vLT + 4 if m == 3 else vCA + 1
                P(f'ds_read_b64_tr_b16 {vr(f, 2)}, v{va} offset:{o}')
                P(f'ds_read_b64_tr_b16 {vr(f + 2, 2)}, v{va} offset:{o + 4 * rstr}')
        P('s_waitcnt lgkmcnt(0)')
        for kk in range(2):
            for m in range(ntile):
                P(mfma(vCACC, vSEL + 4 * m, vCF + 16 * kk + 4 * m, None if (s, kk, m) == (0, 0, 0) else vCACC))
        if s == 1:
            P.label(lab + 'b')
        P.label(lab)
        if s == 1:
            P(f'''s_lshl_b32 s{sT0}, s{sCG}, 13
s_lshl_b32 s{sT1}, s{sROT}, 10
s_add_u32 s{sT0}, s{sT0}, s{sT1}
s_lshl_b32 s{sT1}, s{sI}, 7
s_add_u32 s{sT0}, s{sT0}, s{sT1}
s_add_u32 s{sT0}, s{sT0}, {WS_CSUM}
s_cmp_lg_u32 s{sPUB}, 0
s_cselect_b32 s{sT0}, 0x40000000, s{sT0}
v_lshrrev_b32 v{vLT}, 4, v0
v_lshlrev_b32 v{vLT}, 9, v{vLT}
v_and_b32 v{vLT + 1}, 15, v0
v_lshl_add_u32 v{vLT}, v{vLT + 1}, 3, v{vLT}
v_mov_b32 v{vCACC + 1}, s{sTAG}
buffer_store_dwordx2 {vr(vCACC, 2)}, v{vLT}, {srd(SWS)}, s{sT0} offen sc1''')
            vm.issue()

    def gather_issue(count=True):
        for pi in range(4):
            P(f'buffer_load_dwordx2 {vr(vCF + 2 * pi, 2)}, v{vGA}, {srd(SWS)}, s{sT2 + pi // 2} offen offset:{2048 * (pi % 2)} sc1')
            if count:
                vm.issue('gather')
        P(f'''s_lshl_b32 s{sT0}, s{sRB}, 7
s_sub_u32 s{sT0}, s{sT0}, 16
v_add_u32 v{vCF + 10}, s{sT0}, v{vGS}
v_max_i32 v{vCF + 10}, 0, v{vCF + 10}
v_lshlrev_b32 v{vCF + 10}, 3, v{vCF + 10}
s_movk_i32 s{sT0}, {WS_STATS}
buffer_load_dwordx2 {vr(vCF + 8, 2)}, v{vCF + 10}, {srd(SWS)}, s{sT0} offen sc1''')
        if count:
            vm.issue('gather')

    def gather_start():
        P(f'''s_lshl_b32 s{sT2}, s{sCG}, 13
s_add_u32 s{sT2}, s{sT2}, {WS_CSUM}
s_add_u32 s{sT3}, s{sT2}, 4096''')
        gather_issue()

    def gather_cmp():
        for pi in range(5):
            P(f'v_xor_b32 v{vLT + pi}, s{sTAG}, v{vCF + 2 * pi + 1}')
        P(f'''v_or3_b32 v{vLT}, v{vLT}, v{vLT + 1}, v{vLT + 4}
v_or3_b32 v{vLT}, v{vLT}, v{vLT + 2}, v{vLT + 3}
v_cmp_ne_u32 vcc, 0, v{vLT}''')

    def gather_fin():
        for x in gather_chk():
            P(x)

    def gather_chk():
        vm.wait('gather')
        gather_cmp()
        P(f's_cbranch_vccz L_{t}gok')
        P.label(f'L_{t}gre')
        spin_guard(f'L_{t}gok')
        P('s_sleep 1')
        gather_issue(False)
        P('s_waitcnt vmcnt(0)')
        gather_cmp()
        P(f's_cbranch_vccnz L_{t}gre')
        P.label(f'L_{t}gok')
        a, b = vCF, vLT + 2
        txt = (f'''v_add_f32 v{a}, v{a}, v{a + 2}
v_add_f32 v{a + 4}, v{a + 4}, v{a + 6}
v_add_f32 v{a}, v{a}, v{a + 4}
v_mul_f32 v{a}, 0x3e800000, v{a}
v_and_b32 v{a + 14}, 0xffff0000, v{a + 8}
v_and_b32 v{a + 13}, 0xffff, v{a + 8}
v_rcp_f32 v{a + 14}, v{a + 14}
v_xor_b32 v{a + 13}, 0x8000, v{a + 13}
v_lshl_or_b32 v{a + 12}, v{a + 13}, 16, v{a + 13}
v_mul_f32 v{a + 15}, 0x3e8b9a4d, v{a + 14}
v_lshlrev_b32 v{a + 10}, 4, v{vGS}
v_add_u32 v{a + 10}, {ST}, v{a + 10}
ds_write_b128 v{a + 10}, {vr(a + 12)}
v_cvt_pk_bf16_f32 v{b}, 0, v{a}
v_sub_f32 v{b + 2}, v{a}, v{b}
v_cvt_pk_bf16_f32 v{b}, v{a}, v{b + 2}
v_and_b32 v{b + 1}, 0xffff0000, v{b}
v_sub_f32 v{b + 1}, v{b + 2}, v{b + 1}
v_cvt_pk_bf16_f32 v{b + 1}, v{b + 1}, 0
v_add_u32 v{vLT}, {CS}, v{vGA}
v_cmp_gt_u32 vcc, {224 * 8}, v{vGA}
s_mov_b64 exec, vcc|ds_write_b64 v{vLT}, {vr(b, 2)}|s_mov_b64 exec, -1''')
        return [x.replace('|', '\n') for x in txt.split('\n')]

    def pf_w():
        P(f'''s_lshl_b32 s{sT1}, s2, 2
s_add_u32 s{sT1}, s{sT1}, s{sI}
s_lshl_b32 s{sT1}, s{sT1}, 11
v_lshlrev_b32 v{vLT + 8}, 7, v0
s_mov_b64 exec, 0xffff
buffer_load_dword v{vLT + 9}, v{vLT + 8}, {srd(SW2)}, s{sT1} offen
buffer_load_dword v{vLT + 9}, v{vLT + 8}, {srd(SWO)}, s{sT1} offen
s_mov_b64 exec, -1''')
        vm.issue()
        vm.issue()

    P(f's_waitcnt lgkmcnt(0)\ns_add_u32 s{sTAG}, s{sTAG}, 1')
    w2 = W2Plan(vm)
    if not isq:
        w2.pairs += [WIN, WIN + 8192]
    nown = 0
    nstg = 0

    def own(n):
        nonlocal nown
        n = min(n, 2 * LST - nown)
        w2.own(range(nown, nown + n))
        nown += n

    def stage(n):
        nonlocal nstg
        n = min(n, nown - nstg)
        if n > 0:
            w2.stage(list(range(nstg, nstg + n)))
        nstg += n

    def cwait(v):
        lds_poll(f'L_{t}cp{v}', vPT, vSY, 16, v, OPT['lsl'])

    fin = set()
    sfill = []
    for s in range(5):
        if OPT['ds'] == 3:
            stamp(1 + 3 * s)
            vm.wait(('st', s))
            stamp(2 + 3 * s)
            P('s_barrier')
            stamp(3 + 3 * s) if s < 4 else None
        else:
            stamp(13) if s == 4 else None
            vm.wait(('st', s))
            stamp(14) if s == 4 else None
            P('s_barrier')
            stamp({0: 1, 3: 3, 4: 5}[s]) if s in (0, 3, 4) else None
        def extras(st):
            if OPT['pf_w'] == st:
                pf_w()

        def stream():
            for st, lim in ((s + 1, 99), (s + 2, KS[s + 1])):
                if st in fin:
                    continue
                k = 0
                while k < lim:
                    if next(gens[st], 'end') == 'end':
                        fin.add(st)
                        extras(st)
                        break
                    k += 1
                    yield
        g = stream()
        if s == 4 and OPT['cs_it'] == 35:
            gather_start()
        if s < 2:
            run(g, 5)
            csum_part(s)
        if s == OPT['cs_it'] + 1:
            run(g, OPT['gk'])
            sfill = gather_chk()
        while next(g, 'end') != 'end':
            for _ in range(OPT['sfn']):
                if sfill:
                    P(sfill.pop(0))
        if s == OPT['cs_it']:
            gather_start()
        if s == OPT['cs_it'] + 1:
            while sfill:
                P(sfill.pop(0))
        if s == 2 and OPT['fwarm']:
            P(BL)
            of_addr(sT0, sT1, 10)
            for p_ in range(4):
                P(f's_buffer_load_dword s11, {srd(SWS)}, s{sT0} offset:{1024 * p_} glc')
            xh_addr(sT0)
            for w_ in range(2):
                P(f's_buffer_load_dword s11, {srd(SWS)}, s{sT0} offset:{4096 * w_} glc')
        if s == 1:
            for ct in range(4):
                P(f'v_add_u32 v{vAD1 + ct}, 0x10000, v{LADR + ct}\nv_add_u32 v{vAD2 + ct}, 0x20000, v{LADR + ct}')
        if s == 4 and not isq:
            own(OPT['w4'])
    global MUTE
    MUTE = OPT['ds'] == 3

    def progress(total):
        left = total
        while left > 0:
            isown = nown < 2 * LST
            if not (w2.has_pair() if isown else w2.grp):
                if w2.pending:
                    w2.sync()
                elif nstg < nown:
                    stage(1)
                else:
                    break
                continue
            if isown:
                own(1)
                left -= 2
            else:
                w2.cw()
                left -= 1
            if nstg < nown and vm.n - vm.tags[('own', nstg)] >= OPT['hw']:
                stage(1)
            if OPT['cap'] and vm.n - vm.done > OPT['cap']:
                vm.wait(vm.n - OPT['cap'])
    vm.wait(('st', 5))
    stamp(2)
    P('s_barrier')
    stamp(4)
    w2.pairs += [16384, 24576]
    w2.grp |= set(range(7))
    for _ in gens[6]:
        pass
    if OPT['cs_it'] == 5:
        gather_start()
    if OPT['pf_w'] == 7:
        pf_w()
    own(OPT['n5'])
    if OPT['cs_it'] >= 4:
        gather_fin()
    vm.wait(('st', 6))
    P('s_waitcnt lgkmcnt(0)')
    lds_signal(vSG, 246, 7)
    P(f's_cmp_ge_u32 s{sCT}, 7\ns_cbranch_scc1 L_EXIT')
    progress(OPT['p5'])
    stamp(6)
    cwait(6)
    w2.pairs += [32768, 40960]
    w2.grp |= set(range(7, 14))
    if OPT['lpause'] and not isq:
        progress(OPT['lpause'] - 1)
        stage(100)
        cwait(8)
    progress(100)
    assert nown == 2 * LST and nstg == nown and not w2.pending and w2.ncw == NGRP
    if isq and OPT['qhold']:
        cwait(9)
    if isq == OPT['qf']:
        P('s_branch L_P2L')
    return vm


FX = 4


def fin_xload():
    P(f'''v_lshrrev_b32 v1, 3, v0
v_lshl_add_u32 v1, s{sWAVE}, 3, v1
v_mul_u32_u24 v3, 896, v1
v_and_b32 v2, 7, v0
v_lshl_add_u32 v3, v2, 4, v3
s_mul_i32 s{sT2}, s{sRT}, {64 * 896}
s_lshl_b32 s{sT0}, s{sCT}, 7
s_add_u32 s{sT2}, s{sT2}, s{sT0}
buffer_load_dwordx4 {vr(FX)}, v3, {srd(SX)}, s{sT2} offen
v_lshlrev_b32 v9, 3, v1
s_lshl_b32 s{sT0}, s{sRT}, 9
s_add_u32 s{sT0}, s{sT0}, {WS_STATS}
buffer_load_dword v8, v9, {srd(SWS)}, s{sT0} offen sc1''')


FP = 12


def fin_pload(first=True):
    if first:
        P(f'''v_lshl_add_u32 v10, s{sWAVE}, 6, v0
v_lshlrev_b32 v10, 4, v10
s_mul_i32 s{sA0}, s{sRT}, 7
s_add_u32 s{sA0}, s{sA0}, s{sCT}
s_lshl_b32 s{sA0}, s{sA0}, 14
s_add_u32 s{sA0}, s{sA0}, {WS_XCH}
s_add_u32 s{sA1}, s{sA0}, 8192''')
    for u in range(2):
        P(f'buffer_load_dwordx4 {vr(FP + 4 * u)}, v10, {srd(SWS)}, s{sA0 + u} offen sc1')


def L_phase2(vm):
    P.label('L_P2L')
    lastcw = vm.n
    vm.done = 0
    stamp(8)
    sB, sO = 62, 63
    vDA, vL16, vSy, vSg = LADR, 20, 21, 22
    P(f'''v_mov_b32 v{vL16}, v1
v_mov_b32 v{vSy}, v{vSY}
v_mov_b32 v{vSg}, v{vSG}
s_and_b32 s{sT3}, s{sRT}, 1
s_lshl_b32 s{sT3}, s{sT3}, 2
s_add_u32 s{sT3}, s{sT3}, s{sI}
s_xor_b32 s{sT2}, s{sRT}, 1
s_mul_i32 s{sT2}, s{sT2}, {4 * NS * 1024}
s_mul_i32 s{sT3}, s{sT3}, {LST * 1024}
s_add_u32 s{sT3}, s{sT3}, {WS_ACT}
s_add_u32 s{sB}, s{sT2}, s{sT3}
s_mul_i32 s{sO}, s{sRT}, {4 * NS * 1024}
s_add_u32 s{sO}, s{sO}, s{sT3}
v_and_b32 v{vDA}, 15, v0
v_lshrrev_b32 v{vDA + 1}, 4, v0
v_xor_b32 v{vDA + 1}, v{vDA + 1}, v{vDA}
v_lshlrev_b32 v{vDA + 1}, 4, v{vDA + 1}
v_lshl_add_u32 v{vDA}, v{vDA}, 8, v{vDA + 1}
s_lshl_b32 s{sT1}, s{sI}, 14
v_add_u32 v{vDA}, s{sT1}, v{vDA}
v_xor_b32 v{vDA + 1}, 64, v{vDA}
v_xor_b32 v{vDA + 2}, 128, v{vDA}
v_xor_b32 v{vDA + 3}, 192, v{vDA}
s_branch L_pb_w''')
    spoll('L_pb', BL, 4)
    stamp(9)
    TMP = 248
    free = [LA + 4 * n for n in range(20)]
    aloc = {}
    nxt = 0
    NT = 8 * LST

    def loads(cur, mx=100):
        nonlocal nxt
        while nxt < NT and free and nxt - cur < (OPT['lahead'] if cur >= 2 * LST else OPT['la0']) and mx > 0:
            t, k = divmod(nxt, LST)
            aloc[nxt] = free.pop(0)
            P(f'buffer_load_dwordx4 {vr(aloc[nxt])}, v{vL16}, {srd(SWS)}, s{sB} offen offset:{(k % 4) * 1024} sc1')
            vm.issue(('a', nxt))
            if k == 3:
                P(f's_add_u32 s{sB}, s{sB}, 4096')
            if k == LST - 1:
                P(f's_mov_b32 s{sB}, s{sO}' if t == 3 else f's_add_u32 s{sB}, s{sB}, {NS * 1024 - 4096}')
            nxt += 1
            mx -= 1

    def dwr(t, ct):
        P(f'ds_write_b128 v{vDA + ct}, {vr(LACC + 16 * (t % 2) + 4 * ct)} offset:{4096 * (t % 4)}')
    loads(0)
    vm.wait(lastcw)
    lds_signal(vSg, TMP, 9)
    lds_poll('L_d1c', TMP, vSy, 16, 7, 1)
    lds_poll('L_d1l', TMP, vSy, 0, 9, 0)
    stamp(10)
    for n in range(NT):
        t, k = divmod(n, LST)
        if n == 4 * LST:
            stamp(11)
            P(f'ds_read_b128 {vr(TMP)}, v{vSy} offset:16')
        if n == 5 * LST:
            lds_cmp(TMP, 10)
            P('s_cbranch_vccz L_d2_ok')
            lds_spin('L_d2', TMP, vSy, 16, 10, 1)
            P.label('L_d2_ok')
            for ct in range(4):
                P(f'v_add_u32 v{vDA + ct}, {DUMPO}, v{vDA + ct}')
        if n == NT - OPT['lpl']:
            fin_xload()
            vm.issue()
            vm.issue()
            if not OPT['xl']:
                fin_pload()
                vm.issue()
                vm.issue()
        if n == NT - LST + 1 and OPT['xl']:
            xh_addr(sT1)
            P(f's_buffer_load_dword s4, {srd(SWS)}, s{sT1} glc')
        vm.wait(('a', n))
        for ct in range(4):
            a = LACC + 16 * (t % 2) + 4 * ct
            P(mfma(a, LW + 16 * k + 4 * ct, aloc[n], None if k == 0 else a))
            if ct == 0:
                loads(n, 2)
            if t > 0 and (k, ct) in ((0, 3), (1, 1), (1, 3), (2, 1)):
                dwr(t - 1, (2 * k + ct // 2) - 1)
        if k == OPT['sk'] and t > 0:
            P('s_waitcnt lgkmcnt(0)')
            if t <= 4:
                lds_signal(vSg, 23, 9 + t)
            stamp(12) if t == 4 else None
        free.append(aloc[n])
    stamp(13)
    for ct in range(4):
        dwr(7, ct)
    if OPT['xl']:
        P('s_branch L_lx_w')
        spoll('L_lx', f's_buffer_load_dword s4, {srd(SWS)}, s{sT1} glc', 1)
        fin_pload()
    stamp(14)
    P('s_branch L_FIN')


vmh = L_phase1(OPT['qf'])
P.label('L_LQ')
vmq = L_phase1(1 - OPT['qf'])
L_phase2(vmq)

CW = 112
CX = 144
CHX = 168
cXA = 180
cHA = 182
cWA = 184
cWB = 190
cST = 196
cSO = 202
cBE = 204
cR = 196
cM16, cM48, cL16, cCSA, cCSH = 221, 222, 223, 224, 225
cVW, cVWH, cVR, cKX, cSY, cSG = 226, 227, 228, 229, 230, 231
cF = 252
cBA, cBB, cBA0 = 232, 236, 240
cT = 244

MUTE = False
P.label('L_C')
vmS = Q(P, 'vmcnt', 63)
if True:
    vS = 16
    P('s_setprio 1')
    stats_rows()
    P('s_waitcnt lgkmcnt(0)')
    mk_srd(SX, 4, 2048 * 896)
    stats_load(vmS)
    if OPT['swarm']:
        P(f's_lshl_b32 s{sT0}, s{sT3}, 3\ns_and_b32 s{sT0}, s{sT0}, 0xffffff80\ns_add_u32 s{sT0}, s{sT0}, {WS_STATS}')
        P(f's_load_dword s10, s[20:21], s{sT0}\ns_load_dword s11, s[20:21], s{sT0} offset:64')
    P(f's_setprio 0\ns_load_dword s{sTAG}, s[20:21], 0')
P(f'''v_mov_b32 v{cSY}, {SYNC}
v_lshl_add_u32 v{cSG}, s{sI}, 2, v{cSY}
v_add_u32 v{cSG}, 16, v{cSG}
v_mov_b32 v12, 0
v_lshlrev_b32 v13, 2, v0
v_add_u32 v13, {SYNC}, v13
ds_write_b32 v13, v12
v_lshlrev_b32 v{cL16}, 4, v0
v_and_b32 v11, 15, v0
v_lshrrev_b32 v10, 4, v0
v_lshrrev_b32 v13, 1, v11
v_xor_b32 v13, v13, v10
v_lshlrev_b32 v13, 4, v13
v_lshl_add_u32 v13, v11, 7, v13
s_lshl_b32 s{sT0}, s{sI}, 12
v_add_u32 v{cXA}, s{sT0}, v13
v_xor_b32 v{cXA + 1}, 64, v{cXA}
v_add_u32 v{cHA}, {HALO}, v13
v_xor_b32 v{cHA + 1}, 64, v{cHA}
v_lshlrev_b32 v12, 3, v11
v_add_u32 v{cCSA}, {CS}, v12
v_lshlrev_b32 v12, 4, v11
v_add_u32 v{cSO + 1}, {ST}, v12
s_lshl_b32 s{sT0}, s{sI}, 9
v_add_u32 v{cSO}, s{sT0}, v{cSO + 1}
v_mov_b32 v{cBE + 2}, 0
v_mov_b32 v{cBE + 3}, 0
v_mov_b32 v{cBE + 6}, 0
v_mov_b32 v{cBE + 7}, 0
v_mov_b32 v{cBE + 10}, 0
v_mov_b32 v{cBE + 11}, 0
s_lshl_b32 s{sXO}, s{sRB}, 2
s_add_u32 s{sXO}, s{sXO}, s{sI}
s_mul_i32 s{sA0}, s{sXO}, {2 * NS * 1024}
s_add_u32 s{sA0}, s{sA0}, {WS_ACT}
s_lshl_b32 s{sA1}, s{sRB}, 4
s_add_u32 s{sA1}, s{sA1}, s{sCG}
s_lshl_b32 s{sA1}, s{sA1}, 10
s_lshl_b32 s{sT1}, s{sI}, {FS}
s_add_u32 s{sA1}, s{sA1}, s{sT1}
s_add_u32 s{sA1}, s{sA1}, {WS_FLAGS}''')
if OPT['pf_code']:
    P('s_getpc_b64 s[22:23]')
    P.label('L_pc')
    P(f'''s_sub_u32 s22, s22, L_pc-{NAME}_kernel
s_subb_u32 s23, s23, 0
s_bfe_u32 s{sT1}, s2, 0x30003
s_lshl_b32 s{sT1}, s{sT1}, 2
s_add_u32 s{sT1}, s{sT1}, s{sI}
s_lshl_b32 s{sT1}, s{sT1}, 11
v_lshlrev_b32 v{cT + 4}, 7, v11
v_add_u32 v{cT + 4}, s{sT1}, v{cT + 4}
v_min_u32 v{cT + 4}, L_END-{NAME}_kernel, v{cT + 4}
s_mov_b64 exec, 0xffff
global_load_dword v{cT + 5}, v{cT + 4}, s[22:23]
s_mov_b64 exec, -1''')
    vmS.issue()
stamp(0)
mk_srd(SWS, 20, WS_BYTES)
mk_srd(SOUT, 16, 2048 * 896)
P(f's_cmp_eq_u32 s{sISQ}, 1\ns_cbranch_scc1 L_CQ')


SLOW = []


def C_phase1(isq):
    t = 'Q' if isq else 'H'
    lg = Q(P, 'lgkmcnt', 15)
    LA_, HOLD, WSTEP, TM = OPT['la'], OPT['hold'], OPT['wstep'], OPT['tm']
    wsl = WSL
    if isq:
        q_addr_parts(12, 13, 14, 15)
        for e in range(2):
            for t01 in range(2):
                q_addr(cWB + 2 * e + t01, 56 * e + 32 * t01, 12, 13, 14)
        P(f'''s_bitcmp1_b32 s{sI}, 0
s_cselect_b64 vcc, -1, 0
s_lshr_b32 s{sT0}, s{sI}, 1
s_add_u32 s{sT0}, s{sT0}, 1
s_lshl_b32 s{sT0}, s{sT0}, 13
v_cndmask_b32 v{cWB + 4}, v{cWB}, v{cWB + 2}, vcc
v_cndmask_b32 v{cWB + 5}, v{cWB + 1}, v{cWB + 3}, vcc
v_add_u32 v{cWB + 4}, s{sT0}, v{cWB + 4}
v_add_u32 v{cWB + 5}, s{sT0}, v{cWB + 5}
s_lshl_b32 s{sT0}, s{sI}, 8
s_add_u32 s{sT0}, s{sT0}, 512
v_add_u32 v{cCSH}, s{sT0}, v{cCSA}
v_cmp_gt_u32 vcc, 48, v0
v_cndmask_b32 v{cM48}, 0, -1, vcc
v_lshlrev_b32 v13, 2, v10
v_sub_u32 v13, v11, v13
v_mov_b32 v15, 0xf149f2ca''')
        for r in range(4):
            for (d, add) in ((cBA, 16), (cBB, 0)):
                P(f'''v_add_u32 v14, {add - r}, v13
v_and_b32 v14, -15, v14
v_cmp_eq_u32 vcc, 0, v14
v_cndmask_b32 v{d + r}, v15, 0, vcc''')
        P(f's_cmp_eq_u32 s{sXO}, 0\ns_cselect_b64 vcc, -1, 0')
        for r in range(4):
            P(f'v_cndmask_b32 v{cBA0 + r}, v{cBA + r}, v15, vcc')
        P(f'''v_mul_u32_u24 v13, {VSTR}, v11
v_lshl_add_u32 v13, v10, 3, v13
s_mul_i32 s{sT0}, s{sI}, {32 * VSTR}
s_add_u32 s{sT1}, s{sT0}, {VREG + 16 * VSTR}
v_add_u32 v{cVW}, s{sT1}, v13
s_and_b32 s{sT1}, s{sI}, 1
s_mul_i32 s{sT1}, s{sT1}, {144 * VSTR}
s_add_u32 s{sT1}, s{sT1}, {VREG}
v_add_u32 v{cVWH}, s{sT1}, v13
v_lshrrev_b32 v13, 2, v0
v_mul_u32_u24 v13, {VSTR}, v13
v_and_b32 v14, 3, v0
v_lshl_add_u32 v13, v14, 3, v13
s_add_u32 s{sT0}, s{sT0}, {VREG}
v_add_u32 v{cVR}, s{sT0}, v13
s_lshl_b32 s{sT0}, s{sI}, 11
s_add_u32 s{sT0}, s{sT0}, {KX}
v_add_u32 v{cKX}, s{sT0}, v{cL16}''')
        nb = 6
        pairs = [(1, 0), (2, 0), (1, 1), (2, 1), (0, 0), (0, 1)]
        tiles = [(pi, t01) for pi in range(4) for t01 in range(2)] + [('H', 0), ('H', 1)] + \
                [(pi, t01) for pi in range(4, 6) for t01 in range(2)]
    else:
        h_addr(cWB, 12, 13)
        P(f'v_xor_b32 v{cWB + 1}, 32, v{cWB}')
        nb = 2
        tiles = [(pi, t01) for pi in range(7) for t01 in range(2)]

    def set_slot(s):
        for b in range(nb):
            P(f'v_add_u32 v{cWA + b}, {wsl[s % 3]}, v{cWB + b}')

    def xbuf(ks):
        return 2 if (TM and ks == 13) else ks % 2

    units = []

    def unit(tile, ks):
        pi, t01 = tile
        u = dict(tile=tile, ks=ks, pre=[])
        if ks == 'E':
            u['stage'] = 6
            if pi == 'H':
                u['rd'] = [('b64', cCSH, 128 * t01)]
            elif isq:
                sg, e = pairs[pi]
                u['rd'] = [('b64', cCSA, 128 * (4 * sg + 2 * e + t01))]
            else:
                u['rd'] = [('b64', cCSA, 128 * (2 * pi + t01))]
        else:
            s, kk = divmod(ks, 2)
            u['stage'] = s
            if pi == 'H':
                a, o, o2 = cWA + 4 + t01, kk * 4096, 512
            elif isq:
                sg, e = pairs[pi]
                a, o, o2 = cWA + 2 * e + t01, sg * 8192 + kk * 4096, 512
            else:
                a, o, o2 = cWA + t01, pi * 64 + kk * 32 * 448, 4 * 448
            u['rd'] = [('tr', a, o), ('tr', a, o + o2)]
        if pi == 'H':
            u['mm'] = [(96 + 4 * t01, cBE + 8 if ks == 'E' else CHX + 4 * xbuf(ks))]
        else:
            u['mm'] = [(16 * pi + 8 * tt + 4 * t01, cBE + 4 * tt if ks == 'E' else CX + 8 * xbuf(ks) + 4 * tt)
                       for tt in range(2)]
        return u
    seen_x, seen_h = set(), set()
    order = []
    for ks in range(12 if TM else 14):
        order += [(tl, ks) for tl in tiles]
    if TM:
        for tl in tiles:
            order += [(tl, 12), (tl, 13), (tl, 'E')]
    else:
        order += [(tl, 'E') for tl in tiles]
    for tl, ks in order:
        u = unit(tl, ks)
        if ks != 'E':
            s, kk = divmod(ks, 2)
            if tl[0] == 'H':
                if ks not in seen_h:
                    seen_h.add(ks)
                    u['pre'].append(f'ds_read_b128 {vr(CHX + 4 * xbuf(ks))}, v{cHA + kk} offset:{2048 * s}')
            elif ks not in seen_x:
                seen_x.add(ks)
                for tt in range(2):
                    u['pre'].append(f'ds_read_b128 {vr(CX + 8 * xbuf(ks) + 4 * tt)}, v{cXA + kk} offset:{XS[s % 3] + 2048 * tt}')
        elif 'E' not in seen_x:
            seen_x.add('E')
            for tt in range(2):
                u['pre'].append(f'ds_read_b64 {vr(cBE + 4 * tt, 2)}, v{cSO} offset:{256 + 256 * tt}')
                if isq:
                    u['pre'].append(f'ds_read_b64 {vr(cR + 2 * tt, 2)}, v{cSO} offset:{256 + 256 * tt + 8}')
        elif tl == ('H', 0):
            u['pre'].append(f'ds_read_b64 {vr(cBE + 8, 2)}, v{cSO + 1}')
            u['pre'].append(f'ds_read_b64 {vr(cR + 4, 2)}, v{cSO + 1} offset:8')
        units.append(u)
    NU = len(units)
    last_ring = max(n for n, u in enumerate(units) if u['ks'] != 'E')
    done_at = {}
    for n, u in enumerate(units):
        done_at[u['tile'][0]] = n

    def rd_list(n):
        u = units[n]
        slot = CW + 4 * (n % 8)
        out = list(u['pre'])
        for j, (kind, a, o) in enumerate(u['rd']):
            if kind == 'tr':
                out.append(f'ds_read_b64_tr_b16 {vr(slot + 2 * j, 2)}, v{a} offset:{o}')
            else:
                out.append(f'ds_read_b64 {vr(slot, 2)}, v{a} offset:{o}')
        return out

    def pack(b):
        return [f'v_cvt_pk_bf16_f32 v{b + i}, v{b + 2 * i}, v{b + 2 * i + 1}' for i in range(4)]

    def scale(b, r):
        return [f'v_mul_f32 v{b + i}, v{b + i}, v{r}' for i in range(8)]

    def epi(pi):
        out = []
        if not isq:
            for tt in range(2):
                b = 16 * pi + 8 * tt
                if OPT['relu'] == 0:
                    out += [f'v_max_f32 v{b + i}, 0, v{b + i}' for i in range(8)]
                out += pack(b)
                if OPT['relu'] == 1:
                    out += [f'v_pk_max_i16 v{b + i}, v{b + i}, 0' for i in range(4)]
                out.append(f'buffer_store_dwordx4 {vr(b)}, v{cL16}, {srd(SWS)}, s{sT2 + tt} offen offset:{(pi % 4) * 1024} sc1')
            if pi == 3:
                out += [f's_add_u32 s{sT2}, s{sT2}, 4096', f's_add_u32 s{sT3}, s{sT3}, 4096']
        elif pi == 'H':
            out += scale(96, cR + 4) + pack(96)
        else:
            sg, e = pairs[pi]
            for tt in range(2):
                b = 16 * pi + 8 * tt
                if sg:
                    out += scale(b, cR + 2 * tt)
                out += pack(b)
                if sg == 0:
                    out += [f'v_and_b32 v{b + i}, v{b + i}, v{cM48}' for i in (2, 3)]
        return out

    set_slot(0)
    P(f's_waitcnt lgkmcnt(0)\ns_add_u32 s{sTAG}, s{sTAG}, 1')
    if True:
        vmS.done = 0
        vmS.wait('stats')
        for x in stats_body():
            P(x)
        stats_store(Q(P, 'vmcnt', 63))
    if not isq:
        P(f'''s_mul_i32 s{sT2}, s{sIDX}, {7 * 1024}
s_add_u32 s{sT2}, s{sT2}, s{sA0}
s_add_u32 s{sT3}, s{sT2}, {NS * 1024}''')
    P('s_barrier')
    stamp(1)
    cstamp(2)
    pend = []
    fill = []
    nr = 0
    cur_stage = 0
    b7_done = False

    def queue_reads(n):
        l = rd_list(n)
        for j, x in enumerate(l):
            pend.append((x, ('w', n) if j == len(l) - 1 else None))

    def flush(k=1000):
        while pend and k > 0:
            x, tag = pend.pop(0)
            P(x)
            lg.issue(tag)
            k -= 1

    slow = []
    deferred = []
    last_of = {}
    first_of = {}
    for n, u in enumerate(units):
        if u['ks'] != 'E':
            last_of[u['stage']] = n
        first_of.setdefault(u['stage'], n)
    while nr < LA_:
        queue_reads(nr)
        nr += 1
    flush()
    ups = len(tiles) * 2
    for n in range(NU):
        u = units[n]
        w = n
        if n % WSTEP == 0:
            while w + 1 < min(n + WSTEP, NU) and ('w', w + 1) in lg.tags:
                w += 1
        lg.wait(('w', w))
        for j, (acc, b) in enumerate(u['mm']):
            P(mfma(acc, CW + 4 * (n % 8), b, None if u['ks'] == 0 else acc))
            if j == 0 and nr < NU and units[nr]['stage'] != cur_stage and units[nr]['stage'] <= 5:
                if nr - n <= LA_ - HOLD:
                    cur_stage = units[nr]['stage']
                    set_slot(cur_stage)
                    if HOLD:
                        lg.all()
                    stamp(3) if cur_stage == 4 else None
                    P('s_barrier')
                    stamp(5) if cur_stage == 4 else None
                    while nr <= n + LA_:
                        queue_reads(nr)
                        nr += 1
                    flush()
            elif j == 0 and nr < NU:
                s1 = units[nr]['stage']
                if s1 != cur_stage:
                    cur_stage = s1
                    set_slot(s1)
                    if OPT['ds'] == 2:
                        stamp({5: 9, 6: 13}[s1])
                    lg.wait(('f', s1))
                    lds_cmp(cF, s1 + 1)
                    P(f's_cbranch_vccnz L_{t}w{s1}')
                    P.label(f'L_{t}w{s1}_ok')
                    slow.append(s1)
                    stamp(6) if s1 == 6 else None
                    stamp(10) if (s1 == 5 and OPT['ds'] == 2) else None
                queue_reads(nr)
                if nr + OPT['fla'] == first_of[6]:
                    pend.append((f'ds_read_b128 {vr(cF)}, v{cSY}', ('f', units[nr + OPT['fla']]['stage'])))
                nr += 1
            last = j == len(u['mm']) - 1
            flush(1000 if last else (len(pend) + 1) // 2)
            for _ in range(OPT['nfill']):
                if fill:
                    P(fill.pop(0))
        if n == last_of[u['stage']] and u['stage'] >= 5:
            lds_signal(cSG, cT + 7, u['stage'] + 1)
            lg.issue()
            stamp(7) if u['stage'] == 6 else None
        if n == (NU - 1 if isq else 6 * ups) and OPT['prio']:
            P('s_setprio %d' % OPT['prio'])
        for pi, dn in done_at.items():
            if dn == n - 2:
                fill += epi(pi)
    SLOW.extend((t, s1) for s1 in slow)
    stamp(8)
    cstamp(4)
    for pi, dn in done_at.items():
        if dn >= NU - 2:
            fill += epi(pi)
    if not isq:
        while fill:
            P(fill.pop(0))
        stamp(9)
        lds_signal(cSG, cT + 1, 9)
        P('s_waitcnt vmcnt(0)\ns_branch L_CFLAG')
        return
    qstart = epi(4)[0]
    while fill and fill[0] != qstart and qstart in fill:
        P(fill.pop(0))
    lds_poll('L_scrc', cF, cSY, 16, 7)
    stamp(3) if OPT['ds'] == 1 else None
    for e in range(2):
        for tt in range(2):
            for t01 in range(2):
                P(f'ds_write_b64 v{cVW}, {vr(16 * (2 * e + 1) + 8 * tt + 2 * t01, 2)} offset:{e * 144 * VSTR + tt * 16 * VSTR + 32 * t01}')
    P(f's_cmp_eq_u32 s{sI}, 3\ns_cbranch_scc1 L_nokx')
    for e in range(2):
        P(f'ds_write_b128 v{cKX}, {vr(32 * e + 8)} offset:{2048 + 1024 * e}')
    P.label('L_nokx')
    P(f'''s_cmp_ge_u32 s{sI}, 2
s_cbranch_scc1 L_halov
s_lshl_b32 s{sT0}, s{sI}, 10
v_subrev_u32 v{cT}, s{sT0}, v{cKX}
ds_write_b128 v{cT}, {vr(96)}
s_branch L_halod''')
    P.label('L_halov')
    for t01 in range(2):
        P(f'ds_write_b64 v{cVWH}, {vr(96 + 2 * t01, 2)} offset:{32 * t01}')
    P.label('L_halod')
    while fill:
        P(fill.pop(0))
    P('s_waitcnt lgkmcnt(0)')
    lds_signal(cSG, cT + 1, 8)
    KP, VO, S = 104, 112, 144
    au = [(0, 1), (1, 1), (0, 0), (1, 0)]
    for n, (e, tq) in enumerate(au):
        P(mfma(S + 8 * n + 4, 32 * e + 8 * tq, 64 + 16 * e + 8 * tq, cBB))
    for n, (e, tq) in enumerate(au[:2]):
        P(mfma(S + 8 * n, 32 * e, 64 + 16 * e + 8 * tq, cBA))
    stamp(5) if OPT['ds'] == 1 else None
    lds_poll('L_attp', cF, cSY, 16, 8)
    stamp(6) if OPT['ds'] == 1 else None
    for e in range(2):
        P(f'ds_read_b128 {vr(KP + 4 * e)}, v{cKX} offset:{1024 * e}')
    for e in range(2):
        for dt in range(2):
            for kt in range(3):
                P(f'ds_read_b64_tr_b16 {vr(VO + 12 * e + 6 * dt + 2 * kt, 2)}, v{cVR} offset:{e * 144 * VSTR + kt * 16 * VSTR + 32 * dt}')
    P('s_waitcnt lgkmcnt(12)')
    for n, (e, tq) in list(enumerate(au))[2:]:
        P(mfma(S + 8 * n, KP + 4 * e, 64 + 16 * e + 8 * tq, cBA0))
    M = cT
    U = range(4)
    for n in U:
        P(f'v_max3_f32 v{M + n}, v{S + 8 * n + 4}, v{S + 8 * n + 5}, v{S + 8 * n + 6}')
    for n in U:
        P(f'v_max3_f32 v{M + n}, v{M + n}, v{S + 8 * n + 7}, v{S + 8 * n}')
    for n in U:
        P(f'v_max3_f32 v{M + n}, v{M + n}, v{S + 8 * n + 1}, v{S + 8 * n + 2}')
    for n in U:
        P(f'v_max_f32 v{M + n}, v{M + n}, v{S + 8 * n + 3}')

    def xl(op):
        for sw in ('16', '32'):
            for n in U:
                P(f'v_mov_b32 v{M + 4 + n}, v{M + n}')
            for n in U:
                P(f'v_permlane{sw}_swap_b32 v{M + 4 + n}, v{M + n}')
            for n in U:
                P(f'{op} v{M + n}, v{M + n}, v{M + 4 + n}')
    xl('v_max_f32')
    for n in U:
        P(f'v_mul_f32 v{M + n}, v{cR + 1 + 2 * au[n][1]}, v{M + n}')
    for n in U:
        for i in range(8):
            P(f'v_fma_f32 v{S + 8 * n + i}, v{S + 8 * n + i}, v{cR + 1 + 2 * au[n][1]}, -v{M + n}')
        for i in range(8):
            P(f'v_exp_f32 v{S + 8 * n + i}, v{S + 8 * n + i}')
    stamp(7) if OPT['ds'] == 1 else None
    RI = 16
    for n in U:
        P(f'v_pk_add_f32 {vr(RI + 2 * n, 2)}, {vr(S + 8 * n, 2)}, {vr(S + 8 * n + 2, 2)}')
    for i in (4, 6):
        for n in U:
            P(f'v_pk_add_f32 {vr(RI + 2 * n, 2)}, {vr(RI + 2 * n, 2)}, {vr(S + 8 * n + i, 2)}')
    for n in U:
        P(f'v_add_f32 v{M + n}, v{RI + 2 * n}, v{RI + 2 * n + 1}')
    xl('v_add_f32')
    for n in U:
        P(f'v_rcp_f32 v{RI + 2 * n}, v{M + n}')
    P(f'''s_lshl_b32 s{sT2}, s{sIDX}, 11
s_add_u32 s{sT2}, s{sT2}, s{sA0}
s_add_u32 s{sT2}, s{sT2}, {56 * 1024}
s_add_u32 s{sT3}, s{sT2}, {NS * 1024}
s_waitcnt lgkmcnt(0)''')
    O = 64
    for n, (e, tq) in enumerate(au):
        for i in range(4):
            P(f'v_pk_mul_f32 {vr(S + 8 * n + 2 * i, 2)}, {vr(S + 8 * n + 2 * i, 2)}, {vr(RI + 2 * n, 2)} op_sel_hi:[1,0]')
        for x in pack(S + 8 * n):
            P(x)
        if n:
            ep, tp = au[n - 1]
            for dt in range(2):
                P(mfma(O + 8 * (n - 1) + 4 * dt, VO + 12 * ep + 6 * dt + 2 * tp, S + 8 * (n - 1), None))
    for dt in range(2):
        P(mfma(O + 24 + 4 * dt, VO + 12 * au[3][0] + 6 * dt + 2 * au[3][1], S + 24, None))
    stamp(13) if OPT['ds'] == 1 else None
    for n, (e, tq) in enumerate(au):
        for x in pack(O + 8 * n):
            P(x)
        P(f'v_and_b32 v{O + 8 * n + 2}, v{O + 8 * n + 2}, v{cM48}\nv_and_b32 v{O + 8 * n + 3}, v{O + 8 * n + 3}, v{cM48}')
        P(f'buffer_store_dwordx4 {vr(O + 8 * n)}, v{cL16}, {srd(SWS)}, s{sT2 + tq} offen offset:{1024 * e} sc1')


C_phase1(0)
P.label('L_CQ')
C_phase1(1)
stamp(9)
lds_signal(cSG, cT + 1, 9)
P('s_waitcnt vmcnt(0)')
P.label('L_CFLAG')
_st = stamp
if OPT['ds'] == 2:
    def stamp(k):
        if k >= 14:
            _st(k)
P(f'''v_lshrrev_b32 v1, 2, v{cL16}
v_mov_b32 v2, s{sTAG}
s_mov_b32 exec_lo, {(1 << OPT['fl']) - 1:#x}
s_mov_b32 exec_hi, 0
buffer_store_dword v2, v1, {srd(SWS)}, s{sA1} offen sc1
s_mov_b64 exec, -1
v_lshrrev_b32 v0, 4, v{cL16}''')
stamp(10)
P(f'''s_cmp_lt_u32 s{sCT}, 7
s_cbranch_scc1 L_P2C''')
if OPT['ipf']:
    P(f'''s_lshr_b32 s{sT0}, s2, 3
s_and_b32 s{sT0}, s{sT0}, 3
s_lshl_b32 s{sT0}, s{sT0}, 1
s_add_u32 s{sRT}, s{sRT}, s{sT0}
s_sub_u32 s{sRT}, s{sRT}, 8
s_and_b32 s{sT0}, s{sRT}, 1
s_lshl_b32 s{sT0}, s{sT0}, 2
s_add_u32 s{sT0}, s{sT0}, s{sI}
s_lshr_b32 s{sFB}, s{sRT}, 1
s_lshl_b32 s{sFB}, s{sFB}, 4
s_add_u32 s{sFB}, s{sFB}, s{sT0}
s_lshl_b32 s{sFB}, s{sFB}, 10
s_add_u32 s{sFB}, s{sFB}, {WS_FLAGS}
s_mul_i32 s{sT2}, s{sRT}, {4 * NS * 1024}
s_add_u32 s{sT2}, s{sT2}, {WS_ACT}
s_mul_i32 s{sT3}, s{sT0}, {LST * 1024}
s_add_u32 s{sT3}, s{sT3}, s{sT2}
v_min_u32 v4, 55, v0
v_lshlrev_b32 v4, 7, v4
v_lshlrev_b32 v6, 7, v0''')
    spoll('L_ip1', BL, 4)
    for q_ in range(4):
        P(f'buffer_load_dword v5, v4, {srd(SWS)}, s{sT3} offen sc1\ns_add_u32 s{sT3}, s{sT3}, {NS * 1024}')
    if OPT['ipf'] > 1:
        of_addr(sT3, sT0, sT1)
        spoll('L_ip2', '\n'.join(f's_buffer_load_dword s{4 + p_}, {srd(SWS)}, s{sT3} offset:{1024 * p_} glc' for p_ in range(4)), 4)
        P(f'''s_and_b32 s{sT0}, s{sI}, 1
s_mul_i32 s{sT0}, s{sT0}, {2 * NS * 1024}
s_lshr_b32 s{sT1}, s{sI}, 1
s_lshl_b32 s{sT1}, s{sT1}, 13
s_add_u32 s{sT2}, s{sT2}, s{sT0}
s_add_u32 s{sT2}, s{sT2}, s{sT1}
s_add_u32 s{sT2}, s{sT2}, {56 * 1024}''')
        for q_ in range(2):
            P(f'buffer_load_dword v5, v6, {srd(SWS)}, s{sT2} offen sc1\ns_add_u32 s{sT2}, s{sT2}, {NS * 1024}')
P(f'''s_cmp_lg_u32 s2, 255
s_cbranch_scc1 L_EXIT
s_cmp_lg_u32 s{sWAVE}, 4
s_cbranch_scc1 L_EXIT
v_lshlrev_b32 v3, 12, v0
v_add_u32 v3, {WS_FLAGS}, v3''')
P.label('L_bump')
spin_guard('L_EXIT')
P('s_sleep 32')
for n in range(16):
    P(f'buffer_load_dword v{4 + n}, v3, {srd(SWS)}, 0 offen offset:{1024 * (n // 4) + ((n % 4) << FS)} sc1')
P('s_waitcnt vmcnt(0)')
for n in range(16):
    P(f'v_xor_b32 v{4 + n}, v{4 + n}, v2')
for n in range(1, 16):
    P(f'v_or_b32 v4, v4, v{4 + n}')
P(f'''v_cmp_ne_u32 vcc, 0, v4
s_cbranch_vccnz L_bump
s_mov_b64 exec, 1
buffer_store_dword v2, v1, {srd(SWS)}, 0 offen sc1
s_mov_b64 exec, -1
s_branch L_EXIT''')

for t_, s_ in SLOW:
    lds_spin(f'L_{t_}w{s_}', cF, cSY, 0, s_ + 1, 0)
    P(f's_branch L_{t_}w{s_}_ok')

CACC = 24
CAR = 56
CWR = 120
cA2 = 56
cRA, cDA = 11, 20
sDONE, sOF, sXA = 62, 63, 64
P.label('L_P2C')
P(f'v_mov_b32 v21, v{cL16}\nv_mov_b32 v22, v{cSY}\nv_mov_b32 v23, v{cSG}')
cL16, cSY, cSG = 21, 22, 23
cU = 248
P('s_setprio %d' % OPT['cprio'])
w2_tr_addr(cA2, 10, 12, 13)
P(f's_lshr_b32 s{sT3}, s{sI}, 1\ns_mul_i32 s{sT0}, s{sT3}, {8 * 28 * 128}\ns_add_u32 s{sT0}, s{sT0}, {WO}')
for ct in range(4):
    P(f'v_add_u32 v{cA2 + ct}, s{sT0}, v{cA2 + ct}')
P(f'''v_and_b32 v12, 15, v0
v_lshlrev_b32 v12, 7, v12
v_lshrrev_b32 v13, 5, v0
v_xor_b32 v13, v13, v0
v_and_b32 v13, 7, v13
v_lshl_add_u32 v12, v13, 4, v12
v_bfe_u32 v13, v0, 4, 1
v_lshl_add_u32 v12, v13, 3, v12
s_and_b32 s{sT1}, s{sI}, 1
s_lshl_b32 s{sT0}, s{sT1}, 12
s_mul_i32 s{sT2}, s{sT3}, {STILE[1] - STILE[0]}
s_add_u32 s{sT0}, s{sT0}, s{sT2}
s_add_u32 s{sT0}, s{sT0}, {STILE[0]}
v_add_u32 v{cRA}, s{sT0}, v12
v_lshrrev_b32 v12, 3, v0
v_and_b32 v13, 7, v0
v_lshlrev_b32 v13, 1, v13
v_xor_b32 v13, v13, v12
v_lshlrev_b32 v13, 4, v13
v_lshl_add_u32 v13, v12, 8, v13
s_lshl_b32 s{sT0}, s{sI}, 12
v_add_u32 v{cDA}, s{sT0}, v13
s_xor_b32 s{sXA}, s{sRT}, 1
s_mul_i32 s{sXA}, s{sXA}, 7
s_add_u32 s{sXA}, s{sXA}, s{sCT}
s_lshl_b32 s{sXA}, s{sXA}, 14
s_lshl_b32 s{sT0}, s{sI}, 11
s_add_u32 s{sXA}, s{sXA}, s{sT0}
s_add_u32 s{sXA}, s{sXA}, {WS_XCH}
s_add_u32 s{sXA + 1}, s{sXA}, 8192
s_lshl_b32 s{sT0}, s{sRT}, 1
s_add_u32 s{sT0}, s{sT0}, s{sT1}
s_mul_i32 s66, s{sT0}, {2 * NS * 1024}
s_lshl_b32 s{sT0}, s{sT3}, 13
s_add_u32 s66, s66, s{sT0}
s_add_u32 s66, s66, {WS_ACT + 56 * 1024}
s_add_u32 s67, s66, {NS * 1024}
s_add_u32 s{sT3}, s{sI}, 10
s_mov_b32 s{sDONE}, 0''')
of_addr(sOF, sT0, sT1)
lds_poll('L_cwl', cF, cSY, 0, 9, 2)
for k in range(8):
    for ct in range(4):
        for j in range(2):
            P(f'ds_read_b64_tr_b16 {vr(CWR + 16 * k + 4 * ct + 2 * j, 2)}, v{cA2 + (ct ^ (2 * (k % 2)))} offset:{28 * k * 128 + 2048 * j}')
P('s_waitcnt lgkmcnt(0)')
lds_signal(cSG, cU, 10)
ol = '\n'.join(f's_buffer_load_dword s{4 + p_}, {srd(SWS)}, s{sOF} offset:{1024 * p_} glc' for p_ in range(4))


def s_loads():
    for k in range(8):
        for tt in range(2):
            P(f'buffer_load_dwordx4 {vr(CAR + 8 * k + 4 * tt)}, v{cL16}, {srd(SWS)}, s{66 + tt} offen offset:{(k % 4) * 1024} sc1')
        if k == 3:
            P('s_add_u32 s66, s66, 4096\ns_add_u32 s67, s67, 4096')
    fin_xload()


DV = f's{sT3}'
P.label('L_cw')
P(ol)
P(f'ds_read_b128 {vr(cF)}, v{cSY}\ns_waitcnt lgkmcnt(0)')
lds_cmp(cF, DV)
P('s_cbranch_vccz L_R')
for n in range(4):
    P(f's_xor_b32 s{4 + n}, s{4 + n}, s{sTAG}')
P('s_or_b64 s[4:5], s[4:5], s[6:7]')
P('s_cbranch_scc0 L_cw2')
spin_guard('L_R')
P(f's_sleep {OPT["ssl"]}\ns_branch L_cw')
P.label('L_cw2')
P(f'v_cmp_gt_u32 vcc, {OPT["gate"]}, v{cF}\ns_cbranch_vccz L_cw3\ns_min_u32 s{sT1}, {DV}, {OPT["gate"]}')
lds_poll('L_cg', cF, cSY, 0, f's{sT1}', 1)
P(f'v_cmp_gt_u32 vcc, {DV}, v{cF}\ns_mov_b32 s{sDONE}, 3\ns_cbranch_vccz L_R')
P.label('L_cw3')
stamp(3)
s_loads()
P(f's_mov_b32 s{sDONE}, 1\ns_waitcnt vmcnt(10)\nds_read_b128 {vr(cF)}, v{cSY}\ns_waitcnt vmcnt(2) lgkmcnt(0)')
lds_cmp(cF, DV)
P(f's_cbranch_vccz L_R\ns_mov_b32 s{sDONE}, 2\ns_branch L_S')
P.label('L_R')
stamp(11)
RO = 12
P(f'v_xor_b32 v{cU}, 16, v{cDA}\nv_xor_b32 v{cU + 1}, 0x880, v{cDA}\nv_xor_b32 v{cU + 2}, 0x890, v{cDA}')
for n in range(4):
    P(f'v_mov_b32 v{RO + 2 * n + 1}, s{sTAG}')
for u2 in range(2):
    b = CACC
    for part in range(4):
        for hf in range(2):
            P(f'ds_read_b128 {vr(b + 8 * part + 4 * hf)}, v{(cDA, cU, cU + 1, cU + 2)[2 * u2 + hf]} offset:{DUMPF + 16384 * part}')
    P('s_waitcnt lgkmcnt(4)')
    for r in range(8):
        P(f'v_add_f32 v{b + r}, v{b + r}, v{b + 8 + r}')
    P('s_waitcnt lgkmcnt(0)')
    for r in range(8):
        P(f'v_add_f32 v{b + 16 + r}, v{b + 16 + r}, v{b + 24 + r}')
    for r in range(8):
        P(f'v_add_f32 v{b + r}, v{b + r}, v{b + 16 + r}')
    for r in range(4):
        P(f'v_cvt_pk_bf16_f32 v{RO + 2 * r}, v{b + 2 * r}, v{b + 2 * r + 1}')
    for u in range(2):
        P(f'buffer_store_dwordx4 {vr(RO + 4 * u)}, v{cL16}, {srd(SWS)}, s{sXA + u} offen offset:{1024 * u2} sc1')
stamp(13)
P(f's_cmp_eq_u32 s{sDONE}, 2\ns_cbranch_scc1 L_CE\ns_cmp_eq_u32 s{sDONE}, 1\ns_cbranch_scc1 L_S')
P(f's_cmp_eq_u32 s{sDONE}, 3\ns_cbranch_scc1 L_po_ok')
spoll('L_po', ol, 4)
lds_poll('L_cg2', cF, cSY, 0, OPT['gate'], 1)
stamp(3)
s_loads()
P('s_waitcnt vmcnt(2)')
P.label('L_S')
stamp(12)
P(f'ds_read_b128 {vr(cF)}, v{cSY} offset:16')
for k in range(8):
    for tt in range(2):
        for ct in range(4):
            a = CACC + 16 * tt + 4 * ct
            P(mfma(a, CWR + 16 * k + 4 * ct, CAR + 8 * k + 4 * tt, None if k == 0 else a))
    if k == 6:
        P(f'v_xor_b32 v{cU}, 32, v{cRA}\nv_xor_b32 v{cU + 1}, 64, v{cRA}\nv_xor_b32 v{cU + 2}, 96, v{cRA}\ns_waitcnt lgkmcnt(0)')
        lds_cmp(cF, 9)
stamp(14)
P('s_cbranch_vccz L_c9_ok')
lds_spin('L_c9', cF, cSY, 16, 9, 0)
P.label('L_c9_ok')
for n in range(8):
    for r in (2 * n, 2 * n + 1):
        P(f'v_cvt_pk_bf16_f32 v{CACC + r}, v{CACC + 2 * r}, v{CACC + 2 * r + 1}')
    P(f'ds_write_b64 v{(cRA, cU, cU + 1, cU + 2)[n % 4]}, {vr(CACC + 2 * n, 2)} offset:{2048 * (n // 4)}')
P(f's_cmp_lg_u32 s{sDONE}, 2\ns_cbranch_scc1 L_CE')
lds_poll('L_cd1', cF, cSY, 0, DV, 1)
P('s_branch L_R')
P.label('L_CE')
if OPT['xh']:
    xh_addr(sT1)
    spoll('L_cx', f's_buffer_load_dword s4, {srd(SWS)}, s{sT1} glc', 1)
stamp(1) if OPT['ds'] == 4 else None
fin_pload()

P.label('L_FIN')
F, S_, X_, E_, G_, SR = 48, 96, 36, 80, 88, 24
P(f'''v_xor_b32 v9, v1, v2
v_and_b32 v9, 7, v9
v_lshlrev_b32 v9, 4, v9
v_lshl_add_u32 v9, v1, 7, v9
v_add_u32 v11, {STILE[1]}, v9
v_add_u32 v9, {STILE[0]}, v9
v_lshlrev_b32 v20, 1, v2
v_xor_b32 v20, v20, v1
v_and_b32 v20, 15, v20
v_lshlrev_b32 v20, 4, v20
v_lshl_add_u32 v20, v1, 8, v20
v_add_u32 v20, {DUMPO}, v20
v_xor_b32 v21, 16, v20''')


def pchk():
    P('s_waitcnt vmcnt(0)')
    for n in range(4):
        P(f'v_xor_b32 v{G_ + n}, s{sTAG}, v{FP + 2 * n + 1}')
    P(f'v_or_b32 v{G_}, v{G_}, v{G_ + 1}\nv_or3_b32 v{G_}, v{G_}, v{G_ + 2}, v{G_ + 3}\nv_cmp_ne_u32 vcc, 0, v{G_}')


pchk()
P('s_cbranch_vccz L_px_ok')
P.label('L_px')
spin_guard('L_px_ok')
P('s_sleep 1')
fin_pload(False)
pchk()
P('s_cbranch_vccnz L_px')
P.label('L_px_ok')
P('v_and_b32 v8, 0xffff0000, v8\nv_rcp_f32 v8, v8')
for n in range(4):
    P(f'v_lshlrev_b32 v{G_ + 2 * n}, 16, v{FP + 2 * n}\nv_and_b32 v{G_ + 2 * n + 1}, 0xffff0000, v{FP + 2 * n}')
for n in range(4):
    P(f'v_lshlrev_b32 v{X_ + 2 * n}, 16, v{FX + n}\nv_and_b32 v{X_ + 2 * n + 1}, 0xffff0000, v{FX + n}')
P('s_waitcnt lgkmcnt(0)')
stamp(5) if OPT['ds'] == 4 else None
P('s_barrier')
stamp(6) if OPT['ds'] == 4 else None
for part in range(4):
    for hf in range(2):
        P(f'ds_read_b128 {vr(F + 8 * part + 4 * hf)}, v{20 + hf} offset:{16384 * part}')
P(f'ds_read_b128 {vr(SR)}, v9\nds_read_b128 {vr(SR + 4)}, v11')
P('s_waitcnt lgkmcnt(6)')
for n in range(8):
    P(f'v_add_f32 v{F + n}, v{F + n}, v{F + 8 + n}')
for n in range(8):
    P(f'v_add_f32 v{F + n}, v{F + n}, v{G_ + n}')
P('s_waitcnt lgkmcnt(2)')
for n in range(8):
    P(f'v_add_f32 v{F + 16 + n}, v{F + 16 + n}, v{F + 24 + n}')
for n in range(8):
    P(f'v_add_f32 v{F + n}, v{F + n}, v{F + 16 + n}')
for n in range(8):
    P(f'v_mul_f32 v{F + n}, v{F + n}, v8')
for n in range(8):
    P(f'v_mul_f32 v{E_ + n}, 0xbfb8aa3b, v{F + n}')
for n in range(8):
    P(f'v_exp_f32 v{E_ + n}, v{E_ + n}')
P('s_waitcnt lgkmcnt(0)')
for n in range(8):
    P(f'v_lshlrev_b32 v{S_ + 2 * n}, 16, v{SR + n}\nv_and_b32 v{S_ + 2 * n + 1}, 0xffff0000, v{SR + n}')
for n in range(8):
    P(f'v_add_f32 v{S_ + n}, v{S_ + n}, v{S_ + 8 + n}')
for n in range(8):
    P(f'v_add_f32 v{E_ + n}, 1.0, v{E_ + n}')
for n in range(8):
    P(f'v_rcp_f32 v{E_ + n}, v{E_ + n}')
for n in range(8):
    P(f'v_mul_f32 v{F + n}, v{F + n}, v{S_ + n}')
for n in range(8):
    P(f'v_fmac_f32 v{X_ + n}, v{F + n}, v{E_ + n}')
for n in range(4):
    P(f'v_cvt_pk_bf16_f32 v{12 + n}, v{X_ + 2 * n}, v{X_ + 2 * n + 1}')
stamp(7) if OPT['ds'] == 4 else None
P(f'buffer_store_dwordx4 v[12:15], v3, {srd(SOUT)}, s{sT2} offen' + (' sc1' if OPT['osc1'] else ''))
P.label('L_EXIT')
if DIAG:
    P('s_waitcnt vmcnt(0)')
    stamp(15)
    diag_dump()
P.label('L_END')
P('s_endpgm')

body = P.finalize()
ref = open('cdna_kernels/%s.s.ref' % NAME).read()
hdr = [l for l in ref.split('\n') if l.startswith(';') and '@launch' not in l]
out = '\n'.join(hdr) + '\n; @launch grid=(256,1,1) block=(512,1,1) lds=%d\n' % LDS_BYTES
out += f'''.amdgcn_target "amdgcn-amd-amdhsa--gfx950"
.text
.globl {NAME}_kernel
.p2align 8
.type {NAME}_kernel,@function
{NAME}_kernel:
{body}.section .rodata,"a"
.p2align 6
.amdhsa_kernel {NAME}_kernel
  .amdhsa_next_free_vgpr 256
  .amdhsa_next_free_sgpr 102
  .amdhsa_accum_offset 256
  .amdhsa_group_segment_fixed_size 0
  .amdhsa_kernarg_size 72
  .amdhsa_user_sgpr_count 2
  .amdhsa_user_sgpr_kernarg_segment_ptr 1
  .amdhsa_system_sgpr_workgroup_id_x 1
.end_amdhsa_kernel
'''
open(sys.argv[1], 'w').write(out)
print('instructions', len(P.ins), 'nops inserted', P.nops_inserted)
```

```python
import sys
import itertools
from asmlib import Prog, Q

NAME = 'recurrent_scan__sliding_local_dilated__dense_activation_relu__prompt'
OPT = dict(diag=0, pf_code=1, pf_w=4, la=5, hold=2, wstep=2, prio=1, osc1=1, lahead=20, tm=1,
           nfill=2, cs_it=5, fla=4, ds=0, lsl=4, hw=7, cap=7, relu=0, n5=2, p5=12,
           kh=0x58ffff, kq=0x47ffff, k0=0, sfn=5, gk=5, ssl=1, nt=0, fs=7, fl=32, swarm=1, w4=2, lpause=9, pe=4, lpl=8, cprio=1, fwarm=2, xh=1, qf=1, qhold=0, la0=20, gate=10, m1=2, abl=0, p7=1, pad=-1, spf=0, capp=3, cape=7, l0=15, qfirst=0, ipff=4, hst=0, rm=0, sk=4, lpp=2, xw=10, rf=2, sprio=0, xd=4, xp=0, xq=2, nm=3, xs=0, xr=2, ipf=2)
for a in sys.argv[2:]:
    k, v = a.split('=')
    OPT[k] = int(v, 0)
PROBE = OPT.get('probe')
DIAG = OPT['diag'] or PROBE is not None

WS_FLAGS = 0x980000
FS = OPT['fs']
WS_STATS = 16384
WS_CSUM = 32768
WS_ACT = 262144
WS_XCH = 0xA00000
WS_DIAG = 0xE00000
WS_BYTES = 0xF00000
NS = 72
LST = 7

XS = [0, 16384, 32768]
WSL = [49152, 77824, 106496]
WO = 77824
NGRP = 14
HALO = 135168
WIN = 135168
ST = 157696
CS = 161792
SYNC = 163584
VSTR = 72
VREG = 135168
KX = 65536
DUMPF = 0
DUMPO = 77824
STILE = [65536, 143360]
LDS_BYTES = 163840

sSPIN = 3
SPIN_MAX = 0x40000
SX, SW, SWO, SW2, SWS, SOUT = 24, 28, 32, 36, 40, 44
sWAVE, sRB, sIDX, sISQ, sCG, sRT, sCT, sROT, sTAG, sI = range(48, 58)
sT0, sT1, sT2, sT3 = 58, 59, 60, 61
sXO, sWO_, sMX, sMW, sHO, sKB = 62, 63, 64, 65, 66, 67
sA0, sA1 = 68, 69
sWF = 19
sPUB = 22
sST = 70

P = Prog()


def srd(b):
    return 's[%d:%d]' % (b, b + 3)


def vr(a, n=4):
    return 'v[%d:%d]' % (a, a + n - 1)


MUTE = False


def stamp(k):
    if DIAG and not MUTE:
        P('s_memrealtime s[%d:%d]' % (sST + 2 * k, sST + 2 * k + 1))


def cstamp(k):
    if DIAG and PROBE is None:
        P('s_memtime s[%d:%d]' % (sST + 2 * k, sST + 2 * k + 1))


def mk_srd(b, ptr, size):
    P('s_mov_b32 s%d, s%d\ns_mov_b32 s%d, s%d\ns_mov_b32 s%d, 0x%x\ns_mov_b32 s%d, 0x20000'
      % (b, ptr, b + 1, ptr + 1, b + 2, size, b + 3))


def diag_dump():
    if PROBE is not None:
        a, b = divmod(PROBE, 100)
        P(f'''s_waitcnt lgkmcnt(0)
s_cmp_lt_u32 s{sWAVE}, 4
s_cbranch_scc1 L_END
s_cmp_ge_u32 s{sCT}, 7
s_cbranch_scc1 L_END
s_sub_u32 s{sT0}, s{sST + 2 * b}, s{sST + 2 * a}
s_min_u32 s{sT0}, s{sT0}, 5000
s_lshl_b32 s{sT0}, s{sT0}, 2''')
        P.label('L_probe')
        P(f'''s_memrealtime s[{sT2}:{sT3}]
s_waitcnt lgkmcnt(0)
s_sub_u32 s{sT1}, s{sT2}, s{sST + 30}
s_cmp_lt_u32 s{sT1}, s{sT0}
s_cbranch_scc1 L_probe''')
    elif DIAG:
        P('s_lshl_b32 s%d, s2, 3\ns_add_u32 s%d, s%d, s%d\ns_lshl_b32 s%d, s%d, 6\ns_add_u32 s%d, s%d, 0x%x'
          % (sT0, sT0, sT0, sWAVE, sT0, sT0, sT0, sT0, WS_DIAG))
        P('v_mov_b32 v1, 0\ns_waitcnt lgkmcnt(0)')
        for k in range(16):
            P('v_mov_b32 v2, s%d\nbuffer_store_dword v2, v1, %s, s%d offen offset:%d' % (sST + 2 * k, srd(SWS), sT0, 4 * k))


def spin_guard(out):
    P(f's_add_u32 s{sSPIN}, s{sSPIN}, 1\ns_cmp_gt_u32 s{sSPIN}, {SPIN_MAX}\ns_cbranch_scc1 {out}')


def lds_cmp(tmp, val):
    P(f'v_min3_u32 v{tmp}, v{tmp}, v{tmp + 1}, v{tmp + 2}\nv_min_u32 v{tmp}, v{tmp}, v{tmp + 3}\nv_cmp_gt_u32 vcc, {val}, v{tmp}')


def lds_poll(name, tmp, vsync, off, val, sleep=0):
    P(f'ds_read_b128 {vr(tmp)}, v{vsync} offset:{off}\ns_waitcnt lgkmcnt(0)')
    lds_cmp(tmp, val)
    P(f's_cbranch_vccz {name}_ok')
    lds_spin(name, tmp, vsync, off, val, sleep)
    P.label(name + '_ok')


def lds_spin(name, tmp, vsync, off, val, sleep):
    P.label(name)
    spin_guard(name + '_ok')
    if sleep:
        P(f's_sleep {sleep}')
    P(f'ds_read_b128 {vr(tmp)}, v{vsync} offset:{off}\ns_waitcnt lgkmcnt(0)')
    lds_cmp(tmp, val)
    P(f's_cbranch_vccnz {name}')


def lds_signal(vaddr, tmp, val):
    P(f'v_mov_b32 v{tmp}, {val}\nds_write_b32 v{vaddr}, v{tmp}')


def w2_tr_addr(d, hi_shift, t0, t1):
    P(f'''v_bfe_u32 v{t0}, v0, 2, 3
v_lshlrev_b32 v{t0}, 7, v{t0}
v_lshrrev_b32 v{t1}, 5, v0
v_lshl_add_u32 v{t0}, v{t1}, {hi_shift}, v{t0}
v_and_b32 v{t1}, 3, v0
v_lshl_add_u32 v{t0}, v{t1}, 3, v{t0}
v_bfe_u32 v{t1}, v0, 3, 2
v_lshl_add_u32 v{d}, v{t1}, 5, v{t0}
v_xor_b32 v{d + 1}, 32, v{d}
v_xor_b32 v{d + 2}, 64, v{d}
v_xor_b32 v{d + 3}, 96, v{d}''')


def q_addr_parts(trow, tmask, tc, t):
    P(f'''v_lshrrev_b32 v{trow}, 4, v0
v_lshlrev_b32 v{trow}, 3, v{trow}
v_bfe_u32 v{t}, v0, 2, 2
v_add_u32 v{trow}, v{trow}, v{t}
v_lshlrev_b32 v{trow}, 7, v{trow}
v_bfe_u32 v{tmask}, v0, 3, 2
v_lshlrev_b32 v{tmask}, 5, v{tmask}
v_and_b32 v{tc}, 3, v0
v_lshlrev_b32 v{tc}, 3, v{tc}''')
    if OPT['p7']:
        P(f's_cmp_eq_u32 s{sIDX}, 7\ns_cselect_b32 s{sT0}, 16, 0\nv_add_u32 v{tc}, s{sT0}, v{tc}')


def q_addr(d, boff, trow, tmask, tc):
    P(f'v_add_u32 v{d}, {boff}, v{tc}\nv_min_u32 v{d}, 120, v{d}\nv_xor_b32 v{d}, v{d}, v{tmask}\nv_add_u32 v{d}, v{d}, v{trow}')


def h_addr(d, t0, t1):
    P(f'''v_lshrrev_b32 v{t0}, 4, v0
v_lshlrev_b32 v{t0}, 3, v{t0}
v_bfe_u32 v{t1}, v0, 2, 2
v_add_u32 v{t0}, v{t0}, v{t1}
v_mul_u32_u24 v{t0}, 448, v{t0}
v_bfe_u32 v{t1}, v0, 4, 1
v_lshl_add_u32 v{t0}, v{t1}, 5, v{t0}
v_and_b32 v{t1}, 3, v0
v_lshl_add_u32 v{d}, v{t1}, 3, v{t0}''')


def mfma(d, a, b, c):
    return f'v_mfma_f32_16x16x32_bf16 {vr(d)}, {vr(a)}, {vr(b)}, ' + ('0' if c is None else vr(c))


P(f'''s_cmp_ge_u32 s2, 256
s_cbranch_scc1 L_END
s_load_dwordx16 s[4:19], s[0:1], 0
s_load_dwordx2 s[20:21], s[0:1], 64''')
if OPT['pf_code']:
    P('s_getpc_b64 s[22:23]')
    P.label('L_pc')
    P(f'''s_lshl_b32 s{sT0}, s2, 10
s_and_b32 s{sT0}, s{sT0}, 0xe000
v_lshlrev_b32 v2, 4, v0
v_add_u32 v2, s{sT0}, v2
v_min_u32 v2, L_END-L_pc, v2
s_mov_b32 exec_lo, 0x01010101
s_mov_b32 exec_hi, 0x01010101
global_load_dword v247, v2, s[22:23]
s_mov_b64 exec, -1''')
P(f'''v_lshrrev_b32 v1, 6, v0
v_and_b32 v0, 63, v0
v_readfirstlane_b32 s{sWAVE}, v1
s_and_b32 s{sT0}, s2, 7
s_lshr_b32 s{sT1}, s2, 3
s_and_b32 s{sRB}, s{sT0}, 1
s_lshl_b32 s{sRB}, s{sRB}, 3
s_and_b32 s{sT2}, s{sT1}, 7
s_add_u32 s{sRB}, s{sRB}, s{sT2}
s_and_b32 s{sIDX}, s{sT0}, 6
s_bfe_u32 s{sT2}, s{sT1}, 0x10003
s_add_u32 s{sIDX}, s{sIDX}, s{sT2}
MAP1
s_lshr_b32 s{sISQ}, s{sT1}, 4
s_xor_b32 s{sISQ}, s{sISQ}, {OPT['qfirst']}
s_lshl_b32 s{sCG}, s{sISQ}, 3
s_add_u32 s{sCG}, s{sCG}, s{sIDX}
s_mul_i32 s{sT2}, s{sT1}, 9363
s_lshr_b32 s{sT2}, s{sT2}, 16
s_mul_i32 s{sT3}, s{sT2}, 7
s_sub_u32 s{sT3}, s{sT1}, s{sT3}
s_cmp_ge_u32 s{sT1}, 28
s_cselect_b32 s{sCT}, 7, s{sT3}
s_lshl_b32 s{sT2}, s{sT2}, 1
s_and_b32 s{sRT}, s{sT0}, 6
s_lshl_b32 s{sRT}, s{sRT}, 2
s_add_u32 s{sRT}, s{sRT}, s{sT2}
s_and_b32 s{sT2}, s{sT0}, 1
s_add_u32 s{sRT}, s{sRT}, s{sT2}
ROT1
s_mul_i32 s{sT2}, s{sROT}, 9363
s_lshr_b32 s{sT2}, s{sT2}, 16
s_mul_i32 s{sT2}, s{sT2}, 7
s_sub_u32 s{sROT}, s{sROT}, s{sT2}
s_and_b32 s{sPUB}, s{sROT}, 1
s_cmp_ge_u32 s{sRB}, 7
s_cselect_b32 s{sPUB}, 1, s{sPUB}
s_mov_b32 s{sSPIN}, 0
s_and_b32 s{sI}, s{sWAVE}, 3'''.replace('MAP1', '' if not OPT['m1'] else f'''s_and_b32 s{sT2}, s{sT0}, 2
s_lshl_b32 s{sT2}, s{sT2}, 1
s_and_b32 s{sT3}, s{sRB}, 11
s_add_u32 s{sT2}, s{sT2}, s{sT3}
s_and_b32 s{sT3}, s{sT0}, 4
s_bfe_u32 s{sCG}, s{sT1}, 0x20002
s_add_u32 s{sT3}, s{sT3}, s{sCG}
s_cmp_ge_u32 s{sT1}, 16
s_cselect_b32 s{sRB}, s{sT2}, s{sRB}
s_cselect_b32 s{sIDX}, s{sT3}, s{sIDX}''' if OPT['m1'] == 2 else f'''s_lshr_b32 s{sRB}, s{sT0}, 1
s_lshl_b32 s{sRB}, s{sRB}, 2
s_and_b32 s{sT2}, s{sT1}, 3
s_add_u32 s{sRB}, s{sRB}, s{sT2}
s_and_b32 s{sIDX}, s{sT0}, 1
s_lshl_b32 s{sIDX}, s{sIDX}, 2
s_bfe_u32 s{sT2}, s{sT1}, 0x20002
s_add_u32 s{sIDX}, s{sIDX}, s{sT2}''').replace('ROT1', f'''s_lshr_b32 s{sROT}, s{sT1}, 3
s_lshl_b32 s{sROT}, s{sROT}, 1
s_add_u32 s{sROT}, s{sROT}, s{sRB}''' if not OPT['m1'] else f'''s_and_b32 s{sROT}, s{sIDX}, 1
s_mul_i32 s{sROT}, s{sROT}, 3
s_and_b32 s{sT2}, s{sIDX}, 3
s_lshl_b32 s{sT2}, s{sT2}, 1
s_add_u32 s{sT2}, s{sT2}, 1
s_cmp_ge_u32 s{sT1}, 16
s_cselect_b32 s{sROT}, s{sT2}, s{sROT}
s_lshl_b32 s{sT2}, s{sRB}, 1
s_add_u32 s{sROT}, s{sROT}, s{sT2}''' if OPT['m1'] == 2 else f'''s_lshr_b32 s{sROT}, s{sT1}, 2
s_lshl_b32 s{sT2}, s{sRB}, 1
s_add_u32 s{sROT}, s{sROT}, s{sT2}'''))
if DIAG:
    for k in range(16):
        P('s_mov_b32 s%d, 0' % (sST + 2 * k))
if PROBE is not None:
    stamp(2)
P(f'''s_cmp_ge_u32 s{sWAVE}, 4
s_cbranch_scc1 L_C''')

LW, LACC, LA, LADR = 24, 136, 168, 252
vX, vW, vH, vCA, vGA, vGS = 164, 168, 175, 176, 178, 179
vSEL, vCACC, vCF, vLT = 180, 196, 200, 232
vAD1, vAD2 = 180, 184
vS = 124
vSY, vSG, vPT = 244, 245, 248


def dma(vm, voff, srdb, soff, m0base, m0imm, tag=None, nt=False):
    P(f's_add_u32 m0, s{m0base}, {m0imm}')
    P(f'buffer_load_dwordx4 v{voff}, {srd(srdb)}, s{soff} offen {"nt " if nt else ""}lds')
    vm.issue(tag)


def red32(a, t):
    for sh in (8, 4, 2, 1):
        P(f'v_add_f32_dpp v{a}, v{a}, v{a} row_ror:{sh} row_mask:0xf bank_mask:0xf')
    P(f'v_mov_b32 v{t}, v{a}\nv_permlane16_swap_b32 v{t}, v{a}\nv_add_f32 v{a}, v{a}, v{t}')


def stats_rows():
    P(f'''v_and_b32 v{vS}, 31, v0
v_lshrrev_b32 v{vS + 1}, 5, v0
v_mul_u32_u24 v{vS + 2}, 896, v{vS + 1}
v_lshl_add_u32 v{vS + 2}, v{vS}, 4, v{vS + 2}
v_cmp_gt_u32 vcc, 28, v{vS}
v_mov_b32 v{vS + 3}, 0x10000000
v_cndmask_b32 v{vS + 2}, v{vS + 3}, v{vS + 2}, vcc
v_cndmask_b32 v{vS + 3}, 0, 1.0, vcc
s_lshl_b32 s{sT0}, s{sRB}, 7
s_lshl_b32 s{sT1}, s{sCG}, 3
s_add_u32 s{sT0}, s{sT0}, s{sT1}
s_lshl_b32 s{sT1}, s{sI}, 1
s_add_u32 s{sT3}, s{sT0}, s{sT1}
s_mul_i32 s{sT2}, s{sT3}, 896''')


def stats_load(vm):
    for u in range(2):
        P(f'buffer_load_dwordx4 {vr(vS + 4 + 4 * u)}, v{vS + 2}, {srd(SX)}, s{sT2} offen offset:{448 * u}')
        vm.issue('stats')

def stats_body():
    n0 = len(P.ins)
    a, d = vS + 12, vS + 16
    for n in range(8):
        P(f'v_lshlrev_b32 v{d + 2 * n}, 16, v{vS + 4 + n}\nv_and_b32 v{d + 1 + 2 * n}, 0xffff0000, v{vS + 4 + n}')
    P(f'v_add_f32 v{a}, v{d}, v{d + 1}\nv_add_f32 v{a + 1}, v{d + 2}, v{d + 3}')
    for n in range(4, 16):
        P(f'v_add_f32 v{a + n % 2}, v{a + n % 2}, v{d + n}')
    P(f'v_add_f32 v{a}, v{a}, v{a + 1}')
    red32(a, a + 1)
    P(f'v_mul_f32 v{a}, 0x3b124925, v{a}')
    for n in range(16):
        P(f'v_sub_f32 v{d + n}, v{d + n}, v{a}')
    P(f'v_mul_f32 v{a + 2}, v{d}, v{d}\nv_mul_f32 v{a + 3}, v{d + 1}, v{d + 1}')
    for n in range(2, 16):
        P(f'v_fmac_f32 v{a + 2 + n % 2}, v{d + n}, v{d + n}')
    P(f'v_add_f32 v{a + 2}, v{a + 2}, v{a + 3}\nv_mul_f32 v{a + 2}, v{a + 2}, v{vS + 3}')
    red32(a + 2, a + 1)
    P(f'''v_mul_f32 v{a + 2}, 0x3b124925, v{a + 2}
v_cvt_pk_bf16_f32 v{a + 2}, 0, v{a + 2}
v_add_f32 v{a + 2}, 0x3727c5ac, v{a + 2}
v_cvt_pk_bf16_f32 v{a + 2}, 0, v{a + 2}
v_sqrt_f32 v{a + 2}, v{a + 2}
v_cvt_pk_bf16_f32 v{a + 2}, v{a}, v{a + 2}
v_mov_b32 v{a + 3}, s{sTAG}
v_lshlrev_b32 v{a + 1}, 3, v{vS + 1}''')
    out = [x.text for x in P.ins[n0:]]
    del P.ins[n0:]
    return out

def stats_store(vm):
    a = vS + 12
    P(f'''s_lshl_b32 s{sT3}, s{sT3}, 3
s_add_u32 s{sT3}, s{sT3}, {WS_STATS}
s_mov_b32 exec_lo, 1
s_mov_b32 exec_hi, 1
buffer_store_dwordx2 {vr(a + 2, 2)}, v{a + 1}, {srd(SWS)}, s{sT3} offen sc1
s_mov_b64 exec, -1''')
    vm.issue()


sFB = 23
BL = '\n'.join(f's_buffer_load_dword s{4 + g}, {srd(SWS)}, s{sFB} offset:{g << FS} glc' for g in range(4))


def of_addr(d, t0, t1):
    P(f'''s_lshr_b32 s{d}, s{sRT}, 1
s_lshl_b32 s{d}, s{d}, 14
s_lshr_b32 s{t0}, s{sI}, 1
s_lshl_b32 s{t0}, s{t0}, 12
s_add_u32 s{d}, s{d}, s{t0}
s_and_b32 s{t0}, s{sRT}, 1
s_lshl_b32 s{t0}, s{t0}, 1
s_and_b32 s{t1}, s{sI}, 1
s_add_u32 s{t0}, s{t0}, s{t1}
s_lshl_b32 s{t0}, s{t0}, {FS}
s_add_u32 s{d}, s{d}, s{t0}
s_add_u32 s{d}, s{d}, {WS_FLAGS + (0 if OPT['abl'] & 1 else 8192)}''')


def xh_addr(d, w=None):
    P(f'''s_mul_i32 s{d}, s{sRT}, 7
s_add_u32 s{d}, s{d}, s{sCT}
s_lshl_b32 s{d}, s{d}, 4
s_add_u32 s{d}, s{d}, s{sWF if w is None else w}
s_lshl_b32 s{d}, s{d}, 10
s_add_u32 s{d}, s{d}, {WS_XCH + 8192 + 1020}''')


class W2Plan:
    def __init__(self, vm):
        self.vm = vm
        self.pairs = []
        self.grp = set()
        self.loc = {}
        self.pending = []
        self.ncw = 0

    def wopair(self):
        c = [g for g in (0, 2, 4) if g in self.grp and g + 1 in self.grp]
        return c[0] if c else None

    def has_pair(self):
        return bool(self.pairs) or self.wopair() is not None

    def own(self, hs):
        for h in hs:
            if self.pairs:
                a = self.pairs.pop(0)
            else:
                g = self.wopair()
                self.grp -= {g, g + 1}
                a = WO + 4096 * g
            self.loc[h] = a
            for u in range(2):
                dma(self.vm, 2 + u, SW2, sA0, sMX, a + 4096 * u, ('own', h))
            P(f's_add_u32 s{sA0}, s{sA0}, {16 * 896}')

    def sync(self):
        if self.pending:
            P('s_waitcnt lgkmcnt(0)')
            for h in self.pending:
                a = self.loc[h]
                if WO <= a < WO + 4096 * NGRP:
                    self.grp |= {(a - WO) // 4096, (a - WO) // 4096 + 1}
                else:
                    self.pairs.append(a)
            self.pending = []

    def stage(self, hs):
        self.vm.wait(('own', hs[-1]))
        self.sync()
        for h in hs:
            o = self.loc[h]
            base = (LADR, vAD1, vAD2)[o >> 16]
            for ct in range(4):
                P(f'ds_read_b64_tr_b16 {vr(LW + 8 * (h & ~1) + 4 * ct + 2 * (h & 1), 2)}, v{base + ct} offset:{o & 0xffff}')
        self.pending = list(hs)

    def cw(self):
        if NGRP - self.ncw == OPT['pe']:
            P(BL)
        g = max(self.grp)
        self.grp.remove(g)
        P(f's_add_u32 s{sT0}, s{sA1}, {g * 28672 + (0x20000000 if OPT["abl"] & 4 else 0)}')
        dma(self.vm, 2, SWO, sT0, sMX, WO + 4096 * g, ('cw', g))
        self.ncw += 1


def spoll(name, loads, nreg):
    P.label(name)
    P(loads)
    P.label(name + '_w')
    P('s_waitcnt lgkmcnt(0)')
    for n in range(nreg):
        P(f's_xor_b32 s{4 + n}, s{4 + n}, s{sTAG}')
    if nreg == 1:
        pass
    elif nreg == 2:
        P('s_or_b32 s4, s4, s5')
    elif nreg == 4:
        P('s_or_b64 s[4:5], s[4:5], s[6:7]')
    else:
        P('s_or_b64 s[4:5], s[4:5], s[6:7]\ns_or_b64 s[8:9], s[8:9], s[10:11]\ns_or_b64 s[4:5], s[4:5], s[8:9]')
    P(f's_cbranch_scc0 {name}_ok')
    spin_guard(name + '_ok')
    P(f's_sleep {OPT["ssl"]}\ns_branch {name}')
    P.label(name + '_ok')


P(f'''v_lshrrev_b32 v{vLT}, 3, v0
v_lshl_add_u32 v{vLT}, s{sI}, 3, v{vLT}
v_mul_u32_u24 v{vX}, 896, v{vLT}
v_lshrrev_b32 v{vLT}, 1, v{vLT}
v_xor_b32 v{vLT}, v{vLT}, v0
v_and_b32 v{vLT}, 7, v{vLT}
v_lshl_add_u32 v{vX}, v{vLT}, 4, v{vX}
v_add_u32 v{vX + 1}, 28672, v{vX}
v_add_u32 v{vX + 2}, 57344, v{vX}
v_add_u32 v{vX + 3}, 86016, v{vX}
s_mul_i32 s{sXO}, s{sRB}, 114688
s_lshl_b32 s{sT0}, s{sROT}, 7
s_add_u32 s{sXO}, s{sXO}, s{sT0}
s_mov_b32 s{sKB}, s{sROT}
s_lshl_b32 s{sMX}, s{sI}, 10
s_cmp_eq_u32 s{sISQ}, {1 - OPT['qf']}
s_cbranch_scc1 L_LQ''')


def L_phase1(isq):
    t = 'Q' if isq else 'H'
    vm = Q(P, 'vmcnt', 63)
    wstr = 2688 if isq else 3584
    wsl = WSL
    globals()['MUTE'] = False

    def gen_st(s):
        for n in range(4):
            dma(vm, vX + n, SX, sXO, sMX, XS[s % 3] + 4096 * n, nt=(OPT['nt'] & 1 and s < 1))
            yield
        if isq and s % 2 == 0:
            if s < 6:
                P(f'''s_lshr_b32 s{sT0}, s{sI}, 1
s_add_u32 s{sT0}, s{sT0}, s{sKB}
s_cmp_eq_u32 s{sT0}, 7
s_cselect_b32 s{sT0}, 0, s{sT0}
s_lshl_b32 s{sT0}, s{sT0}, 7
s_add_u32 s{sT0}, s{sT0}, s{sHO}''')
                dma(vm, vH, SX, sT0, sMX, HALO + 2048 * s)
            else:
                P(f'''s_lshl_b32 s{sT0}, s{sKB}, 7
s_add_u32 s{sT0}, s{sT0}, s{sHO}
s_and_b32 s{sT1}, s{sMX}, 1024''')
                dma(vm, vH, SX, sT0, sT1, HALO + 2048 * s)
            yield
        nw = 6 if isq else 7
        for n in range(nw):
            o = (n // 2) * 8192 + (n % 2) * 1024 if isq else n * 1024
            dma(vm, vW + n, SW, sWO_, sMW, wsl[s % 3] + o, ('st', s), nt=(OPT['nt'] & 2 and s < 1))
            if n == nw - 1 and s < 6:
                P(f'''s_add_u32 s{sKB}, s{sKB}, 1
s_cmp_eq_u32 s{sKB}, 7
s_cselect_b32 s{sKB}, 0, s{sKB}
s_cselect_b32 s{sT0}, {7 * 128}, 0
s_cselect_b32 s{sT1}, {7 * 64 * wstr}, 0
s_add_u32 s{sXO}, s{sXO}, 128
s_add_u32 s{sWO_}, s{sWO_}, {64 * wstr}
s_sub_u32 s{sXO}, s{sXO}, s{sT0}
s_sub_u32 s{sWO_}, s{sWO_}, s{sT1}''')
            yield

    def run(g, n=1000):
        for _ in range(n):
            if next(g, 'end') == 'end':
                break

    if isq:
        P(f'''v_lshrrev_b32 v{vLT}, 3, v0
v_mul_u32_u24 v{vW}, 2688, v{vLT}
v_bfe_u32 v{vLT}, v0, 4, 1
v_lshlrev_b32 v{vLT}, 1, v{vLT}
v_xor_b32 v{vLT}, v{vLT}, v0
v_and_b32 v{vLT}, 7, v{vLT}
v_lshlrev_b32 v{vLT}, 4, v{vLT}
v_xor_b32 v{vLT + 1}, 64, v{vLT}
v_add_u32 v{vW + 1}, {8 * 2688}, v{vW}
v_add_u32 v{vW}, v{vW}, v{vLT}
v_add_u32 v{vW + 1}, v{vW + 1}, v{vLT + 1}''')
        for n in range(2, 6):
            P(f'v_add_u32 v{vW + n}, {(n // 2) * 896}, v{vW + n % 2}')
        P(f'''s_mul_i32 s{sT0}, s{sIDX}, 112
s_min_u32 s{sT0}, s{sT0}, {768 if OPT['p7'] else 1024}
s_and_b32 s{sT0}, s{sT0}, {0xff80 if OPT['abl'] & 8 else 0xffff}
s_lshl_b32 s{sMW}, s{sI}, 11
s_lshr_b32 s{sT1}, s{sI}, 1
s_mul_i32 s{sT1}, s{sT1}, {16 * 896}
v_subrev_u32 v{vH}, s{sT1}, v{vX}
s_mul_i32 s{sHO}, s{sRB}, 114688
s_max_u32 s{sHO}, s{sHO}, {16 * 896}
s_sub_u32 s{sHO}, s{sHO}, {16 * 896}''')
    else:
        P(f's_movk_i32 s{sT0}, 3136')
        for n in range(7):
            P(f'''v_add_u32 v{vLT}, {64 * n}, v0
v_mul_u32_u24 v{vLT + 1}, 2341, v{vLT}
v_lshrrev_b32 v{vLT + 1}, 16, v{vLT + 1}
v_lshlrev_b32 v{vLT}, 4, v{vLT}
v_mad_u32_u24 v{vW + n}, v{vLT + 1}, s{sT0}, v{vLT}''')
            if n == 3:
                P(f'v_and_b32 v{vLT + 1}, 8, v{vLT + 1}\nv_lshlrev_b32 v{vLT + 1}, 2, v{vLT + 1}\nv_xor_b32 v{vW + n}, v{vW + n}, v{vLT + 1}')
            elif n > 3:
                P(f'v_xor_b32 v{vW + n}, 32, v{vW + n}')
        P(f's_mul_i32 s{sT0}, s{sIDX}, 448\ns_mul_i32 s{sMW}, s{sI}, 7168')
    P(f'''s_lshl_b32 s{sT1}, s{sROT}, 2
s_add_u32 s{sT1}, s{sT1}, s{sI}
s_mul_i32 s{sWO_}, s{sT1}, {16 * wstr}
s_add_u32 s{sWO_}, s{sWO_}, s{sT0}''')
    P('s_waitcnt lgkmcnt(0)')
    mk_srd(SX, 4, 2048 * 896)
    mk_srd(SW, 6 if isq else 12, 448 * wstr)
    stamp(0)
    KS = [int(c, 16) for c in '%06x' % OPT['kq' if isq else 'kh']]
    gens = [gen_st(s) for s in range(7)]
    run(gens[0])
    run(gens[1], min(KS[0], OPT['k0']))
    P(f's_load_dword s{sTAG}, s[20:21], 0')
    mk_srd(SWO, 8, 448 * 896)
    mk_srd(SW2, 14, 1792 * 896)
    mk_srd(SWS, 20, WS_BYTES)
    mk_srd(SOUT, 16, 2048 * 896)
    P(f'v_bfe_u32 v{vLT}, v0, 2, 2\nv_mov_b32 v{vLT + 1}, 0x3f803f80')
    for m in range(4):
        P(f'v_cmp_eq_u32 vcc, {m}, v{vLT}\nv_cndmask_b32 v{vSEL + 4 * m}, 0, v{vLT + 1}, vcc')
        for r in range(1, 4):
            P(f'v_mov_b32 v{vSEL + 4 * m + r}, v{vSEL + 4 * m}')
    if isq:
        q_addr_parts(vLT, vLT + 1, vLT + 2, vLT + 3)
        P(f'''s_lshr_b32 s{sT0}, s{sI}, 1
s_mul_i32 s{sT0}, s{sT0}, 56
s_and_b32 s{sT1}, s{sI}, 1
s_lshl_b32 s{sT1}, s{sT1}, 5
s_add_u32 s{sT0}, s{sT0}, s{sT1}''')
        q_addr(vCA, f's{sT0}', vLT, vLT + 1, vLT + 2)
        ntile, tstr, rstr, kstr = 3, 8192, 128, 4096
    else:
        h_addr(vCA, vLT, vLT + 1)
        P(f'''s_and_b32 s{sT0}, s{sI}, 1
s_lshl_b32 s{sT0}, s{sT0}, 5
v_xor_b32 v{vCA}, s{sT0}, v{vCA}
s_lshr_b32 s{sT0}, s{sI}, 1
s_lshl_b32 s{sT0}, s{sT0}, 6
v_add_u32 v{vCA}, s{sT0}, v{vCA}''')
        ntile, tstr, rstr, kstr = 4, 128, 448, 32 * 448
    w2_tr_addr(LADR, 12, vLT, vLT + 1)
    for ct in range(4):
        P(f'v_add_u32 v{LADR + ct}, s{sMX}, v{LADR + ct}')
    P(f'''v_lshrrev_b32 v{vLT}, 3, v0
v_mul_u32_u24 v2, 896, v{vLT}
v_and_b32 v{vLT}, 6, v{vLT}
v_xor_b32 v{vLT}, v{vLT}, v0
v_and_b32 v{vLT}, 7, v{vLT}
v_lshl_add_u32 v2, v{vLT}, 4, v2
v_add_u32 v3, {8 * 896}, v2
v_lshlrev_b32 v1, 4, v0
s_and_b32 s{sT0}, s{sRT}, 1
s_lshl_b32 s{sT0}, s{sT0}, 2
s_add_u32 s{sT0}, s{sT0}, s{sI}
s_mul_i32 s{sA0}, s{sT0}, {LST * 32 * 896}
s_lshr_b32 s{sFB}, s{sRT}, 1
s_lshl_b32 s{sFB}, s{sFB}, 4
s_add_u32 s{sFB}, s{sFB}, s{sT0}
s_lshl_b32 s{sFB}, s{sFB}, 10
s_add_u32 s{sFB}, s{sFB}, {WS_FLAGS}
s_lshl_b32 s{sT0}, s{sCT}, 7
s_cmp_lt_u32 s{sCT}, 7
s_cselect_b32 s{sT0}, s{sT0}, 0x40000000
s_add_u32 s{sA0}, s{sA0}, s{sT0}
s_mul_i32 s{sA1}, s{sI}, {8 * 896}
s_add_u32 s{sA1}, s{sA1}, s{sT0}
v_lshl_add_u32 v{vGA}, s{sI}, 6, v0
v_min_u32 v{vGS}, 143, v{vGA}
v_lshlrev_b32 v{vGA}, 3, v{vGA}
v_mov_b32 v{vSY}, {SYNC}
v_lshl_add_u32 v{vSG}, s{sI}, 2, v{vSY}''')
    run(gens[1], KS[0] - min(KS[0], OPT['k0']))

    def csum_part(s):
        lab = f'L_{t}cs{s}'
        P(f's_cmp_lg_u32 s{sPUB}, 0\ns_cbranch_scc1 {lab}')
        if s == 1:
            P(f's_cmp_eq_u32 s{sROT}, 6\ns_cbranch_scc1 {lab}b')
        P(f'v_add_u32 v{vCA + 1}, {wsl[s]}, v{vCA}')
        if not isq:
            P(f's_and_b32 s{sT0}, s{sI}, 2\ns_lshl_b32 s{sT0}, s{sT0}, 6\nv_subrev_u32 v{vLT + 4}, s{sT0}, v{vCA + 1}')
        for kk in range(2):
            for m in range(ntile):
                f = vCF + 16 * kk + 4 * m
                o = m * tstr + kk * kstr
                va = vLT + 4 if m == 3 else vCA + 1
                P(f'ds_read_b64_tr_b16 {vr(f, 2)}, v{va} offset:{o}')
                P(f'ds_read_b64_tr_b16 {vr(f + 2, 2)}, v{va} offset:{o + 4 * rstr}')
        P('s_waitcnt lgkmcnt(0)')
        for kk in range(2):
            for m in range(ntile):
                P(mfma(vCACC, vSEL + 4 * m, vCF + 16 * kk + 4 * m, None if (s, kk, m) == (0, 0, 0) else vCACC))
        if s == 1:
            P.label(lab + 'b')
        P.label(lab)
        if s == 1:
            P(f'''s_lshl_b32 s{sT0}, s{sCG}, 13
s_lshl_b32 s{sT1}, s{sROT}, 10
s_add_u32 s{sT0}, s{sT0}, s{sT1}
s_lshl_b32 s{sT1}, s{sI}, 7
s_add_u32 s{sT0}, s{sT0}, s{sT1}
s_add_u32 s{sT0}, s{sT0}, {WS_CSUM}
s_cmp_lg_u32 s{sPUB}, 0
s_cselect_b32 s{sT0}, 0x40000000, s{sT0}
v_lshrrev_b32 v{vLT}, 4, v0
v_lshlrev_b32 v{vLT}, 9, v{vLT}
v_and_b32 v{vLT + 1}, 15, v0
v_lshl_add_u32 v{vLT}, v{vLT + 1}, 3, v{vLT}
v_mov_b32 v{vCACC + 1}, s{sTAG}
buffer_store_dwordx2 {vr(vCACC, 2)}, v{vLT}, {srd(SWS)}, s{sT0} offen sc1''')
            vm.issue()

    def gather_issue(count=True):
        for pi in range(4):
            P(f'buffer_load_dwordx2 {vr(vCF + 2 * pi, 2)}, v{vGA}, {srd(SWS)}, s{sT2 + pi // 2} offen offset:{2048 * (pi % 2)} sc1')
            if count:
                vm.issue('gather')
        P(f'''s_lshl_b32 s{sT0}, s{sRB}, 7
s_sub_u32 s{sT0}, s{sT0}, 16
v_add_u32 v{vCF + 10}, s{sT0}, v{vGS}
v_max_i32 v{vCF + 10}, 0, v{vCF + 10}
v_lshlrev_b32 v{vCF + 10}, 3, v{vCF + 10}
s_movk_i32 s{sT0}, {WS_STATS}
buffer_load_dwordx2 {vr(vCF + 8, 2)}, v{vCF + 10}, {srd(SWS)}, s{sT0} offen sc1''')
        if count:
            vm.issue('gather')

    def gather_start():
        P(f'''s_lshl_b32 s{sT2}, s{sCG}, 13
s_add_u32 s{sT2}, s{sT2}, {WS_CSUM}
s_add_u32 s{sT3}, s{sT2}, 4096''')
        gather_issue()

    def gather_cmp():
        for pi in range(5):
            P(f'v_xor_b32 v{vLT + pi}, s{sTAG}, v{vCF + 2 * pi + 1}')
        P(f'''v_or3_b32 v{vLT}, v{vLT}, v{vLT + 1}, v{vLT + 4}
v_or3_b32 v{vLT}, v{vLT}, v{vLT + 2}, v{vLT + 3}
v_cmp_ne_u32 vcc, 0, v{vLT}''')

    def gather_fin():
        for x in gather_chk():
            P(x)

    def gather_chk():
        vm.wait('gather')
        gather_cmp()
        P(f's_cbranch_vccz L_{t}gok')
        P.label(f'L_{t}gre')
        spin_guard(f'L_{t}gok')
        P('s_sleep 1')
        gather_issue(False)
        P('s_waitcnt vmcnt(0)')
        gather_cmp()
        P(f's_cbranch_vccnz L_{t}gre')
        P.label(f'L_{t}gok')
        a, b = vCF, vLT + 2
        txt = (f'''v_add_f32 v{a}, v{a}, v{a + 2}
v_add_f32 v{a + 4}, v{a + 4}, v{a + 6}
v_add_f32 v{a}, v{a}, v{a + 4}
v_mul_f32 v{a}, 0x3e800000, v{a}
v_and_b32 v{a + 14}, 0xffff0000, v{a + 8}
v_and_b32 v{a + 13}, 0xffff, v{a + 8}
v_rcp_f32 v{a + 14}, v{a + 14}
v_xor_b32 v{a + 13}, 0x8000, v{a + 13}
v_lshl_or_b32 v{a + 12}, v{a + 13}, 16, v{a + 13}
v_mul_f32 v{a + 15}, 0x3e8b9a4d, v{a + 14}
v_lshlrev_b32 v{a + 10}, 4, v{vGS}
v_add_u32 v{a + 10}, {ST}, v{a + 10}
ds_write_b128 v{a + 10}, {vr(a + 12)}
v_cvt_pk_bf16_f32 v{b}, 0, v{a}
v_sub_f32 v{b + 2}, v{a}, v{b}
v_cvt_pk_bf16_f32 v{b}, v{a}, v{b + 2}
v_and_b32 v{b + 1}, 0xffff0000, v{b}
v_sub_f32 v{b + 1}, v{b + 2}, v{b + 1}
v_cvt_pk_bf16_f32 v{b + 1}, v{b + 1}, 0
v_add_u32 v{vLT}, {CS}, v{vGA}
v_cmp_gt_u32 vcc, {224 * 8}, v{vGA}
s_mov_b64 exec, vcc|ds_write_b64 v{vLT}, {vr(b, 2)}|s_mov_b64 exec, -1''')
        return [x.replace('|', '\n') for x in txt.split('\n')]

    def pf_w():
        P(f'''s_lshl_b32 s{sT1}, s2, 2
s_add_u32 s{sT1}, s{sT1}, s{sI}
s_lshl_b32 s{sT1}, s{sT1}, 11
v_lshlrev_b32 v{vLT + 8}, 7, v0
s_mov_b64 exec, 0xffff
buffer_load_dword v{vLT + 9}, v{vLT + 8}, {srd(SW2)}, s{sT1} offen
buffer_load_dword v{vLT + 9}, v{vLT + 8}, {srd(SWO)}, s{sT1} offen
s_mov_b64 exec, -1''')
        vm.issue()
        vm.issue()

    P(f's_waitcnt lgkmcnt(0)\ns_add_u32 s{sTAG}, s{sTAG}, 1')
    w2 = W2Plan(vm)
    if not isq:
        w2.pairs += [WIN, WIN + 8192]
    nown = 0
    nstg = 0

    def own(n):
        nonlocal nown
        n = min(n, 2 * LST - nown)
        w2.own(range(nown, nown + n))
        nown += n

    def stage(n):
        nonlocal nstg
        n = min(n, nown - nstg)
        if n > 0:
            w2.stage(list(range(nstg, nstg + n)))
        nstg += n

    def cwait(v):
        lds_poll(f'L_{t}cp{v}', vPT, vSY, 16, v, OPT['lsl'])

    def fwarm():
        P(BL)
        of_addr(sT0, sT1, 10)
        for p_ in range(4):
            P(f's_buffer_load_dword s11, {srd(SWS)}, s{sT0} offset:{1024 * p_} glc')
        xh_addr(sT0, sI)
        P(f's_buffer_load_dword s11, {srd(SWS)}, s{sT0} glc\ns_buffer_load_dword s11, {srd(SWS)}, s{sT0} offset:4096 glc')

    nspf = 0

    def spf(n):
        nonlocal nspf
        if nspf == 0:
            P(f'''s_lshl_b32 s9, s2, 2
s_add_u32 s9, s9, s{sI}
s_mul_i32 s8, s9, {25 * 64}
s_mul_i32 s9, s9, {7 * 64}''')
        for _ in range(n):
            if nspf < 25:
                P(f's_buffer_load_dword s12, {srd(SW2)}, s8 offset:{64 * nspf}')
            elif nspf < 32:
                P(f's_buffer_load_dword s12, {srd(SWO)}, s9 offset:{64 * (nspf - 25)}')
            nspf += 1
    if OPT['fwarm'] == 9:
        fwarm()
    spn = [int(c, 16) for c in '%05x' % OPT['spf']]
    fin = set()
    wbs = [int(c) for c in '%05d' % OPT['w4']]
    sfill = []
    for s in range(5):
        if OPT['ds'] == 3:
            stamp(1 + 3 * s)
            vm.wait(('st', s))
            stamp(2 + 3 * s)
            P('s_barrier')
            stamp(3 + 3 * s) if s < 4 else None
        else:
            stamp(13) if s == 4 else None
            vm.wait(('st', s))
            stamp(14) if s == 4 else None
            P('s_barrier')
            stamp({0: 1, 3: 3, 4: 5}[s]) if s in (0, 3, 4) else None
        def extras(st):
            if OPT['pf_w'] == st:
                pf_w()

        def stream():
            for st, lim in ((s + 1, 99), (s + 2, KS[s + 1])):
                if st in fin:
                    continue
                k = 0
                while k < lim:
                    if next(gens[st], 'end') == 'end':
                        fin.add(st)
                        extras(st)
                        break
                    k += 1
                    yield
        g = stream()
        if s == 4 and OPT['cs_it'] == 35:
            gather_start()
        if s < 2:
            run(g, 5)
            csum_part(s)
        if s == OPT['cs_it'] + 1:
            run(g, OPT['gk'])
            sfill = gather_chk()
        while next(g, 'end') != 'end':
            for _ in range(OPT['sfn']):
                if sfill:
                    P(sfill.pop(0))
        if s == OPT['cs_it']:
            gather_start()
        if s == OPT['cs_it'] + 1:
            while sfill:
                P(sfill.pop(0))
        if spn[s]:
            spf(spn[s])
        if s == OPT['fwarm']:
            fwarm()
        if s == 1:
            for ct in range(4):
                P(f'v_add_u32 v{vAD1 + ct}, 0x10000, v{LADR + ct}\nv_add_u32 v{vAD2 + ct}, 0x20000, v{LADR + ct}')
        if not isq and wbs[s]:
            if len(w2.pairs) < wbs[s]:
                stage(wbs[s] - len(w2.pairs))
                w2.sync()
            own(wbs[s])
    global MUTE
    MUTE = OPT['ds'] == 3

    def progress(total, cap=OPT['cap']):
        left = total
        while left > 0:
            isown = nown < 2 * LST
            if not (w2.has_pair() if isown else w2.grp):
                if w2.pending:
                    w2.sync()
                elif nstg < nown:
                    stage(1)
                else:
                    break
                continue
            if isown:
                own(1)
                left -= 2
            else:
                w2.cw()
                left -= 1
            while nstg < nown and vm.n - vm.tags[('own', nstg)] >= cap:
                stage(1)
            if vm.n - vm.done > cap:
                vm.wait(vm.n - cap)
    vm.wait(('st', 5))
    stamp(2)
    P('s_barrier')
    stamp(4)
    w2.pairs += [16384, 24576]
    w2.grp |= set(range(7))
    for _ in gens[6]:
        pass
    if OPT['cs_it'] == 5:
        gather_start()
    if OPT['pf_w'] == 7:
        pf_w()
    own(OPT['n5'])
    if OPT['cs_it'] >= 4:
        gather_fin()
    vm.wait(('st', 6))
    P('s_waitcnt lgkmcnt(0)')
    lds_signal(vSG, 246, 7)
    P(f's_cmp_ge_u32 s{sCT}, 7\ns_cbranch_scc1 L_EXIT')
    progress(OPT['p5'])
    stamp(6)
    cwait(6)
    w2.pairs += [32768, 40960]
    w2.grp |= set(range(7, 14))
    if OPT['lpause'] and not isq:
        progress(OPT['lpause'] - 1, OPT['capp'])
        stage(100)
        cwait(8)
    progress(100, OPT['cap'] if isq else OPT['cape'])
    stage(100)
    w2.sync()
    assert nown == 2 * LST and nstg == nown and not w2.pending and w2.ncw == NGRP
    if isq and OPT['qhold']:
        cwait(9)
    if isq == OPT['qf']:
        P('s_branch L_P2L')
    return vm


FX = 4


def fin_xload():
    P(f'''v_lshrrev_b32 v1, 3, v0
v_lshl_add_u32 v1, s{sWF}, 3, v1
v_mul_u32_u24 v3, 896, v1
v_and_b32 v2, 7, v0
v_lshl_add_u32 v3, v2, 4, v3
s_mul_i32 s{sT2}, s{sRT}, {64 * 896}
s_lshl_b32 s{sT0}, s{sCT}, 7
s_add_u32 s{sT2}, s{sT2}, s{sT0}
buffer_load_dwordx4 {vr(FX)}, v3, {srd(SX)}, s{sT2} offen
v_lshlrev_b32 v9, 3, v1
s_lshl_b32 s{sT0}, s{sRT}, 9
s_add_u32 s{sT0}, s{sT0}, {WS_STATS}
buffer_load_dword v8, v9, {srd(SWS)}, s{sT0} offen sc1''')


FP = 12


def fin_pload(first=True, load=True):
    if first:
        P(f'''v_lshl_add_u32 v10, s{sWF}, 6, v0
v_lshlrev_b32 v10, 4, v10
s_mul_i32 s{sA0}, s{sRT}, 7
s_add_u32 s{sA0}, s{sA0}, s{sCT}
s_lshl_b32 s{sA0}, s{sA0}, 14
s_add_u32 s{sA0}, s{sA0}, {WS_XCH}
s_add_u32 s{sA1}, s{sA0}, 8192''')
    for u in range(2 if load else 0):
        P(f'buffer_load_dwordx4 {vr(FP + 4 * u)}, v10, {srd(SWS)}, s{sA0 + u} offen sc1')


F, S_, X_, E_, G_, SR, FA = 48, 96, 168, 80, 176, 24, 184


def fin_prep(t):
    P(f'''v_xor_b32 v9, v1, v2
v_and_b32 v9, 7, v9
v_lshlrev_b32 v9, 4, v9
v_lshl_add_u32 v9, v1, 7, v9
v_add_u32 v11, {STILE[1]}, v9
v_add_u32 v9, {STILE[0]}, v9
v_lshlrev_b32 v{FA}, 1, v2
v_xor_b32 v{FA}, v{FA}, v1
v_and_b32 v{FA}, 15, v{FA}
v_lshlrev_b32 v{FA}, 4, v{FA}
v_lshl_add_u32 v{FA}, v1, 8, v{FA}
v_add_u32 v{FA}, {DUMPO}, v{FA}
v_xor_b32 v{FA + 1}, 16, v{FA}''')

    def pchk():
        P('s_waitcnt vmcnt(0)')
        for n in range(4):
            P(f'v_xor_b32 v{G_ + n}, s{sTAG}, v{FP + 2 * n + 1}')
        P(f'v_or_b32 v{G_}, v{G_}, v{G_ + 1}\nv_or3_b32 v{G_}, v{G_}, v{G_ + 2}, v{G_ + 3}\nv_cmp_ne_u32 vcc, 0, v{G_}')
    pchk()
    P(f's_branch L_px{t}_ok' if OPT['abl'] & 2 else f's_cbranch_vccz L_px{t}_ok')
    P.label(f'L_px{t}')
    spin_guard(f'L_px{t}_ok')
    P('s_sleep 1')
    fin_pload(False)
    pchk()
    P(f's_cbranch_vccnz L_px{t}')
    P.label(f'L_px{t}_ok')
    P('v_and_b32 v8, 0xffff0000, v8\nv_rcp_f32 v8, v8\ns_setprio 0')
    for n in range(4):
        P(f'v_lshlrev_b32 v{G_ + 2 * n}, 16, v{FP + 2 * n}\nv_and_b32 v{G_ + 2 * n + 1}, 0xffff0000, v{FP + 2 * n}')
    for n in range(4):
        P(f'v_lshlrev_b32 v{X_ + 2 * n}, 16, v{FX + n}\nv_and_b32 v{X_ + 2 * n + 1}, 0xffff0000, v{FX + n}')
    P(f'v_mul_f32 v{FA + 2}, 0xbfb8aa3b, v8')


def L_phase2(vm):
    P.label('L_P2L')
    lastcw = vm.n
    vm.done = 0
    stamp(8)
    sB, sO = 62, 63
    vDA, vL16, vSy, vSg = LADR, 20, 21, 22
    P(f'''v_mov_b32 v{vL16}, v1
s_xor_b32 s{sWF}, s{sWAVE}, 4
v_mov_b32 v{vSy}, v{vSY}
v_mov_b32 v{vSg}, v{vSG}
s_and_b32 s{sT3}, s{sRT}, 1
s_lshl_b32 s{sT3}, s{sT3}, 2
s_add_u32 s{sT3}, s{sT3}, s{sI}
s_xor_b32 s{sT2}, s{sRT}, 1
s_mul_i32 s{sT2}, s{sT2}, {4 * NS * 1024}
s_mul_i32 s{sT3}, s{sT3}, {LST * 1024}
s_add_u32 s{sT3}, s{sT3}, {WS_ACT}
s_add_u32 s{sB}, s{sT2}, s{sT3}
s_mul_i32 s{sO}, s{sRT}, {4 * NS * 1024}
s_add_u32 s{sO}, s{sO}, s{sT3}
v_and_b32 v{vDA}, 15, v0
v_lshrrev_b32 v{vDA + 1}, 4, v0
v_xor_b32 v{vDA + 1}, v{vDA + 1}, v{vDA}
v_lshlrev_b32 v{vDA + 1}, 4, v{vDA + 1}
v_lshl_add_u32 v{vDA}, v{vDA}, 8, v{vDA + 1}
s_lshl_b32 s{sT1}, s{sI}, 14
v_add_u32 v{vDA}, s{sT1}, v{vDA}
v_xor_b32 v{vDA + 1}, 64, v{vDA}
v_xor_b32 v{vDA + 2}, 128, v{vDA}
v_xor_b32 v{vDA + 3}, 192, v{vDA}
s_branch L_pb_w''')
    spoll('L_pb', BL, 4)
    stamp(9)
    TMP = 248
    free = [LA + 4 * n for n in range(5, 20)] + [LA + 4 * n for n in range(OPT['xs'])]
    aloc = {}
    nxt = 0
    NT = 8 * LST

    def loads(cur, mx=100):
        nonlocal nxt
        while nxt < NT and free and nxt - cur < (OPT['lahead'] if cur >= 2 * LST else OPT['la0']) and mx > 0:
            t, k = divmod(nxt, LST)
            aloc[nxt] = free.pop(0)
            if aloc[nxt] < LA + 20 and nxt >= NT - LST:
                continue
            P(f'buffer_load_dwordx4 {vr(aloc[nxt])}, v{vL16}, {srd(SWS)}, s{sB} offen offset:{(k % 4) * 1024} ' + ('sc1', '', 'nt', 'sc0')[OPT['rm']])
            vm.issue(('a', nxt))
            if k == 3:
                P(f's_add_u32 s{sB}, s{sB}, 4096')
            if k == LST - 1:
                P(f's_mov_b32 s{sB}, s{sO}' if t == 3 else f's_add_u32 s{sB}, s{sB}, {NS * 1024 - 4096}')
            nxt += 1
            mx -= 1

    def dwr(t, ct):
        P(f'ds_write_b128 v{vDA + ct}, {vr(LACC + 16 * (t % 2) + 4 * ct)} offset:{4096 * (t % 4)}')
    loads(0, OPT['l0'])
    vm.wait(lastcw)
    lds_signal(vSg, 23, 9)
    stamp(10)
    cstamp(2) if OPT['ds'] == 5 else None
    for n in range(NT):
        t, k = divmod(n, LST)
        if n == LST - 2:
            P(f'ds_read_b128 {vr(TMP)}, v{vSy} offset:16\nds_read_b128 {vr(12)}, v{vSy}')
        if n == LST:
            P('s_waitcnt lgkmcnt(0)')
            for nm, rg, off, val in (('L_d1c', TMP, 16, 7), ('L_d1l', 12, 0, 9)):
                lds_cmp(rg, val)
                P(f's_cbranch_vccz {nm}_ok')
                lds_spin(nm, rg, vSy, off, val, 0)
                P.label(nm + '_ok')
        if n == 4 * LST:
            stamp(11)
            P(f'ds_read_b128 {vr(TMP)}, v{vSy} offset:16')
        if n == 5 * LST:
            lds_cmp(TMP, 10)
            P('s_cbranch_vccz L_d2_ok')
            lds_spin('L_d2', TMP, vSy, 16, 10, 1)
            P.label('L_d2_ok')
            for ct in range(4):
                P(f'v_add_u32 v{vDA + ct}, {DUMPO}, v{vDA + ct}')
        if n == NT - OPT['lpl'] - OPT['xd']:
            xh_addr(sT1)
            P(f's_buffer_load_dword s5, {srd(SWS)}, s{sT1} glc')
        if n == NT - OPT['lpl']:
            assert nxt == NT
            fin_xload()
            fin_pload(True, False)
            vm.issue()
            vm.issue()
            P(f's_waitcnt lgkmcnt(0)\ns_mov_b32 s4, s5\ns_cmp_lg_u32 s5, s{sTAG}\ns_cbranch_scc1 L_lnq')
            fin_pload(False)
            P('s_branch L_lnr')
            P.label('L_lnq')
            P(f's_buffer_load_dword s4, {srd(SWS)}, s{sT1} glc')
            P.label('L_lnr')
        if n == NT - LST + OPT['sk'] + 1:
            vm.wait(('a', NT - 1))
            P(f's_cmp_lg_u32 s5, s{sTAG}\ns_cbranch_scc1 L_ln2')
            fin_prep('M')
            P('s_branch L_lnp')
            P.label('L_ln2')
            P(f's_cmp_lg_u32 s4, s{sTAG}\ns_cbranch_scc1 L_lnp')
            fin_pload(False)
            P.label('L_lnp')
        vm.wait(('a', n))
        for ct in range(4):
            a = LACC + 16 * (t % 2) + 4 * ct
            P(mfma(a, LW + 16 * k + 4 * ct, aloc[n], None if k == 0 else a))
            if ct == 0:
                loads(n, 2)
            if t > 0 and (k, ct) in ((0, 3), (1, 1), (1, 3), (2, 1)):
                dwr(t - 1, (2 * k + ct // 2) - 1)
        if k == OPT['sk'] and t > 0:
            P('s_waitcnt lgkmcnt(0)')
            if t <= 4:
                lds_signal(vSg, 23, 9 + t)
            stamp(12) if t == 4 else None
        free.append(aloc[n])
    stamp(13)
    cstamp(4) if OPT['ds'] == 5 else None
    for ct in range(4):
        dwr(7, ct)
    P(f's_cmp_eq_u32 s5, s{sTAG}\ns_cbranch_scc1 L_FIN\ns_cmp_eq_u32 s4, s{sTAG}\ns_cbranch_scc1 L_lpd')
    spoll('L_lx', f's_buffer_load_dword s4, {srd(SWS)}, s{sT1} glc', 1)
    fin_pload(False)
    P.label('L_lpd')
    fin_prep('L')
    stamp(14)
    P('s_branch L_FIN')


vmh = L_phase1(OPT['qf'])
P.label('L_LQ')
vmq = L_phase1(1 - OPT['qf'])
L_phase2(vmq)

CW = 112
CX = 144
CHX = 168
cXA = 180
cHA = 182
cWA = 184
cWB = 190
cST = 196
cSO = 202
cBE = 204
cR = 196
cM16, cM48, cL16, cCSA, cCSH = 221, 222, 223, 224, 225
cVW, cVWH, cVR, cKX, cSY, cSG = 226, 227, 228, 229, 230, 231
cF = 252
cBA, cBB, cBA0 = 232, 236, 240
cT = 244

MUTE = False
if OPT['pad'] >= 0:
    P('.p2align 12')
    if OPT['pad']:
        P('.fill %d, 4, 0xbf800000' % (OPT['pad'] // 4))
P.label('L_C')
vmS = Q(P, 'vmcnt', 63)
if True:
    vS = 16
    P('s_setprio 1')
    stats_rows()
    P('s_waitcnt lgkmcnt(0)')
    mk_srd(SX, 4, 2048 * 896)
    stats_load(vmS)
    if OPT['swarm']:
        P(f's_lshl_b32 s{sT0}, s{sT3}, 3\ns_and_b32 s{sT0}, s{sT0}, 0xffffff80\ns_add_u32 s{sT0}, s{sT0}, {WS_STATS}')
        P(f's_load_dword s10, s[20:21], s{sT0}\ns_load_dword s11, s[20:21], s{sT0} offset:64')
    P(f's_load_dword s{sTAG}, s[20:21], 0')
P(f'''v_mov_b32 v{cSY}, {SYNC}
v_lshl_add_u32 v{cSG}, s{sI}, 2, v{cSY}
v_add_u32 v{cSG}, 16, v{cSG}
v_mov_b32 v12, 0
v_lshlrev_b32 v13, 2, v0
v_add_u32 v13, {SYNC}, v13
ds_write_b32 v13, v12
v_lshlrev_b32 v{cL16}, 4, v0
v_and_b32 v11, 15, v0
v_lshrrev_b32 v10, 4, v0
v_lshrrev_b32 v13, 1, v11
v_xor_b32 v13, v13, v10
v_lshlrev_b32 v13, 4, v13
v_lshl_add_u32 v13, v11, 7, v13
s_lshl_b32 s{sT0}, s{sI}, 12
v_add_u32 v{cXA}, s{sT0}, v13
v_xor_b32 v{cXA + 1}, 64, v{cXA}
v_add_u32 v{cHA}, {HALO}, v13
v_xor_b32 v{cHA + 1}, 64, v{cHA}
v_lshlrev_b32 v12, 3, v11
v_add_u32 v{cCSA}, {CS}, v12
v_lshlrev_b32 v12, 4, v11
v_add_u32 v{cSO + 1}, {ST}, v12
s_lshl_b32 s{sT0}, s{sI}, 9
v_add_u32 v{cSO}, s{sT0}, v{cSO + 1}
v_mov_b32 v{cBE + 2}, 0
v_mov_b32 v{cBE + 3}, 0
v_mov_b32 v{cBE + 6}, 0
v_mov_b32 v{cBE + 7}, 0
v_mov_b32 v{cBE + 10}, 0
v_mov_b32 v{cBE + 11}, 0
s_lshl_b32 s{sXO}, s{sRB}, 2
s_add_u32 s{sXO}, s{sXO}, s{sI}
s_mul_i32 s{sA0}, s{sXO}, {2 * NS * 1024}
s_add_u32 s{sA0}, s{sA0}, {WS_ACT}
s_lshl_b32 s{sA1}, s{sRB}, 4
s_add_u32 s{sA1}, s{sA1}, s{sCG}
s_lshl_b32 s{sA1}, s{sA1}, 10
s_lshl_b32 s{sT1}, s{sI}, {FS}
s_add_u32 s{sA1}, s{sA1}, s{sT1}
s_add_u32 s{sA1}, s{sA1}, {WS_FLAGS}''')
stamp(0)
mk_srd(SWS, 20, WS_BYTES)
mk_srd(SOUT, 16, 2048 * 896)
P(f's_cmp_eq_u32 s{sISQ}, 1\ns_cbranch_scc1 L_CQ')


SLOW = []


def C_phase1(isq):
    t = 'Q' if isq else 'H'
    lg = Q(P, 'lgkmcnt', 15)
    LA_, HOLD, WSTEP, TM = OPT['la'], OPT['hold'], OPT['wstep'], OPT['tm']
    wsl = WSL
    if isq:
        q_addr_parts(12, 13, 14, 15)
        for e in range(2):
            for t01 in range(2):
                q_addr(cWB + 2 * e + t01, 56 * e + 32 * t01, 12, 13, 14)
        P(f'''s_bitcmp1_b32 s{sI}, 0
s_cselect_b64 vcc, -1, 0
s_lshr_b32 s{sT0}, s{sI}, 1
s_add_u32 s{sT0}, s{sT0}, 1
s_lshl_b32 s{sT0}, s{sT0}, 13
v_cndmask_b32 v{cWB + 4}, v{cWB}, v{cWB + 2}, vcc
v_cndmask_b32 v{cWB + 5}, v{cWB + 1}, v{cWB + 3}, vcc
v_add_u32 v{cWB + 4}, s{sT0}, v{cWB + 4}
v_add_u32 v{cWB + 5}, s{sT0}, v{cWB + 5}
s_lshl_b32 s{sT0}, s{sI}, 8
s_add_u32 s{sT0}, s{sT0}, 512
v_add_u32 v{cCSH}, s{sT0}, v{cCSA}
v_cmp_gt_u32 vcc, 48, v0
v_cndmask_b32 v{cM48}, 0, -1, vcc
v_lshlrev_b32 v13, 2, v10
v_sub_u32 v13, v11, v13
v_mov_b32 v15, 0xf149f2ca''')
        for r in range(4):
            for (d, add) in ((cBA, 16), (cBB, 0)):
                P(f'''v_add_u32 v14, {add - r}, v13
v_and_b32 v14, -15, v14
v_cmp_eq_u32 vcc, 0, v14
v_cndmask_b32 v{d + r}, v15, 0, vcc''')
        P(f's_cmp_eq_u32 s{sXO}, 0\ns_cselect_b64 vcc, -1, 0')
        for r in range(4):
            P(f'v_cndmask_b32 v{cBA0 + r}, v{cBA + r}, v15, vcc')
        P(f'''v_mul_u32_u24 v13, {VSTR}, v11
v_lshl_add_u32 v13, v10, 3, v13
s_mul_i32 s{sT0}, s{sI}, {32 * VSTR}
s_add_u32 s{sT1}, s{sT0}, {VREG + 16 * VSTR}
v_add_u32 v{cVW}, s{sT1}, v13
s_and_b32 s{sT1}, s{sI}, 1
s_mul_i32 s{sT1}, s{sT1}, {144 * VSTR}
s_add_u32 s{sT1}, s{sT1}, {VREG}
v_add_u32 v{cVWH}, s{sT1}, v13
v_lshrrev_b32 v13, 2, v0
v_mul_u32_u24 v13, {VSTR}, v13
v_and_b32 v14, 3, v0
v_lshl_add_u32 v13, v14, 3, v13
s_add_u32 s{sT0}, s{sT0}, {VREG}
v_add_u32 v{cVR}, s{sT0}, v13
s_lshl_b32 s{sT0}, s{sI}, 11
s_add_u32 s{sT0}, s{sT0}, {KX}
v_add_u32 v{cKX}, s{sT0}, v{cL16}''')
        nb = 6
        pairs = [(1, 0), (2, 0), (1, 1), (2, 1), (0, 0), (0, 1)]
        tiles = [(pi, t01) for pi in range(4) for t01 in range(2)] + [('H', 0), ('H', 1)] + \
                [(pi, t01) for pi in range(4, 6) for t01 in range(2)]
    else:
        h_addr(cWB, 12, 13)
        P(f'v_xor_b32 v{cWB + 1}, 32, v{cWB}')
        nb = 2
        tiles = [(pi, t01) for pi in range(7) for t01 in range(2)]

    def set_slot(s):
        for b in range(nb):
            P(f'v_add_u32 v{cWA + b}, {wsl[s % 3]}, v{cWB + b}')

    def xbuf(ks):
        return 2 if (TM and ks == 13) else ks % 2

    units = []

    def unit(tile, ks):
        pi, t01 = tile
        u = dict(tile=tile, ks=ks, pre=[])
        if ks == 'E':
            u['stage'] = 6
            if pi == 'H':
                u['rd'] = [('b64', cCSH, 128 * t01)]
            elif isq:
                sg, e = pairs[pi]
                u['rd'] = [('b64', cCSA, 128 * (4 * sg + 2 * e + t01))]
            else:
                u['rd'] = [('b64', cCSA, 128 * (2 * pi + t01))]
        else:
            s, kk = divmod(ks, 2)
            u['stage'] = s
            if pi == 'H':
                a, o, o2 = cWA + 4 + t01, kk * 4096, 512
            elif isq:
                sg, e = pairs[pi]
                a, o, o2 = cWA + 2 * e + t01, sg * 8192 + kk * 4096, 512
            else:
                a, o, o2 = cWA + t01, pi * 64 + kk * 32 * 448, 4 * 448
            u['rd'] = [('tr', a, o), ('tr', a, o + o2)]
        if pi == 'H':
            u['mm'] = [(96 + 4 * t01, cBE + 8 if ks == 'E' else CHX + 4 * xbuf(ks))]
        else:
            u['mm'] = [(16 * pi + 8 * tt + 4 * t01, cBE + 4 * tt if ks == 'E' else CX + 8 * xbuf(ks) + 4 * tt)
                       for tt in range(2)]
        return u
    seen_x, seen_h = set(), set()
    order = []
    for ks in range(12 if TM else 14):
        order += [(tl, ks) for tl in tiles]
    if TM:
        for tl in tiles:
            order += [(tl, 12), (tl, 13), (tl, 'E')]
    else:
        order += [(tl, 'E') for tl in tiles]
    for tl, ks in order:
        u = unit(tl, ks)
        if ks != 'E':
            s, kk = divmod(ks, 2)
            if tl[0] == 'H':
                if ks not in seen_h:
                    seen_h.add(ks)
                    u['pre'].append(f'ds_read_b128 {vr(CHX + 4 * xbuf(ks))}, v{cHA + kk} offset:{2048 * s}')
            elif ks not in seen_x:
                seen_x.add(ks)
                for tt in range(2):
                    u['pre'].append(f'ds_read_b128 {vr(CX + 8 * xbuf(ks) + 4 * tt)}, v{cXA + kk} offset:{XS[s % 3] + 2048 * tt}')
        elif 'E' not in seen_x:
            seen_x.add('E')
            for tt in range(2):
                u['pre'].append(f'ds_read_b64 {vr(cBE + 4 * tt, 2)}, v{cSO} offset:{256 + 256 * tt}')
                if isq:
                    u['pre'].append(f'ds_read_b64 {vr(cR + 2 * tt, 2)}, v{cSO} offset:{256 + 256 * tt + 8}')
        elif tl == ('H', 0):
            u['pre'].append(f'ds_read_b64 {vr(cBE + 8, 2)}, v{cSO + 1}')
            u['pre'].append(f'ds_read_b64 {vr(cR + 4, 2)}, v{cSO + 1} offset:8')
        units.append(u)
    NU = len(units)
    last_ring = max(n for n, u in enumerate(units) if u['ks'] != 'E')
    done_at = {}
    for n, u in enumerate(units):
        done_at[u['tile'][0]] = n

    def rd_list(n):
        u = units[n]
        slot = CW + 4 * (n % 8)
        out = list(u['pre'])
        for j, (kind, a, o) in enumerate(u['rd']):
            if kind == 'tr':
                out.append(f'ds_read_b64_tr_b16 {vr(slot + 2 * j, 2)}, v{a} offset:{o}')
            else:
                out.append(f'ds_read_b64 {vr(slot, 2)}, v{a} offset:{o}')
        return out

    def pack(b):
        return [f'v_cvt_pk_bf16_f32 v{b + i}, v{b + 2 * i}, v{b + 2 * i + 1}' for i in range(4)]

    def scale(b, r):
        return [f'v_mul_f32 v{b + i}, v{b + i}, v{r}' for i in range(8)]

    def epi(pi):
        out = []
        if not isq:
            for tt in range(2):
                b = 16 * pi + 8 * tt
                if OPT['relu'] == 0:
                    out += [f'v_max_f32 v{b + i}, 0, v{b + i}' for i in range(8)]
                out += pack(b)
                if OPT['relu'] == 1:
                    out += [f'v_pk_max_i16 v{b + i}, v{b + i}, 0' for i in range(4)]
                out.append(f'buffer_store_dwordx4 {vr(b)}, v{cL16}, {srd(SWS)}, s{sT2 + tt} offen offset:{(pi % 4) * 1024} ' + ('sc1', '', 'nt')[OPT['hst']])
            if pi == 3:
                out += [f's_add_u32 s{sT2}, s{sT2}, 4096', f's_add_u32 s{sT3}, s{sT3}, 4096']
        elif pi == 'H':
            out += scale(96, cR + 4) + pack(96)
        else:
            sg, e = pairs[pi]
            for tt in range(2):
                b = 16 * pi + 8 * tt
                if sg:
                    out += scale(b, cR + 2 * tt)
                out += pack(b)
                if sg == 0:
                    out += [f'v_and_b32 v{b + i}, v{b + i}, v{cM48}' for i in (2, 3)]
        return out

    set_slot(0)
    P(f's_waitcnt lgkmcnt(0)\ns_add_u32 s{sTAG}, s{sTAG}, 1')
    if True:
        vmS.done = 0
        vmS.wait('stats')
        for x in stats_body():
            P(x)
        stats_store(Q(P, 'vmcnt', 63))
        P('s_setprio 0')
        stamp(13) if OPT['ds'] == 3 else None
    if not isq:
        P(f'''s_mul_i32 s{sT2}, s{sIDX}, {7 * 1024}
s_add_u32 s{sT2}, s{sT2}, s{sA0}
s_add_u32 s{sT3}, s{sT2}, {NS * 1024}''')
    P('s_barrier')
    stamp(1)
    cstamp(2)
    pend = []
    fill = []
    nr = 0
    cur_stage = 0
    b7_done = False

    def queue_reads(n):
        l = rd_list(n)
        for j, x in enumerate(l):
            pend.append((x, ('w', n) if j == len(l) - 1 else None))

    def flush(k=1000):
        while pend and k > 0:
            x, tag = pend.pop(0)
            P(x)
            lg.issue(tag)
            k -= 1

    slow = []
    deferred = []
    last_of = {}
    first_of = {}
    for n, u in enumerate(units):
        if u['ks'] != 'E':
            last_of[u['stage']] = n
        first_of.setdefault(u['stage'], n)
    while nr < LA_:
        queue_reads(nr)
        nr += 1
    flush()
    ups = len(tiles) * 2
    for n in range(NU):
        u = units[n]
        w = n
        if n % WSTEP == 0:
            while w + 1 < min(n + WSTEP, NU) and ('w', w + 1) in lg.tags:
                w += 1
        lg.wait(('w', w))
        for j, (acc, b) in enumerate(u['mm']):
            P(mfma(acc, CW + 4 * (n % 8), b, None if u['ks'] == 0 else acc))
            if j == 0 and nr < NU and units[nr]['stage'] != cur_stage and units[nr]['stage'] <= 5:
                if nr - n <= LA_ - HOLD:
                    cur_stage = units[nr]['stage']
                    set_slot(cur_stage)
                    if HOLD:
                        lg.all()
                    stamp(3) if cur_stage == 4 else None
                    P('s_barrier')
                    stamp(5) if cur_stage == 4 else None
                    while nr <= n + LA_:
                        queue_reads(nr)
                        nr += 1
                    flush()
            elif j == 0 and nr < NU:
                s1 = units[nr]['stage']
                if s1 != cur_stage:
                    cur_stage = s1
                    set_slot(s1)
                    if OPT['ds'] == 2:
                        stamp({5: 9, 6: 13}[s1])
                    lg.wait(('f', s1))
                    lds_cmp(cF, s1 + 1)
                    P(f's_cbranch_vccnz L_{t}w{s1}')
                    P.label(f'L_{t}w{s1}_ok')
                    slow.append(s1)
                    stamp(6) if s1 == 6 else None
                    stamp(10) if (s1 == 5 and OPT['ds'] == 2) else None
                queue_reads(nr)
                if nr + OPT['fla'] == first_of[6]:
                    pend.append((f'ds_read_b128 {vr(cF)}, v{cSY}', ('f', units[nr + OPT['fla']]['stage'])))
                nr += 1
            last = j == len(u['mm']) - 1
            flush(1000 if last else (len(pend) + 1) // 2)
            for _ in range(OPT['nfill']):
                if fill:
                    P(fill.pop(0))
        if n == last_of[u['stage']] and u['stage'] >= 5:
            lds_signal(cSG, cT + 7, u['stage'] + 1)
            lg.issue()
            stamp(7) if u['stage'] == 6 else None
        if n == (NU - 1 if isq else 6 * ups) and OPT['prio']:
            P('s_setprio %d' % OPT['prio'])
        for pi, dn in done_at.items():
            if dn == n - 2:
                fill += epi(pi)
    SLOW.extend((t, s1) for s1 in slow)
    stamp(8)
    cstamp(4)
    for pi, dn in done_at.items():
        if dn >= NU - 2:
            fill += epi(pi)
    if not isq:
        while fill:
            P(fill.pop(0))
        stamp(9)
        lds_signal(cSG, cT + 1, 9)
        P('s_waitcnt vmcnt(0)\ns_branch L_CFLAG')
        return
    qstart = epi(4)[0]
    while fill and fill[0] != qstart and qstart in fill:
        P(fill.pop(0))
    lds_poll('L_scrc', cF, cSY, 16, 7)
    stamp(3) if OPT['ds'] == 1 else None
    for e in range(2):
        for tt in range(2):
            for t01 in range(2):
                P(f'ds_write_b64 v{cVW}, {vr(16 * (2 * e + 1) + 8 * tt + 2 * t01, 2)} offset:{e * 144 * VSTR + tt * 16 * VSTR + 32 * t01}')
    P(f's_cmp_eq_u32 s{sI}, 3\ns_cbranch_scc1 L_nokx')
    for e in range(2):
        P(f'ds_write_b128 v{cKX}, {vr(32 * e + 8)} offset:{2048 + 1024 * e}')
    P.label('L_nokx')
    P(f'''s_cmp_ge_u32 s{sI}, 2
s_cbranch_scc1 L_halov
s_lshl_b32 s{sT0}, s{sI}, 10
v_subrev_u32 v{cT}, s{sT0}, v{cKX}
ds_write_b128 v{cT}, {vr(96)}
s_branch L_halod''')
    P.label('L_halov')
    for t01 in range(2):
        P(f'ds_write_b64 v{cVWH}, {vr(96 + 2 * t01, 2)} offset:{32 * t01}')
    P.label('L_halod')
    while fill:
        P(fill.pop(0))
    P('s_waitcnt lgkmcnt(0)')
    lds_signal(cSG, cT + 1, 8)
    KP, VO, S = 104, 112, 144
    au = [(0, 1), (1, 1), (0, 0), (1, 0)]
    for n, (e, tq) in enumerate(au):
        P(mfma(S + 8 * n + 4, 32 * e + 8 * tq, 64 + 16 * e + 8 * tq, cBB))
    for n, (e, tq) in enumerate(au[:2]):
        P(mfma(S + 8 * n, 32 * e, 64 + 16 * e + 8 * tq, cBA))
    stamp(5) if OPT['ds'] == 1 else None
    lds_poll('L_attp', cF, cSY, 16, 8)
    stamp(6) if OPT['ds'] == 1 else None
    for e in range(2):
        P(f'ds_read_b128 {vr(KP + 4 * e)}, v{cKX} offset:{1024 * e}')
    for e in range(2):
        for dt in range(2):
            for kt in range(3):
                P(f'ds_read_b64_tr_b16 {vr(VO + 12 * e + 6 * dt + 2 * kt, 2)}, v{cVR} offset:{e * 144 * VSTR + kt * 16 * VSTR + 32 * dt}')
    P('s_waitcnt lgkmcnt(12)')
    for n, (e, tq) in list(enumerate(au))[2:]:
        P(mfma(S + 8 * n, KP + 4 * e, 64 + 16 * e + 8 * tq, cBA0))
    M = cT
    U = range(4)
    for n in U:
        P(f'v_max3_f32 v{M + n}, v{S + 8 * n + 4}, v{S + 8 * n + 5}, v{S + 8 * n + 6}')
    for n in U:
        P(f'v_max3_f32 v{M + n}, v{M + n}, v{S + 8 * n + 7}, v{S + 8 * n}')
    for n in U:
        P(f'v_max3_f32 v{M + n}, v{M + n}, v{S + 8 * n + 1}, v{S + 8 * n + 2}')
    for n in U:
        P(f'v_max_f32 v{M + n}, v{M + n}, v{S + 8 * n + 3}')

    def xl(op):
        for sw in ('16', '32'):
            for n in U:
                P(f'v_mov_b32 v{M + 4 + n}, v{M + n}')
            for n in U:
                P(f'v_permlane{sw}_swap_b32 v{M + 4 + n}, v{M + n}')
            for n in U:
                P(f'{op} v{M + n}, v{M + n}, v{M + 4 + n}')
    xl('v_max_f32')
    for n in U:
        P(f'v_mul_f32 v{M + n}, v{cR + 1 + 2 * au[n][1]}, v{M + n}')
    for n in U:
        for i in range(8):
            P(f'v_fma_f32 v{S + 8 * n + i}, v{S + 8 * n + i}, v{cR + 1 + 2 * au[n][1]}, -v{M + n}')
        for i in range(8):
            P(f'v_exp_f32 v{S + 8 * n + i}, v{S + 8 * n + i}')
    stamp(7) if OPT['ds'] == 1 else None
    RI = 16
    for n in U:
        P(f'v_add_f32 v{M + n}, v{S + 8 * n}, v{S + 8 * n + 1}')
    for i in range(2, 8):
        for n in U:
            P(f'v_add_f32 v{M + n}, v{M + n}, v{S + 8 * n + i}')
    xl('v_add_f32')
    for n in U:
        P(f'v_rcp_f32 v{RI + 2 * n}, v{M + n}')
    P(f'''s_lshl_b32 s{sT2}, s{sIDX}, 11
s_add_u32 s{sT2}, s{sT2}, s{sA0}
s_add_u32 s{sT2}, s{sT2}, {56 * 1024}
s_add_u32 s{sT3}, s{sT2}, {NS * 1024}
s_waitcnt lgkmcnt(0)''')
    O = 64
    for n, (e, tq) in enumerate(au):
        for i in range(8):
            P(f'v_mul_f32 v{S + 8 * n + i}, v{S + 8 * n + i}, v{RI + 2 * n}')
        for x in pack(S + 8 * n):
            P(x)
        if n:
            ep, tp = au[n - 1]
            for dt in range(2):
                P(mfma(O + 8 * (n - 1) + 4 * dt, VO + 12 * ep + 6 * dt + 2 * tp, S + 8 * (n - 1), None))
    for dt in range(2):
        P(mfma(O + 24 + 4 * dt, VO + 12 * au[3][0] + 6 * dt + 2 * au[3][1], S + 24, None))
    stamp(13) if OPT['ds'] == 1 else None
    for n, (e, tq) in enumerate(au):
        for x in pack(O + 8 * n):
            P(x)
        P(f'v_and_b32 v{O + 8 * n + 2}, v{O + 8 * n + 2}, v{cM48}\nv_and_b32 v{O + 8 * n + 3}, v{O + 8 * n + 3}, v{cM48}')
        P(f'buffer_store_dwordx4 {vr(O + 8 * n)}, v{cL16}, {srd(SWS)}, s{sT2 + tq} offen offset:{1024 * e} sc1')


C_phase1(0)
P.label('L_CQ')
C_phase1(1)
stamp(9)
lds_signal(cSG, cT + 1, 9)
P('s_waitcnt vmcnt(0)')
P.label('L_CFLAG')
_st = stamp
if OPT['ds'] == 1:
    def stamp(k):
        if k not in (3, 13):
            _st(k)
P(f'''v_lshrrev_b32 v1, 2, v{cL16}
v_mov_b32 v2, s{sTAG}
s_mov_b32 exec_lo, {(1 << OPT['fl']) - 1:#x}
s_mov_b32 exec_hi, 0
buffer_store_dword v2, v1, {srd(SWS)}, s{sA1} offen sc1
s_mov_b64 exec, -1
v_lshrrev_b32 v0, 4, v{cL16}''')
stamp(10)
P(f'''s_cmp_lt_u32 s{sCT}, 7
s_cbranch_scc1 L_P2C''')
if OPT['ipf']:
    P(f'''s_lshr_b32 s{sT0}, s2, 3
s_and_b32 s{sT0}, s{sT0}, 3
s_lshl_b32 s{sT0}, s{sT0}, 1
s_add_u32 s{sRT}, s{sRT}, s{sT0}
s_sub_u32 s{sRT}, s{sRT}, 8
s_and_b32 s{sT0}, s{sRT}, 1
s_lshl_b32 s{sT0}, s{sT0}, 2
s_add_u32 s{sT0}, s{sT0}, s{sI}
s_lshr_b32 s{sFB}, s{sRT}, 1
s_lshl_b32 s{sFB}, s{sFB}, 4
s_add_u32 s{sFB}, s{sFB}, s{sT0}
s_lshl_b32 s{sFB}, s{sFB}, 10
s_add_u32 s{sFB}, s{sFB}, {WS_FLAGS}
s_mul_i32 s{sT2}, s{sRT}, {4 * NS * 1024}
s_add_u32 s{sT2}, s{sT2}, {WS_ACT}
s_mul_i32 s{sT3}, s{sT0}, {LST * 1024}
s_add_u32 s{sT3}, s{sT3}, s{sT2}
v_min_u32 v4, 55, v0
v_lshlrev_b32 v4, 7, v4
v_lshlrev_b32 v6, 7, v0''')
    if OPT['ipf'] != 3:
        spoll('L_ip1', BL, 4)
    if OPT['ipff'] < 4:
        P(f'''s_and_b32 s{sT0}, s{sRT}, 1
s_mul_i32 s{sT0}, s{sT0}, {8 * NS * 1024}
s_add_u32 s{sT1}, s{sT3}, {(4 + OPT['ipff']) * NS * 1024}
s_sub_u32 s{sT1}, s{sT1}, s{sT0}''')
        for q_ in range(OPT['ipff'], 4):
            P(f'buffer_load_dword v5, v4, {srd(SWS)}, s{sT1} offen sc1\ns_add_u32 s{sT1}, s{sT1}, {NS * 1024}')
    for q_ in range(4 if OPT['ipf'] != 3 else 0):
        P(f'buffer_load_dword v5, v4, {srd(SWS)}, s{sT3} offen sc1\ns_add_u32 s{sT3}, s{sT3}, {NS * 1024}')
    if OPT['ipf'] > 1:
        of_addr(sT3, sT0, sT1)
        spoll('L_ip2', '\n'.join(f's_buffer_load_dword s{4 + p_}, {srd(SWS)}, s{sT3} offset:{1024 * p_} glc' for p_ in range(4)), 4)
        P(f'''s_and_b32 s{sT0}, s{sI}, 1
s_mul_i32 s{sT0}, s{sT0}, {2 * NS * 1024}
s_lshr_b32 s{sT1}, s{sI}, 1
s_lshl_b32 s{sT1}, s{sT1}, 13
s_add_u32 s{sT2}, s{sT2}, s{sT0}
s_add_u32 s{sT2}, s{sT2}, s{sT1}
s_add_u32 s{sT2}, s{sT2}, {56 * 1024}''')
        for q_ in range(2):
            P(f'buffer_load_dword v5, v6, {srd(SWS)}, s{sT2} offen sc1\ns_add_u32 s{sT2}, s{sT2}, {NS * 1024}')
P(f'''s_cmp_lg_u32 s2, 255
s_cbranch_scc1 L_EXIT
s_cmp_lg_u32 s{sWAVE}, 4
s_cbranch_scc1 L_EXIT
v_lshlrev_b32 v3, 12, v0
v_add_u32 v3, {WS_FLAGS}, v3''')
P.label('L_bump')
spin_guard('L_EXIT')
P('s_sleep 32')
for n in range(16):
    P(f'buffer_load_dword v{4 + n}, v3, {srd(SWS)}, 0 offen offset:{1024 * (n // 4) + ((n % 4) << FS)} sc1')
P('s_waitcnt vmcnt(0)')
for n in range(16):
    P(f'v_xor_b32 v{4 + n}, v{4 + n}, v2')
for n in range(1, 16):
    P(f'v_or_b32 v4, v4, v{4 + n}')
P(f'''v_cmp_ne_u32 vcc, 0, v4
s_cbranch_vccnz L_bump
s_mov_b64 exec, 1
buffer_store_dword v2, v1, {srd(SWS)}, 0 offen sc1
s_mov_b64 exec, -1
s_branch L_EXIT''')

for t_, s_ in SLOW:
    lds_spin(f'L_{t_}w{s_}', cF, cSY, 0, s_ + 1, 0)
    P(f's_branch L_{t_}w{s_}_ok')

CACC = 24
CAR = 56
CWR = 120
cA2 = 56
cRA, cDA = 11, 20
sDONE, sOF, sXA, sXH, sPL = 62, 63, 64, 22, 23
P.label('L_P2C')
P(f's_xor_b32 s{sWF}, s{sWAVE}, 4')
P(f'v_mov_b32 v21, v{cL16}\nv_mov_b32 v22, v{cSY}\nv_mov_b32 v23, v{cSG}')
cL16, cSY, cSG = 21, 22, 23
cU = 248
P('s_setprio %d' % OPT['cprio'])
w2_tr_addr(cA2, 10, 12, 13)
P(f's_lshr_b32 s{sT3}, s{sI}, 1\ns_mul_i32 s{sT0}, s{sT3}, {8 * 28 * 128}\ns_add_u32 s{sT0}, s{sT0}, {WO}')
for ct in range(4):
    P(f'v_add_u32 v{cA2 + ct}, s{sT0}, v{cA2 + ct}')
P(f'''v_and_b32 v12, 15, v0
v_lshlrev_b32 v12, 7, v12
v_lshrrev_b32 v13, 5, v0
v_xor_b32 v13, v13, v0
v_and_b32 v13, 7, v13
v_lshl_add_u32 v12, v13, 4, v12
v_bfe_u32 v13, v0, 4, 1
v_lshl_add_u32 v12, v13, 3, v12
s_and_b32 s{sT1}, s{sI}, 1
s_lshl_b32 s{sT0}, s{sT1}, 12
s_mul_i32 s{sT2}, s{sT3}, {STILE[1] - STILE[0]}
s_add_u32 s{sT0}, s{sT0}, s{sT2}
s_add_u32 s{sT0}, s{sT0}, {STILE[0]}
v_add_u32 v{cRA}, s{sT0}, v12
v_lshrrev_b32 v12, 3, v0
v_and_b32 v13, 7, v0
v_lshlrev_b32 v13, 1, v13
v_xor_b32 v13, v13, v12
v_lshlrev_b32 v13, 4, v13
v_lshl_add_u32 v13, v12, 8, v13
s_lshl_b32 s{sT0}, s{sI}, 12
v_add_u32 v{cDA}, s{sT0}, v13
s_xor_b32 s{sXA}, s{sRT}, 1
s_mul_i32 s{sXA}, s{sXA}, 7
s_add_u32 s{sXA}, s{sXA}, s{sCT}
s_lshl_b32 s{sXA}, s{sXA}, 14
s_lshl_b32 s{sT0}, s{sI}, 11
s_add_u32 s{sXA}, s{sXA}, s{sT0}
s_add_u32 s{sXA}, s{sXA}, {WS_XCH}
s_add_u32 s{sXA + 1}, s{sXA}, 8192
s_lshl_b32 s{sT0}, s{sRT}, 1
s_add_u32 s{sT0}, s{sT0}, s{sT1}
s_mul_i32 s66, s{sT0}, {2 * NS * 1024}
s_lshl_b32 s{sT0}, s{sT3}, 13
s_add_u32 s66, s66, s{sT0}
s_add_u32 s66, s66, {WS_ACT + 56 * 1024}
s_add_u32 s67, s66, {NS * 1024}
s_add_u32 s12, s66, 4096
s_add_u32 s13, s67, 4096
s_add_u32 s{sT3}, s{sI}, 10
s_mov_b32 s8, 0
s_mov_b32 s{sDONE}, 0''')
of_addr(sOF, sT0, sT1)
lds_poll('L_cwl', cF, cSY, 0, 9, 2)
for k in range(8):
    for ct in range(4):
        for j in range(2):
            P(f'ds_read_b64_tr_b16 {vr(CWR + 16 * k + 4 * ct + 2 * j, 2)}, v{cA2 + (ct ^ (2 * (k % 2)))} offset:{28 * k * 128 + 2048 * j}')
P('s_waitcnt lgkmcnt(0)')
lds_signal(cSG, cU, 10)
ol = '\n'.join(f's_buffer_load_dword s{4 + p_}, {srd(SWS)}, s{sOF} offset:{1024 * p_} glc' for p_ in range(4))

fin_xload()
xh_addr(sXH)
fin_pload(True, False)
DV = f's{sT3}'
P.label('L_ev')
P(f's_bitcmp1_b32 s{sDONE}, 8\ns_cbranch_scc1 L_ev1')
P(f'ds_read_b128 {vr(cF)}, v{cSY}\ns_waitcnt lgkmcnt(0)')
lds_cmp(cF, DV)
P(f's_cbranch_vccz L_R\nv_cmp_gt_u32 vcc, {OPT["gate"]}, v{cF}\ns_cbranch_vccnz L_ev3\ns_branch L_ev2')
P.label('L_R')
stamp(11)
P(f's_buffer_load_dword s8, {srd(SWS)}, s{sXH} glc') if OPT['xr'] == 0 else None
RO = 12
P(f'v_xor_b32 v{cU}, 16, v{cDA}\nv_xor_b32 v{cU + 1}, 0x880, v{cDA}\nv_xor_b32 v{cU + 2}, 0x890, v{cDA}')
for n in range(4):
    P(f'v_mov_b32 v{RO + 2 * n + 1}, s{sTAG}')
for u2 in range(2):
    b = CACC
    for part in range(4):
        for hf in range(2):
            P(f'ds_read_b128 {vr(b + 8 * part + 4 * hf)}, v{(cDA, cU, cU + 1, cU + 2)[2 * u2 + hf]} offset:{DUMPF + 16384 * part}')
    P('s_waitcnt lgkmcnt(4)')
    for r in range(8):
        P(f'v_add_f32 v{b + r}, v{b + r}, v{b + 8 + r}')
    P('s_waitcnt lgkmcnt(0)')
    for r in range(8):
        P(f'v_add_f32 v{b + 16 + r}, v{b + 16 + r}, v{b + 24 + r}')
    for r in range(8):
        P(f'v_add_f32 v{b + r}, v{b + r}, v{b + 16 + r}')
    for r in range(4):
        P(f'v_cvt_pk_bf16_f32 v{RO + 2 * r}, v{b + 2 * r}, v{b + 2 * r + 1}')
    for u in range(2):
        P(f'buffer_store_dwordx4 {vr(RO + 4 * u)}, v{cL16}, {srd(SWS)}, s{sXA + u} offen offset:{1024 * u2} sc1')
stamp(13) if OPT['ds'] != 3 else None
P(f's_buffer_load_dword s8, {srd(SWS)}, s{sXH} glc') if OPT['xr'] == 1 else None
P(f'ds_read_b128 {vr(cF)}, v{cSY} offset:16')
for r in range(32):
    P(f'v_mov_b32 v{CACC + r}, 0')
P(f'v_xor_b32 v{cU}, 32, v{cRA}\nv_xor_b32 v{cU + 1}, 64, v{cRA}\nv_xor_b32 v{cU + 2}, 96, v{cRA}')
P(f's_bitset1_b32 s{sDONE}, 8\ns_waitcnt vmcnt(4) lgkmcnt(0)\ns_cmp_lg_u32 s8, s{sTAG}\ns_cbranch_scc1 L_ev1b')
fin_pload(False)
P(f's_bitset1_b32 s{sDONE}, 9\ns_branch L_ev1b')
P.label('L_ev1')
P(f's_and_b32 s{sT0}, s{sDONE}, 15\ns_bcnt1_i32_b32 s{sT0}, s{sT0}\ns_cmp_lt_u32 s{sT0}, {OPT["nm"]}\ns_cbranch_scc1 L_ev2')
P(f's_lshr_b32 s{sT0}, s{sDONE}, 4\ns_andn2_b32 s{sT0}, s{sDONE}, s{sT0}\ns_and_b32 s{sT0}, s{sT0}, 15\ns_cbranch_scc0 L_ev2')
P('s_waitcnt vmcnt(0)')
P.label('L_ev1b')
P(f's_setprio {OPT["sprio"]}\ns_lshr_b32 s{sT0}, s{sDONE}, 4\ns_andn2_b32 s{sT0}, s{sDONE}, s{sT0}\ns_and_b32 s{sT0}, s{sT0}, 15\ns_cbranch_scc0 L_sk3')
for p_ in range(4):
    if p_ == OPT['xp']:
        P(f's_buffer_load_dword s8, {srd(SWS)}, s{sXH} glc')
    if p_ == OPT['xq']:
        P(f's_waitcnt lgkmcnt(0)\ns_bitcmp1_b32 s{sDONE}, 9\ns_cbranch_scc1 L_sx\ns_cmp_lg_u32 s8, s{sTAG}\ns_cbranch_scc1 L_sx')
        fin_pload(False)
        P(f's_bitset1_b32 s{sDONE}, 9')
        P.label('L_sx')
    P(f's_bitcmp0_b32 s{sT0}, {p_}\ns_cbranch_scc1 L_sk{p_}')
    for k in (2 * p_, 2 * p_ + 1):
        for tt in range(2):
            for ct in range(4):
                a = CACC + 16 * tt + 4 * ct
                P(mfma(a, CWR + 16 * k + 4 * ct, CAR + 8 * k + 4 * tt, a))
    P(f's_bitset1_b32 s{sDONE}, {4 + p_}')
    P.label(f'L_sk{p_}')
P(f's_setprio {OPT["cprio"]}\ns_and_b32 s{sT0}, s{sDONE}, 0xf0\ns_cmp_eq_u32 s{sT0}, 0xf0\ns_cbranch_scc1 L_evx')
P.label('L_ev2')
P(f's_and_b32 s{sT0}, s{sDONE}, 15\ns_cmp_eq_u32 s{sT0}, 15\ns_cbranch_scc1 ' + ('L_ev2b' if OPT['xr'] == 2 else 'L_ev3'))
P(ol)
P.label('L_ev2b')
P(f's_buffer_load_dword s8, {srd(SWS)}, s{sXH} glc\ns_waitcnt lgkmcnt(0)')
for p_ in range(4):
    P(f's_bitcmp1_b32 s{sDONE}, {p_}\ns_cbranch_scc1 L_lk{p_}\ns_cmp_lg_u32 s{4 + p_}, s{sTAG}\ns_cbranch_scc1 L_lk{p_}')
    for k in (2 * p_, 2 * p_ + 1):
        for tt in range(2):
            P(f'buffer_load_dwordx4 {vr(CAR + 8 * k + 4 * tt)}, v{cL16}, {srd(SWS)}, s{(66, 67, 12, 13)[tt + 2 * (k // 4)]} offen offset:{(k % 4) * 1024} sc1')
    P(f's_bitset1_b32 s{sDONE}, {p_}')
    stamp(3)
    P.label(f'L_lk{p_}')
P(f's_and_b32 s{sT0}, s{sDONE}, 0x300\ns_cmp_lg_u32 s{sT0}, 0x100\ns_cbranch_scc1 L_ev3\ns_cmp_lg_u32 s8, s{sTAG}\ns_cbranch_scc1 L_ev3')
fin_pload(False)
P(f's_bitset1_b32 s{sDONE}, 9')
P.label('L_ev3')
spin_guard('L_evx')
P('s_branch L_ev')
P.label('L_evx')
stamp(14)
P(f's_bitcmp1_b32 s{sDONE}, 9\ns_cbranch_scc1 L_nox\ns_buffer_load_dword s4, {srd(SWS)}, s{sXH} glc')
P.label('L_nox')
lds_cmp(cF, 9)
P('s_cbranch_vccz L_c9_ok')
lds_spin('L_c9', cF, cSY, 16, 9, 0)
P.label('L_c9_ok')
for n in range(8):
    for r in (2 * n, 2 * n + 1):
        P(f'v_cvt_pk_bf16_f32 v{CACC + r}, v{CACC + 2 * r}, v{CACC + 2 * r + 1}')
    P(f'ds_write_b64 v{(cRA, cU, cU + 1, cU + 2)[n % 4]}, {vr(CACC + 2 * n, 2)} offset:{2048 * (n // 4)}')
P(f's_bitcmp1_b32 s{sDONE}, 9\ns_cbranch_scc1 L_CE2\ns_branch L_cx_w')
spoll('L_cx', f's_buffer_load_dword s4, {srd(SWS)}, s{sXH} glc', 1)
stamp(1) if OPT['ds'] == 4 else None
fin_pload(False)
P.label('L_CE2')

fin_prep('C')
P.label('L_FIN')
P('s_waitcnt lgkmcnt(0)')
stamp(5) if OPT['ds'] == 4 else None
P('s_barrier')
stamp(6) if OPT['ds'] == 4 else None
for part in range(4):
    for hf in range(2):
        P(f'ds_read_b128 {vr(F + 8 * part + 4 * hf)}, v{FA + hf} offset:{16384 * part}')
P(f'ds_read_b128 {vr(SR)}, v9\nds_read_b128 {vr(SR + 4)}, v11')


def pk(op, d, a, b, bc=False):
    for n in range(4):
        P(f'v_pk_{op}_f32 {vr(d + 2 * n, 2)}, {vr(a + 2 * n, 2)}, ' + (f'{vr(b, 2)} op_sel_hi:[1,0]' if bc else vr(b + 2 * n, 2)))


for part in range(4):
    P(f's_waitcnt lgkmcnt({8 - 2 * part})')
    pk('add', G_, G_, F + 8 * part)
pk('mul', E_, G_, FA + 2, True)
for n in range(8):
    P(f'v_exp_f32 v{E_ + n}, v{E_ + n}')
pk('mul', G_, G_, 8, True)
P('s_waitcnt lgkmcnt(0)')
for n in range(8):
    P(f'v_add_f32 v{E_ + n}, 1.0, v{E_ + n}')
for n in range(8):
    P(f'v_rcp_f32 v{E_ + n}, v{E_ + n}')
    P(f'v_lshlrev_b32 v{S_ + 2 * n}, 16, v{SR + n}\nv_and_b32 v{S_ + 2 * n + 1}, 0xffff0000, v{SR + n}')
pk('add', S_, S_, S_ + 8)
pk('mul', G_, G_, S_)
for n in range(4):
    P(f'v_pk_fma_f32 {vr(X_ + 2 * n, 2)}, {vr(G_ + 2 * n, 2)}, {vr(E_ + 2 * n, 2)}, {vr(X_ + 2 * n, 2)}')
for n in range(4):
    P(f'v_cvt_pk_bf16_f32 v{12 + n}, v{X_ + 2 * n}, v{X_ + 2 * n + 1}')
stamp(7) if OPT['ds'] == 4 else None
P(f'buffer_store_dwordx4 v[12:15], v3, {srd(SOUT)}, s{sT2} offen' + (' sc1' if OPT['osc1'] else ''))
P.label('L_EXIT')
if DIAG:
    P('s_waitcnt vmcnt(0)')
    stamp(15)
    diag_dump()
P.label('L_END')
P('s_endpgm')

body = P.finalize()
ref = open('cdna_kernels/%s.s.ref' % NAME).read()
hdr = [l for l in ref.split('\n') if l.startswith(';') and '@launch' not in l]
out = '\n'.join(hdr) + '\n; @launch grid=(256,1,1) block=(512,1,1) lds=%d\n' % LDS_BYTES
out += f'''.amdgcn_target "amdgcn-amd-amdhsa--gfx950"
.text
.globl {NAME}_kernel
.p2align 8
.type {NAME}_kernel,@function
{NAME}_kernel:
{body}.section .rodata,"a"
.p2align 6
.amdhsa_kernel {NAME}_kernel
  .amdhsa_next_free_vgpr 256
  .amdhsa_next_free_sgpr 102
  .amdhsa_accum_offset 256
  .amdhsa_group_segment_fixed_size 0
  .amdhsa_kernarg_size 72
  .amdhsa_user_sgpr_count 2
  .amdhsa_user_sgpr_kernarg_segment_ptr 1
  .amdhsa_system_sgpr_workgroup_id_x 1
.end_amdhsa_kernel
'''
open(sys.argv[1], 'w').write(out)
print('instructions', len(P.ins), 'nops inserted', P.nops_inserted)
```

```python
import sys
import itertools
from asmlib import Prog, Q

NAME = 'recurrent_scan__sliding_local_dilated__dense_activation_relu__prompt'
OPT = dict(diag=0, pf_code=1, pf_w=4, la=5, hold=2, wstep=2, prio=1, osc1=1, lahead=12, tm=1,
           nfill=2, cs_it=5, fla=4, ds=0, lsl=4, hw=7, cap=7, relu=0, n5=2, p5=12,
           kh=0x58ffff, kq=0x47ffff, k0=0, sfn=5, gk=5, ssl=1, nt=0, fs=7, fl=32, swarm=1, w4=2, lpause=9, pe=4, lpl=8, cprio=1, fwarm=2, xh=1, qf=1, qhold=0, la0=20, gate=9, m1=2, abl=0, p7=1, pad=2816, spf=0, capp=3, cape=7, l0=12, qfirst=0, ipff=4, hst=0, rm=0, sk=4, lpp=2, xw=10, rf=2, sprio=0, ot=3, dc=2, wl=20, ws=37, tw=0, twl=10, gp=1, esl=0, b6=0, n5q=2, qp=1, ps=6, nfq=2, xp=0, xq=2, nm=3, xs=0, xr=2, ipf=8, ipl=0)
for a in sys.argv[2:]:
    k, v = a.split('=')
    OPT[k] = int(v, 0)
PROBE = OPT.get('probe')
DIAG = OPT['diag'] or PROBE is not None

WS_FLAGS = 0x980000
FS = OPT['fs']
WS_STATS = 16384
WS_CSUM = 32768
WS_ACT = 262144
WS_XCH = 0xA00000
WS_DIAG = 0xE00000
WS_BYTES = 0xF00000
NS = 72
LST = 7

XS = [0, 16384, 32768]
WSL = [49152, 77824, 106496]
WO = 77824
NGRP = 14
HALO = 135168
WIN = 135168
ST = 157696
CS = 161792
SYNC = 163584
VSTR = 56
VREG = 141312
KX = 24576
DUMMY = 73728


def halo_off(s):
    return 2048 * ((s + 3) % 7)


DUMPF = 0
STILE = 65536
LDS_BYTES = 163840

sSPIN = 3
SPIN_MAX = 0x40000
SX, SW, SWO, SW2, SWS, SOUT = 24, 28, 32, 36, 40, 44
sWAVE, sRB, sIDX, sISQ, sCG, sRT, sCT, sROT, sTAG, sI = range(48, 58)
sT0, sT1, sT2, sT3 = 58, 59, 60, 61
sXO, sWO_, sMX, sMW, sHO, sKB = 62, 63, 64, 65, 66, 67
sA0, sA1 = 68, 69
sWF = 19
sPUB = 22
sST = 70

P = Prog()


def srd(b):
    return 's[%d:%d]' % (b, b + 3)


def vr(a, n=4):
    return 'v[%d:%d]' % (a, a + n - 1)


MUTE = False


def stamp(k):
    if DIAG and not MUTE:
        P('s_memrealtime s[%d:%d]' % (sST + 2 * k, sST + 2 * k + 1))


def cstamp(k):
    if DIAG and PROBE is None:
        P('s_memtime s[%d:%d]' % (sST + 2 * k, sST + 2 * k + 1))


def mk_srd(b, ptr, size):
    P('s_mov_b32 s%d, s%d\ns_mov_b32 s%d, s%d\ns_mov_b32 s%d, 0x%x\ns_mov_b32 s%d, 0x20000'
      % (b, ptr, b + 1, ptr + 1, b + 2, size, b + 3))


def diag_dump():
    if PROBE is not None:
        a, b = divmod(PROBE, 100)
        P(f'''s_waitcnt lgkmcnt(0)
s_cmp_lt_u32 s{sWAVE}, 4
s_cbranch_scc1 L_END
s_cmp_ge_u32 s{sCT}, 7
s_cbranch_scc1 L_END
s_sub_u32 s{sT0}, s{sST + 2 * b}, s{sST + 2 * a}
s_min_u32 s{sT0}, s{sT0}, 5000
s_lshl_b32 s{sT0}, s{sT0}, 2''')
        P.label('L_probe')
        P(f'''s_memrealtime s[{sT2}:{sT3}]
s_waitcnt lgkmcnt(0)
s_sub_u32 s{sT1}, s{sT2}, s{sST + 30}
s_cmp_lt_u32 s{sT1}, s{sT0}
s_cbranch_scc1 L_probe''')
    elif DIAG:
        P('s_lshl_b32 s%d, s2, 3\ns_add_u32 s%d, s%d, s%d\ns_lshl_b32 s%d, s%d, 6\ns_add_u32 s%d, s%d, 0x%x'
          % (sT0, sT0, sT0, sWAVE, sT0, sT0, sT0, sT0, WS_DIAG))
        P('v_mov_b32 v1, 0\ns_waitcnt lgkmcnt(0)')
        for k in range(16):
            P('v_mov_b32 v2, s%d\nbuffer_store_dword v2, v1, %s, s%d offen offset:%d' % (sST + 2 * k, srd(SWS), sT0, 4 * k))


def spin_guard(out):
    P(f's_add_u32 s{sSPIN}, s{sSPIN}, 1\ns_cmp_gt_u32 s{sSPIN}, {SPIN_MAX}\ns_cbranch_scc1 {out}')


def lds_cmp(tmp, val):
    P(f'v_min3_u32 v{tmp}, v{tmp}, v{tmp + 1}, v{tmp + 2}\nv_min_u32 v{tmp}, v{tmp}, v{tmp + 3}\nv_cmp_gt_u32 vcc, {val}, v{tmp}')


def lds_poll(name, tmp, vsync, off, val, sleep=0):
    P(f'ds_read_b128 {vr(tmp)}, v{vsync} offset:{off}\ns_waitcnt lgkmcnt(0)')
    lds_cmp(tmp, val)
    P(f's_cbranch_vccz {name}_ok')
    lds_spin(name, tmp, vsync, off, val, sleep)
    P.label(name + '_ok')


def lds_spin(name, tmp, vsync, off, val, sleep):
    P.label(name)
    spin_guard(name + '_ok')
    if sleep:
        P(f's_sleep {sleep}')
    P(f'ds_read_b128 {vr(tmp)}, v{vsync} offset:{off}\ns_waitcnt lgkmcnt(0)')
    lds_cmp(tmp, val)
    P(f's_cbranch_vccnz {name}')


def lds_signal(vaddr, tmp, val):
    P(f'v_mov_b32 v{tmp}, {val}\nds_write_b32 v{vaddr}, v{tmp}')


def w2_tr_addr(d, hi_shift, t0, t1):
    P(f'''v_bfe_u32 v{t0}, v0, 2, 3
v_lshlrev_b32 v{t0}, 7, v{t0}
v_lshrrev_b32 v{t1}, 5, v0
v_lshl_add_u32 v{t0}, v{t1}, {hi_shift}, v{t0}
v_and_b32 v{t1}, 3, v0
v_lshl_add_u32 v{t0}, v{t1}, 3, v{t0}
v_bfe_u32 v{t1}, v0, 3, 2
v_lshl_add_u32 v{d}, v{t1}, 5, v{t0}
v_xor_b32 v{d + 1}, 32, v{d}
v_xor_b32 v{d + 2}, 64, v{d}
v_xor_b32 v{d + 3}, 96, v{d}''')


def q_addr_parts(trow, tmask, tc, t):
    P(f'''v_lshrrev_b32 v{trow}, 4, v0
v_lshlrev_b32 v{trow}, 3, v{trow}
v_bfe_u32 v{t}, v0, 2, 2
v_add_u32 v{trow}, v{trow}, v{t}
v_lshlrev_b32 v{trow}, 7, v{trow}
v_bfe_u32 v{tmask}, v0, 3, 2
v_lshlrev_b32 v{tmask}, 5, v{tmask}
v_and_b32 v{tc}, 3, v0
v_lshlrev_b32 v{tc}, 3, v{tc}''')
    if OPT['p7']:
        P(f's_cmp_eq_u32 s{sIDX}, 7\ns_cselect_b32 s{sT0}, 16, 0\nv_add_u32 v{tc}, s{sT0}, v{tc}')


def q_addr(d, boff, trow, tmask, tc):
    P(f'v_add_u32 v{d}, {boff}, v{tc}\nv_min_u32 v{d}, 120, v{d}\nv_xor_b32 v{d}, v{d}, v{tmask}\nv_add_u32 v{d}, v{d}, v{trow}')


def h_addr(d, t0, t1):
    P(f'''v_lshrrev_b32 v{t0}, 4, v0
v_lshlrev_b32 v{t0}, 3, v{t0}
v_bfe_u32 v{t1}, v0, 2, 2
v_add_u32 v{t0}, v{t0}, v{t1}
v_mul_u32_u24 v{t0}, 448, v{t0}
v_bfe_u32 v{t1}, v0, 4, 1
v_lshl_add_u32 v{t0}, v{t1}, 5, v{t0}
v_and_b32 v{t1}, 3, v0
v_lshl_add_u32 v{d}, v{t1}, 3, v{t0}''')


def mfma(d, a, b, c):
    return f'v_mfma_f32_16x16x32_bf16 {vr(d)}, {vr(a)}, {vr(b)}, ' + ('0' if c is None else vr(c))


P(f'''s_cmp_ge_u32 s2, 256
s_cbranch_scc1 L_END
s_load_dwordx16 s[4:19], s[0:1], 0
s_load_dwordx2 s[20:21], s[0:1], 64''')
if OPT['pf_code']:
    P('s_getpc_b64 s[22:23]')
    P.label('L_pc')
    P(f'''s_lshl_b32 s{sT0}, s2, 10
s_and_b32 s{sT0}, s{sT0}, 0xe000
v_lshlrev_b32 v2, 4, v0
v_add_u32 v2, s{sT0}, v2
v_min_u32 v2, L_END-L_pc, v2
s_mov_b32 exec_lo, 0x01010101
s_mov_b32 exec_hi, 0x01010101
global_load_dword v247, v2, s[22:23]
s_mov_b64 exec, -1''')
P(f'''v_lshrrev_b32 v1, 6, v0
v_and_b32 v0, 63, v0
v_readfirstlane_b32 s{sWAVE}, v1
s_and_b32 s{sT0}, s2, 7
s_lshr_b32 s{sT1}, s2, 3
s_and_b32 s{sRB}, s{sT0}, 1
s_lshl_b32 s{sRB}, s{sRB}, 3
s_and_b32 s{sT2}, s{sT1}, 7
s_add_u32 s{sRB}, s{sRB}, s{sT2}
s_and_b32 s{sIDX}, s{sT0}, 6
s_bfe_u32 s{sT2}, s{sT1}, 0x10003
s_add_u32 s{sIDX}, s{sIDX}, s{sT2}
MAP1
s_lshr_b32 s{sISQ}, s{sT1}, 4
s_xor_b32 s{sISQ}, s{sISQ}, {OPT['qfirst']}
s_lshl_b32 s{sCG}, s{sISQ}, 3
s_add_u32 s{sCG}, s{sCG}, s{sIDX}
s_mul_i32 s{sT2}, s{sT1}, 9363
s_lshr_b32 s{sT2}, s{sT2}, 16
s_mul_i32 s{sT3}, s{sT2}, 7
s_sub_u32 s{sT3}, s{sT1}, s{sT3}
s_cmp_ge_u32 s{sT1}, 28
s_cselect_b32 s{sCT}, 7, s{sT3}
s_lshl_b32 s{sT2}, s{sT2}, 1
s_and_b32 s{sRT}, s{sT0}, 6
s_lshl_b32 s{sRT}, s{sRT}, 2
s_add_u32 s{sRT}, s{sRT}, s{sT2}
s_and_b32 s{sT2}, s{sT0}, 1
s_add_u32 s{sRT}, s{sRT}, s{sT2}
ROT1
s_mul_i32 s{sT2}, s{sROT}, 9363
s_lshr_b32 s{sT2}, s{sT2}, 16
s_mul_i32 s{sT2}, s{sT2}, 7
s_sub_u32 s{sROT}, s{sROT}, s{sT2}
s_and_b32 s{sPUB}, s{sROT}, 1
s_cmp_ge_u32 s{sRB}, 7
s_cselect_b32 s{sPUB}, 1, s{sPUB}
s_mov_b32 s{sSPIN}, 0
s_and_b32 s{sI}, s{sWAVE}, 3'''.replace('MAP1', '' if not OPT['m1'] else f'''s_and_b32 s{sT2}, s{sT0}, 2
s_lshl_b32 s{sT2}, s{sT2}, 1
s_and_b32 s{sT3}, s{sRB}, 11
s_add_u32 s{sT2}, s{sT2}, s{sT3}
s_and_b32 s{sT3}, s{sT0}, 4
s_bfe_u32 s{sCG}, s{sT1}, 0x20002
s_add_u32 s{sT3}, s{sT3}, s{sCG}
s_cmp_ge_u32 s{sT1}, 16
s_cselect_b32 s{sRB}, s{sT2}, s{sRB}
s_cselect_b32 s{sIDX}, s{sT3}, s{sIDX}''' if OPT['m1'] == 2 else f'''s_lshr_b32 s{sRB}, s{sT0}, 1
s_lshl_b32 s{sRB}, s{sRB}, 2
s_and_b32 s{sT2}, s{sT1}, 3
s_add_u32 s{sRB}, s{sRB}, s{sT2}
s_and_b32 s{sIDX}, s{sT0}, 1
s_lshl_b32 s{sIDX}, s{sIDX}, 2
s_bfe_u32 s{sT2}, s{sT1}, 0x20002
s_add_u32 s{sIDX}, s{sIDX}, s{sT2}''').replace('ROT1', f'''s_lshr_b32 s{sROT}, s{sT1}, 3
s_lshl_b32 s{sROT}, s{sROT}, 1
s_add_u32 s{sROT}, s{sROT}, s{sRB}''' if not OPT['m1'] else f'''s_and_b32 s{sROT}, s{sIDX}, 1
s_mul_i32 s{sROT}, s{sROT}, 3
s_and_b32 s{sT2}, s{sIDX}, 3
s_lshl_b32 s{sT2}, s{sT2}, 1
s_add_u32 s{sT2}, s{sT2}, 1
s_cmp_ge_u32 s{sT1}, 16
s_cselect_b32 s{sROT}, s{sT2}, s{sROT}
s_lshl_b32 s{sT2}, s{sRB}, 1
s_add_u32 s{sROT}, s{sROT}, s{sT2}''' if OPT['m1'] == 2 else f'''s_lshr_b32 s{sROT}, s{sT1}, 2
s_lshl_b32 s{sT2}, s{sRB}, 1
s_add_u32 s{sROT}, s{sROT}, s{sT2}'''))
if DIAG:
    for k in range(16):
        P('s_mov_b32 s%d, 0' % (sST + 2 * k))
if PROBE is not None:
    stamp(2)
P(f'''s_cmp_ge_u32 s{sWAVE}, 4
s_cbranch_scc1 L_C''')

LW, LACC, LA, LADR = 24, 136, 168, 252
vX, vW, vH, vCA, vGA, vGS = 164, 168, 175, 176, 178, 179
vSEL, vCACC, vCF, vLT = 180, 196, 200, 232
vAD1, vAD2 = 180, 184
vS = 124
vSY, vSG, vPT = 244, 245, 248


def dma(vm, voff, srdb, soff, m0base, m0imm, tag=None, nt=False):
    P(f's_add_u32 m0, s{m0base}, {m0imm}')
    P(f'buffer_load_dwordx4 v{voff}, {srd(srdb)}, s{soff} offen {"nt " if nt else ""}lds')
    vm.issue(tag)


def red32(a, t):
    for sh in (8, 4, 2, 1):
        P(f'v_add_f32_dpp v{a}, v{a}, v{a} row_ror:{sh} row_mask:0xf bank_mask:0xf')
    P(f'v_mov_b32 v{t}, v{a}\nv_permlane16_swap_b32 v{t}, v{a}\nv_add_f32 v{a}, v{a}, v{t}')


def stats_rows():
    P(f'''v_and_b32 v{vS}, 31, v0
v_lshrrev_b32 v{vS + 1}, 5, v0
v_mul_u32_u24 v{vS + 2}, 896, v{vS + 1}
v_lshl_add_u32 v{vS + 2}, v{vS}, 4, v{vS + 2}
v_cmp_gt_u32 vcc, 28, v{vS}
v_mov_b32 v{vS + 3}, 0x10000000
v_cndmask_b32 v{vS + 2}, v{vS + 3}, v{vS + 2}, vcc
v_cndmask_b32 v{vS + 3}, 0, 1.0, vcc
s_lshl_b32 s{sT0}, s{sRB}, 7
s_lshl_b32 s{sT1}, s{sCG}, 3
s_add_u32 s{sT0}, s{sT0}, s{sT1}
s_lshl_b32 s{sT1}, s{sI}, 1
s_add_u32 s{sT3}, s{sT0}, s{sT1}
s_mul_i32 s{sT2}, s{sT3}, 896''')


def stats_load(vm):
    for u in range(2):
        P(f'buffer_load_dwordx4 {vr(vS + 4 + 4 * u)}, v{vS + 2}, {srd(SX)}, s{sT2} offen offset:{448 * u}')
        vm.issue('stats')

def stats_body():
    n0 = len(P.ins)
    a, d = vS + 12, vS + 16
    for n in range(8):
        P(f'v_lshlrev_b32 v{d + 2 * n}, 16, v{vS + 4 + n}\nv_and_b32 v{d + 1 + 2 * n}, 0xffff0000, v{vS + 4 + n}')
    P(f'v_add_f32 v{a}, v{d}, v{d + 1}\nv_add_f32 v{a + 1}, v{d + 2}, v{d + 3}')
    for n in range(4, 16):
        P(f'v_add_f32 v{a + n % 2}, v{a + n % 2}, v{d + n}')
    P(f'v_add_f32 v{a}, v{a}, v{a + 1}')
    red32(a, a + 1)
    P(f'v_mul_f32 v{a}, 0x3b124925, v{a}')
    for n in range(16):
        P(f'v_sub_f32 v{d + n}, v{d + n}, v{a}')
    P(f'v_mul_f32 v{a + 2}, v{d}, v{d}\nv_mul_f32 v{a + 3}, v{d + 1}, v{d + 1}')
    for n in range(2, 16):
        P(f'v_fmac_f32 v{a + 2 + n % 2}, v{d + n}, v{d + n}')
    P(f'v_add_f32 v{a + 2}, v{a + 2}, v{a + 3}\nv_mul_f32 v{a + 2}, v{a + 2}, v{vS + 3}')
    red32(a + 2, a + 1)
    P(f'''v_mul_f32 v{a + 2}, 0x3b124925, v{a + 2}
v_cvt_pk_bf16_f32 v{a + 2}, 0, v{a + 2}
v_add_f32 v{a + 2}, 0x3727c5ac, v{a + 2}
v_cvt_pk_bf16_f32 v{a + 2}, 0, v{a + 2}
v_sqrt_f32 v{a + 2}, v{a + 2}
v_cvt_pk_bf16_f32 v{a + 2}, v{a}, v{a + 2}
v_mov_b32 v{a + 3}, s{sTAG}
v_lshlrev_b32 v{a + 1}, 3, v{vS + 1}''')
    out = [x.text for x in P.ins[n0:]]
    del P.ins[n0:]
    return out

def stats_store(vm):
    a = vS + 12
    P(f'''s_lshl_b32 s{sT3}, s{sT3}, 3
s_add_u32 s{sT3}, s{sT3}, {WS_STATS}
s_mov_b32 exec_lo, 1
s_mov_b32 exec_hi, 1
buffer_store_dwordx2 {vr(a + 2, 2)}, v{a + 1}, {srd(SWS)}, s{sT3} offen sc1
s_mov_b64 exec, -1''')
    vm.issue()


sFB = 23
BL = '\n'.join(f's_buffer_load_dword s{4 + g}, {srd(SWS)}, s{sFB} offset:{g << FS} glc' for g in range(4))


def of_addr(d, t0, t1):
    P(f'''s_lshr_b32 s{d}, s{sRT}, 1
s_lshl_b32 s{d}, s{d}, 14
s_and_b32 s{t0}, s{sRT}, 1
s_lshl_b32 s{t0}, s{t0}, 1
s_lshr_b32 s{t1}, s{sI}, 1
s_add_u32 s{t0}, s{t0}, s{t1}
s_lshl_b32 s{t0}, s{t0}, {FS}
s_add_u32 s{d}, s{d}, s{t0}
s_add_u32 s{d}, s{d}, {WS_FLAGS + 8192}''')


def ol(a):
    return '\n'.join(f's_buffer_load_dword s{4 + p_}, {srd(SWS)}, s{a} offset:{1024 * p_} glc' for p_ in range(8))


def xh_addr(d, w=None):
    P(f'''s_mul_i32 s{d}, s{sRT}, 7
s_add_u32 s{d}, s{d}, s{sCT}
s_lshl_b32 s{d}, s{d}, 4
s_add_u32 s{d}, s{d}, s{sI}
s_lshl_b32 s{d}, s{d}, 10
s_add_u32 s{d}, s{d}, {WS_XCH + 8192 + 1020}''')


class W2Plan:
    def __init__(self, vm):
        self.vm = vm
        self.pairs = []
        self.grp = set()
        self.loc = {}
        self.pending = []
        self.ncw = 0

    def wopair(self):
        c = [g for g in (0, 2, 4) if g in self.grp and g + 1 in self.grp]
        return c[0] if c else None

    def has_pair(self):
        return bool(self.pairs) or self.wopair() is not None

    def own(self, hs):
        for h in hs:
            if self.pairs:
                a = self.pairs.pop(0)
            else:
                g = self.wopair()
                self.grp -= {g, g + 1}
                a = WO + 4096 * g
            self.loc[h] = a
            for u in range(2):
                dma(self.vm, 2 + u, SW2, sA0, sMX, a + 4096 * u, ('own', h))
            P(f's_add_u32 s{sA0}, s{sA0}, {16 * 896}')

    def sync(self):
        if self.pending:
            P('s_waitcnt lgkmcnt(0)')
            for h in self.pending:
                a = self.loc[h]
                if WO <= a < WO + 4096 * NGRP:
                    self.grp |= {(a - WO) // 4096, (a - WO) // 4096 + 1}
                else:
                    self.pairs.append(a)
            self.pending = []

    def stage(self, hs):
        self.vm.wait(('own', hs[-1]))
        self.sync()
        for h in hs:
            o = self.loc[h]
            base = (LADR, vAD1, vAD2)[o >> 16]
            for ct in range(4):
                P(f'ds_read_b64_tr_b16 {vr(LW + 8 * (h & ~1) + 4 * ct + 2 * (h & 1), 2)}, v{base + ct} offset:{o & 0xffff}')
        self.pending = list(hs)

    def cw(self):
        if NGRP - self.ncw == OPT['pe']:
            P(BL)
        g = max(self.grp)
        self.grp.remove(g)
        P(f's_add_u32 s{sT0}, s{sA1}, {g * 28672 + (0x20000000 if (OPT["abl"] & 4 or (OPT["abl"] & 32 and not self.isq)) else 0)}')
        dma(self.vm, 2, SWO, sT0, sMX, WO + 4096 * g, ('cw', g))
        self.ncw += 1


def spoll(name, loads, nreg, onfail=None):
    P.label(name)
    P(loads)
    P.label(name + '_w')
    P('s_waitcnt lgkmcnt(0)')
    for n in range(nreg):
        P(f's_xor_b32 s{4 + n}, s{4 + n}, s{sTAG}')
    if nreg == 1:
        pass
    elif nreg == 2:
        P('s_or_b32 s4, s4, s5')
    elif nreg == 4:
        P('s_or_b64 s[4:5], s[4:5], s[6:7]')
    else:
        P('s_or_b64 s[4:5], s[4:5], s[6:7]\ns_or_b64 s[8:9], s[8:9], s[10:11]\ns_or_b64 s[4:5], s[4:5], s[8:9]')
    P(f's_cbranch_scc0 {name}_ok')
    if onfail:
        onfail()
    spin_guard(name + '_ok')
    P(f's_sleep {OPT["ssl"]}\ns_branch {name}')
    P.label(name + '_ok')


P(f'''v_lshrrev_b32 v{vLT}, 3, v0
v_lshl_add_u32 v{vLT}, s{sI}, 3, v{vLT}
v_mul_u32_u24 v{vX}, 896, v{vLT}
v_lshrrev_b32 v{vLT}, 1, v{vLT}
v_xor_b32 v{vLT}, v{vLT}, v0
v_and_b32 v{vLT}, 7, v{vLT}
v_lshl_add_u32 v{vX}, v{vLT}, 4, v{vX}
v_add_u32 v{vX + 1}, 28672, v{vX}
v_add_u32 v{vX + 2}, 57344, v{vX}
v_add_u32 v{vX + 3}, 86016, v{vX}
s_mul_i32 s{sXO}, s{sRB}, 114688
s_lshl_b32 s{sT0}, s{sROT}, 7
s_add_u32 s{sXO}, s{sXO}, s{sT0}
s_mov_b32 s{sKB}, s{sROT}
s_lshl_b32 s{sMX}, s{sI}, 10
s_cmp_eq_u32 s{sISQ}, {1 - OPT['qf']}
s_cbranch_scc1 L_LQ''')


def L_phase1(isq):
    t = 'Q' if isq else 'H'
    vm = Q(P, 'vmcnt', 63)
    wstr = 2688 if isq else 3584
    wsl = WSL
    globals()['MUTE'] = False

    def gen_st(s):
        for n in range(4):
            dma(vm, vX + n, SX, sXO, sMX, XS[s % 3] + 4096 * n, nt=(OPT['nt'] & 1 and s < 1))
            yield
        if isq and s % 2 == 0:
            if s < 6:
                P(f'''s_lshr_b32 s{sT0}, s{sI}, 1
s_add_u32 s{sT0}, s{sT0}, s{sKB}
s_cmp_eq_u32 s{sT0}, 7
s_cselect_b32 s{sT0}, 0, s{sT0}
s_lshl_b32 s{sT0}, s{sT0}, 7
s_add_u32 s{sT0}, s{sT0}, s{sHO}''')
                dma(vm, vH, SX, sT0, sMX, HALO + halo_off(s))
            else:
                P(f'''s_lshl_b32 s{sT0}, s{sKB}, 7
s_add_u32 s{sT0}, s{sT0}, s{sHO}
s_and_b32 s{sT1}, s{sMX}, 1024''')
                dma(vm, vH, SX, sT0, sT1, HALO + halo_off(s))
            yield
        nw = 6 if isq else 7
        for n in range(nw):
            o = (n // 2) * 8192 + (n % 2) * 1024 if isq else n * 1024
            dma(vm, vW + n, SW, sWO_, sMW, wsl[s % 3] + o, ('st', s), nt=(OPT['nt'] & 2 and s < 1))
            if n == nw - 1 and s < 6:
                P(f'''s_add_u32 s{sKB}, s{sKB}, 1
s_cmp_eq_u32 s{sKB}, 7
s_cselect_b32 s{sKB}, 0, s{sKB}
s_cselect_b32 s{sT0}, {7 * 128}, 0
s_cselect_b32 s{sT1}, {7 * 64 * wstr}, 0
s_add_u32 s{sXO}, s{sXO}, 128
s_add_u32 s{sWO_}, s{sWO_}, {64 * wstr}
s_sub_u32 s{sXO}, s{sXO}, s{sT0}
s_sub_u32 s{sWO_}, s{sWO_}, s{sT1}''')
            yield

    def run(g, n=1000):
        for _ in range(n):
            if next(g, 'end') == 'end':
                break

    if isq:
        P(f'''v_lshrrev_b32 v{vLT}, 3, v0
v_mul_u32_u24 v{vW}, 2688, v{vLT}
v_bfe_u32 v{vLT}, v0, 4, 1
v_lshlrev_b32 v{vLT}, 1, v{vLT}
v_xor_b32 v{vLT}, v{vLT}, v0
v_and_b32 v{vLT}, 7, v{vLT}
v_lshlrev_b32 v{vLT}, 4, v{vLT}
v_xor_b32 v{vLT + 1}, 64, v{vLT}
v_add_u32 v{vW + 1}, {8 * 2688}, v{vW}
v_add_u32 v{vW}, v{vW}, v{vLT}
v_add_u32 v{vW + 1}, v{vW + 1}, v{vLT + 1}''')
        for n in range(2, 6):
            P(f'v_add_u32 v{vW + n}, {(n // 2) * 896}, v{vW + n % 2}')
        P(f'''s_mul_i32 s{sT0}, s{sIDX}, 112
s_min_u32 s{sT0}, s{sT0}, {768 if OPT['p7'] else 1024}
s_and_b32 s{sT0}, s{sT0}, {0xff80 if OPT['abl'] & 8 else 0xffff}
s_lshl_b32 s{sMW}, s{sI}, 11
s_lshr_b32 s{sT1}, s{sI}, 1
s_mul_i32 s{sT1}, s{sT1}, {16 * 896}
v_subrev_u32 v{vH}, s{sT1}, v{vX}
s_mul_i32 s{sHO}, s{sRB}, 114688
s_max_u32 s{sHO}, s{sHO}, {16 * 896}
s_sub_u32 s{sHO}, s{sHO}, {16 * 896}''')
    else:
        P(f's_movk_i32 s{sT0}, 3136')
        for n in range(7):
            P(f'''v_add_u32 v{vLT}, {64 * n}, v0
v_mul_u32_u24 v{vLT + 1}, 2341, v{vLT}
v_lshrrev_b32 v{vLT + 1}, 16, v{vLT + 1}
v_lshlrev_b32 v{vLT}, 4, v{vLT}
v_mad_u32_u24 v{vW + n}, v{vLT + 1}, s{sT0}, v{vLT}''')
            if n == 3:
                P(f'v_and_b32 v{vLT + 1}, 8, v{vLT + 1}\nv_lshlrev_b32 v{vLT + 1}, 2, v{vLT + 1}\nv_xor_b32 v{vW + n}, v{vW + n}, v{vLT + 1}')
            elif n > 3:
                P(f'v_xor_b32 v{vW + n}, 32, v{vW + n}')
        P(f's_mul_i32 s{sT0}, s{sIDX}, 448\ns_mul_i32 s{sMW}, s{sI}, 7168')
    P(f'''s_lshl_b32 s{sT1}, s{sROT}, 2
s_add_u32 s{sT1}, s{sT1}, s{sI}
s_mul_i32 s{sWO_}, s{sT1}, {16 * wstr}
s_add_u32 s{sWO_}, s{sWO_}, s{sT0}''')
    P('s_waitcnt lgkmcnt(0)')
    mk_srd(SX, 4, 2048 * 896)
    mk_srd(SW, 6 if isq else 12, 448 * wstr)
    stamp(0)
    KS = [int(c, 16) for c in '%06x' % OPT['kq' if isq else 'kh']]
    gens = [gen_st(s) for s in range(7)]
    run(gens[0])
    run(gens[1], min(KS[0], OPT['k0']))
    P(f's_load_dword s{sTAG}, s[20:21], 0')
    mk_srd(SWO, 8, 448 * 896)
    mk_srd(SW2, 14, 1792 * 896)
    mk_srd(SWS, 20, WS_BYTES)
    mk_srd(SOUT, 16, 2048 * 896)
    P(f'v_bfe_u32 v{vLT}, v0, 2, 2\nv_mov_b32 v{vLT + 1}, 0x3f803f80')
    for m in range(4):
        P(f'v_cmp_eq_u32 vcc, {m}, v{vLT}\nv_cndmask_b32 v{vSEL + 4 * m}, 0, v{vLT + 1}, vcc')
        for r in range(1, 4):
            P(f'v_mov_b32 v{vSEL + 4 * m + r}, v{vSEL + 4 * m}')
    if isq:
        q_addr_parts(vLT, vLT + 1, vLT + 2, vLT + 3)
        P(f'''s_lshr_b32 s{sT0}, s{sI}, 1
s_mul_i32 s{sT0}, s{sT0}, 56
s_and_b32 s{sT1}, s{sI}, 1
s_lshl_b32 s{sT1}, s{sT1}, 5
s_add_u32 s{sT0}, s{sT0}, s{sT1}''')
        q_addr(vCA, f's{sT0}', vLT, vLT + 1, vLT + 2)
        ntile, tstr, rstr, kstr = 3, 8192, 128, 4096
    else:
        h_addr(vCA, vLT, vLT + 1)
        P(f'''s_and_b32 s{sT0}, s{sI}, 1
s_lshl_b32 s{sT0}, s{sT0}, 5
v_xor_b32 v{vCA}, s{sT0}, v{vCA}
s_lshr_b32 s{sT0}, s{sI}, 1
s_lshl_b32 s{sT0}, s{sT0}, 6
v_add_u32 v{vCA}, s{sT0}, v{vCA}''')
        ntile, tstr, rstr, kstr = 4, 128, 448, 32 * 448
    w2_tr_addr(LADR, 12, vLT, vLT + 1)
    for ct in range(4):
        P(f'v_add_u32 v{LADR + ct}, s{sMX}, v{LADR + ct}')
    P(f'''v_lshrrev_b32 v{vLT}, 3, v0
v_mul_u32_u24 v2, 896, v{vLT}
v_and_b32 v{vLT}, 6, v{vLT}
v_xor_b32 v{vLT}, v{vLT}, v0
v_and_b32 v{vLT}, 7, v{vLT}
v_lshl_add_u32 v2, v{vLT}, 4, v2
v_add_u32 v3, {8 * 896}, v2
v_lshlrev_b32 v1, 4, v0
s_and_b32 s{sT0}, s{sRT}, 1
s_lshl_b32 s{sT0}, s{sT0}, 2
s_add_u32 s{sT0}, s{sT0}, s{sI}
s_mul_i32 s{sA0}, s{sT0}, {LST * 32 * 896}
s_lshr_b32 s{sFB}, s{sRT}, 1
s_lshl_b32 s{sFB}, s{sFB}, 4
s_add_u32 s{sFB}, s{sFB}, s{sT0}
s_lshl_b32 s{sFB}, s{sFB}, 10
s_add_u32 s{sFB}, s{sFB}, {WS_FLAGS}
s_lshl_b32 s{sT0}, s{sCT}, 7
s_cmp_lt_u32 s{sCT}, 7
s_cselect_b32 s{sT0}, s{sT0}, 0x40000000
s_add_u32 s{sA0}, s{sA0}, s{sT0}
s_mul_i32 s{sA1}, s{sI}, {8 * 896}
s_add_u32 s{sA1}, s{sA1}, s{sT0}
v_lshl_add_u32 v{vGA}, s{sI}, 6, v0
v_min_u32 v{vGS}, 143, v{vGA}
v_lshlrev_b32 v{vGA}, 3, v{vGA}
v_mov_b32 v{vSY}, {SYNC}
v_lshl_add_u32 v{vSG}, s{sI}, 2, v{vSY}''')
    run(gens[1], KS[0] - min(KS[0], OPT['k0']))

    def csum_part(s):
        lab = f'L_{t}cs{s}'
        P(f's_cmp_lg_u32 s{sPUB}, 0\ns_cbranch_scc1 {lab}')
        if s == 1:
            P(f's_cmp_eq_u32 s{sROT}, 6\ns_cbranch_scc1 {lab}b')
        P(f'v_add_u32 v{vCA + 1}, {wsl[s]}, v{vCA}')
        if not isq:
            P(f's_and_b32 s{sT0}, s{sI}, 2\ns_lshl_b32 s{sT0}, s{sT0}, 6\nv_subrev_u32 v{vLT + 4}, s{sT0}, v{vCA + 1}')
        for kk in range(2):
            for m in range(ntile):
                f = vCF + 16 * kk + 4 * m
                o = m * tstr + kk * kstr
                va = vLT + 4 if m == 3 else vCA + 1
                P(f'ds_read_b64_tr_b16 {vr(f, 2)}, v{va} offset:{o}')
                P(f'ds_read_b64_tr_b16 {vr(f + 2, 2)}, v{va} offset:{o + 4 * rstr}')
        P('s_waitcnt lgkmcnt(0)')
        for kk in range(2):
            for m in range(ntile):
                P(mfma(vCACC, vSEL + 4 * m, vCF + 16 * kk + 4 * m, None if (s, kk, m) == (0, 0, 0) else vCACC))
        if s == 1:
            P.label(lab + 'b')
        P.label(lab)
        if s == 1:
            P(f'''s_lshl_b32 s{sT0}, s{sCG}, 13
s_lshl_b32 s{sT1}, s{sROT}, 10
s_add_u32 s{sT0}, s{sT0}, s{sT1}
s_lshl_b32 s{sT1}, s{sI}, 7
s_add_u32 s{sT0}, s{sT0}, s{sT1}
s_add_u32 s{sT0}, s{sT0}, {WS_CSUM}
s_cmp_lg_u32 s{sPUB}, 0
s_cselect_b32 s{sT0}, 0x40000000, s{sT0}
v_lshrrev_b32 v{vLT}, 4, v0
v_lshlrev_b32 v{vLT}, 9, v{vLT}
v_and_b32 v{vLT + 1}, 15, v0
v_lshl_add_u32 v{vLT}, v{vLT + 1}, 3, v{vLT}
v_mov_b32 v{vCACC + 1}, s{sTAG}
buffer_store_dwordx2 {vr(vCACC, 2)}, v{vLT}, {srd(SWS)}, s{sT0} offen sc1''')
            vm.issue()

    def gather_issue(count=True):
        for pi in range(4):
            P(f'buffer_load_dwordx2 {vr(vCF + 2 * pi, 2)}, v{vGA}, {srd(SWS)}, s{sT2 + pi // 2} offen offset:{2048 * (pi % 2)} sc1')
            if count:
                vm.issue('gather')
        P(f'''s_lshl_b32 s{sT0}, s{sRB}, 7
s_sub_u32 s{sT0}, s{sT0}, 16
v_add_u32 v{vCF + 10}, s{sT0}, v{vGS}
v_max_i32 v{vCF + 10}, 0, v{vCF + 10}
v_lshlrev_b32 v{vCF + 10}, 3, v{vCF + 10}
s_movk_i32 s{sT0}, {WS_STATS}
buffer_load_dwordx2 {vr(vCF + 8, 2)}, v{vCF + 10}, {srd(SWS)}, s{sT0} offen sc1''')
        if count:
            vm.issue('gather')

    def gather_start():
        P(f'''s_lshl_b32 s{sT2}, s{sCG}, 13
s_add_u32 s{sT2}, s{sT2}, {WS_CSUM}
s_add_u32 s{sT3}, s{sT2}, 4096''')
        gather_issue()

    def gather_cmp():
        for pi in range(5):
            P(f'v_xor_b32 v{vLT + pi}, s{sTAG}, v{vCF + 2 * pi + 1}')
        P(f'''v_or3_b32 v{vLT}, v{vLT}, v{vLT + 1}, v{vLT + 4}
v_or3_b32 v{vLT}, v{vLT}, v{vLT + 2}, v{vLT + 3}
v_cmp_ne_u32 vcc, 0, v{vLT}''')

    def gather_fin():
        for x in gather_chk():
            P(x)

    def gather_chk():
        vm.wait('gather')
        gather_cmp()
        P(f's_cbranch_vccz L_{t}gok')
        P.label(f'L_{t}gre')
        spin_guard(f'L_{t}gok')
        P('s_sleep 1')
        gather_issue(False)
        P('s_waitcnt vmcnt(0)')
        gather_cmp()
        P(f's_cbranch_vccnz L_{t}gre')
        P.label(f'L_{t}gok')
        a, b = vCF, vLT + 2
        txt = (f'''v_add_f32 v{a}, v{a}, v{a + 2}
v_add_f32 v{a + 4}, v{a + 4}, v{a + 6}
v_add_f32 v{a}, v{a}, v{a + 4}
v_mul_f32 v{a}, 0x3e800000, v{a}
v_and_b32 v{a + 14}, 0xffff0000, v{a + 8}
v_and_b32 v{a + 13}, 0xffff, v{a + 8}
v_rcp_f32 v{a + 14}, v{a + 14}
v_xor_b32 v{a + 13}, 0x8000, v{a + 13}
v_lshl_or_b32 v{a + 12}, v{a + 13}, 16, v{a + 13}
v_mul_f32 v{a + 15}, 0x3e8b9a4d, v{a + 14}
v_lshlrev_b32 v{a + 10}, 4, v{vGS}
v_add_u32 v{a + 10}, {ST}, v{a + 10}
ds_write_b128 v{a + 10}, {vr(a + 12)}
v_cvt_pk_bf16_f32 v{b}, 0, v{a}
v_sub_f32 v{b + 2}, v{a}, v{b}
v_cvt_pk_bf16_f32 v{b}, v{a}, v{b + 2}
v_and_b32 v{b + 1}, 0xffff0000, v{b}
v_sub_f32 v{b + 1}, v{b + 2}, v{b + 1}
v_cvt_pk_bf16_f32 v{b + 1}, v{b + 1}, 0
v_add_u32 v{vLT}, {CS}, v{vGA}
v_cmp_gt_u32 vcc, {224 * 8}, v{vGA}
s_mov_b64 exec, vcc|ds_write_b64 v{vLT}, {vr(b, 2)}|s_mov_b64 exec, -1''')
        return [x.replace('|', '\n') for x in txt.split('\n')]

    def pf_w():
        P(f'''s_lshl_b32 s{sT1}, s2, 2
s_add_u32 s{sT1}, s{sT1}, s{sI}
s_lshl_b32 s{sT1}, s{sT1}, 11
v_lshlrev_b32 v{vLT + 8}, 7, v0
s_mov_b64 exec, 0xffff
buffer_load_dword v{vLT + 9}, v{vLT + 8}, {srd(SW2)}, s{sT1} offen
buffer_load_dword v{vLT + 9}, v{vLT + 8}, {srd(SWO)}, s{sT1} offen
s_mov_b64 exec, -1''')
        vm.issue()
        vm.issue()

    P(f's_waitcnt lgkmcnt(0)\ns_add_u32 s{sTAG}, s{sTAG}, 1')
    w2 = W2Plan(vm)
    w2.isq = isq
    if not isq:
        w2.pairs += [WIN, WIN + 8192]
    nown = 0
    nstg = 0

    def own(n):
        nonlocal nown
        n = min(n, 2 * LST - nown)
        w2.own(range(nown, nown + n))
        nown += n

    def stage(n):
        nonlocal nstg
        n = min(n, nown - nstg)
        if n > 0:
            w2.stage(list(range(nstg, nstg + n)))
        nstg += n

    def cwait(v):
        lds_poll(f'L_{t}cp{v}', vPT, vSY, 16, v, OPT['lsl'])

    def fwarm():
        P(BL)
        of_addr(sT0, sT1, 10)
        P(f's_and_b32 s{sT1}, s{sI}, 1\ns_lshl_b32 s{sT1}, s{sT1}, 12\ns_add_u32 s{sT0}, s{sT0}, s{sT1}')
        for p_ in range(4):
            P(f's_buffer_load_dword s11, {srd(SWS)}, s{sT0} offset:{1024 * p_} glc')
        xh_addr(sT0, sI)
        P(f's_buffer_load_dword s11, {srd(SWS)}, s{sT0} glc\ns_buffer_load_dword s11, {srd(SWS)}, s{sT0} offset:4096 glc')

    nspf = 0

    def spf(n):
        nonlocal nspf
        if nspf == 0:
            P(f'''s_lshl_b32 s9, s2, 2
s_add_u32 s9, s9, s{sI}
s_mul_i32 s8, s9, {25 * 64}
s_mul_i32 s9, s9, {7 * 64}''')
        for _ in range(n):
            if nspf < 25:
                P(f's_buffer_load_dword s12, {srd(SW2)}, s8 offset:{64 * nspf}')
            elif nspf < 32:
                P(f's_buffer_load_dword s12, {srd(SWO)}, s9 offset:{64 * (nspf - 25)}')
            nspf += 1
    if OPT['fwarm'] == 9:
        fwarm()
    spn = [int(c, 16) for c in '%05x' % OPT['spf']]
    fin = set()
    wbs = [int(c) for c in '%05d' % OPT['w4']]
    sfill = []
    for s in range(5):
        if OPT['ds'] == 3:
            stamp(1 + 3 * s)
            vm.wait(('st', s))
            stamp(2 + 3 * s)
            P('s_barrier')
            stamp(3 + 3 * s) if s < 4 else None
        else:
            stamp(13) if s == 4 else None
            vm.wait(('st', s))
            stamp(14) if s == 4 else None
            P('s_barrier')
            stamp({0: 1, 3: 3, 4: 5}[s]) if s in (0, 3, 4) else None
        def extras(st):
            if OPT['pf_w'] == st:
                pf_w()

        def stream():
            for st, lim in ((s + 1, 99), (s + 2, KS[s + 1])):
                if st in fin:
                    continue
                k = 0
                while k < lim:
                    if next(gens[st], 'end') == 'end':
                        fin.add(st)
                        extras(st)
                        break
                    k += 1
                    yield
        g = stream()
        if OPT['cs_it'] == 10 * s - 5 and s > 1:
            gather_start()
        if s < 2:
            run(g, 5)
            csum_part(s)
        if s == OPT['cs_it'] + 1 or (OPT['cs_it'] == 10 * s - 15 and s > 2):
            run(g, OPT['gk'])
            sfill = gather_chk()
        while next(g, 'end') != 'end':
            for _ in range(OPT['sfn']):
                if sfill:
                    P(sfill.pop(0))
        if s == OPT['cs_it']:
            gather_start()
        if True:
            while sfill:
                P(sfill.pop(0))
        if spn[s]:
            spf(spn[s])
        if s == OPT['fwarm']:
            fwarm()
        if s == 1:
            for ct in range(4):
                P(f'v_add_u32 v{vAD1 + ct}, 0x10000, v{LADR + ct}\nv_add_u32 v{vAD2 + ct}, 0x20000, v{LADR + ct}')
        if not isq and wbs[s]:
            if len(w2.pairs) < wbs[s]:
                stage(wbs[s] - len(w2.pairs))
                w2.sync()
            own(wbs[s])
    global MUTE
    MUTE = OPT['ds'] == 3

    def progress(total, cap=OPT['cap']):
        left = total
        while left > 0:
            isown = nown < 2 * LST
            if not (w2.has_pair() if isown else w2.grp):
                if w2.pending:
                    w2.sync()
                elif nstg < nown:
                    stage(1)
                else:
                    break
                continue
            if isown:
                own(1)
                left -= 2
            else:
                w2.cw()
                left -= 1
            while nstg < nown and vm.n - vm.tags[('own', nstg)] >= cap:
                stage(1)
            if vm.n - vm.done > cap:
                vm.wait(vm.n - cap)
    vm.wait(('st', 5))
    stamp(2)
    P('s_barrier')
    stamp(4)
    w2.pairs += [16384] if isq else [16384, 24576]
    w2.grp |= set(range(7))
    for _ in gens[6]:
        pass
    if OPT['cs_it'] == 5:
        gather_start()
    if OPT['pf_w'] == 7:
        pf_w()
    own(OPT['n5q'] if isq else OPT['n5'])
    if OPT['cs_it'] in (4, 5, 35):
        gather_fin()
    vm.wait(('st', 6))
    P('s_waitcnt lgkmcnt(0)')
    if OPT['b6']:
        stamp(7)
        P('s_barrier')
    else:
        lds_signal(vSG, 246, 7)
    P(f's_cmp_ge_u32 s{sCT}, 7\ns_cbranch_scc1 L_IDLE')
    if not OPT['b6']:
        progress(OPT['p5'])
        stamp(6)
        cwait(6)
    w2.pairs += [32768, 40960]
    w2.grp |= set(range(7, 14))
    if OPT['b6']:
        progress(OPT['p5'])
        stamp(6)
    if OPT['lpause'] and not isq:
        progress(OPT['lpause'] - 1, OPT['capp'])
        stage(100)
        cwait(8)
    progress(100, OPT['cap'] if isq else OPT['cape'])
    stage(100)
    w2.sync()
    assert nown == 2 * LST and nstg == nown and not w2.pending and w2.ncw == NGRP
    if isq and OPT['qhold']:
        cwait(9)
    if isq == OPT['qf']:
        P('s_branch L_P2L')
    return vm


def L_phase2(vm):
    P.label('L_P2L')
    lastcw = vm.n
    vm.done = 0
    stamp(8)
    lds_signal(vSG, 246, 8)
    sB, sO, sS, sOF = 62, 63, 65, 66
    vDA, vSy, vSg, vWA, TMP = LADR, 2, 3, 20, 248
    P(f'''v_mov_b32 v{vSy}, v{vSY}
v_mov_b32 v{vSg}, v{vSG}
s_and_b32 s{sT3}, s{sRT}, 1
s_lshl_b32 s{sT3}, s{sT3}, 2
s_add_u32 s{sT3}, s{sT3}, s{sI}
s_xor_b32 s{sT2}, s{sRT}, 1
s_mul_i32 s{sT2}, s{sT2}, {4 * NS * 1024}
s_mul_i32 s{sT3}, s{sT3}, {LST * 1024}
s_add_u32 s{sT3}, s{sT3}, {WS_ACT}
s_add_u32 s{sB}, s{sT2}, s{sT3}
s_mul_i32 s{sO}, s{sRT}, {4 * NS * 1024}
s_mul_i32 s{sS}, s{sI}, {NS * 1024}
s_add_u32 s{sS}, s{sS}, s{sO}
s_add_u32 s{sS}, s{sS}, {WS_ACT + 56 * 1024}
s_add_u32 s{sO}, s{sO}, s{sT3}
v_and_b32 v{vDA}, 15, v0
v_lshrrev_b32 v{vDA + 1}, 4, v0
v_xor_b32 v{vDA + 1}, v{vDA + 1}, v{vDA}
v_lshlrev_b32 v{vDA + 1}, 4, v{vDA + 1}
v_lshl_add_u32 v{vDA}, v{vDA}, 8, v{vDA + 1}
s_lshl_b32 s{sT1}, s{sI}, 14
v_add_u32 v{vDA}, s{sT1}, v{vDA}
v_xor_b32 v{vDA + 1}, 64, v{vDA}
v_xor_b32 v{vDA + 2}, 128, v{vDA}
v_xor_b32 v{vDA + 3}, 192, v{vDA}''')
    if OPT['abl'] & 64:
        P(f's_and_b32 s{sB}, s{sRT}, 1\ns_mul_i32 s{sB}, s{sB}, 802816\ns_mul_i32 s{sO}, s{sI}, 16384\ns_add_u32 s{sB}, s{sB}, s{sO}\ns_add_u32 s{sO}, s{sB}, 294912\ns_add_u32 s{sS}, s{sO}, 294912')
    P('s_branch L_pb_w')
    spoll('L_pb', BL, 4)
    stamp(9)
    free = [LA + 4 * n for n in range(OPT['lahead'] + 1)]
    vSG2 = LA + 76
    aloc = {}
    nxt = 0
    NT = 8 * LST
    NA = NT + 16
    lim = NT

    def load1():
        nonlocal nxt
        t, k = divmod(nxt, LST) if nxt < NT else (8, nxt - NT)
        aloc[nxt] = free.pop(0)
        P(f'buffer_load_dwordx4 {vr(aloc[nxt])}, v1, {srd(SWS)}, s{sB} offen offset:{(k % 4) * 1024} sc1')
        vm.issue(('a', nxt))
        nxt += 1
        if k == LST - 1 and t < 8:
            P(f's_mov_b32 s{sB}, s{sO}' if t == 3 else f's_mov_b32 s{sB}, s{sS}' if t == 7 else
              f's_add_u32 s{sB}, s{sB}, {NS * 1024 - 4096}')
        elif k % 4 == 3:
            P(f's_add_u32 s{sB}, s{sB}, 4096')

    def can_load(cur):
        return nxt < lim and free and nxt - cur < OPT['lahead']
    lg = Q(P, 'lgkmcnt', 15)
    fq = []
    cold = []

    def f_txt(x, cost=1, ds=None):
        def fn():
            P(x)
            if ds is not None:
                lg.issue(ds or None)
        fq.append((cost, fn))

    def f_chk(nm, rg, off, val):
        f_txt(f'v_min3_u32 v{rg}, v{rg}, v{rg + 1}, v{rg + 2}')
        f_txt(f'v_min_u32 v{rg}, v{rg}, v{rg + 3}')
        f_txt(f'v_cmp_gt_u32 vcc, {val}, v{rg}', 2)
        f_txt(f's_cbranch_vccnz {nm}\n{nm}_ok:')
        cold.append(lambda: (lds_spin(nm, rg, vSy, off, val, 0), P(f's_branch {nm}_ok')))
    while can_load(0) and nxt < OPT['l0']:
        load1()
    if OPT['tw']:
        P(f'v_add_u32 v{vWA}, {WO}, v1')
    else:
        w2_tr_addr(vWA, 10, TMP, TMP + 1)
        for ct in range(4):
            P(f'v_add_u32 v{vWA + ct}, {WO}, v{vWA + ct}')
    of_addr(sOF, sT0, sT1)
    P(f'''v_and_b32 v{TMP}, 15, v0
v_lshlrev_b32 v{TMP}, 7, v{TMP}
v_lshrrev_b32 v{TMP + 1}, 5, v0
v_xor_b32 v{TMP + 1}, v{TMP + 1}, v0
v_and_b32 v{TMP + 1}, 7, v{TMP + 1}
v_lshl_add_u32 v{TMP}, v{TMP + 1}, 4, v{TMP}
v_bfe_u32 v{TMP + 1}, v0, 4, 1
v_lshl_add_u32 v{TMP}, v{TMP + 1}, 3, v{TMP}
s_lshl_b32 s{sT0}, s{sI}, 11
s_add_u32 s{sT0}, s{sT0}, {STILE}
v_add_u32 v{vSG2 + 1}, s{sT0}, v{TMP}''')
    stamp(10)
    cstamp(2) if OPT['ds'] == 5 else None
    wfree = [4, 8, 12, 16] + [LA + 4 * n for n in range(OPT['lahead'] + 1, 19)]
    wloc = {}
    nw = 0

    def wread():
        nonlocal nw
        f, j = divmod(nw, 2)
        if nw >= 128 or (j == 0 and not wfree):
            return False
        if j == 0:
            wloc[f] = wfree.pop(0)
        k, ct = divmod(f, 4)
        if OPT['tw']:
            P(f'ds_read_b128 {vr(wloc[f])}, v{vWA} offset:{1024 * f}')
            nw += 1
        else:
            P(f'ds_read_b64_tr_b16 {vr(wloc[f] + 2 * j, 2)}, v{vWA + (ct ^ (2 * (k % 2)))} offset:{28 * k * 128 + 2048 * j}')
        lg.issue(('w', f))
        nw += 1
        return True
    need = {1: 9, 5: 11, 7: 12}

    def set_lim():
        nonlocal lim
        lim = NA
    for n in range(NA):
        t, k = divmod(n, LST) if n < NT else (8, n - NT)
        if OPT['ds'] == 6 and k == 0 and t:
            stamp(t)
        if t + 1 in need and k == LST - 3:
            f_txt(f'ds_read_b128 {vr(TMP)}, v{vSy} offset:16', 1, 'c')
            if t == 0:
                f_txt(f'ds_read_b128 {vr(12)}, v{vSy}', 1, 'c')
        if t + 1 in need and k == LST - 1:
            fq.append((1, lambda: lg.wait('c')))
            f_chk(f'L_d{t}', TMP, 16, need[t + 1])
            if t == 0:
                f_chk('L_d1l', 12, 0, 8)
        if OPT['tw'] and n == 1:
            f_txt(f'v_mov_b32 v{vSG2}, 10')
            f_txt(f'ds_write_b32 v{vSg}, v{vSG2}', 1, '')
        if t > 0 and k == 1:
            for ct in range(4):
                f_txt(f'ds_write_b128 v{vDA + ct}, {vr(LACC + 16 * ((t - 1) % 2) + 4 * ct)} offset:{DUMPF + 4096 * ((t - 1) % 4)}', OPT['dc'], 'd')
            if t % 2 == 0:
                f_txt(f'v_mov_b32 v{vSG2}, {9 + t}')
        if t > 0 and k == OPT['sk']:
            fq.append((1, lambda: lg.wait('d')))
            if t % 2 == 0:
                f_txt(f'ds_write_b32 v{vSg}, v{vSG2}', 1, '')
            if t == OPT['ot']:
                for x in ol(sOF).split('\n'):
                    f_txt(x)
        if (t, k) == (OPT['ot'] + 1, OPT['sk'] + 1):
            fq.append((1, lambda: lg.force0()))
            for r in range(8):
                f_txt(f's_xor_b32 s{4 + r}, s{4 + r}, s{sTAG}')
            f_txt('s_or_b64 s[4:5], s[4:5], s[6:7]')
            f_txt('s_or_b64 s[8:9], s[8:9], s[10:11]')
            f_txt('s_or_b64 s[4:5], s[4:5], s[8:9]\ns_cbranch_scc1 L_po\nL_po_bk:', 2)
            fq.append((0, set_lim))
            cold.append(lambda: (spoll('L_po', ol(sOF), 8), P('s_branch L_po_bk')))
        if (t, k) == (8, 13):
            for c_ in range(4):
                f_txt(f'v_xor_b32 v{vDA + c_}, {32 * c_}, v{vSG2 + 1}')
        stamp(11) if n == 4 * LST else None
        stamp(12) if n == NT else None
        if k == 0 and t > 1:
            assert lg.done >= lg.tags['d'], (t, 'dump not drained')
        vm.wait(('a', n))
        for ct in range(4):
            a = LACC + 16 * (t % 2) + 4 * ct
            if t == 8:
                f = 4 * k + ct
                if ct % 2 == 0:
                    while nw < 2 * f + 4:
                        assert wread()
                    lg.wait(('w', f + 1))
                P(mfma(a, wloc[f], aloc[n], None if k == 0 else a))
                if f:
                    wfree.append(wloc[f - 1])
            else:
                P(mfma(a, LW + 16 * k + 4 * ct, aloc[n], None if k == 0 else a))
                if t == 7 and 4 * k + ct:
                    wfree.append(LW + 16 * k + 4 * ct - 4)
            bud = 2 if ct < 3 else 1
            if t == 8 and ct == 1:
                bud = 1
            if ct in (0, 2) and can_load(n):
                load1()
                bud -= 2
            while t == 8 and nw < min(128, 2 * (4 * k + ct) + OPT['wl']):
                assert wread()
                bud -= 1
            if fq and bud <= 0 and t == 8 and ct == 0:
                bud = 1
            while bud > 0:
                if fq:
                    c, fn = fq.pop(0)
                    fn()
                    bud -= c
                elif n >= OPT['ws'] and wread():
                    bud -= 1
                else:
                    break
        free.append(aloc[n])
    while fq:
        fq.pop(0)[1]()
    stamp(13)
    cstamp(4) if OPT['ds'] == 5 else None
    for ct in range(4):
        for r in (2 * ct, 2 * ct + 1):
            P(f'v_cvt_pk_bf16_f32 v{LACC + r}, v{LACC + 2 * r}, v{LACC + 2 * r + 1}')
        P(f'ds_write_b64 v{vDA + ct}, {vr(LACC + 2 * ct, 2)}')
    P('s_waitcnt lgkmcnt(0)')
    stamp(14)
    P('s_barrier\ns_branch L_EXIT')
    for fn in cold:
        fn()


vmh = L_phase1(OPT['qf'])
P.label('L_LQ')
vmq = L_phase1(1 - OPT['qf'])
L_phase2(vmq)
P.label('L_IDLE')
if OPT['ipl']:
    P(f'''s_bfe_u32 s{sT1}, s2, 0x20003
v_min_u32 v4, 55, v0
v_lshlrev_b32 v4, 7, v4''')
    if OPT['ipl'] & 1:
        P(f's_lshl_b32 s{sT2}, s{sT1}, 2\ns_add_u32 s{sT2}, s{sT2}, s{sI}\ns_mul_i32 s{sT2}, s{sT2}, {56 * 128}\ns_add_u32 s{sT2}, s{sT2}, {3 * 16 * 56 * 128}')
        for n in range(4):
            P(f'buffer_load_dword v5, v4, {srd(SWO)}, s{sT2} offen\ns_sub_u32 s{sT2}, s{sT2}, {16 * 56 * 128}')
    if OPT['ipl'] & 2:
        P(f'''s_lshl_b32 s{sT1}, s{sT1}, 1
s_add_u32 s{sT1}, s{sT1}, s{sRT}
s_sub_u32 s{sT1}, s{sT1}, 8
s_lshl_b32 s{sT1}, s{sT1}, 2
s_add_u32 s{sT1}, s{sT1}, s{sI}
s_mul_i32 s{sT1}, s{sT1}, {16 * 896}''')
        for n in range(2):
            P(f'buffer_load_dword v5, v4, {srd(SX)}, s{sT1} offen\ns_add_u32 s{sT1}, s{sT1}, {8 * 896}')
P('s_branch L_EXIT')

CW = 112
CX = 144
CHX = 168
cXA = 180
cHA = 182
cWA = 184
cWB = 190
cST = 196
cSO = 202
cBE = 204
cR = 196
cKXW, cHW, cPM, cONE = 216, 217, 219, 104
cM16, cM48, cL16, cCSA, cCSH = 221, 222, 223, 224, 225
cVW, cVWH, cVR, cKX, cSY, cSG = 226, 227, 228, 229, 230, 231
cF = 252
cBA, cBB, cBA0 = 232, 236, 240
cT = 244

MUTE = False
if OPT['pad'] >= 0:
    P('.p2align 12')
    if OPT['pad']:
        P('.fill %d, 4, 0xbf800000' % (OPT['pad'] // 4))
P.label('L_C')
vmS = Q(P, 'vmcnt', 63)
if True:
    vS = 16
    P('s_setprio 1')
    stats_rows()
    P('s_waitcnt lgkmcnt(0)')
    mk_srd(SX, 4, 2048 * 896)
    stats_load(vmS)
    if OPT['swarm']:
        P(f's_lshl_b32 s{sT0}, s{sT3}, 3\ns_and_b32 s{sT0}, s{sT0}, 0xffffff80\ns_add_u32 s{sT0}, s{sT0}, {WS_STATS}')
        P(f's_load_dword s10, s[20:21], s{sT0}\ns_load_dword s11, s[20:21], s{sT0} offset:64')
    P(f's_load_dword s{sTAG}, s[20:21], 0')
P(f'''v_mov_b32 v{cSY}, {SYNC}
v_lshl_add_u32 v{cSG}, s{sI}, 2, v{cSY}
v_add_u32 v{cSG}, 16, v{cSG}
v_mov_b32 v12, 0
v_lshlrev_b32 v13, 2, v0
v_add_u32 v13, {SYNC}, v13
ds_write_b32 v13, v12
v_lshlrev_b32 v{cL16}, 4, v0
v_and_b32 v11, 15, v0
v_lshrrev_b32 v10, 4, v0
v_lshrrev_b32 v13, 1, v11
v_xor_b32 v13, v13, v10
v_lshlrev_b32 v13, 4, v13
v_lshl_add_u32 v13, v11, 7, v13
s_lshl_b32 s{sT0}, s{sI}, 12
v_add_u32 v{cXA}, s{sT0}, v13
v_xor_b32 v{cXA + 1}, 64, v{cXA}
v_add_u32 v{cHA}, {HALO}, v13
v_xor_b32 v{cHA + 1}, 64, v{cHA}
v_lshlrev_b32 v12, 3, v11
v_add_u32 v{cCSA}, {CS}, v12
v_lshlrev_b32 v12, 4, v11
v_add_u32 v{cSO + 1}, {ST}, v12
s_lshl_b32 s{sT0}, s{sI}, 9
v_add_u32 v{cSO}, s{sT0}, v{cSO + 1}
v_mov_b32 v{cBE + 2}, 0
v_mov_b32 v{cBE + 3}, 0
v_mov_b32 v{cBE + 6}, 0
v_mov_b32 v{cBE + 7}, 0
v_mov_b32 v{cBE + 10}, 0
v_mov_b32 v{cBE + 11}, 0
s_lshl_b32 s{sXO}, s{sRB}, 2
s_add_u32 s{sXO}, s{sXO}, s{sI}
s_mul_i32 s{sA0}, s{sXO}, {2 * NS * 1024}
s_add_u32 s{sA0}, s{sA0}, {WS_ACT}
s_lshl_b32 s{sA1}, s{sRB}, 4
s_add_u32 s{sA1}, s{sA1}, s{sCG}
s_lshl_b32 s{sA1}, s{sA1}, 10
s_lshl_b32 s{sT1}, s{sI}, {FS}
s_add_u32 s{sA1}, s{sA1}, s{sT1}
s_add_u32 s{sA1}, s{sA1}, {WS_FLAGS}''')
stamp(0)
mk_srd(SWS, 20, WS_BYTES)
mk_srd(SOUT, 16, 2048 * 896)
P(f's_cmp_eq_u32 s{sISQ}, 1\ns_cbranch_scc1 L_CQ')


SLOW = []


def C_phase1(isq):
    t = 'Q' if isq else 'H'
    lg = Q(P, 'lgkmcnt', 15)
    LA_, HOLD, WSTEP, TM = OPT['la'], OPT['hold'], OPT['wstep'], OPT['tm']
    wsl = WSL
    if isq:
        q_addr_parts(12, 13, 14, 15)
        for e in range(2):
            for t01 in range(2):
                q_addr(cWB + 2 * e + t01, 56 * e + 32 * t01, 12, 13, 14)
        P(f'''s_bitcmp1_b32 s{sI}, 0
s_cselect_b64 vcc, -1, 0
s_lshr_b32 s{sT0}, s{sI}, 1
s_add_u32 s{sT0}, s{sT0}, 1
s_lshl_b32 s{sT0}, s{sT0}, 13
v_cndmask_b32 v{cWB + 4}, v{cWB}, v{cWB + 2}, vcc
v_cndmask_b32 v{cWB + 5}, v{cWB + 1}, v{cWB + 3}, vcc
v_add_u32 v{cWB + 4}, s{sT0}, v{cWB + 4}
v_add_u32 v{cWB + 5}, s{sT0}, v{cWB + 5}
s_lshl_b32 s{sT0}, s{sI}, 8
s_add_u32 s{sT0}, s{sT0}, 512
v_add_u32 v{cCSH}, s{sT0}, v{cCSA}
v_cmp_gt_u32 vcc, 48, v0
v_cndmask_b32 v{cM48}, 0, -1, vcc
v_lshlrev_b32 v13, 2, v10
v_sub_u32 v13, v11, v13
v_mov_b32 v15, 0xf149f2ca''')
        for r in range(4):
            for (d, add) in ((cBA, 16), (cBB, 0)):
                P(f'''v_add_u32 v14, {add - r}, v13
v_and_b32 v14, -15, v14
v_cmp_eq_u32 vcc, 0, v14
v_cndmask_b32 v{d + r}, v15, 0, vcc''')
        P(f's_cmp_eq_u32 s{sXO}, 0\ns_cselect_b64 vcc, -1, 0')
        for r in range(4):
            P(f'v_cndmask_b32 v{cBA0 + r}, v{cBA + r}, v15, vcc')
        P(f'''v_mul_u32_u24 v13, {VSTR}, v11
v_lshl_add_u32 v13, v10, 3, v13
s_mul_i32 s{sT0}, s{sI}, {32 * VSTR}
s_add_u32 s{sT1}, s{sT0}, {VREG + 16 * VSTR}
v_add_u32 v{cVW}, s{sT1}, v13
s_and_b32 s{sT1}, s{sI}, 1
s_mul_i32 s{sT1}, s{sT1}, {144 * VSTR}
s_add_u32 s{sT1}, s{sT1}, {VREG}
v_add_u32 v{cVWH}, s{sT1}, v13
v_lshrrev_b32 v13, 2, v0
v_mul_u32_u24 v13, {VSTR}, v13
v_and_b32 v14, 3, v0
v_lshl_add_u32 v13, v14, 3, v13
s_add_u32 s{sT0}, s{sT0}, {VREG}
v_add_u32 v{cVR}, s{sT0}, v13
s_lshl_b32 s{sT0}, s{sI}, 11
s_add_u32 s{sT0}, s{sT0}, {KX}
v_add_u32 v{cKX}, s{sT0}, v{cL16}
s_add_u32 s{sT1}, s{sT0}, 2048
s_cmp_eq_u32 s{sI}, 3
s_cselect_b32 s{sT1}, {DUMMY}, s{sT1}
v_add_u32 v{cKXW}, s{sT1}, v{cL16}
v_add_u32 v13, 32, v{cVWH}
v_mov_b32 v14, {DUMMY + 2048}
v_cmp_gt_u32 vcc, 48, v0
v_cndmask_b32 v13, v14, v13, vcc
s_lshl_b32 s{sT0}, s{sI}, 10
s_add_u32 s{sT0}, s{sT0}, {KX}
v_add_u32 v14, s{sT0}, v{cL16}
v_add_u32 v15, 8, v14
s_cmp_ge_u32 s{sI}, 2
s_cselect_b64 vcc, -1, 0
v_cndmask_b32 v{cHW}, v14, v{cVWH}, vcc
v_cndmask_b32 v{cHW + 1}, v15, v13, vcc
v_and_b32 v13, 1, v0
v_lshlrev_b32 v13, 4, v13
v_mov_b32 v14, 0xffff
v_lshlrev_b32 v{cPM}, v13, v14
v_mov_b32 v{cONE}, 0x3f803f80
v_mov_b32 v{cONE + 1}, 0x3f803f80
v_mov_b32 v{cONE + 2}, 0x3f803f80
v_mov_b32 v{cONE + 3}, 0x3f803f80''')
        nb = 6
        pairs = [(1, 0), (2, 0), (1, 1), (2, 1), (0, 0), (0, 1)]
        tiles = [(pi, t01) for pi in range(4) for t01 in range(2)] + [('H', 0), ('H', 1)] + \
                [(pi, t01) for pi in range(4, 6) for t01 in range(2)]
    else:
        h_addr(cWB, 12, 13)
        P(f'v_xor_b32 v{cWB + 1}, 32, v{cWB}')
        nb = 2
        tiles = [(pi, t01) for pi in range(6 if OPT['abl'] & 16 else 7) for t01 in range(2)]

    def set_slot(s):
        for b in range(nb):
            P(f'v_add_u32 v{cWA + b}, {wsl[s % 3]}, v{cWB + b}')

    def xbuf(ks):
        return 2 if (TM and ks == 13) else ks % 2

    units = []

    def unit(tile, ks):
        pi, t01 = tile
        u = dict(tile=tile, ks=ks, pre=[])
        if ks == 'E':
            u['stage'] = 6
            if pi == 'H':
                u['rd'] = [('b64', cCSH, 128 * t01)]
            elif isq:
                sg, e = pairs[pi]
                u['rd'] = [('b64', cCSA, 128 * (4 * sg + 2 * e + t01))]
            else:
                u['rd'] = [('b64', cCSA, 128 * (2 * pi + t01))]
        else:
            s, kk = divmod(ks, 2)
            u['stage'] = s
            if pi == 'H':
                a, o, o2 = cWA + 4 + t01, kk * 4096, 512
            elif isq:
                sg, e = pairs[pi]
                a, o, o2 = cWA + 2 * e + t01, sg * 8192 + kk * 4096, 512
            else:
                a, o, o2 = cWA + t01, pi * 64 + kk * 32 * 448, 4 * 448
            u['rd'] = [('tr', a, o), ('tr', a, o + o2)]
        if pi == 'H':
            u['mm'] = [(96 + 4 * t01, cBE + 8 if ks == 'E' else CHX + 4 * xbuf(ks))]
        else:
            u['mm'] = [(16 * pi + 8 * tt + 4 * t01, cBE + 4 * tt if ks == 'E' else CX + 8 * xbuf(ks) + 4 * tt)
                       for tt in range(2)]
        return u
    seen_x, seen_h = set(), set()
    order = []
    for ks in range(12 if TM else 14):
        order += [(tl, ks) for tl in tiles]
    if TM:
        for tl in tiles:
            order += [(tl, 12), (tl, 13), (tl, 'E')]
    else:
        order += [(tl, 'E') for tl in tiles]
    for tl, ks in order:
        u = unit(tl, ks)
        if ks != 'E':
            s, kk = divmod(ks, 2)
            if tl[0] == 'H':
                if ks not in seen_h:
                    seen_h.add(ks)
                    u['pre'].append(f'ds_read_b128 {vr(CHX + 4 * xbuf(ks))}, v{cHA + kk} offset:{halo_off(s)}')
            elif ks not in seen_x:
                seen_x.add(ks)
                for tt in range(2):
                    u['pre'].append(f'ds_read_b128 {vr(CX + 8 * xbuf(ks) + 4 * tt)}, v{cXA + kk} offset:{XS[s % 3] + 2048 * tt}')
        elif 'E' not in seen_x:
            seen_x.add('E')
            for tt in range(2):
                u['pre'].append(f'ds_read_b64 {vr(cBE + 4 * tt, 2)}, v{cSO} offset:{256 + 256 * tt}')
                if isq:
                    u['pre'].append(f'ds_read_b64 {vr(cR + 2 * tt, 2)}, v{cSO} offset:{256 + 256 * tt + 8}')
        elif tl == ('H', 0):
            u['pre'].append(f'ds_read_b64 {vr(cBE + 8, 2)}, v{cSO + 1}')
            u['pre'].append(f'ds_read_b64 {vr(cR + 4, 2)}, v{cSO + 1} offset:8')
        units.append(u)
    NU = len(units)
    last_ring = max(n for n, u in enumerate(units) if u['ks'] != 'E')
    done_at = {}
    for n, u in enumerate(units):
        done_at[u['tile'][0]] = n

    def rd_list(n):
        u = units[n]
        slot = CW + 4 * (n % 8)
        out = list(u['pre'])
        for j, (kind, a, o) in enumerate(u['rd']):
            if kind == 'tr':
                out.append(f'ds_read_b64_tr_b16 {vr(slot + 2 * j, 2)}, v{a} offset:{o}')
            else:
                out.append(f'ds_read_b64 {vr(slot, 2)}, v{a} offset:{o}')
        return out

    def pack(b):
        return [f'v_cvt_pk_bf16_f32 v{b + i}, v{b + 2 * i}, v{b + 2 * i + 1}' for i in range(4)]

    def scale(b, r):
        return [f'v_mul_f32 v{b + i}, v{b + i}, v{r}' for i in range(8)]

    def epi(pi):
        out = []
        if not isq:
            for tt in range(2):
                b = 16 * pi + 8 * tt
                if OPT['relu'] == 0:
                    out += [f'v_max_f32 v{b + i}, 0, v{b + i}' for i in range(8)]
                out += pack(b)
                if OPT['relu'] == 1:
                    out += [f'v_pk_max_i16 v{b + i}, v{b + i}, 0' for i in range(4)]
                out.append(f'buffer_store_dwordx4 {vr(b)}, v{cL16}, {srd(SWS)}, s{sT2 + tt} offen offset:{(pi % 4) * 1024} ' + ('sc1', '', 'nt')[OPT['hst']])
            if pi == 3:
                out += [f's_add_u32 s{sT2}, s{sT2}, 4096', f's_add_u32 s{sT3}, s{sT3}, 4096']
        elif pi == 'H':
            out += scale(96, cR + 4) + pack(96)
            out += [f'ds_write_b64 v{cHW + t01}, {vr(96 + 2 * t01, 2)}' for t01 in range(2)]
            out += ['MARK', 'NOP', 'NOP', 'NOP', 'NOP', 'PUB']
        else:
            sg, e = pairs[pi]
            for tt in range(2):
                b = 16 * pi + 8 * tt
                if sg:
                    out += scale(b, cR + 2 * tt)
                out += pack(b)
                if sg == 0:
                    out += [f'v_and_b32 v{b + i}, v{b + i}, v{cM48}' for i in (2, 3)]
                if sg == 1 and tt == 1:
                    out.append(f'ds_write_b128 v{cKXW}, {vr(b)} offset:{1024 * e}')
                if sg == 2:
                    o = e * 144 * VSTR + tt * 16 * VSTR
                    out.append(f'ds_write_b64 v{cVW}, {vr(b, 2)} offset:{o}')
                    out.append(f's_mov_b32 exec_hi, 0xffff\nds_write_b64 v{cVW}, {vr(b + 2, 2)} offset:{o + 32}\ns_mov_b32 exec_hi, -1')
        return out

    set_slot(0)
    P(f's_waitcnt lgkmcnt(0)\ns_add_u32 s{sTAG}, s{sTAG}, 1')
    if True:
        vmS.done = 0
        vmS.wait('stats')
        for x in stats_body():
            P(x)
        stats_store(Q(P, 'vmcnt', 63))
        P('s_setprio 0')
        stamp(13) if OPT['ds'] == 3 else None
    if not isq:
        P(f'''s_mul_i32 s{sT2}, s{sIDX}, {7 * 1024}
s_add_u32 s{sT2}, s{sT2}, s{sA0}
s_add_u32 s{sT3}, s{sT2}, {NS * 1024}''')
    P('s_barrier')
    stamp(1)
    cstamp(2)
    pend = []
    fill = []
    nr = 0
    cur_stage = 0
    b7_done = False

    def queue_reads(n):
        l = rd_list(n)
        for j, x in enumerate(l):
            pend.append((x, ('w', n) if j == len(l) - 1 else None))

    def flush(k=1000):
        while pend and k > 0:
            x, tag = pend.pop(0)
            P(x)
            lg.issue(tag)
            k -= 1

    slow = []

    def emit_fill():
        x = fill.pop(0)
        if x == 'MARK':
            lg.tags['kv'] = lg.n
        elif x == 'PUB':
            lg.wait('kv')
            P(f'v_mov_b32 v{cT + 6}, 1\nds_write_b32 v{cSG}, v{cT + 6} offset:16')
            lg.issue()
        elif x != 'NOP':
            P(x)
            if 'ds_write' in x:
                lg.issue()
    last_of = {}
    first_of = {}
    for n, u in enumerate(units):
        if u['ks'] != 'E':
            last_of[u['stage']] = n
        first_of.setdefault(u['stage'], n)
    while nr < LA_:
        queue_reads(nr)
        nr += 1
    flush()
    ups = len(tiles) * 2
    for n in range(NU):
        u = units[n]
        w = n
        if n % WSTEP == 0:
            while w + 1 < min(n + WSTEP, NU) and ('w', w + 1) in lg.tags:
                w += 1
        lg.wait(('w', w))
        for j, (acc, b) in enumerate(u['mm']):
            P(mfma(acc, CW + 4 * (n % 8), b, None if u['ks'] == 0 else acc))
            if j == 0 and nr < NU and units[nr]['stage'] != cur_stage and units[nr]['stage'] <= 5 + OPT['b6']:
                if nr - n <= LA_ - HOLD:
                    cur_stage = units[nr]['stage']
                    set_slot(cur_stage)
                    if HOLD:
                        lg.all()
                    stamp(3) if cur_stage == 4 else None
                    P('s_barrier')
                    stamp(5) if cur_stage == 4 else None
                    stamp(6) if cur_stage == 6 else None
                    while nr <= n + LA_:
                        queue_reads(nr)
                        nr += 1
                    flush()
            elif j == 0 and nr < NU:
                s1 = units[nr]['stage']
                if s1 != cur_stage:
                    cur_stage = s1
                    set_slot(s1)
                    if OPT['ds'] == 2:
                        stamp({5: 9, 6: 13}[s1])
                    lg.wait(('f', s1))
                    lds_cmp(cF, s1 + 1)
                    P(f's_cbranch_vccnz L_{t}w{s1}')
                    P.label(f'L_{t}w{s1}_ok')
                    slow.append(s1)
                    stamp(6) if s1 == 6 else None
                    stamp(10) if (s1 == 5 and OPT['ds'] == 2) else None
                queue_reads(nr)
                if nr + OPT['fla'] == first_of[6] and not OPT['b6']:
                    pend.append((f'ds_read_b128 {vr(cF)}, v{cSY}', ('f', units[nr + OPT['fla']]['stage'])))
                nr += 1
            last = j == len(u['mm']) - 1
            flush(1000 if last else (len(pend) + 1) // 2)
            for _ in range(OPT['nfq'] if isq else OPT['nfill']):
                if fill:
                    emit_fill()
        if n == last_of[u['stage']] and u['stage'] >= 5 + OPT['b6']:
            lds_signal(cSG, cT + 7, u['stage'] + 1)
            lg.issue()
            stamp(7) if u['stage'] == 6 else None
        if n == (NU - 1 if (isq and not OPT['qp']) else OPT['ps'] * ups) and OPT['prio']:
            P('s_setprio %d' % OPT['prio'])
        for pi, dn in done_at.items():
            if dn == n - 2:
                fill += epi(pi)
    SLOW.extend((t, s1) for s1 in slow)
    stamp(8)
    cstamp(4)
    for pi, dn in done_at.items():
        if dn >= NU - 2:
            fill += epi(pi)
    if not isq:
        while fill:
            emit_fill()
        stamp(9)
        lds_signal(cSG, cT + 1, 9)
        P('s_waitcnt vmcnt(0)\ns_branch L_CFLAG')
        return
    if 'PUB' in fill:
        k0 = fill.index('PUB')
        fill[:] = fill[:k0] + fill[k0 + 1:k0 + 9] + ['PUB'] + fill[k0 + 9:]
    while fill:
        emit_fill()
    stamp(3) if OPT['ds'] == 1 else None
    KP, VO, S = 136, 112, 144
    au = [(0, 1), (1, 1), (0, 0), (1, 0)]
    P(f'ds_read_b128 {vr(cF)}, v{cSY} offset:32')
    for n, (e, tq) in enumerate(au):
        P(mfma(S + 8 * n + 4, 32 * e + 8 * tq, 64 + 16 * e + 8 * tq, cBB))
    for n, (e, tq) in enumerate(au[:2]):
        P(mfma(S + 8 * n, 32 * e, 64 + 16 * e + 8 * tq, cBA))
    stamp(5) if OPT['ds'] == 1 else None
    P('s_waitcnt lgkmcnt(0)')
    lds_cmp(cF, 1)
    P('s_cbranch_vccz L_attp_ok')
    lds_spin('L_attp', cF, cSY, 32, 1, 0)
    P.label('L_attp_ok')
    stamp(6) if OPT['ds'] == 1 else None
    for e in range(2):
        P(f'ds_read_b128 {vr(KP + 4 * e)}, v{cKX} offset:{1024 * e}')
    for e in range(2):
        for dt in range(2):
            for kt in range(3):
                P(f'ds_read_b64_tr_b16 {vr(VO + 12 * e + 6 * dt + 2 * kt, 2)}, v{cVR} offset:{e * 144 * VSTR + kt * 16 * VSTR + 32 * dt}')
    M = cT
    U = range(4)

    def sel(n, i):
        P(f'v_max_f32 v{S + 8 * n + i}, v{S + 8 * n + 2 * i}, v{S + 8 * n + 2 * i + 1}')
    for n in (0, 1):
        for i in range(4):
            sel(n, i)
    P('s_waitcnt lgkmcnt(12)')
    for n, (e, tq) in list(enumerate(au))[2:]:
        P(mfma(S + 8 * n, KP + 4 * e, 64 + 16 * e + 8 * tq, cBA0))
    for ns in ((0, 1), (2, 3)):
        if ns[0]:
            for n in ns:
                for i in range(4):
                    sel(n, i)
        for n in ns:
            P(f'v_max3_f32 v{M + n}, v{S + 8 * n}, v{S + 8 * n + 1}, v{S + 8 * n + 2}')
        for n in ns:
            P(f'v_max_f32 v{M + n}, v{M + n}, v{S + 8 * n + 3}')
        P(f'v_permlane16_swap_b32 v{M + ns[0]}, v{M + ns[1]}\nv_max_f32 v{M + ns[0]}, v{M + ns[0]}, v{M + ns[1]}')
    P(f'''v_permlane32_swap_b32 v{M}, v{M + 2}
v_max_f32 v{M}, v{M}, v{M + 2}
v_mov_b32 v{M + 2}, v{M}
v_permlane32_swap_b32 v{M}, v{M + 2}
v_mov_b32 v{M + 1}, v{M}
v_mov_b32 v{M + 3}, v{M + 2}
v_permlane16_swap_b32 v{M}, v{M + 1}
v_permlane16_swap_b32 v{M + 2}, v{M + 3}''')
    for n in U:
        P(f'v_mul_f32 v{M + n}, v{cR + 1 + 2 * au[n][1]}, v{M + n}')
    for n in U:
        for i in range(4):
            P(f'v_fma_f32 v{S + 8 * n + i}, v{S + 8 * n + i}, v{cR + 1 + 2 * au[n][1]}, -v{M + n}')
    for n in U:
        for i in range(4):
            P(f'v_exp_f32 v{S + 8 * n + i}, v{S + 8 * n + i}')
    stamp(7) if OPT['ds'] == 1 else None
    P(f'''s_lshl_b32 s{sT2}, s{sIDX}, 11
s_add_u32 s{sT2}, s{sT2}, s{sA0}
s_add_u32 s{sT2}, s{sT2}, {56 * 1024}
s_add_u32 s{sT3}, s{sT2}, {NS * 1024}
s_waitcnt lgkmcnt(0)''')
    O = 64

    def pv(n):
        e, tq = au[n]
        P(mfma(S + 8 * n + 4, cONE, S + 8 * n, None))
        for dt in range(2):
            P(mfma(O + 8 * n + 4 * dt, VO + 12 * e + 6 * dt + 2 * tq, S + 8 * n, None))
    for n in U:
        for i in range(4):
            P(f'v_cvt_pk_bf16_f32 v{S + 8 * n + i}, v{S + 8 * n + i}, v{S + 8 * n + i}')
        for i in range(4):
            P(f'v_and_b32 v{S + 8 * n + i}, v{S + 8 * n + i}, v{cPM}')
        if n:
            pv(n - 1)
    pv(3)
    stamp(13) if OPT['ds'] == 1 else None
    for n, (e, tq) in enumerate(au):
        P(f'v_rcp_f32 v{M + n}, v{S + 8 * n + 4}')
        for i in range(8):
            P(f'v_mul_f32 v{O + 8 * n + i}, v{O + 8 * n + i}, v{M + n}')
        for x in pack(O + 8 * n):
            P(x)
        P(f'v_and_b32 v{O + 8 * n + 2}, v{O + 8 * n + 2}, v{cM48}\nv_and_b32 v{O + 8 * n + 3}, v{O + 8 * n + 3}, v{cM48}')
        P(f'buffer_store_dwordx4 {vr(O + 8 * n)}, v{cL16}, {srd(SWS)}, s{sT2 + tq} offen offset:{1024 * e} sc1')


C_phase1(0)
P.label('L_CQ')
C_phase1(1)
stamp(9)
lds_signal(cSG, cT + 1, 9)
P('s_waitcnt vmcnt(0)')
P.label('L_CFLAG')
_st = stamp
if OPT['ds'] == 1:
    def stamp(k):
        if k not in (3, 13):
            _st(k)
P(f'''v_lshrrev_b32 v1, 2, v{cL16}
v_mov_b32 v2, s{sTAG}
s_mov_b32 exec_lo, {(1 << OPT['fl']) - 1:#x}
s_mov_b32 exec_hi, 0
buffer_store_dword v2, v1, {srd(SWS)}, s{sA1} offen sc1
s_mov_b64 exec, -1
v_lshrrev_b32 v0, 4, v{cL16}''')
stamp(10)
P(f'''s_cmp_lt_u32 s{sCT}, 7
s_cbranch_scc1 L_P2C''')
if OPT['ipf']:
    P(f'''s_lshr_b32 s{sT0}, s2, 3
s_and_b32 s{sT0}, s{sT0}, 3
s_lshl_b32 s{sT0}, s{sT0}, 1
s_add_u32 s{sRT}, s{sRT}, s{sT0}
s_sub_u32 s{sRT}, s{sRT}, 8
s_and_b32 s{sT0}, s{sRT}, 1
s_lshl_b32 s{sT0}, s{sT0}, 2
s_add_u32 s{sT0}, s{sT0}, s{sI}
s_lshr_b32 s{sFB}, s{sRT}, 1
s_lshl_b32 s{sFB}, s{sFB}, 4
s_add_u32 s{sFB}, s{sFB}, s{sT0}
s_lshl_b32 s{sFB}, s{sFB}, 10
s_add_u32 s{sFB}, s{sFB}, {WS_FLAGS}
s_mul_i32 s{sT2}, s{sRT}, {4 * NS * 1024}
s_add_u32 s{sT2}, s{sT2}, {WS_ACT}
s_mul_i32 s{sT3}, s{sT0}, {LST * 1024}
s_add_u32 s{sT3}, s{sT3}, s{sT2}
v_min_u32 v4, {47 if OPT['abl'] & 16 else 55}, v0
v_lshlrev_b32 v4, 7, v4
v_lshlrev_b32 v6, 7, v0''')
    P(f'''s_and_b32 s{sT0}, s{sRT}, 1
s_mul_i32 s{sT0}, s{sT0}, {8 * NS * 1024}
s_add_u32 s62, s{sT3}, {4 * NS * 1024}
s_sub_u32 s62, s62, s{sT0}
s_mul_i32 s{sT0}, s{sI}, {NS * 1024}
s_add_u32 s{sT2}, s{sT2}, s{sT0}
s_add_u32 s{sT2}, s{sT2}, {56 * 1024}''')
    of_addr(63, sT0, sT1)
    spoll('L_ip1', BL, 4)
    for c_ in str(OPT['ipf']):
        c_ = int(c_)
        if c_ < 8:
            P(f's_add_u32 s{sT0}, s{62 if c_ < 4 else sT3}, {(c_ % 4) * NS * 1024}\nbuffer_load_dword v5, v4, {srd(SWS)}, s{sT0} offen sc1')
        else:
            spoll('L_ip2', ol(63), 8)
            for q_ in range(2):
                P(f'buffer_load_dword v5, v6, {srd(SWS)}, s{sT2} offen sc1\ns_add_u32 s{sT2}, s{sT2}, 8192')
P(f'''s_cmp_lg_u32 s2, 255
s_cbranch_scc1 L_EXIT
s_cmp_lg_u32 s{sWAVE}, 4
s_cbranch_scc1 L_EXIT
v_lshlrev_b32 v3, 12, v0
v_add_u32 v3, {WS_FLAGS}, v3''')
P.label('L_bump')
spin_guard('L_EXIT')
P('s_sleep 32')
for n in range(4):
    P(f'buffer_load_dword v{4 + n}, v3, {srd(SWS)}, 0 offen offset:{1024 * n} sc1')
P('s_waitcnt vmcnt(0)')
for n in range(4):
    P(f'v_xor_b32 v{4 + n}, v{4 + n}, v2')
for n in range(1, 4):
    P(f'v_or_b32 v4, v4, v{4 + n}')
P(f'''v_cmp_ne_u32 vcc, 0, v4
s_cbranch_vccnz L_bump
s_mov_b64 exec, 1
buffer_store_dword v2, v1, {srd(SWS)}, 0 offen sc1
s_mov_b64 exec, -1
s_branch L_EXIT''')

for t_, s_ in SLOW:
    lds_spin(f'L_{t_}w{s_}', cF, cSY, 0, s_ + 1, 0)
    P(f's_branch L_{t_}w{s_}_ok')

cX, cSt, cPp, cXu, cG, cD, cE, RO = 8, 16, 24, 40, 56, 72, 104, 112
cDA, cSA, cXO, cPO, cSO2 = 2, 4, 5, 6, 7
sXA, sXH, sPA, sXR = 62, 64, 66, 12
P.label('L_P2C')
P('s_setprio %d' % OPT['cprio'])
P(f'''v_lshrrev_b32 v1, 3, v0
v_lshl_add_u32 v1, s{sI}, 3, v1
v_and_b32 v20, 7, v0
v_mul_u32_u24 v{cXO}, 896, v1
v_lshl_add_u32 v{cXO}, v20, 4, v{cXO}
s_mul_i32 s{sXR}, s{sRT}, {64 * 896}
s_lshl_b32 s{sT0}, s{sCT}, 7
s_add_u32 s{sXR}, s{sXR}, s{sT0}
s_add_u32 s{sXR + 1}, s{sXR}, {32 * 896}
buffer_load_dwordx4 {vr(cX)}, v{cXO}, {srd(SX)}, s{sXR} offen
buffer_load_dwordx4 {vr(cX + 4)}, v{cXO}, {srd(SX)}, s{sXR + 1} offen
v_lshlrev_b32 v21, 1, v20
v_xor_b32 v21, v21, v1
v_and_b32 v21, 15, v21
v_lshlrev_b32 v21, 4, v21
v_lshl_add_u32 v{cDA}, v1, 8, v21
v_xor_b32 v{cDA + 1}, 16, v{cDA}
v_xor_b32 v21, v1, v20
v_and_b32 v21, 7, v21
v_lshlrev_b32 v21, 4, v21
v_lshl_add_u32 v21, v1, 7, v21
v_add_u32 v{cSA}, {STILE}, v21
s_lshl_b32 s{sT0}, s{sI}, 10
v_add_u32 v{cPO}, s{sT0}, v{cL16}
v_lshlrev_b32 v{cSO2}, 3, v1
s_xor_b32 s{sXA}, s{sRT}, 1
s_mul_i32 s{sXA}, s{sXA}, 7
s_add_u32 s{sXA}, s{sXA}, s{sCT}
s_lshl_b32 s{sXA}, s{sXA}, 14
s_add_u32 s{sXA}, s{sXA}, {WS_XCH}
s_add_u32 s{sXA + 1}, s{sXA}, 8192
s_mul_i32 s{sPA}, s{sRT}, 7
s_add_u32 s{sPA}, s{sPA}, s{sCT}
s_lshl_b32 s{sPA}, s{sPA}, 14
s_add_u32 s{sPA}, s{sPA}, {WS_XCH}
s_add_u32 s{sPA + 1}, s{sPA}, 8192
s_lshl_b32 s{sT1}, s{sRT}, 9
s_add_u32 s{sT1}, s{sT1}, {WS_STATS}''')
xh_addr(sXH)
for n in range(8):
    P(f'v_mov_b32 v{RO + 2 * n + 1}, s{sTAG}')


if OPT['tw']:
    cA2, cWF = 128, 132
    w2_tr_addr(cA2, 10, 20, 21)
    P(f's_mul_i32 s{sT0}, s{sI}, {4 * 28 * 128}\ns_add_u32 s{sT0}, s{sT0}, {WO}')
    for ct in range(4):
        P(f'v_add_u32 v{cA2 + ct}, s{sT0}, v{cA2 + ct}')
    P(f's_lshl_b32 s{sT0}, s{sI}, 14\ns_add_u32 s{sT0}, s{sT0}, {WO}\nv_add_u32 v20, s{sT0}, v{cL16}')
    lds_poll('L_cwl', cF, cSY, 0, 10, 2)
    for k in range(4):
        for ct in range(4):
            for j in range(2):
                P(f'ds_read_b64_tr_b16 {vr(cWF + 16 * k + 4 * ct + 2 * j, 2)}, v{cA2 + (ct ^ (2 * (k % 2)))} offset:{28 * k * 128 + 2048 * j}')
    P('s_waitcnt lgkmcnt(0)')
    lds_signal(cSG, cT, 10)
    lds_poll('L_cwt', cF, cSY, 16, 10, 0)
    P('s_setprio 0')
    for f in range(16):
        P(f'ds_write_b128 v20, {vr(cWF + 4 * f)} offset:{1024 * f}')
    P('s_setprio %d' % OPT['cprio'])


def dump_reads(rd):
    for part in range(4):
        for hf in range(2):
            P(f'ds_read_b128 {vr(cD + 8 * part + 4 * hf)}, v{cDA + hf} offset:{DUMPF + 16384 * part + 8192 * rd}')


for rd in range(2):
    lds_poll(f'L_cr{rd}', cF, cSY, 0, 11 + 2 * rd, 1)
    stamp(11) if rd else None
    dump_reads(rd)
    P('s_waitcnt lgkmcnt(4)')
    for r in range(8):
        P(f'v_add_f32 v{cD + r}, v{cD + r}, v{cD + 8 + r}')
    P('s_waitcnt lgkmcnt(0)')
    lds_signal(cSG, cT, 11 + rd)
    for r in range(8):
        P(f'v_add_f32 v{cD + 16 + r}, v{cD + 16 + r}, v{cD + 24 + r}')
    for r in range(8):
        P(f'v_add_f32 v{cD + r}, v{cD + r}, v{cD + 16 + r}')
    for r in range(4):
        P(f'v_cvt_pk_bf16_f32 v{RO + 8 * rd + 2 * r}, v{cD + 2 * r}, v{cD + 2 * r + 1}')
    for u in range(2):
        P(f'buffer_store_dwordx4 {vr(RO + 8 * rd + 4 * u)}, v{cPO}, {srd(SWS)}, s{sXA + u} offen sc1')
    if rd == 0:
        P(f's_add_u32 s{sXA}, s{sXA}, 4096\ns_add_u32 s{sXA + 1}, s{sXA + 1}, 4096')
        for r2 in range(2):
            P(f'buffer_load_dword v{cSt + 2 * r2}, v{cSO2}, {srd(SWS)}, s{sT1} offen offset:{256 * r2} sc1')
        P('s_waitcnt vmcnt(4)')
        for n in range(8):
            P(f'v_lshlrev_b32 v{cXu + 2 * n}, 16, v{cX + n}\nv_and_b32 v{cXu + 2 * n + 1}, 0xffff0000, v{cX + n}')
stamp(13)
P('s_setprio %d' % OPT['gp'])


def pload(rd):
    for u in range(2):
        P(f'buffer_load_dwordx4 {vr(cPp + 8 * rd + 4 * u)}, v{cPO}, {srd(SWS)}, s{(sPA, 14)[rd] + u} offen sc1')


def pchk(rd, cnt):
    P(f's_waitcnt vmcnt({cnt})')
    for n in range(4):
        P(f'v_xor_b32 v{cE + n}, s{sTAG}, v{cPp + 8 * rd + 2 * n + 1}')
    P(f'v_or_b32 v{cE}, v{cE}, v{cE + 1}\nv_or3_b32 v{cE}, v{cE}, v{cE + 2}, v{cE + 3}\nv_cmp_ne_u32 vcc, 0, v{cE}')


P(f's_add_u32 s14, s{sPA}, 4096\ns_add_u32 s15, s{sPA + 1}, 4096')
for rd in range(2):
    spoll(f'L_cx{rd}', f's_buffer_load_dword s4, {srd(SWS)}, s{sXH} offset:{4096 * rd} glc', 1)
    stamp(3) if rd else None
    pload(rd)
for rd in range(2):
    lds_poll(f'L_cg{rd}', cF, cSY, 0, 15 + 2 * rd, 1 - rd)
    stamp(12) if rd else None
    dump_reads(rd)
    g = cG + 8 * rd
    P('s_waitcnt lgkmcnt(4)')
    for r in range(8):
        P(f'v_add_f32 v{cD + r}, v{cD + r}, v{cD + 8 + r}')
    P('s_waitcnt lgkmcnt(0)')
    for r in range(8):
        P(f'v_add_f32 v{cD + 16 + r}, v{cD + 16 + r}, v{cD + 24 + r}')
    for r in range(8):
        P(f'v_add_f32 v{cD + r}, v{cD + r}, v{cD + 16 + r}')
    pchk(rd, 2 - 2 * rd)
    P(f's_cbranch_vccz L_px{rd}_ok')
    P.label(f'L_px{rd}')
    spin_guard(f'L_px{rd}_ok')
    P('s_sleep 1')
    pload(rd)
    pchk(rd, 0)
    P(f's_cbranch_vccnz L_px{rd}')
    P.label(f'L_px{rd}_ok')
    if rd == 0:
        for r2 in range(2):
            st = cSt + 2 * r2
            P(f'v_and_b32 v{st}, 0xffff0000, v{st}\nv_rcp_f32 v{st}, v{st}\nv_mul_f32 v{st + 1}, 0xbfb8aa3b, v{st}')
    for n in range(4):
        P(f'v_lshlrev_b32 v{g + 2 * n}, 16, v{cPp + 8 * rd + 2 * n}\nv_and_b32 v{g + 2 * n + 1}, 0xffff0000, v{cPp + 8 * rd + 2 * n}')
    for r in range(8):
        P(f'v_add_f32 v{g + r}, v{g + r}, v{cD + r}')
    for r in range(8):
        P(f'v_mul_f32 v{cE + r}, v{cSt + 2 * rd + 1}, v{g + r}')
    for r in range(8):
        P(f'v_exp_f32 v{cE + r}, v{cE + r}')
    for r in range(8):
        P(f'v_add_f32 v{cE + r}, 1.0, v{cE + r}')
    for r in range(8):
        P(f'v_rcp_f32 v{cE + r}, v{cE + r}')
    for r in range(8):
        P(f'v_mul_f32 v{g + r}, v{g + r}, v{cSt + 2 * rd}')
    for r in range(8):
        P(f'v_mul_f32 v{g + r}, v{g + r}, v{cE + r}')
stamp(14)
P('s_barrier')
stamp(6) if OPT['ds'] == 4 else None
for rd in range(2):
    P(f'ds_read_b128 {vr(cX + 4 * rd)}, v{cSA} offset:{4096 * rd}')
for rd in range(2):
    P(f's_waitcnt lgkmcnt({1 - rd})')
    for n in range(4):
        P(f'v_lshlrev_b32 v{cD + 2 * n}, 16, v{cX + 4 * rd + n}\nv_and_b32 v{cD + 2 * n + 1}, 0xffff0000, v{cX + 4 * rd + n}')
    for n in range(4):
        a = cXu + 8 * rd + 2 * n
        P(f'v_pk_fma_f32 {vr(a, 2)}, {vr(cD + 2 * n, 2)}, {vr(cG + 8 * rd + 2 * n, 2)}, {vr(a, 2)}')
    for n in range(4):
        P(f'v_cvt_pk_bf16_f32 v{cE + 4 * rd + n}, v{cXu + 8 * rd + 2 * n}, v{cXu + 8 * rd + 2 * n + 1}')
    P(f'buffer_store_dwordx4 {vr(cE + 4 * rd)}, v{cXO}, {srd(SOUT)}, s{sXR + rd} offen' + (' sc1' if OPT['osc1'] else ''))
stamp(7) if OPT['ds'] == 4 else None
P.label('L_EXIT')
if DIAG:
    P('s_waitcnt vmcnt(0)')
    stamp(15)
    diag_dump()
P.label('L_END')
P('s_endpgm')

body = P.finalize()
ref = open('cdna_kernels/%s.s.ref' % NAME).read()
hdr = [l for l in ref.split('\n') if l.startswith(';') and '@launch' not in l]
out = '\n'.join(hdr) + '\n; @launch grid=(256,1,1) block=(512,1,1) lds=%d\n' % LDS_BYTES
out += f'''.amdgcn_target "amdgcn-amd-amdhsa--gfx950"
.text
.globl {NAME}_kernel
.p2align 8
.type {NAME}_kernel,@function
{NAME}_kernel:
{body}.section .rodata,"a"
.p2align 6
.amdhsa_kernel {NAME}_kernel
  .amdhsa_next_free_vgpr 256
  .amdhsa_next_free_sgpr 102
  .amdhsa_accum_offset 256
  .amdhsa_group_segment_fixed_size 0
  .amdhsa_kernarg_size 72
  .amdhsa_user_sgpr_count 2
  .amdhsa_user_sgpr_kernarg_segment_ptr 1
  .amdhsa_system_sgpr_workgroup_id_x 1
.end_amdhsa_kernel
'''
open(sys.argv[1], 'w').write(out)
print('instructions', len(P.ins), 'nops inserted', P.nops_inserted)
```

```python
import sys
import itertools
from asmlib import Prog, Q

NAME = 'recurrent_scan__sliding_local_dilated__dense_activation_relu__prompt'
OPT = dict(diag=0, pf_code=1, pf_w=4, la=5, hold=2, wstep=2, prio=1, osc1=1, lahead=13, tm=1,
           nfill=2, cs_it=5, fla=4, ds=0, lsl=4, hw=7, cap=7, relu=1, n5=2, p5=14,
           kh=0x58ffff, kq=0x47ffff, k0=0, sfn=5, gk=5, ssl=1, nt=0, fs=7, fl=32, swarm=1, w4=2, lpause=5, pe=4, lpl=8, cprio=1, fwarm=2, xh=1, qf=1, qhold=0, la0=20, gate=9, m1=2, abl=0, p7=1, pad=2816, spf=0, capp=3, cape=7, l0=13, qfirst=0, ipff=4, hst=0, rm=0, sk=3, lpp=2, xw=10, rf=2, sprio=0, ot=3, xf=1, xo=0, na=0, fap=6, ncw2=0, nb=9, bd=5, on=33, dc=2, wl=28, ws=37, tw=0, twl=10, gp=1, esl=0, b6=0, n5q=2, qp=1, ps=6, nfq=2, xp=0, xq=2, nm=3, xs=0, xr=2, ipf=8, ipl=0)
for a in sys.argv[2:]:
    k, v = a.split('=')
    OPT[k] = int(v, 0)
PROBE = OPT.get('probe')
DIAG = OPT['diag'] or PROBE is not None

WS_FLAGS = 0x980000
FS = OPT['fs']
WS_STATS = 16384
WS_CSUM = 32768
WS_ACT = 262144
WS_XCH = 0xA00000
WS_DIAG = 0xE00000
WS_BYTES = 0xF00000
NS = 72
LST = 7

XS = [0, 16384, 32768]
WSL = [49152, 77824, 106496]
WO = 77824
NGRP = 14
HALO = 135168
WIN = 135168
ST = 157696
CS = 161792
SYNC = 163584
VSTR = 56
VREG = 141312
KX = 24576
DUMMY = 73728


def halo_off(s):
    return 2048 * ((s + 3) % 7)


DUMPF = 0
STILE = 65536
LDS_BYTES = 163840

sSPIN = 3
SPIN_MAX = 0x200000
SX, SW, SWO, SW2, SWS, SOUT = 24, 28, 32, 36, 40, 44
sWAVE, sRB, sIDX, sISQ, sCG, sRT, sCT, sROT, sTAG, sI = range(48, 58)
sT0, sT1, sT2, sT3 = 58, 59, 60, 61
sXO, sWO_, sMX, sMW, sHO, sKB = 62, 63, 64, 65, 66, 67
sA0, sA1 = 68, 69
sWF = 19
sPUB = 22
sST = 70

P = Prog()


def srd(b):
    return 's[%d:%d]' % (b, b + 3)


def vr(a, n=4):
    return 'v[%d:%d]' % (a, a + n - 1)


MUTE = False


def stamp(k):
    if DIAG and not MUTE:
        P('s_memrealtime s[%d:%d]' % (sST + 2 * k, sST + 2 * k + 1))


def cstamp(k):
    if DIAG and PROBE is None:
        P('s_memtime s[%d:%d]' % (sST + 2 * k, sST + 2 * k + 1))


def mk_srd(b, ptr, size):
    P('s_mov_b32 s%d, s%d\ns_mov_b32 s%d, s%d\ns_mov_b32 s%d, 0x%x\ns_mov_b32 s%d, 0x20000'
      % (b, ptr, b + 1, ptr + 1, b + 2, size, b + 3))


def diag_dump():
    if PROBE is not None:
        a, b = divmod(PROBE, 100)
        P(f'''s_waitcnt lgkmcnt(0)
s_cmp_lt_u32 s{sWAVE}, 4
s_cbranch_scc1 L_END
s_cmp_ge_u32 s{sCT}, 7
s_cbranch_scc1 L_END
s_sub_u32 s{sT0}, s{sST + 2 * b}, s{sST + 2 * a}
s_min_u32 s{sT0}, s{sT0}, 5000
s_lshl_b32 s{sT0}, s{sT0}, 2''')
        P.label('L_probe')
        P(f'''s_memrealtime s[{sT2}:{sT3}]
s_waitcnt lgkmcnt(0)
s_sub_u32 s{sT1}, s{sT2}, s{sST + 30}
s_cmp_lt_u32 s{sT1}, s{sT0}
s_cbranch_scc1 L_probe''')
    elif DIAG:
        P('s_lshl_b32 s%d, s2, 3\ns_add_u32 s%d, s%d, s%d\ns_lshl_b32 s%d, s%d, 6\ns_add_u32 s%d, s%d, 0x%x'
          % (sT0, sT0, sT0, sWAVE, sT0, sT0, sT0, sT0, WS_DIAG))
        P('v_mov_b32 v1, 0\ns_waitcnt lgkmcnt(0)')
        for k in range(16):
            P('v_mov_b32 v2, s%d\nbuffer_store_dword v2, v1, %s, s%d offen offset:%d' % (sST + 2 * k, srd(SWS), sT0, 4 * k))


def spin_guard(out):
    P(f's_add_u32 s{sSPIN}, s{sSPIN}, 1\ns_cmp_gt_u32 s{sSPIN}, {SPIN_MAX}\ns_cbranch_scc1 {out}')


def lds_cmp(tmp, val):
    P(f'v_min3_u32 v{tmp}, v{tmp}, v{tmp + 1}, v{tmp + 2}\nv_min_u32 v{tmp}, v{tmp}, v{tmp + 3}\nv_cmp_gt_u32 vcc, {val}, v{tmp}')


def lds_poll(name, tmp, vsync, off, val, sleep=0):
    P(f'ds_read_b128 {vr(tmp)}, v{vsync} offset:{off}\ns_waitcnt lgkmcnt(0)')
    lds_cmp(tmp, val)
    P(f's_cbranch_vccz {name}_ok')
    lds_spin(name, tmp, vsync, off, val, sleep)
    P.label(name + '_ok')


def lds_spin(name, tmp, vsync, off, val, sleep):
    P.label(name)
    spin_guard(name + '_ok')
    if sleep:
        P(f's_sleep {sleep}')
    P(f'ds_read_b128 {vr(tmp)}, v{vsync} offset:{off}\ns_waitcnt lgkmcnt(0)')
    lds_cmp(tmp, val)
    P(f's_cbranch_vccnz {name}')


def lds_signal(vaddr, tmp, val):
    P(f'v_mov_b32 v{tmp}, {val}\nds_write_b32 v{vaddr}, v{tmp}')


def w2_tr_addr(d, hi_shift, t0, t1):
    P(f'''v_bfe_u32 v{t0}, v0, 2, 3
v_lshlrev_b32 v{t0}, 7, v{t0}
v_lshrrev_b32 v{t1}, 5, v0
v_lshl_add_u32 v{t0}, v{t1}, {hi_shift}, v{t0}
v_and_b32 v{t1}, 3, v0
v_lshl_add_u32 v{t0}, v{t1}, 3, v{t0}
v_bfe_u32 v{t1}, v0, 3, 2
v_lshl_add_u32 v{d}, v{t1}, 5, v{t0}
v_xor_b32 v{d + 1}, 32, v{d}
v_xor_b32 v{d + 2}, 64, v{d}
v_xor_b32 v{d + 3}, 96, v{d}''')


def q_addr_parts(trow, tmask, tc, t):
    P(f'''v_lshrrev_b32 v{trow}, 4, v0
v_lshlrev_b32 v{trow}, 3, v{trow}
v_bfe_u32 v{t}, v0, 2, 2
v_add_u32 v{trow}, v{trow}, v{t}
v_lshlrev_b32 v{trow}, 7, v{trow}
v_bfe_u32 v{tmask}, v0, 3, 2
v_lshlrev_b32 v{tmask}, 5, v{tmask}
v_and_b32 v{tc}, 3, v0
v_lshlrev_b32 v{tc}, 3, v{tc}''')
    if OPT['p7']:
        P(f's_cmp_eq_u32 s{sIDX}, 7\ns_cselect_b32 s{sT0}, 16, 0\nv_add_u32 v{tc}, s{sT0}, v{tc}')


def q_addr(d, boff, trow, tmask, tc):
    P(f'v_add_u32 v{d}, {boff}, v{tc}\nv_min_u32 v{d}, 120, v{d}\nv_xor_b32 v{d}, v{d}, v{tmask}\nv_add_u32 v{d}, v{d}, v{trow}')


def h_addr(d, t0, t1):
    P(f'''v_lshrrev_b32 v{t0}, 4, v0
v_lshlrev_b32 v{t0}, 3, v{t0}
v_bfe_u32 v{t1}, v0, 2, 2
v_add_u32 v{t0}, v{t0}, v{t1}
v_mul_u32_u24 v{t0}, 448, v{t0}
v_bfe_u32 v{t1}, v0, 4, 1
v_lshl_add_u32 v{t0}, v{t1}, 5, v{t0}
v_and_b32 v{t1}, 3, v0
v_lshl_add_u32 v{d}, v{t1}, 3, v{t0}''')


def mfma(d, a, b, c):
    return f'v_mfma_f32_16x16x32_bf16 {vr(d)}, {vr(a)}, {vr(b)}, ' + ('0' if c is None else vr(c))


P(f'''s_cmp_ge_u32 s2, 256
s_cbranch_scc1 L_END
s_load_dwordx16 s[4:19], s[0:1], 0
s_load_dwordx2 s[20:21], s[0:1], 64''')
if OPT['pf_code']:
    P('s_getpc_b64 s[22:23]')
    P.label('L_pc')
    P(f'''s_lshl_b32 s{sT0}, s2, 10
s_and_b32 s{sT0}, s{sT0}, 0xe000
v_lshlrev_b32 v2, 4, v0
v_add_u32 v2, s{sT0}, v2
v_min_u32 v2, L_END-L_pc, v2
s_mov_b32 exec_lo, 0x01010101
s_mov_b32 exec_hi, 0x01010101
global_load_dword v247, v2, s[22:23]
s_mov_b64 exec, -1''')
P(f'''v_lshrrev_b32 v1, 6, v0
v_and_b32 v0, 63, v0
v_readfirstlane_b32 s{sWAVE}, v1
s_and_b32 s{sT0}, s2, 7
s_lshr_b32 s{sT1}, s2, 3
s_and_b32 s{sRB}, s{sT0}, 1
s_lshl_b32 s{sRB}, s{sRB}, 3
s_and_b32 s{sT2}, s{sT1}, 7
s_add_u32 s{sRB}, s{sRB}, s{sT2}
s_and_b32 s{sIDX}, s{sT0}, 6
s_bfe_u32 s{sT2}, s{sT1}, 0x10003
s_add_u32 s{sIDX}, s{sIDX}, s{sT2}
MAP1
s_lshr_b32 s{sISQ}, s{sT1}, 4
s_xor_b32 s{sISQ}, s{sISQ}, {OPT['qfirst']}
s_lshl_b32 s{sCG}, s{sISQ}, 3
s_add_u32 s{sCG}, s{sCG}, s{sIDX}
s_mul_i32 s{sT2}, s{sT1}, 9363
s_lshr_b32 s{sT2}, s{sT2}, 16
s_mul_i32 s{sT3}, s{sT2}, 7
s_sub_u32 s{sT3}, s{sT1}, s{sT3}
s_cmp_ge_u32 s{sT1}, 28
s_cselect_b32 s{sCT}, 7, s{sT3}
s_lshl_b32 s{sT2}, s{sT2}, 1
s_and_b32 s{sRT}, s{sT0}, 6
s_lshl_b32 s{sRT}, s{sRT}, 2
s_add_u32 s{sRT}, s{sRT}, s{sT2}
s_and_b32 s{sT2}, s{sT0}, 1
s_add_u32 s{sRT}, s{sRT}, s{sT2}
ROT1
s_mul_i32 s{sT2}, s{sROT}, 9363
s_lshr_b32 s{sT2}, s{sT2}, 16
s_mul_i32 s{sT2}, s{sT2}, 7
s_sub_u32 s{sROT}, s{sROT}, s{sT2}
s_and_b32 s{sPUB}, s{sROT}, 1
s_cmp_ge_u32 s{sRB}, 7
s_cselect_b32 s{sPUB}, 1, s{sPUB}
s_mov_b32 s{sSPIN}, 0
s_and_b32 s{sI}, s{sWAVE}, 3'''.replace('MAP1', '' if not OPT['m1'] else f'''s_and_b32 s{sT2}, s{sT0}, 2
s_lshl_b32 s{sT2}, s{sT2}, 1
s_and_b32 s{sT3}, s{sRB}, 11
s_add_u32 s{sT2}, s{sT2}, s{sT3}
s_and_b32 s{sT3}, s{sT0}, 4
s_bfe_u32 s{sCG}, s{sT1}, 0x20002
s_add_u32 s{sT3}, s{sT3}, s{sCG}
s_cmp_ge_u32 s{sT1}, 16
s_cselect_b32 s{sRB}, s{sT2}, s{sRB}
s_cselect_b32 s{sIDX}, s{sT3}, s{sIDX}''' if OPT['m1'] == 2 else f'''s_lshr_b32 s{sRB}, s{sT0}, 1
s_lshl_b32 s{sRB}, s{sRB}, 2
s_and_b32 s{sT2}, s{sT1}, 3
s_add_u32 s{sRB}, s{sRB}, s{sT2}
s_and_b32 s{sIDX}, s{sT0}, 1
s_lshl_b32 s{sIDX}, s{sIDX}, 2
s_bfe_u32 s{sT2}, s{sT1}, 0x20002
s_add_u32 s{sIDX}, s{sIDX}, s{sT2}''').replace('ROT1', f'''s_lshr_b32 s{sROT}, s{sT1}, 3
s_lshl_b32 s{sROT}, s{sROT}, 1
s_add_u32 s{sROT}, s{sROT}, s{sRB}''' if not OPT['m1'] else f'''s_and_b32 s{sROT}, s{sIDX}, 1
s_mul_i32 s{sROT}, s{sROT}, 3
s_and_b32 s{sT2}, s{sIDX}, 3
s_lshl_b32 s{sT2}, s{sT2}, 1
s_add_u32 s{sT2}, s{sT2}, 1
s_cmp_ge_u32 s{sT1}, 16
s_cselect_b32 s{sROT}, s{sT2}, s{sROT}
s_lshl_b32 s{sT2}, s{sRB}, 1
s_add_u32 s{sROT}, s{sROT}, s{sT2}''' if OPT['m1'] == 2 else f'''s_lshr_b32 s{sROT}, s{sT1}, 2
s_lshl_b32 s{sT2}, s{sRB}, 1
s_add_u32 s{sROT}, s{sROT}, s{sT2}'''))
if DIAG:
    for k in range(16):
        P('s_mov_b32 s%d, 0' % (sST + 2 * k))
if PROBE is not None:
    stamp(2)
P(f'''s_cmp_ge_u32 s{sWAVE}, 4
s_cbranch_scc1 L_C''')

LW, LACC, LA, LADR = 24, 136, 200, 252
vX, vW, vH, vCA, vGA, vGS = 164, 168, 175, 176, 178, 179
vSEL, vCACC, vCF, vLT = 180, 196, 200, 232
vAD1, vAD2 = 180, 184
vS = 124
vSY, vSG, vPT = 244, 245, 248


def dma(vm, voff, srdb, soff, m0base, m0imm, tag=None, nt=False):
    P(f's_add_u32 m0, s{m0base}, {m0imm}')
    P(f'buffer_load_dwordx4 v{voff}, {srd(srdb)}, s{soff} offen {"nt " if nt else ""}lds')
    vm.issue(tag)


def red32(a, t):
    for sh in (8, 4, 2, 1):
        P(f'v_add_f32_dpp v{a}, v{a}, v{a} row_ror:{sh} row_mask:0xf bank_mask:0xf')
    P(f'v_mov_b32 v{t}, v{a}\nv_permlane16_swap_b32 v{t}, v{a}\nv_add_f32 v{a}, v{a}, v{t}')


def stats_rows():
    P(f'''v_and_b32 v{vS}, 31, v0
v_lshrrev_b32 v{vS + 1}, 5, v0
v_mul_u32_u24 v{vS + 2}, 896, v{vS + 1}
v_lshl_add_u32 v{vS + 2}, v{vS}, 4, v{vS + 2}
v_cmp_gt_u32 vcc, 28, v{vS}
v_mov_b32 v{vS + 3}, 0x10000000
v_cndmask_b32 v{vS + 2}, v{vS + 3}, v{vS + 2}, vcc
v_cndmask_b32 v{vS + 3}, 0, 1.0, vcc
s_lshl_b32 s{sT0}, s{sRB}, 7
s_lshl_b32 s{sT1}, s{sCG}, 3
s_add_u32 s{sT0}, s{sT0}, s{sT1}
s_lshl_b32 s{sT1}, s{sI}, 1
s_add_u32 s{sT3}, s{sT0}, s{sT1}
s_mul_i32 s{sT2}, s{sT3}, 896''')


def stats_load(vm):
    for u in range(2):
        P(f'buffer_load_dwordx4 {vr(vS + 4 + 4 * u)}, v{vS + 2}, {srd(SX)}, s{sT2} offen offset:{448 * u}')
        vm.issue('stats')

def stats_body():
    n0 = len(P.ins)
    a, d = vS + 12, vS + 16
    for n in range(8):
        P(f'v_lshlrev_b32 v{d + 2 * n}, 16, v{vS + 4 + n}\nv_and_b32 v{d + 1 + 2 * n}, 0xffff0000, v{vS + 4 + n}')
    P(f'v_add_f32 v{a}, v{d}, v{d + 1}\nv_add_f32 v{a + 1}, v{d + 2}, v{d + 3}')
    for n in range(4, 16):
        P(f'v_add_f32 v{a + n % 2}, v{a + n % 2}, v{d + n}')
    P(f'v_add_f32 v{a}, v{a}, v{a + 1}')
    red32(a, a + 1)
    P(f'v_mul_f32 v{a}, 0x3b124925, v{a}')
    for n in range(16):
        P(f'v_sub_f32 v{d + n}, v{d + n}, v{a}')
    P(f'v_mul_f32 v{a + 2}, v{d}, v{d}\nv_mul_f32 v{a + 3}, v{d + 1}, v{d + 1}')
    for n in range(2, 16):
        P(f'v_fmac_f32 v{a + 2 + n % 2}, v{d + n}, v{d + n}')
    P(f'v_add_f32 v{a + 2}, v{a + 2}, v{a + 3}\nv_mul_f32 v{a + 2}, v{a + 2}, v{vS + 3}')
    red32(a + 2, a + 1)
    P(f'''v_mul_f32 v{a + 2}, 0x3b124925, v{a + 2}
v_cvt_pk_bf16_f32 v{a + 2}, 0, v{a + 2}
v_add_f32 v{a + 2}, 0x3727c5ac, v{a + 2}
v_cvt_pk_bf16_f32 v{a + 2}, 0, v{a + 2}
v_sqrt_f32 v{a + 2}, v{a + 2}
v_cvt_pk_bf16_f32 v{a + 2}, v{a}, v{a + 2}
v_mov_b32 v{a + 3}, s{sTAG}
v_lshlrev_b32 v{a + 1}, 3, v{vS + 1}''')
    out = [x.text for x in P.ins[n0:]]
    del P.ins[n0:]
    return out

def stats_store(vm):
    a = vS + 12
    P(f'''s_lshl_b32 s{sT3}, s{sT3}, 3
s_add_u32 s{sT3}, s{sT3}, {WS_STATS}
s_mov_b32 exec_lo, 1
s_mov_b32 exec_hi, 1
buffer_store_dwordx2 {vr(a + 2, 2)}, v{a + 1}, {srd(SWS)}, s{sT3} offen sc1
s_mov_b64 exec, -1''')
    vm.issue()


sFB = 23
sFA = 18
AL = '\n'.join(f's_buffer_load_dword s{4 + g}, {srd(SWS)}, s{sFA} offset:{512 + (g << FS)} glc' for g in range(2))
BL = '\n'.join(f's_buffer_load_dword s{4 + g}, {srd(SWS)}, s{sFB} offset:{g << FS} glc' for g in range(4))


def of_addr(d, t0, t1):
    P(f'''s_lshr_b32 s{d}, s{sRT}, 1
s_lshl_b32 s{d}, s{d}, 14
s_and_b32 s{t0}, s{sRT}, 1
s_lshl_b32 s{t0}, s{t0}, 1
s_lshr_b32 s{t1}, s{sI}, 1
s_add_u32 s{t0}, s{t0}, s{t1}
s_lshl_b32 s{t0}, s{t0}, {FS}
s_add_u32 s{d}, s{d}, s{t0}
s_add_u32 s{d}, s{d}, {WS_FLAGS + 8192}''')


def ol(a):
    return '\n'.join(f's_buffer_load_dword s{4 + p_}, {srd(SWS)}, s{a} offset:{1024 * p_} glc' for p_ in range(8))


def xh_addr(d, w=None):
    P(f'''s_mul_i32 s{d}, s{sRT}, 7
s_add_u32 s{d}, s{d}, s{sCT}
s_lshl_b32 s{d}, s{d}, 4
s_add_u32 s{d}, s{d}, s{sI}
s_lshl_b32 s{d}, s{d}, 10
s_add_u32 s{d}, s{d}, {WS_XCH + 8192 + 1020}''')


class W2Plan:
    def __init__(self, vm):
        self.vm = vm
        self.pairs = []
        self.grp = set()
        self.loc = {}
        self.pending = []
        self.ncw = 0

    def wopair(self):
        c = [g for g in (0, 2, 4) if g in self.grp and g + 1 in self.grp]
        return c[0] if c else None

    def has_pair(self):
        return bool(self.pairs) or self.wopair() is not None

    def own(self, hs):
        for h in hs:
            if self.pairs:
                a = self.pairs.pop(0)
            else:
                g = self.wopair()
                self.grp -= {g, g + 1}
                a = WO + 4096 * g
            self.loc[h] = a
            for u in range(2):
                dma(self.vm, 2 + u, SW2, sA0, sMX, a + 4096 * u, ('own', h))
            P(f's_add_u32 s{sA0}, s{sA0}, {16 * 896}')

    def sync(self):
        if self.pending:
            P('s_waitcnt lgkmcnt(0)')
            for h in self.pending:
                a = self.loc[h]
                if WO <= a < WO + 4096 * NGRP:
                    self.grp |= {(a - WO) // 4096, (a - WO) // 4096 + 1}
                else:
                    self.pairs.append(a)
            self.pending = []

    def stage(self, hs):
        self.vm.wait(('own', hs[-1]))
        self.sync()
        for h in hs:
            o = self.loc[h]
            base = (LADR, vAD1, vAD2)[o >> 16]
            for ct in range(4):
                P(f'ds_read_b64_tr_b16 {vr(LW + 8 * (h & ~1) + 4 * ct + 2 * (h & 1), 2)}, v{base + ct} offset:{o & 0xffff}')
        self.pending = list(hs)

    def cw(self):
        if NGRP - self.ncw == OPT['pe'] and not OPT['na'] and not OPT['ncw2']:
            P(BL)
        g = max(self.grp)
        self.grp.remove(g)
        P(f's_add_u32 s{sT0}, s{sA1}, {g * 28672 + (0x20000000 if (OPT["abl"] & 4 or (OPT["abl"] & 32 and not self.isq)) else 0)}')
        dma(self.vm, 2, SWO, sT0, sMX, WO + 4096 * g, ('cw', g))
        self.ncw += 1


def spoll(name, loads, nreg, onfail=None):
    P.label(name)
    P(loads)
    P.label(name + '_w')
    P('s_waitcnt lgkmcnt(0)')
    for n in range(nreg):
        P(f's_xor_b32 s{4 + n}, s{4 + n}, s{sTAG}')
    if nreg == 1:
        pass
    elif nreg == 2:
        P('s_or_b32 s4, s4, s5')
    elif nreg == 4:
        P('s_or_b64 s[4:5], s[4:5], s[6:7]')
    else:
        P('s_or_b64 s[4:5], s[4:5], s[6:7]\ns_or_b64 s[8:9], s[8:9], s[10:11]\ns_or_b64 s[4:5], s[4:5], s[8:9]')
    P(f's_cbranch_scc0 {name}_ok')
    if onfail:
        onfail()
    spin_guard(name + '_ok')
    P(f's_sleep {OPT["ssl"]}\ns_branch {name}')
    P.label(name + '_ok')


P(f'''v_lshrrev_b32 v{vLT}, 3, v0
v_lshl_add_u32 v{vLT}, s{sI}, 3, v{vLT}
v_mul_u32_u24 v{vX}, 896, v{vLT}
v_lshrrev_b32 v{vLT}, 1, v{vLT}
v_xor_b32 v{vLT}, v{vLT}, v0
v_and_b32 v{vLT}, 7, v{vLT}
v_lshl_add_u32 v{vX}, v{vLT}, 4, v{vX}
v_add_u32 v{vX + 1}, 28672, v{vX}
v_add_u32 v{vX + 2}, 57344, v{vX}
v_add_u32 v{vX + 3}, 86016, v{vX}
s_mul_i32 s{sXO}, s{sRB}, 114688
s_lshl_b32 s{sT0}, s{sROT}, 7
s_add_u32 s{sXO}, s{sXO}, s{sT0}
s_mov_b32 s{sKB}, s{sROT}
s_lshl_b32 s{sMX}, s{sI}, 10
s_cmp_eq_u32 s{sISQ}, {1 - OPT['qf']}
s_cbranch_scc1 L_LQ''')


def L_phase1(isq):
    t = 'Q' if isq else 'H'
    vm = Q(P, 'vmcnt', 63)
    wstr = 2688 if isq else 3584
    wsl = WSL
    globals()['MUTE'] = False

    def gen_st(s):
        for n in range(4):
            dma(vm, vX + n, SX, sXO, sMX, XS[s % 3] + 4096 * n, nt=(OPT['nt'] & 1 and s < 1))
            yield
        if isq and s % 2 == 0:
            if s < 6:
                P(f'''s_lshr_b32 s{sT0}, s{sI}, 1
s_add_u32 s{sT0}, s{sT0}, s{sKB}
s_cmp_eq_u32 s{sT0}, 7
s_cselect_b32 s{sT0}, 0, s{sT0}
s_lshl_b32 s{sT0}, s{sT0}, 7
s_add_u32 s{sT0}, s{sT0}, s{sHO}''')
                dma(vm, vH, SX, sT0, sMX, HALO + halo_off(s))
            else:
                P(f'''s_lshl_b32 s{sT0}, s{sKB}, 7
s_add_u32 s{sT0}, s{sT0}, s{sHO}
s_and_b32 s{sT1}, s{sMX}, 1024''')
                dma(vm, vH, SX, sT0, sT1, HALO + halo_off(s))
            yield
        nw = 6 if isq else 7
        for n in range(nw):
            o = (n // 2) * 8192 + (n % 2) * 1024 if isq else n * 1024
            dma(vm, vW + n, SW, sWO_, sMW, wsl[s % 3] + o, ('st', s), nt=(OPT['nt'] & 2 and s < 1))
            if n == nw - 1 and s < 6:
                P(f'''s_add_u32 s{sKB}, s{sKB}, 1
s_cmp_eq_u32 s{sKB}, 7
s_cselect_b32 s{sKB}, 0, s{sKB}
s_cselect_b32 s{sT0}, {7 * 128}, 0
s_cselect_b32 s{sT1}, {7 * 64 * wstr}, 0
s_add_u32 s{sXO}, s{sXO}, 128
s_add_u32 s{sWO_}, s{sWO_}, {64 * wstr}
s_sub_u32 s{sXO}, s{sXO}, s{sT0}
s_sub_u32 s{sWO_}, s{sWO_}, s{sT1}''')
            yield

    def run(g, n=1000):
        for _ in range(n):
            if next(g, 'end') == 'end':
                break

    if isq:
        P(f'''v_lshrrev_b32 v{vLT}, 3, v0
v_mul_u32_u24 v{vW}, 2688, v{vLT}
v_bfe_u32 v{vLT}, v0, 4, 1
v_lshlrev_b32 v{vLT}, 1, v{vLT}
v_xor_b32 v{vLT}, v{vLT}, v0
v_and_b32 v{vLT}, 7, v{vLT}
v_lshlrev_b32 v{vLT}, 4, v{vLT}
v_xor_b32 v{vLT + 1}, 64, v{vLT}
v_add_u32 v{vW + 1}, {8 * 2688}, v{vW}
v_add_u32 v{vW}, v{vW}, v{vLT}
v_add_u32 v{vW + 1}, v{vW + 1}, v{vLT + 1}''')
        for n in range(2, 6):
            P(f'v_add_u32 v{vW + n}, {(n // 2) * 896}, v{vW + n % 2}')
        P(f'''s_mul_i32 s{sT0}, s{sIDX}, 112
s_min_u32 s{sT0}, s{sT0}, {768 if OPT['p7'] else 1024}
s_and_b32 s{sT0}, s{sT0}, {0xff80 if OPT['abl'] & 8 else 0xffff}
s_lshl_b32 s{sMW}, s{sI}, 11
s_lshr_b32 s{sT1}, s{sI}, 1
s_mul_i32 s{sT1}, s{sT1}, {16 * 896}
v_subrev_u32 v{vH}, s{sT1}, v{vX}
s_mul_i32 s{sHO}, s{sRB}, 114688
s_max_u32 s{sHO}, s{sHO}, {16 * 896}
s_sub_u32 s{sHO}, s{sHO}, {16 * 896}''')
    else:
        P(f's_movk_i32 s{sT0}, 3136')
        for n in range(7):
            P(f'''v_add_u32 v{vLT}, {64 * n}, v0
v_mul_u32_u24 v{vLT + 1}, 2341, v{vLT}
v_lshrrev_b32 v{vLT + 1}, 16, v{vLT + 1}
v_lshlrev_b32 v{vLT}, 4, v{vLT}
v_mad_u32_u24 v{vW + n}, v{vLT + 1}, s{sT0}, v{vLT}''')
            if n == 3:
                P(f'v_and_b32 v{vLT + 1}, 8, v{vLT + 1}\nv_lshlrev_b32 v{vLT + 1}, 2, v{vLT + 1}\nv_xor_b32 v{vW + n}, v{vW + n}, v{vLT + 1}')
            elif n > 3:
                P(f'v_xor_b32 v{vW + n}, 32, v{vW + n}')
        P(f's_mul_i32 s{sT0}, s{sIDX}, 448\ns_mul_i32 s{sMW}, s{sI}, 7168')
    P(f'''s_lshl_b32 s{sT1}, s{sROT}, 2
s_add_u32 s{sT1}, s{sT1}, s{sI}
s_mul_i32 s{sWO_}, s{sT1}, {16 * wstr}
s_add_u32 s{sWO_}, s{sWO_}, s{sT0}''')
    P('s_waitcnt lgkmcnt(0)')
    mk_srd(SX, 4, 2048 * 896)
    mk_srd(SW, 6 if isq else 12, 448 * wstr)
    stamp(0)
    KS = [int(c, 16) for c in '%06x' % OPT['kq' if isq else 'kh']]
    gens = [gen_st(s) for s in range(7)]
    run(gens[0])
    run(gens[1], min(KS[0], OPT['k0']))
    P(f's_load_dword s{sTAG}, s[20:21], 0')
    mk_srd(SWO, 8, 448 * 896)
    mk_srd(SW2, 14, 1792 * 896)
    mk_srd(SWS, 20, WS_BYTES)
    mk_srd(SOUT, 16, 2048 * 896)
    P(f'v_bfe_u32 v{vLT}, v0, 2, 2\nv_mov_b32 v{vLT + 1}, 0x3f803f80')
    for m in range(4):
        P(f'v_cmp_eq_u32 vcc, {m}, v{vLT}\nv_cndmask_b32 v{vSEL + 4 * m}, 0, v{vLT + 1}, vcc')
        for r in range(1, 4):
            P(f'v_mov_b32 v{vSEL + 4 * m + r}, v{vSEL + 4 * m}')
    if isq:
        q_addr_parts(vLT, vLT + 1, vLT + 2, vLT + 3)
        P(f'''s_lshr_b32 s{sT0}, s{sI}, 1
s_mul_i32 s{sT0}, s{sT0}, 56
s_and_b32 s{sT1}, s{sI}, 1
s_lshl_b32 s{sT1}, s{sT1}, 5
s_add_u32 s{sT0}, s{sT0}, s{sT1}''')
        q_addr(vCA, f's{sT0}', vLT, vLT + 1, vLT + 2)
        ntile, tstr, rstr, kstr = 3, 8192, 128, 4096
    else:
        h_addr(vCA, vLT, vLT + 1)
        P(f'''s_and_b32 s{sT0}, s{sI}, 1
s_lshl_b32 s{sT0}, s{sT0}, 5
v_xor_b32 v{vCA}, s{sT0}, v{vCA}
s_lshr_b32 s{sT0}, s{sI}, 1
s_lshl_b32 s{sT0}, s{sT0}, 6
v_add_u32 v{vCA}, s{sT0}, v{vCA}''')
        ntile, tstr, rstr, kstr = 4, 128, 448, 32 * 448
    w2_tr_addr(LADR, 12, vLT, vLT + 1)
    for ct in range(4):
        P(f'v_add_u32 v{LADR + ct}, s{sMX}, v{LADR + ct}')
    P(f'''v_lshrrev_b32 v{vLT}, 3, v0
v_mul_u32_u24 v2, 896, v{vLT}
v_and_b32 v{vLT}, 6, v{vLT}
v_xor_b32 v{vLT}, v{vLT}, v0
v_and_b32 v{vLT}, 7, v{vLT}
v_lshl_add_u32 v2, v{vLT}, 4, v2
v_add_u32 v3, {8 * 896}, v2
v_lshlrev_b32 v1, 4, v0
s_and_b32 s{sT0}, s{sRT}, 1
s_lshl_b32 s{sT0}, s{sT0}, 2
s_add_u32 s{sT0}, s{sT0}, s{sI}
s_mul_i32 s{sA0}, s{sT0}, {LST * 32 * 896}
s_lshr_b32 s{sFB}, s{sRT}, 1
s_lshl_b32 s{sFB}, s{sFB}, 4
s_add_u32 s{sFB}, s{sFB}, s{sT0}
s_lshl_b32 s{sFB}, s{sFB}, 10
s_add_u32 s{sFB}, s{sFB}, {WS_FLAGS}
s_andn2_b32 s{sFA}, 1, s{sRT}
s_lshl_b32 s{sFA}, s{sFA}, {FS + 1}
s_add_u32 s{sFA}, s{sFA}, s{sFB}
s_lshl_b32 s{sT0}, s{sCT}, 7
s_cmp_lt_u32 s{sCT}, 7
s_cselect_b32 s{sT0}, s{sT0}, 0x40000000
s_add_u32 s{sA0}, s{sA0}, s{sT0}
s_mul_i32 s{sA1}, s{sI}, {8 * 896}
s_add_u32 s{sA1}, s{sA1}, s{sT0}
v_lshl_add_u32 v{vGA}, s{sI}, 6, v0
v_min_u32 v{vGS}, 143, v{vGA}
v_lshlrev_b32 v{vGA}, 3, v{vGA}
v_mov_b32 v{vSY}, {SYNC}
v_lshl_add_u32 v{vSG}, s{sI}, 2, v{vSY}''')
    run(gens[1], KS[0] - min(KS[0], OPT['k0']))

    def csum_part(s):
        lab = f'L_{t}cs{s}'
        P(f's_cmp_lg_u32 s{sPUB}, 0\ns_cbranch_scc1 {lab}')
        if s == 1:
            P(f's_cmp_eq_u32 s{sROT}, 6\ns_cbranch_scc1 {lab}b')
        P(f'v_add_u32 v{vCA + 1}, {wsl[s]}, v{vCA}')
        if not isq:
            P(f's_and_b32 s{sT0}, s{sI}, 2\ns_lshl_b32 s{sT0}, s{sT0}, 6\nv_subrev_u32 v{vLT + 4}, s{sT0}, v{vCA + 1}')
        for kk in range(2):
            for m in range(ntile):
                f = vCF + 16 * kk + 4 * m
                o = m * tstr + kk * kstr
                va = vLT + 4 if m == 3 else vCA + 1
                P(f'ds_read_b64_tr_b16 {vr(f, 2)}, v{va} offset:{o}')
                P(f'ds_read_b64_tr_b16 {vr(f + 2, 2)}, v{va} offset:{o + 4 * rstr}')
        P('s_waitcnt lgkmcnt(0)')
        for kk in range(2):
            for m in range(ntile):
                P(mfma(vCACC, vSEL + 4 * m, vCF + 16 * kk + 4 * m, None if (s, kk, m) == (0, 0, 0) else vCACC))
        if s == 1:
            P.label(lab + 'b')
        P.label(lab)
        if s == 1:
            P(f'''s_lshl_b32 s{sT0}, s{sCG}, 13
s_lshl_b32 s{sT1}, s{sROT}, 10
s_add_u32 s{sT0}, s{sT0}, s{sT1}
s_lshl_b32 s{sT1}, s{sI}, 7
s_add_u32 s{sT0}, s{sT0}, s{sT1}
s_add_u32 s{sT0}, s{sT0}, {WS_CSUM}
s_cmp_lg_u32 s{sPUB}, 0
s_cselect_b32 s{sT0}, 0x40000000, s{sT0}
v_lshrrev_b32 v{vLT}, 4, v0
v_lshlrev_b32 v{vLT}, 9, v{vLT}
v_and_b32 v{vLT + 1}, 15, v0
v_lshl_add_u32 v{vLT}, v{vLT + 1}, 3, v{vLT}
v_mov_b32 v{vCACC + 1}, s{sTAG}
buffer_store_dwordx2 {vr(vCACC, 2)}, v{vLT}, {srd(SWS)}, s{sT0} offen sc1''')
            vm.issue()

    def gather_issue(count=True):
        for pi in range(4):
            P(f'buffer_load_dwordx2 {vr(vCF + 2 * pi, 2)}, v{vGA}, {srd(SWS)}, s{sT2 + pi // 2} offen offset:{2048 * (pi % 2)} sc1')
            if count:
                vm.issue('gather')
        P(f'''s_lshl_b32 s{sT0}, s{sRB}, 7
s_sub_u32 s{sT0}, s{sT0}, 16
v_add_u32 v{vCF + 10}, s{sT0}, v{vGS}
v_max_i32 v{vCF + 10}, 0, v{vCF + 10}
v_lshlrev_b32 v{vCF + 10}, 3, v{vCF + 10}
s_movk_i32 s{sT0}, {WS_STATS}
buffer_load_dwordx2 {vr(vCF + 8, 2)}, v{vCF + 10}, {srd(SWS)}, s{sT0} offen sc1''')
        if count:
            vm.issue('gather')

    def gather_start():
        P(f'''s_lshl_b32 s{sT2}, s{sCG}, 13
s_add_u32 s{sT2}, s{sT2}, {WS_CSUM}
s_add_u32 s{sT3}, s{sT2}, 4096''')
        gather_issue()

    def gather_cmp():
        for pi in range(5):
            P(f'v_xor_b32 v{vLT + pi}, s{sTAG}, v{vCF + 2 * pi + 1}')
        P(f'''v_or3_b32 v{vLT}, v{vLT}, v{vLT + 1}, v{vLT + 4}
v_or3_b32 v{vLT}, v{vLT}, v{vLT + 2}, v{vLT + 3}
v_cmp_ne_u32 vcc, 0, v{vLT}''')

    def gather_fin():
        for x in gather_chk():
            P(x)

    def gather_chk():
        vm.wait('gather')
        gather_cmp()
        P(f's_cbranch_vccz L_{t}gok')
        P.label(f'L_{t}gre')
        spin_guard(f'L_{t}gok')
        P('s_sleep 1')
        gather_issue(False)
        P('s_waitcnt vmcnt(0)')
        gather_cmp()
        P(f's_cbranch_vccnz L_{t}gre')
        P.label(f'L_{t}gok')
        a, b = vCF, vLT + 2
        txt = (f'''v_add_f32 v{a}, v{a}, v{a + 2}
v_add_f32 v{a + 4}, v{a + 4}, v{a + 6}
v_add_f32 v{a}, v{a}, v{a + 4}
v_mul_f32 v{a}, 0x3e800000, v{a}
v_and_b32 v{a + 14}, 0xffff0000, v{a + 8}
v_and_b32 v{a + 13}, 0xffff, v{a + 8}
v_rcp_f32 v{a + 14}, v{a + 14}
v_xor_b32 v{a + 13}, 0x8000, v{a + 13}
v_lshl_or_b32 v{a + 12}, v{a + 13}, 16, v{a + 13}
v_mul_f32 v{a + 15}, 0x3e8b9a4d, v{a + 14}
v_lshlrev_b32 v{a + 10}, 4, v{vGS}
v_add_u32 v{a + 10}, {ST}, v{a + 10}
ds_write_b128 v{a + 10}, {vr(a + 12)}
v_cvt_pk_bf16_f32 v{b}, 0, v{a}
v_sub_f32 v{b + 2}, v{a}, v{b}
v_cvt_pk_bf16_f32 v{b}, v{a}, v{b + 2}
v_and_b32 v{b + 1}, 0xffff0000, v{b}
v_sub_f32 v{b + 1}, v{b + 2}, v{b + 1}
v_cvt_pk_bf16_f32 v{b + 1}, v{b + 1}, 0
v_add_u32 v{vLT}, {CS}, v{vGA}
v_cmp_gt_u32 vcc, {224 * 8}, v{vGA}
s_mov_b64 exec, vcc|ds_write_b64 v{vLT}, {vr(b, 2)}|s_mov_b64 exec, -1''')
        return [x.replace('|', '\n') for x in txt.split('\n')]

    def pf_w():
        P(f'''s_lshl_b32 s{sT1}, s2, 2
s_add_u32 s{sT1}, s{sT1}, s{sI}
s_lshl_b32 s{sT1}, s{sT1}, 11
v_lshlrev_b32 v{vLT + 8}, 7, v0
s_mov_b64 exec, 0xffff
buffer_load_dword v{vLT + 9}, v{vLT + 8}, {srd(SW2)}, s{sT1} offen
buffer_load_dword v{vLT + 9}, v{vLT + 8}, {srd(SWO)}, s{sT1} offen
s_mov_b64 exec, -1''')
        vm.issue()
        vm.issue()

    P(f's_waitcnt lgkmcnt(0)\ns_add_u32 s{sTAG}, s{sTAG}, 1')
    w2 = W2Plan(vm)
    w2.isq = isq
    if not isq:
        w2.pairs += [WIN, WIN + 8192]
    nown = 0
    nstg = 0

    def own(n):
        nonlocal nown
        n = min(n, 2 * LST - nown)
        w2.own(range(nown, nown + n))
        nown += n

    def stage(n):
        nonlocal nstg
        n = min(n, nown - nstg)
        if n > 0:
            w2.stage(list(range(nstg, nstg + n)))
        nstg += n

    def cwait(v):
        lds_poll(f'L_{t}cp{v}', vPT, vSY, 16, v, OPT['lsl'])

    def fwarm():
        P(BL)
        if OPT['na']:
            P(AL.replace('s4,', 's11,').replace('s5,', 's11,'))
        of_addr(sT0, sT1, 10)
        P(f's_and_b32 s{sT1}, s{sI}, 1\ns_lshl_b32 s{sT1}, s{sT1}, 12\ns_add_u32 s{sT0}, s{sT0}, s{sT1}')
        for p_ in range(4):
            P(f's_buffer_load_dword s11, {srd(SWS)}, s{sT0} offset:{1024 * p_} glc')
        xh_addr(sT0, sI)
        P(f's_buffer_load_dword s11, {srd(SWS)}, s{sT0} glc\ns_buffer_load_dword s11, {srd(SWS)}, s{sT0} offset:4096 glc')

    nspf = 0

    def spf(n):
        nonlocal nspf
        if nspf == 0:
            P(f'''s_lshl_b32 s9, s2, 2
s_add_u32 s9, s9, s{sI}
s_mul_i32 s8, s9, {25 * 64}
s_mul_i32 s9, s9, {7 * 64}''')
        for _ in range(n):
            if nspf < 25:
                P(f's_buffer_load_dword s12, {srd(SW2)}, s8 offset:{64 * nspf}')
            elif nspf < 32:
                P(f's_buffer_load_dword s12, {srd(SWO)}, s9 offset:{64 * (nspf - 25)}')
            nspf += 1
    if OPT['fwarm'] == 9:
        fwarm()
    spn = [int(c, 16) for c in '%05x' % OPT['spf']]
    fin = set()
    wbs = [int(c) for c in '%05d' % OPT['w4']]
    sfill = []
    for s in range(5):
        if OPT['ds'] == 3:
            stamp(1 + 3 * s)
            vm.wait(('st', s))
            stamp(2 + 3 * s)
            P('s_barrier')
            stamp(3 + 3 * s) if s < 4 else None
        else:
            stamp(13) if s == 4 else None
            vm.wait(('st', s))
            stamp(14) if s == 4 else None
            P('s_barrier')
            stamp({0: 1, 3: 3, 4: 5}[s]) if s in (0, 3, 4) else None
        def extras(st):
            if OPT['pf_w'] == st:
                pf_w()

        def stream():
            for st, lim in ((s + 1, 99), (s + 2, KS[s + 1])):
                if st in fin:
                    continue
                k = 0
                while k < lim:
                    if next(gens[st], 'end') == 'end':
                        fin.add(st)
                        extras(st)
                        break
                    k += 1
                    yield
        g = stream()
        if OPT['cs_it'] == 10 * s - 5 and s > 1:
            gather_start()
        if s < 2:
            run(g, 5)
            csum_part(s)
        if s == OPT['cs_it'] + 1 or (OPT['cs_it'] == 10 * s - 15 and s > 2):
            run(g, OPT['gk'])
            sfill = gather_chk()
        while next(g, 'end') != 'end':
            for _ in range(OPT['sfn']):
                if sfill:
                    P(sfill.pop(0))
        if s == OPT['cs_it']:
            gather_start()
        if True:
            while sfill:
                P(sfill.pop(0))
        if spn[s]:
            spf(spn[s])
        if s == OPT['fwarm']:
            fwarm()
        if s == 1:
            for ct in range(4):
                P(f'v_add_u32 v{vAD1 + ct}, 0x10000, v{LADR + ct}\nv_add_u32 v{vAD2 + ct}, 0x20000, v{LADR + ct}')
        if not isq and wbs[s]:
            if len(w2.pairs) < wbs[s]:
                stage(wbs[s] - len(w2.pairs))
                w2.sync()
            own(wbs[s])
    global MUTE
    MUTE = OPT['ds'] == 3

    def progress(total, cap=OPT['cap']):
        left = total
        while left > 0:
            isown = nown < 2 * LST
            if not (w2.has_pair() if isown else any(g_ >= OPT['ncw2'] for g_ in w2.grp)):
                if w2.pending:
                    w2.sync()
                elif nstg < nown:
                    stage(1)
                else:
                    break
                continue
            if isown:
                own(1)
                left -= 2
            else:
                w2.cw()
                left -= 1
            while nstg < nown and vm.n - vm.tags[('own', nstg)] >= cap:
                stage(1)
            if vm.n - vm.done > cap:
                vm.wait(vm.n - cap)
    vm.wait(('st', 5))
    stamp(2)
    P('s_barrier')
    stamp(4)
    w2.pairs += [16384] if isq else [16384, 24576]
    w2.grp |= set(range(7))
    for _ in gens[6]:
        pass
    if OPT['cs_it'] == 5:
        gather_start()
    if OPT['pf_w'] == 7:
        pf_w()
    own(OPT['n5q'] if isq else OPT['n5'])
    if OPT['cs_it'] in (4, 5, 35):
        gather_fin()
    vm.wait(('st', 6))
    P('s_waitcnt lgkmcnt(0)')
    if OPT['b6']:
        stamp(7)
        P('s_barrier')
    else:
        lds_signal(vSG, 246, 7)
    P(f's_cmp_ge_u32 s{sCT}, 7\ns_cbranch_scc1 L_IDLE')
    if not OPT['b6']:
        progress(OPT['p5'])
        stamp(6)
        cwait(6)
    w2.pairs += [32768, 40960]
    w2.grp |= set(range(7, 14))
    if OPT['b6']:
        progress(OPT['p5'])
        stamp(6)
    if OPT['lpause'] and not isq:
        progress(OPT['lpause'] - 1, OPT['capp'])
        stage(100)
        cwait(8)
    progress(100, OPT['cap'] if isq else OPT['cape'])
    stage(100)
    w2.sync()
    assert nown == 2 * LST and nstg == nown and not w2.pending and w2.grp == set(range(OPT['ncw2']))
    globals()['W2'] = w2
    if isq and OPT['qhold']:
        cwait(9)
    if isq == OPT['qf']:
        P('s_branch L_P2L')
    return vm


def L_phase2(vm):
    P.label('L_P2L')
    lastcw = [vm.n]
    W2.vm = vm
    vm.done = 0
    stamp(8)
    lds_signal(vSG, 243, 8)
    NAE = OPT['na']
    if NAE or OPT['ncw2']:
        P(AL if NAE else BL)
    sF, sB, sS, sOF = 12, 62, 65, 66
    vDA, vSy, vSg, vWA, TMP, TMP2 = LADR, 246, 247, 20, 248, 12
    P(f'''v_mov_b32 v{vSg}, v{vSG}
v_mov_b32 v{vSy}, v{vSY}
s_and_b32 s{sT3}, s{sRT}, 1
s_lshl_b32 s{sT3}, s{sT3}, 2
s_add_u32 s{sT3}, s{sT3}, s{sI}
s_xor_b32 s{sT2}, s{sRT}, 1
s_mul_i32 s{sT2}, s{sT2}, {4 * NS * 1024}
s_mul_i32 s{sT3}, s{sT3}, {LST * 1024}
s_add_u32 s{sT3}, s{sT3}, {WS_ACT}
s_add_u32 s{sF}, s{sT2}, s{sT3}
s_add_u32 s{sF + 1}, s{sF}, {NS * 1024}
s_add_u32 s{sF + 2}, s{sF}, {2 * NS * 1024}
s_add_u32 s{sF + 3}, s{sF}, {3 * NS * 1024}
s_mul_i32 s{sB}, s{sRT}, {4 * NS * 1024}
s_mul_i32 s{sS}, s{sI}, {NS * 1024}
s_add_u32 s{sS}, s{sS}, s{sB}
s_add_u32 s{sS}, s{sS}, {WS_ACT + 56 * 1024}
s_add_u32 s{sB}, s{sB}, s{sT3}
v_and_b32 v{vDA}, 15, v0
v_lshrrev_b32 v{vDA + 1}, 4, v0
v_xor_b32 v{vDA + 1}, v{vDA + 1}, v{vDA}
v_lshlrev_b32 v{vDA + 1}, 4, v{vDA + 1}
v_lshl_add_u32 v{vDA}, v{vDA}, 8, v{vDA + 1}
s_lshl_b32 s{sT1}, s{sI}, 14
v_add_u32 v{vDA}, s{sT1}, v{vDA}
v_xor_b32 v{vDA + 1}, 64, v{vDA}
v_xor_b32 v{vDA + 2}, 128, v{vDA}
v_xor_b32 v{vDA + 3}, 192, v{vDA}
s_branch L_pb_w''')
    spoll('L_pb', *((AL, 2) if NAE else (BL, 4)))
    stamp(9)
    xtra = [LACC + 32 + 4 * n for n in range(8)]
    slots = [LA + 4 * n for n in range(11)] + [4, 8, 16] + ([] if NAE else xtra)
    free = slots[:OPT['lahead'] + 1]
    vSG2 = 244
    aloc = {}
    nxt = 0
    NT = 8 * LST
    NA = NT + 16
    lim = 4 * NAE if NAE else NT
    order = [(t, k) for k in range(NAE) for t in range(4)] + [(t, k) for t in range(4) for k in range(NAE, LST)] + \
            [(t, k) for t in range(4, 8) for k in range(LST)] + [(8, k) for k in range(16)]
    dump_n = {t: order.index((t, LST - 1)) + 2 for t in range(8)}

    def acc(t):
        return LACC + 16 * (t if (t < 4 and NAE) else t % 2)

    def load1():
        nonlocal nxt
        t, k = order[nxt]
        sb = sF + t if t < 4 else sB
        aloc[nxt] = free.pop(0)
        P(f'buffer_load_dwordx4 {vr(aloc[nxt])}, v1, {srd(SWS)}, s{sb} offen offset:{(k % 4) * 1024} sc1')
        vm.issue(('a', nxt))
        nxt += 1
        if k == LST - 1 and 4 <= t < 8:
            P(f's_mov_b32 s{sB}, s{sS}' if t == 7 else f's_add_u32 s{sB}, s{sB}, {NS * 1024 - 4096}')
        elif k % 4 == 3:
            P(f's_add_u32 s{sb}, s{sb}, 4096')

    def can_load(cur):
        return nxt < lim and free and nxt - cur < OPT['lahead']
    lg = Q(P, 'lgkmcnt', 15)
    fq = []
    cold = []

    def f_txt(x, cost=1, ds=None):
        def fn():
            P(x)
            if ds is not None:
                lg.issue(ds or None)
        fq.append((cost, fn))

    def f_chk(nm, rg, off, val):
        f_txt(f'v_min3_u32 v{rg}, v{rg}, v{rg + 1}, v{rg + 2}')
        f_txt(f'v_min_u32 v{rg}, v{rg}, v{rg + 3}')
        f_txt(f'v_cmp_gt_u32 vcc, {val}, v{rg}', 2)
        f_txt(f's_cbranch_vccnz {nm}\n{nm}_ok:')
        cold.append(lambda: (lds_spin(nm, rg, vSy, off, val, 0), P(f's_branch {nm}_ok')))
    while can_load(0) and nxt < OPT['l0']:
        load1()
    if OPT['tw']:
        P(f'v_add_u32 v{vWA}, {WO}, v1')
    else:
        w2_tr_addr(vWA, 10, TMP, TMP + 1)
        for ct in range(4):
            P(f'v_add_u32 v{vWA + ct}, {WO}, v{vWA + ct}')
    of_addr(sOF, sT0, sT1)
    P(f'''v_and_b32 v{TMP}, 15, v0
v_lshlrev_b32 v{TMP}, 7, v{TMP}
v_lshrrev_b32 v{TMP + 1}, 5, v0
v_xor_b32 v{TMP + 1}, v{TMP + 1}, v0
v_and_b32 v{TMP + 1}, 7, v{TMP + 1}
v_lshl_add_u32 v{TMP}, v{TMP + 1}, 4, v{TMP}
v_bfe_u32 v{TMP + 1}, v0, 4, 1
v_lshl_add_u32 v{TMP}, v{TMP + 1}, 3, v{TMP}
s_lshl_b32 s{sT0}, s{sI}, 11
s_add_u32 s{sT0}, s{sT0}, {STILE}
v_add_u32 v{vSG2 + 1}, s{sT0}, v{TMP}''')
    stamp(10)
    cstamp(2) if OPT['ds'] == 5 else None
    wfree = [TMP2] + slots[OPT['lahead'] + 1:] + (xtra if NAE else [])
    wloc = {}
    nw = 0

    def wread():
        nonlocal nw
        f, j = divmod(nw, 2)
        if nw >= 128 or (j == 0 and not wfree):
            return False
        if j == 0:
            wloc[f] = wfree.pop(0)
        k, ct = divmod(f, 4)
        if OPT['tw']:
            P(f'ds_read_b128 {vr(wloc[f])}, v{vWA} offset:{1024 * f}')
            nw += 1
        else:
            P(f'ds_read_b64_tr_b16 {vr(wloc[f] + 2 * j, 2)}, v{vWA + (ct ^ (2 * (k % 2)))} offset:{28 * k * 128 + 2048 * j}')
        lg.issue(('w', f))
        nw += 1
        return True
    need = {0: 9, 4: 11, 6: 12}

    def set_lim(v):
        nonlocal lim
        lim = v

    def f_flags(nm, loads, nreg, newlim):
        fq.append((1, lambda: lg.force0()))
        for r in range(nreg):
            f_txt(f's_xor_b32 s{4 + r}, s{4 + r}, s{sTAG}')
        if nreg == 8:
            f_txt('s_or_b64 s[4:5], s[4:5], s[6:7]')
            f_txt('s_or_b64 s[6:7], s[8:9], s[10:11]')
        f_txt(f's_or_b64 s[4:5], s[4:5], s[6:7]\ns_cbranch_scc1 {nm}\n{nm}_bk:', 2)
        fq.append((0, lambda: set_lim(newlim)))
        cold.append(lambda: (spoll(nm, loads, nreg), P(f's_branch {nm}_bk')))
    for n in range(NA):
        t, k = order[n]
        if OPT['ds'] == 6 and n % LST == 0 and 0 < n <= NT:
            stamp(n // LST)
        for td, dn in dump_n.items():
            if td in need and n == dn - 4:
                f_txt(f'ds_read_b128 {vr(TMP)}, v{vSy} offset:16', 1, 'c')
                if td == 0:
                    f_txt(f'ds_read_b128 {vr(TMP2)}, v{vSy}', 1, 'c')
            if td in need and n == dn - 2:
                fq.append((1, lambda: lg.wait('c')))
                f_chk(f'L_d{td}', TMP, 16, need[td])
                if td == 0:
                    f_chk('L_d1l', TMP2, 0, 8)
            if n == dn + OPT['sk'] - 1:
                fq.append((1, lambda td=td: lg.wait(('d', td))))
                if td % 2:
                    if td == 1:
                        fq.append((0, lambda: vm.wait(lastcw[0])))
                    f_txt(f'v_mov_b32 v{vSG2}, {10 + td}')
                    f_txt(f'ds_write_b32 v{vSg}, v{vSG2}', 1, '')
            if n == dn:
                for ct in range(4):
                    f_txt(f'ds_write_b128 v{vDA + ct}, {vr(acc(td) + 4 * ct)} offset:{DUMPF + 4096 * (td % 4)}', OPT['dc'], ('d', td))
        if NAE and n == OPT['nb'] - OPT['bd']:
            for x in BL.split('\n'):
                f_txt(x)
        if NAE and n == OPT['nb']:
            f_flags('L_pbb', BL, 4, NT)
        if n == OPT['on'] - LST:
            for x in ol(sOF).split('\n'):
                f_txt(x)
        if n == OPT['on']:
            f_flags('L_po', ol(sOF), 8, NA)
        if (t, k) == (8, 13):
            for c_ in range(4):
                f_txt(f'v_xor_b32 v{vDA + c_}, {32 * c_}, v{vSG2 + 1}')
        stamp(11) if n == 4 * LST else None
        stamp(12) if n == NT else None
        if k == 0 and t >= (4 if NAE else 2):
            assert lg.done >= lg.tags[('d', t - 4 if (t < 6 and NAE) else t - 2)], (t, 'dump not drained')
        while n not in aloc:
            if can_load(n):
                load1()
            else:
                fq.pop(0)[1]()
        vm.wait(('a', n))
        for ct in range(4):
            a = acc(t) + 4 * ct
            if t == 8:
                f = 4 * k + ct
                if ct % 2 == 0:
                    while nw < 2 * f + 4:
                        assert wread()
                    lg.wait(('w', f + 1))
                P(mfma(a, wloc[f], aloc[n], None if k == 0 else a))
                if f:
                    wfree.append(wloc[f - 1])
            else:
                P(mfma(a, LW + 16 * k + 4 * ct, aloc[n], None if k == 0 else a))
                if t == 7 and 4 * k + ct:
                    wfree.append(LW + 16 * k + 4 * ct - 4)
            bud = 2 if ct < 3 else 1
            if t == 8 and ct == 1:
                bud = 1
            if ct in (0, 2) and can_load(n):
                load1()
                bud -= 2
            elif ct in (0, 2) and W2.grp and (nxt >= lim or not NAE):
                W2.cw()
                lastcw[0] = vm.n
                bud -= 2
            while t == 8 and nw < min(128, 2 * (4 * k + ct) + OPT['wl']):
                assert wread()
                bud -= 1
            if fq and bud <= 0 and t == 8 and ct == 0:
                bud = 1
            while bud > 0:
                if fq:
                    c, fn = fq.pop(0)
                    fn()
                    bud -= c
                elif n >= OPT['ws'] and wread():
                    bud -= 1
                else:
                    break
        (free if nxt < NA else wfree).append(aloc[n])
        if n == dump_n[0]:
            while W2.grp:
                W2.cw()
                lastcw[0] = vm.n
    while fq:
        fq.pop(0)[1]()
    stamp(13)
    cstamp(4) if OPT['ds'] == 5 else None
    for ct in range(4):
        for r in (2 * ct, 2 * ct + 1):
            P(f'v_cvt_pk_bf16_f32 v{LACC + r}, v{LACC + 2 * r}, v{LACC + 2 * r + 1}')
        P(f'ds_write_b64 v{vDA + ct}, {vr(LACC + 2 * ct, 2)}')
    P('s_waitcnt lgkmcnt(0)')
    stamp(14)
    P('s_barrier\ns_branch L_EXIT')
    for fn in cold:
        fn()


vmh = L_phase1(OPT['qf'])
P.label('L_LQ')
vmq = L_phase1(1 - OPT['qf'])
L_phase2(vmq)
P.label('L_IDLE')
if OPT['ipl']:
    P(f'''s_bfe_u32 s{sT1}, s2, 0x20003
v_min_u32 v4, 55, v0
v_lshlrev_b32 v4, 7, v4''')
    if OPT['ipl'] & 1:
        P(f's_lshl_b32 s{sT2}, s{sT1}, 2\ns_add_u32 s{sT2}, s{sT2}, s{sI}\ns_mul_i32 s{sT2}, s{sT2}, {56 * 128}\ns_add_u32 s{sT2}, s{sT2}, {3 * 16 * 56 * 128}')
        for n in range(4):
            P(f'buffer_load_dword v5, v4, {srd(SWO)}, s{sT2} offen\ns_sub_u32 s{sT2}, s{sT2}, {16 * 56 * 128}')
    if OPT['ipl'] & 2:
        P(f'''s_lshl_b32 s{sT1}, s{sT1}, 1
s_add_u32 s{sT1}, s{sT1}, s{sRT}
s_sub_u32 s{sT1}, s{sT1}, 8
s_lshl_b32 s{sT1}, s{sT1}, 2
s_add_u32 s{sT1}, s{sT1}, s{sI}
s_mul_i32 s{sT1}, s{sT1}, {16 * 896}''')
        for n in range(2):
            P(f'buffer_load_dword v5, v4, {srd(SX)}, s{sT1} offen\ns_add_u32 s{sT1}, s{sT1}, {8 * 896}')
P('s_branch L_EXIT')

CW = 112
CX = 144
CHX = 168
cXA = 180
cHA = 182
cWA = 184
cWB = 190
cST = 196
cSO = 202
cBE = 204
cR = 196
cKXW, cHW, cPM, cONE = 216, 217, 219, 104
cM16, cM48, cL16, cCSA, cCSH = 221, 222, 223, 224, 225
cVW, cVWH, cVR, cKX, cSY, cSG = 226, 227, 228, 229, 230, 231
cF = 252
cBA, cBB, cBA0 = 232, 236, 240
cT = 244

MUTE = False
if OPT['pad'] >= 0:
    P('.p2align 12')
    if OPT['pad']:
        P('.fill %d, 4, 0xbf800000' % (OPT['pad'] // 4))
P.label('L_C')
vmS = Q(P, 'vmcnt', 63)
if True:
    vS = 16
    P('s_setprio 1')
    stats_rows()
    P('s_waitcnt lgkmcnt(0)')
    mk_srd(SX, 4, 2048 * 896)
    stats_load(vmS)
    if OPT['swarm']:
        P(f's_lshl_b32 s{sT0}, s{sT3}, 3\ns_and_b32 s{sT0}, s{sT0}, 0xffffff80\ns_add_u32 s{sT0}, s{sT0}, {WS_STATS}')
        P(f's_load_dword s10, s[20:21], s{sT0}\ns_load_dword s11, s[20:21], s{sT0} offset:64')
    P(f's_load_dword s{sTAG}, s[20:21], 0')
P(f'''v_mov_b32 v{cSY}, {SYNC}
v_lshl_add_u32 v{cSG}, s{sI}, 2, v{cSY}
v_add_u32 v{cSG}, 16, v{cSG}
v_mov_b32 v12, 0
v_lshlrev_b32 v13, 2, v0
v_add_u32 v13, {SYNC}, v13
ds_write_b32 v13, v12
v_lshlrev_b32 v{cL16}, 4, v0
v_and_b32 v11, 15, v0
v_lshrrev_b32 v10, 4, v0
v_lshrrev_b32 v13, 1, v11
v_xor_b32 v13, v13, v10
v_lshlrev_b32 v13, 4, v13
v_lshl_add_u32 v13, v11, 7, v13
s_lshl_b32 s{sT0}, s{sI}, 12
v_add_u32 v{cXA}, s{sT0}, v13
v_xor_b32 v{cXA + 1}, 64, v{cXA}
v_add_u32 v{cHA}, {HALO}, v13
v_xor_b32 v{cHA + 1}, 64, v{cHA}
v_lshlrev_b32 v12, 3, v11
v_add_u32 v{cCSA}, {CS}, v12
v_lshlrev_b32 v12, 4, v11
v_add_u32 v{cSO + 1}, {ST}, v12
s_lshl_b32 s{sT0}, s{sI}, 9
v_add_u32 v{cSO}, s{sT0}, v{cSO + 1}
v_mov_b32 v{cBE + 2}, 0
v_mov_b32 v{cBE + 3}, 0
v_mov_b32 v{cBE + 6}, 0
v_mov_b32 v{cBE + 7}, 0
v_mov_b32 v{cBE + 10}, 0
v_mov_b32 v{cBE + 11}, 0
s_lshl_b32 s{sXO}, s{sRB}, 2
s_add_u32 s{sXO}, s{sXO}, s{sI}
s_mul_i32 s{sA0}, s{sXO}, {2 * NS * 1024}
s_add_u32 s{sA0}, s{sA0}, {WS_ACT}
s_lshl_b32 s{sA1}, s{sRB}, 4
s_add_u32 s{sA1}, s{sA1}, s{sCG}
s_lshl_b32 s{sA1}, s{sA1}, 10
s_lshl_b32 s{sT1}, s{sI}, {FS}
s_add_u32 s{sA1}, s{sA1}, s{sT1}
s_add_u32 s{sA1}, s{sA1}, {WS_FLAGS}''')
stamp(0)
mk_srd(SWS, 20, WS_BYTES)
mk_srd(SOUT, 16, 2048 * 896)
P(f's_cmp_eq_u32 s{sISQ}, 1\ns_cbranch_scc1 L_CQ')


SLOW = []


def C_phase1(isq):
    t = 'Q' if isq else 'H'
    lg = Q(P, 'lgkmcnt', 15)
    LA_, HOLD, WSTEP, TM = OPT['la'], OPT['hold'], OPT['wstep'], OPT['tm']
    wsl = WSL
    if isq:
        q_addr_parts(12, 13, 14, 15)
        for e in range(2):
            for t01 in range(2):
                q_addr(cWB + 2 * e + t01, 56 * e + 32 * t01, 12, 13, 14)
        P(f'''s_bitcmp1_b32 s{sI}, 0
s_cselect_b64 vcc, -1, 0
s_lshr_b32 s{sT0}, s{sI}, 1
s_add_u32 s{sT0}, s{sT0}, 1
s_lshl_b32 s{sT0}, s{sT0}, 13
v_cndmask_b32 v{cWB + 4}, v{cWB}, v{cWB + 2}, vcc
v_cndmask_b32 v{cWB + 5}, v{cWB + 1}, v{cWB + 3}, vcc
v_add_u32 v{cWB + 4}, s{sT0}, v{cWB + 4}
v_add_u32 v{cWB + 5}, s{sT0}, v{cWB + 5}
s_lshl_b32 s{sT0}, s{sI}, 8
s_add_u32 s{sT0}, s{sT0}, 512
v_add_u32 v{cCSH}, s{sT0}, v{cCSA}
v_cmp_gt_u32 vcc, 48, v0
v_cndmask_b32 v{cM48}, 0, -1, vcc
v_lshlrev_b32 v13, 2, v10
v_sub_u32 v13, v11, v13
v_mov_b32 v15, 0xf149f2ca''')
        for r in range(4):
            for (d, add) in ((cBA, 16), (cBB, 0)):
                P(f'''v_add_u32 v14, {add - r}, v13
v_and_b32 v14, -15, v14
v_cmp_eq_u32 vcc, 0, v14
v_cndmask_b32 v{d + r}, v15, 0, vcc''')
        P(f's_cmp_eq_u32 s{sXO}, 0\ns_cselect_b64 vcc, -1, 0')
        for r in range(4):
            P(f'v_cndmask_b32 v{cBA0 + r}, v{cBA + r}, v15, vcc')
        P(f'''v_mul_u32_u24 v13, {VSTR}, v11
v_lshl_add_u32 v13, v10, 3, v13
s_mul_i32 s{sT0}, s{sI}, {32 * VSTR}
s_add_u32 s{sT1}, s{sT0}, {VREG + 16 * VSTR}
v_add_u32 v{cVW}, s{sT1}, v13
s_and_b32 s{sT1}, s{sI}, 1
s_mul_i32 s{sT1}, s{sT1}, {144 * VSTR}
s_add_u32 s{sT1}, s{sT1}, {VREG}
v_add_u32 v{cVWH}, s{sT1}, v13
v_lshrrev_b32 v13, 2, v0
v_mul_u32_u24 v13, {VSTR}, v13
v_and_b32 v14, 3, v0
v_lshl_add_u32 v13, v14, 3, v13
s_add_u32 s{sT0}, s{sT0}, {VREG}
v_add_u32 v{cVR}, s{sT0}, v13
s_lshl_b32 s{sT0}, s{sI}, 11
s_add_u32 s{sT0}, s{sT0}, {KX}
v_add_u32 v{cKX}, s{sT0}, v{cL16}
s_add_u32 s{sT1}, s{sT0}, 2048
s_cmp_eq_u32 s{sI}, 3
s_cselect_b32 s{sT1}, {DUMMY}, s{sT1}
v_add_u32 v{cKXW}, s{sT1}, v{cL16}
v_add_u32 v13, 32, v{cVWH}
v_mov_b32 v14, {DUMMY + 2048}
v_cmp_gt_u32 vcc, 48, v0
v_cndmask_b32 v13, v14, v13, vcc
s_lshl_b32 s{sT0}, s{sI}, 10
s_add_u32 s{sT0}, s{sT0}, {KX}
v_add_u32 v14, s{sT0}, v{cL16}
v_add_u32 v15, 8, v14
s_cmp_ge_u32 s{sI}, 2
s_cselect_b64 vcc, -1, 0
v_cndmask_b32 v{cHW}, v14, v{cVWH}, vcc
v_cndmask_b32 v{cHW + 1}, v15, v13, vcc
v_and_b32 v13, 1, v0
v_lshlrev_b32 v13, 4, v13
v_mov_b32 v14, 0xffff
v_lshlrev_b32 v{cPM}, v13, v14
v_mov_b32 v{cONE}, 0x3f803f80
v_mov_b32 v{cONE + 1}, 0x3f803f80
v_mov_b32 v{cONE + 2}, 0x3f803f80
v_mov_b32 v{cONE + 3}, 0x3f803f80''')
        nb = 6
        pairs = [(1, 0), (2, 0), (1, 1), (2, 1), (0, 0), (0, 1)]
        tiles = [(pi, t01) for pi in range(4) for t01 in range(2)] + [('H', 0), ('H', 1)] + \
                [(pi, t01) for pi in range(4, 6) for t01 in range(2)]
    else:
        h_addr(cWB, 12, 13)
        P(f'v_xor_b32 v{cWB + 1}, 32, v{cWB}')
        nb = 2
        tiles = [(pi, t01) for pi in range(6 if OPT['abl'] & 16 else 7) for t01 in range(2)]

    def set_slot(s):
        for b in range(nb):
            P(f'v_add_u32 v{cWA + b}, {wsl[s % 3]}, v{cWB + b}')

    def xbuf(ks):
        return 2 if (TM and ks == 13) else ks % 2

    units = []

    def unit(tile, ks):
        pi, t01 = tile
        u = dict(tile=tile, ks=ks, pre=[])
        if ks == 'E':
            u['stage'] = 6
            if pi == 'H':
                u['rd'] = [('b64', cCSH, 128 * t01)]
            elif isq:
                sg, e = pairs[pi]
                u['rd'] = [('b64', cCSA, 128 * (4 * sg + 2 * e + t01))]
            else:
                u['rd'] = [('b64', cCSA, 128 * (2 * pi + t01))]
        else:
            s, kk = divmod(ks, 2)
            u['stage'] = s
            if pi == 'H':
                a, o, o2 = cWA + 4 + t01, kk * 4096, 512
            elif isq:
                sg, e = pairs[pi]
                a, o, o2 = cWA + 2 * e + t01, sg * 8192 + kk * 4096, 512
            else:
                a, o, o2 = cWA + t01, pi * 64 + kk * 32 * 448, 4 * 448
            u['rd'] = [('tr', a, o), ('tr', a, o + o2)]
        if pi == 'H':
            u['mm'] = [(96 + 4 * t01, cBE + 8 if ks == 'E' else CHX + 4 * xbuf(ks))]
        else:
            u['mm'] = [(16 * pi + 8 * tt + 4 * t01, cBE + 4 * tt if ks == 'E' else CX + 8 * xbuf(ks) + 4 * tt)
                       for tt in range(2)]
        return u
    seen_x, seen_h = set(), set()
    order = []
    for ks in range(12 if TM else 14):
        order += [(tl, ks) for tl in tiles]
    if TM:
        for tl in tiles:
            order += [(tl, 12), (tl, 13), (tl, 'E')]
    else:
        order += [(tl, 'E') for tl in tiles]
    for tl, ks in order:
        u = unit(tl, ks)
        if ks != 'E':
            s, kk = divmod(ks, 2)
            if tl[0] == 'H':
                if ks not in seen_h:
                    seen_h.add(ks)
                    u['pre'].append(f'ds_read_b128 {vr(CHX + 4 * xbuf(ks))}, v{cHA + kk} offset:{halo_off(s)}')
            elif ks not in seen_x:
                seen_x.add(ks)
                for tt in range(2):
                    u['pre'].append(f'ds_read_b128 {vr(CX + 8 * xbuf(ks) + 4 * tt)}, v{cXA + kk} offset:{XS[s % 3] + 2048 * tt}')
        elif 'E' not in seen_x:
            seen_x.add('E')
            for tt in range(2):
                u['pre'].append(f'ds_read_b64 {vr(cBE + 4 * tt, 2)}, v{cSO} offset:{256 + 256 * tt}')
                if isq:
                    u['pre'].append(f'ds_read_b64 {vr(cR + 2 * tt, 2)}, v{cSO} offset:{256 + 256 * tt + 8}')
        elif tl == ('H', 0):
            u['pre'].append(f'ds_read_b64 {vr(cBE + 8, 2)}, v{cSO + 1}')
            u['pre'].append(f'ds_read_b64 {vr(cR + 4, 2)}, v{cSO + 1} offset:8')
        units.append(u)
    NU = len(units)
    last_ring = max(n for n, u in enumerate(units) if u['ks'] != 'E')
    done_at = {}
    for n, u in enumerate(units):
        done_at[u['tile'][0]] = n

    def rd_list(n):
        u = units[n]
        slot = CW + 4 * (n % 8)
        out = list(u['pre'])
        for j, (kind, a, o) in enumerate(u['rd']):
            if kind == 'tr':
                out.append(f'ds_read_b64_tr_b16 {vr(slot + 2 * j, 2)}, v{a} offset:{o}')
            else:
                out.append(f'ds_read_b64 {vr(slot, 2)}, v{a} offset:{o}')
        return out

    def pack(b):
        return [f'v_cvt_pk_bf16_f32 v{b + i}, v{b + 2 * i}, v{b + 2 * i + 1}' for i in range(4)]

    def scale(b, r):
        return [f'v_mul_f32 v{b + i}, v{b + i}, v{r}' for i in range(8)]

    def epi(pi):
        out = []
        if not isq:
            for tt in range(2):
                b = 16 * pi + 8 * tt
                if OPT['relu'] == 0:
                    out += [f'v_max_f32 v{b + i}, 0, v{b + i}' for i in range(8)]
                out += pack(b)
                if OPT['relu'] == 1:
                    out += [f'v_pk_max_i16 v{b + i}, v{b + i}, 0' for i in range(4)]
                out.append(f'buffer_store_dwordx4 {vr(b)}, v{cL16}, {srd(SWS)}, s{sT2 + tt} offen offset:{(pi % 4) * 1024} ' + ('sc1', '', 'nt')[OPT['hst']])
            if pi == 3:
                out += [f's_add_u32 s{sT2}, s{sT2}, 4096', f's_add_u32 s{sT3}, s{sT3}, 4096']
            if OPT['na'] and pi == OPT['fap']:
                k0 = [x.startswith('buffer_store') for x in out].index(True)
                out.insert(k0, f'''s_waitcnt vmcnt({2 * (pi - OPT['na'])})
s_mov_b32 exec_hi, 0
buffer_store_dword v{cT + 2}, v{cT + 3}, {srd(SWS)}, s{sA1} offen offset:512 sc1
s_mov_b32 exec_hi, -1''')
        elif pi == 'H':
            out += scale(96, cR + 4) + pack(96)
            out += [f'ds_write_b64 v{cHW + t01}, {vr(96 + 2 * t01, 2)}' for t01 in range(2)]
            out += ['MARK', 'NOP', 'NOP', 'NOP', 'NOP', 'PUB']
        else:
            sg, e = pairs[pi]
            for tt in range(2):
                b = 16 * pi + 8 * tt
                if sg:
                    out += scale(b, cR + 2 * tt)
                out += pack(b)
                if sg == 0:
                    out += [f'v_and_b32 v{b + i}, v{b + i}, v{cM48}' for i in (2, 3)]
                if sg == 1 and tt == 1:
                    out.append(f'ds_write_b128 v{cKXW}, {vr(b)} offset:{1024 * e}')
                if sg == 2:
                    o = e * 144 * VSTR + tt * 16 * VSTR
                    out.append(f'ds_write_b64 v{cVW}, {vr(b, 2)} offset:{o}')
                    out.append(f's_mov_b32 exec_hi, 0xffff\nds_write_b64 v{cVW}, {vr(b + 2, 2)} offset:{o + 32}\ns_mov_b32 exec_hi, -1')
        return out

    set_slot(0)
    P(f's_waitcnt lgkmcnt(0)\ns_add_u32 s{sTAG}, s{sTAG}, 1')
    if True:
        vmS.done = 0
        vmS.wait('stats')
        for x in stats_body():
            P(x)
        stats_store(Q(P, 'vmcnt', 63))
        P('s_setprio 0')
        stamp(13) if OPT['ds'] == 3 else None
    if not isq:
        P(f'''s_mul_i32 s{sT2}, s{sIDX}, {7 * 1024}
s_add_u32 s{sT2}, s{sT2}, s{sA0}
s_add_u32 s{sT3}, s{sT2}, {NS * 1024}
v_mov_b32 v{cT + 2}, s{sTAG}
v_lshrrev_b32 v{cT + 3}, 2, v{cL16}''')
    P('s_barrier')
    stamp(1)
    cstamp(2)
    pend = []
    fill = []
    nr = 0
    cur_stage = 0
    b7_done = False

    def queue_reads(n):
        l = rd_list(n)
        for j, x in enumerate(l):
            pend.append((x, ('w', n) if j == len(l) - 1 else None))

    def flush(k=1000):
        while pend and k > 0:
            x, tag = pend.pop(0)
            P(x)
            lg.issue(tag)
            k -= 1

    slow = []

    def emit_fill():
        x = fill.pop(0)
        if x == 'MARK':
            lg.tags['kv'] = lg.n
        elif x == 'PUB':
            lg.wait('kv')
            P(f'v_mov_b32 v{cT + 6}, 1\nds_write_b32 v{cSG}, v{cT + 6} offset:16')
            lg.issue()
        elif x != 'NOP':
            P(x)
            if 'ds_write' in x:
                lg.issue()
    last_of = {}
    first_of = {}
    for n, u in enumerate(units):
        if u['ks'] != 'E':
            last_of[u['stage']] = n
        first_of.setdefault(u['stage'], n)
    while nr < LA_:
        queue_reads(nr)
        nr += 1
    flush()
    ups = len(tiles) * 2
    for n in range(NU):
        u = units[n]
        w = n
        if n % WSTEP == 0:
            while w + 1 < min(n + WSTEP, NU) and ('w', w + 1) in lg.tags:
                w += 1
        lg.wait(('w', w))
        for j, (acc, b) in enumerate(u['mm']):
            P(mfma(acc, CW + 4 * (n % 8), b, None if u['ks'] == 0 else acc))
            if j == 0 and nr < NU and units[nr]['stage'] != cur_stage and units[nr]['stage'] <= 5 + OPT['b6']:
                if nr - n <= LA_ - HOLD:
                    cur_stage = units[nr]['stage']
                    set_slot(cur_stage)
                    if HOLD:
                        lg.all()
                    stamp(3) if cur_stage == 4 else None
                    P('s_barrier')
                    stamp(5) if cur_stage == 4 else None
                    stamp(6) if cur_stage == 6 else None
                    while nr <= n + LA_:
                        queue_reads(nr)
                        nr += 1
                    flush()
            elif j == 0 and nr < NU:
                s1 = units[nr]['stage']
                if s1 != cur_stage:
                    cur_stage = s1
                    set_slot(s1)
                    if OPT['ds'] == 2:
                        stamp({5: 9, 6: 13}[s1])
                    lg.wait(('f', s1))
                    lds_cmp(cF, s1 + 1)
                    P(f's_cbranch_vccnz L_{t}w{s1}')
                    P.label(f'L_{t}w{s1}_ok')
                    slow.append(s1)
                    stamp(6) if s1 == 6 else None
                    stamp(10) if (s1 == 5 and OPT['ds'] == 2) else None
                queue_reads(nr)
                if nr + OPT['fla'] == first_of[6] and not OPT['b6']:
                    pend.append((f'ds_read_b128 {vr(cF)}, v{cSY}', ('f', units[nr + OPT['fla']]['stage'])))
                nr += 1
            last = j == len(u['mm']) - 1
            flush(1000 if last else (len(pend) + 1) // 2)
            for _ in range(OPT['nfq'] if isq else OPT['nfill']):
                if fill:
                    emit_fill()
        if n == last_of[u['stage']] and u['stage'] >= 5 + OPT['b6']:
            lds_signal(cSG, cT + 7, u['stage'] + 1)
            lg.issue()
            stamp(7) if u['stage'] == 6 else None
        if n == (NU - 1 if (isq and not OPT['qp']) else OPT['ps'] * ups) and OPT['prio']:
            P('s_setprio %d' % OPT['prio'])
        for pi, dn in done_at.items():
            if dn == n - 2:
                fill += epi(pi)
    SLOW.extend((t, s1) for s1 in slow)
    stamp(8)
    cstamp(4)
    for pi, dn in done_at.items():
        if dn >= NU - 2:
            fill += epi(pi)
    if not isq:
        while fill:
            emit_fill()
        stamp(9)
        lds_signal(cSG, cT + 1, 9)
        P('s_waitcnt vmcnt(0)\ns_branch L_CFLAG')
        return
    if 'PUB' in fill:
        k0 = fill.index('PUB')
        fill[:] = fill[:k0] + fill[k0 + 1:k0 + 9] + ['PUB'] + fill[k0 + 9:]
    while fill:
        emit_fill()
    stamp(3) if OPT['ds'] == 1 else None
    KP, VO, S = 136, 112, 144
    au = [(0, 1), (1, 1), (0, 0), (1, 0)]
    P(f'ds_read_b128 {vr(cF)}, v{cSY} offset:32')
    for n, (e, tq) in enumerate(au):
        P(mfma(S + 8 * n + 4, 32 * e + 8 * tq, 64 + 16 * e + 8 * tq, cBB))
    for n, (e, tq) in enumerate(au[:2]):
        P(mfma(S + 8 * n, 32 * e, 64 + 16 * e + 8 * tq, cBA))
    stamp(5) if OPT['ds'] == 1 else None
    P('s_waitcnt lgkmcnt(0)')
    lds_cmp(cF, 1)
    P('s_cbranch_vccz L_attp_ok')
    lds_spin('L_attp', cF, cSY, 32, 1, 0)
    P.label('L_attp_ok')
    stamp(6) if OPT['ds'] == 1 else None
    for e in range(2):
        P(f'ds_read_b128 {vr(KP + 4 * e)}, v{cKX} offset:{1024 * e}')
    for e in range(2):
        for dt in range(2):
            for kt in range(3):
                P(f'ds_read_b64_tr_b16 {vr(VO + 12 * e + 6 * dt + 2 * kt, 2)}, v{cVR} offset:{e * 144 * VSTR + kt * 16 * VSTR + 32 * dt}')
    M = cT
    U = range(4)

    def sel(n, i):
        P(f'v_max_f32 v{S + 8 * n + i}, v{S + 8 * n + 2 * i}, v{S + 8 * n + 2 * i + 1}')
    for n in (0, 1):
        for i in range(4):
            sel(n, i)
    P('s_waitcnt lgkmcnt(12)')
    for n, (e, tq) in list(enumerate(au))[2:]:
        P(mfma(S + 8 * n, KP + 4 * e, 64 + 16 * e + 8 * tq, cBA0))
    for ns in ((0, 1), (2, 3)):
        if ns[0]:
            for n in ns:
                for i in range(4):
                    sel(n, i)
        for n in ns:
            P(f'v_max3_f32 v{M + n}, v{S + 8 * n}, v{S + 8 * n + 1}, v{S + 8 * n + 2}')
        for n in ns:
            P(f'v_max_f32 v{M + n}, v{M + n}, v{S + 8 * n + 3}')
        P(f'v_permlane16_swap_b32 v{M + ns[0]}, v{M + ns[1]}\nv_max_f32 v{M + ns[0]}, v{M + ns[0]}, v{M + ns[1]}')
    P(f'''v_permlane32_swap_b32 v{M}, v{M + 2}
v_max_f32 v{M}, v{M}, v{M + 2}
v_mov_b32 v{M + 2}, v{M}
v_permlane32_swap_b32 v{M}, v{M + 2}
v_mov_b32 v{M + 1}, v{M}
v_mov_b32 v{M + 3}, v{M + 2}
v_permlane16_swap_b32 v{M}, v{M + 1}
v_permlane16_swap_b32 v{M + 2}, v{M + 3}''')
    for n in U:
        P(f'v_mul_f32 v{M + n}, v{cR + 1 + 2 * au[n][1]}, v{M + n}')
    for n in U:
        for i in range(4):
            P(f'v_fma_f32 v{S + 8 * n + i}, v{S + 8 * n + i}, v{cR + 1 + 2 * au[n][1]}, -v{M + n}')
    for n in U:
        for i in range(4):
            P(f'v_exp_f32 v{S + 8 * n + i}, v{S + 8 * n + i}')
    stamp(7) if OPT['ds'] == 1 else None
    P(f'''s_lshl_b32 s{sT2}, s{sIDX}, 11
s_add_u32 s{sT2}, s{sT2}, s{sA0}
s_add_u32 s{sT2}, s{sT2}, {56 * 1024}
s_add_u32 s{sT3}, s{sT2}, {NS * 1024}
s_waitcnt lgkmcnt(0)''')
    O = 64

    def pv(n):
        e, tq = au[n]
        P(mfma(S + 8 * n + 4, cONE, S + 8 * n, None))
        for dt in range(2):
            P(mfma(O + 8 * n + 4 * dt, VO + 12 * e + 6 * dt + 2 * tq, S + 8 * n, None))
    for n in U:
        for i in range(4):
            P(f'v_cvt_pk_bf16_f32 v{S + 8 * n + i}, v{S + 8 * n + i}, v{S + 8 * n + i}')
        for i in range(4):
            P(f'v_and_b32 v{S + 8 * n + i}, v{S + 8 * n + i}, v{cPM}')
        if n:
            pv(n - 1)
    pv(3)
    stamp(13) if OPT['ds'] == 1 else None
    for n, (e, tq) in enumerate(au):
        P(f'v_rcp_f32 v{M + n}, v{S + 8 * n + 4}')
        for i in range(8):
            P(f'v_mul_f32 v{O + 8 * n + i}, v{O + 8 * n + i}, v{M + n}')
        for x in pack(O + 8 * n):
            P(x)
        P(f'v_and_b32 v{O + 8 * n + 2}, v{O + 8 * n + 2}, v{cM48}\nv_and_b32 v{O + 8 * n + 3}, v{O + 8 * n + 3}, v{cM48}')
        P(f'buffer_store_dwordx4 {vr(O + 8 * n)}, v{cL16}, {srd(SWS)}, s{sT2 + tq} offen offset:{1024 * e} sc1')


C_phase1(0)
P.label('L_CQ')
C_phase1(1)
stamp(9)
lds_signal(cSG, cT + 1, 9)
P('s_waitcnt vmcnt(0)')
P.label('L_CFLAG')
_st = stamp
if OPT['ds'] == 1:
    def stamp(k):
        if k not in (3, 13):
            _st(k)
P(f'''v_lshrrev_b32 v1, 2, v{cL16}
v_mov_b32 v2, s{sTAG}
s_mov_b32 exec_lo, {(1 << OPT['fl']) - 1:#x}
s_mov_b32 exec_hi, 0
buffer_store_dword v2, v1, {srd(SWS)}, s{sA1} offen sc1
s_mov_b64 exec, -1
v_lshrrev_b32 v0, 4, v{cL16}''')
stamp(10)
P(f'''s_cmp_lt_u32 s{sCT}, 7
s_cbranch_scc1 L_P2C''')
if OPT['ipf']:
    P(f'''s_lshr_b32 s{sT0}, s2, 3
s_and_b32 s{sT0}, s{sT0}, 3
s_lshl_b32 s{sT0}, s{sT0}, 1
s_add_u32 s{sRT}, s{sRT}, s{sT0}
s_sub_u32 s{sRT}, s{sRT}, 8
s_and_b32 s{sT0}, s{sRT}, 1
s_lshl_b32 s{sT0}, s{sT0}, 2
s_add_u32 s{sT0}, s{sT0}, s{sI}
s_lshr_b32 s{sFB}, s{sRT}, 1
s_lshl_b32 s{sFB}, s{sFB}, 4
s_add_u32 s{sFB}, s{sFB}, s{sT0}
s_lshl_b32 s{sFB}, s{sFB}, 10
s_add_u32 s{sFB}, s{sFB}, {WS_FLAGS}
s_mul_i32 s{sT2}, s{sRT}, {4 * NS * 1024}
s_add_u32 s{sT2}, s{sT2}, {WS_ACT}
s_mul_i32 s{sT3}, s{sT0}, {LST * 1024}
s_add_u32 s{sT3}, s{sT3}, s{sT2}
v_min_u32 v4, {47 if OPT['abl'] & 16 else 55}, v0
v_lshlrev_b32 v4, 7, v4
v_lshlrev_b32 v6, 7, v0''')
    P(f'''s_and_b32 s{sT0}, s{sRT}, 1
s_mul_i32 s{sT0}, s{sT0}, {8 * NS * 1024}
s_add_u32 s62, s{sT3}, {4 * NS * 1024}
s_sub_u32 s62, s62, s{sT0}
s_mul_i32 s{sT0}, s{sI}, {NS * 1024}
s_add_u32 s{sT2}, s{sT2}, s{sT0}
s_add_u32 s{sT2}, s{sT2}, {56 * 1024}''')
    of_addr(63, sT0, sT1)
    spoll('L_ip1', BL, 4)
    for c_ in str(OPT['ipf']):
        c_ = int(c_)
        if c_ < 8:
            P(f's_add_u32 s{sT0}, s{62 if c_ < 4 else sT3}, {(c_ % 4) * NS * 1024}\nbuffer_load_dword v5, v4, {srd(SWS)}, s{sT0} offen sc1')
        else:
            spoll('L_ip2', ol(63), 8)
            for q_ in range(2):
                P(f'buffer_load_dword v5, v6, {srd(SWS)}, s{sT2} offen sc1\ns_add_u32 s{sT2}, s{sT2}, 8192')
P(f'''s_cmp_lg_u32 s2, 255
s_cbranch_scc1 L_EXIT
s_cmp_lg_u32 s{sWAVE}, 4
s_cbranch_scc1 L_EXIT
v_lshlrev_b32 v3, 12, v0
v_add_u32 v3, {WS_FLAGS}, v3''')
P.label('L_bump')
spin_guard('L_EXIT')
P('s_sleep 32')
for n in range(4):
    P(f'buffer_load_dword v{4 + n}, v3, {srd(SWS)}, 0 offen offset:{1024 * n} sc1')
P('s_waitcnt vmcnt(0)')
for n in range(4):
    P(f'v_xor_b32 v{4 + n}, v{4 + n}, v2')
for n in range(1, 4):
    P(f'v_or_b32 v4, v4, v{4 + n}')
P(f'''v_cmp_ne_u32 vcc, 0, v4
s_cbranch_vccnz L_bump
s_mov_b64 exec, 1
buffer_store_dword v2, v1, {srd(SWS)}, 0 offen sc1
s_mov_b64 exec, -1
s_branch L_EXIT''')

for t_, s_ in SLOW:
    lds_spin(f'L_{t_}w{s_}', cF, cSY, 0, s_ + 1, 0)
    P(f's_branch L_{t_}w{s_}_ok')

cX, cSt, cPp, cXu, cG, cD, cE, RO = 8, 16, 24, 40, 56, 72, 104, 112
cDA, cSA, cXO, cPO, cSO2 = 2, 4, 5, 6, 7
sXA, sXH, sPA, sXR = 62, 64, 66, 12
P.label('L_P2C')
P('s_setprio %d' % OPT['cprio'])
P(f'''v_lshrrev_b32 v1, 3, v0
v_lshl_add_u32 v1, s{sI}, 3, v1
v_and_b32 v20, 7, v0
v_mul_u32_u24 v{cXO}, 896, v1
v_lshl_add_u32 v{cXO}, v20, 4, v{cXO}
s_mul_i32 s{sXR}, s{sRT}, {64 * 896}
s_lshl_b32 s{sT0}, s{sCT}, 7
s_add_u32 s{sXR}, s{sXR}, s{sT0}
s_add_u32 s{sXR + 1}, s{sXR}, {32 * 896}
buffer_load_dwordx4 {vr(cX)}, v{cXO}, {srd(SX)}, s{sXR} offen
buffer_load_dwordx4 {vr(cX + 4)}, v{cXO}, {srd(SX)}, s{sXR + 1} offen
v_lshlrev_b32 v21, 1, v20
v_xor_b32 v21, v21, v1
v_and_b32 v21, 15, v21
v_lshlrev_b32 v21, 4, v21
v_lshl_add_u32 v{cDA}, v1, 8, v21
v_xor_b32 v{cDA + 1}, 16, v{cDA}
v_xor_b32 v21, v1, v20
v_and_b32 v21, 7, v21
v_lshlrev_b32 v21, 4, v21
v_lshl_add_u32 v21, v1, 7, v21
v_add_u32 v{cSA}, {STILE}, v21
s_lshl_b32 s{sT0}, s{sI}, 10
v_add_u32 v{cPO}, s{sT0}, v{cL16}
v_lshlrev_b32 v{cSO2}, 3, v1
s_xor_b32 s{sXA}, s{sRT}, 1
s_mul_i32 s{sXA}, s{sXA}, 7
s_add_u32 s{sXA}, s{sXA}, s{sCT}
s_lshl_b32 s{sXA}, s{sXA}, 14
s_add_u32 s{sXA}, s{sXA}, {WS_XCH}
s_add_u32 s{sXA + 1}, s{sXA}, 8192
s_mul_i32 s{sPA}, s{sRT}, 7
s_add_u32 s{sPA}, s{sPA}, s{sCT}
s_lshl_b32 s{sPA}, s{sPA}, 14
s_add_u32 s{sPA}, s{sPA}, {WS_XCH}
s_add_u32 s{sPA + 1}, s{sPA}, 8192
s_lshl_b32 s{sT1}, s{sRT}, 9
s_add_u32 s{sT1}, s{sT1}, {WS_STATS}''')
xh_addr(sXH)
XF = OPT['xf']
for n in range(1 if XF else 8):
    P(f'v_mov_b32 v{RO + 2 * n + 1}, s{sTAG}')
if XF:
    P(f's_lshl_b32 s{sT0}, s{sI}, 10\nv_lshl_add_u32 v{RO}, v0, 2, s{sT0}')


if OPT['tw']:
    cA2, cWF = 128, 132
    w2_tr_addr(cA2, 10, 20, 21)
    P(f's_mul_i32 s{sT0}, s{sI}, {4 * 28 * 128}\ns_add_u32 s{sT0}, s{sT0}, {WO}')
    for ct in range(4):
        P(f'v_add_u32 v{cA2 + ct}, s{sT0}, v{cA2 + ct}')
    P(f's_lshl_b32 s{sT0}, s{sI}, 14\ns_add_u32 s{sT0}, s{sT0}, {WO}\nv_add_u32 v20, s{sT0}, v{cL16}')
    lds_poll('L_cwl', cF, cSY, 0, 10, 2)
    for k in range(4):
        for ct in range(4):
            for j in range(2):
                P(f'ds_read_b64_tr_b16 {vr(cWF + 16 * k + 4 * ct + 2 * j, 2)}, v{cA2 + (ct ^ (2 * (k % 2)))} offset:{28 * k * 128 + 2048 * j}')
    P('s_waitcnt lgkmcnt(0)')
    lds_signal(cSG, cT, 10)
    lds_poll('L_cwt', cF, cSY, 16, 10, 0)
    P('s_setprio 0')
    for f in range(16):
        P(f'ds_write_b128 v20, {vr(cWF + 4 * f)} offset:{1024 * f}')
    P('s_setprio %d' % OPT['cprio'])


def dump_reads(rd):
    for part in range(4):
        for hf in range(2):
            P(f'ds_read_b128 {vr(cD + 8 * part + 4 * hf)}, v{cDA + hf} offset:{DUMPF + 16384 * part + 8192 * rd}')


for rd in range(2):
    lds_poll(f'L_cr{rd}', cF, cSY, 0, 11 + 2 * rd, 1)
    stamp(11) if rd else None
    dump_reads(rd)
    P('s_waitcnt lgkmcnt(4)')
    for r in range(8):
        P(f'v_add_f32 v{cD + r}, v{cD + r}, v{cD + 8 + r}')
    P('s_waitcnt lgkmcnt(0)')
    lds_signal(cSG, cT, 11 + rd)
    for r in range(8):
        P(f'v_add_f32 v{cD + 16 + r}, v{cD + 16 + r}, v{cD + 24 + r}')
    for r in range(8):
        P(f'v_add_f32 v{cD + r}, v{cD + r}, v{cD + 16 + r}')
    for r in range(4):
        P(f'v_cvt_pk_bf16_f32 v{RO + 8 * rd + (4 + r if XF else 2 * r)}, v{cD + 2 * r}, v{cD + 2 * r + 1}')
    if XF:
        P(f'''buffer_store_dwordx4 {vr(RO + 8 * rd + 4)}, v{cPO}, {srd(SWS)}, s{sXA} offen sc1
s_waitcnt vmcnt(0)
s_mov_b32 exec_hi, 0
buffer_store_dword v{RO + 1}, v{RO}, {srd(SWS)}, s{sXA + 1} offen offset:896 sc1
s_mov_b32 exec_hi, -1''')
    else:
        for u in range(2):
            P(f'buffer_store_dwordx4 {vr(RO + 8 * rd + 4 * u)}, v{cPO}, {srd(SWS)}, s{sXA + u} offen sc1')
    if rd == 0:
        P(f's_add_u32 s{sXA}, s{sXA}, 4096\ns_add_u32 s{sXA + 1}, s{sXA + 1}, 4096')
        for r2 in range(2):
            P(f'buffer_load_dword v{cSt + 2 * r2}, v{cSO2}, {srd(SWS)}, s{sT1} offen offset:{256 * r2} sc1')
        P('s_waitcnt vmcnt(4)')
        for n in range(8):
            P(f'v_lshlrev_b32 v{cXu + 2 * n}, 16, v{cX + n}\nv_and_b32 v{cXu + 2 * n + 1}, 0xffff0000, v{cX + n}')
stamp(13)
P('s_setprio %d' % OPT['gp'])


def pload(rd):
    for u in range(1 if XF else 2):
        P(f'buffer_load_dwordx4 {vr(cPp + 8 * rd + 4 * u)}, v{cPO}, {srd(SWS)}, s{(sPA, 14)[rd] + u} offen sc1')


def pchk(rd, cnt):
    P(f's_waitcnt vmcnt({cnt})')
    for n in range(4):
        P(f'v_xor_b32 v{cE + n}, s{sTAG}, v{cPp + 8 * rd + 2 * n + 1}')
    P(f'v_or_b32 v{cE}, v{cE}, v{cE + 1}\nv_or3_b32 v{cE}, v{cE}, v{cE + 2}, v{cE + 3}\nv_cmp_ne_u32 vcc, 0, v{cE}')


P(f's_add_u32 s14, s{sPA}, 4096\ns_add_u32 s15, s{sPA + 1}, 4096')


def fetch(rd):
    spoll(f'L_cx{rd}', f's_buffer_load_dword s4, {srd(SWS)}, s{sXH} offset:{4096 * rd} glc', 1)
    stamp(3) if rd else None
    pload(rd)


if not OPT['xo']:
    fetch(0)
    fetch(1)
for rd in range(2):
    if OPT['xo'] == 2 and rd:
        P(f's_cmp_eq_u32 s5, s{sTAG}\ns_cbranch_scc1 L_gotb')
    if OPT['xo']:
        fetch(rd)
    if OPT['xo'] == 2 and rd:
        P.label('L_gotb')
    lds_poll(f'L_cg{rd}', cF, cSY, 0, 15 + 2 * rd, 1 - rd)
    stamp(12) if rd else None
    dump_reads(rd)
    g = cG + 8 * rd
    P('s_waitcnt lgkmcnt(4)')
    for r in range(8):
        P(f'v_add_f32 v{cD + r}, v{cD + r}, v{cD + 8 + r}')
    P('s_waitcnt lgkmcnt(0)')
    for r in range(8):
        P(f'v_add_f32 v{cD + 16 + r}, v{cD + 16 + r}, v{cD + 24 + r}')
    for r in range(8):
        P(f'v_add_f32 v{cD + r}, v{cD + r}, v{cD + 16 + r}')
    if OPT['xo'] == 2 and rd == 0:
        P(f's_buffer_load_dword s5, {srd(SWS)}, s{sXH} offset:4096 glc')
    if XF:
        P(f's_waitcnt vmcnt({(1 - rd) if not OPT["xo"] else 0})')
    else:
        pchk(rd, (2 - 2 * rd) if not OPT['xo'] else 0)
        P(f's_cbranch_vccz L_px{rd}_ok')
        P.label(f'L_px{rd}')
        spin_guard(f'L_px{rd}_ok')
        P('s_sleep 1')
        pload(rd)
        pchk(rd, 0)
        P(f's_cbranch_vccnz L_px{rd}')
        P.label(f'L_px{rd}_ok')
    if rd == 0:
        for r2 in range(2):
            st = cSt + 2 * r2
            P(f'v_and_b32 v{st}, 0xffff0000, v{st}\nv_rcp_f32 v{st + 1}, v{st}\nv_mul_f32 v{st + 1}, 0xbfb8aa3b, v{st + 1}')
    for n in range(4):
        pp = cPp + 8 * rd + (n if XF else 2 * n)
        P(f'v_lshlrev_b32 v{g + 2 * n}, 16, v{pp}\nv_and_b32 v{g + 2 * n + 1}, 0xffff0000, v{pp}')
    for r in range(8):
        P(f'v_add_f32 v{g + r}, v{g + r}, v{cD + r}')
    for r in range(8):
        P(f'v_mul_f32 v{cE + r}, v{cSt + 2 * rd + 1}, v{g + r}')
    for r in range(8):
        P(f'v_exp_f32 v{cE + r}, v{cE + r}')
    for r in range(8):
        P(f'v_fma_f32 v{cE + r}, v{cE + r}, v{cSt + 2 * rd}, v{cSt + 2 * rd}')
    for r in range(8):
        P(f'v_rcp_f32 v{cE + r}, v{cE + r}')
    if OPT['xo'] == 2 and rd == 0:
        P(f's_waitcnt lgkmcnt(0)\ns_cmp_lg_u32 s5, s{sTAG}\ns_cbranch_scc1 L_nob')
        pload(1)
        P.label('L_nob')
    for r in range(8):
        P(f'v_mul_f32 v{g + r}, v{g + r}, v{cE + r}')
        if OPT.get('pert'):
            import struct
            P(f'v_mul_f32 v{g + r}, {struct.unpack("<I", struct.pack("<f", 1 + OPT["pert"] / 1000))[0]:#x}, v{g + r}')
stamp(14)
P('s_barrier')
stamp(6) if OPT['ds'] == 4 else None
for rd in range(2):
    P(f'ds_read_b128 {vr(cX + 4 * rd)}, v{cSA} offset:{4096 * rd}')
for rd in range(2):
    P(f's_waitcnt lgkmcnt({1 - rd})')
    for n in range(4):
        P(f'v_lshlrev_b32 v{cD + 2 * n}, 16, v{cX + 4 * rd + n}\nv_and_b32 v{cD + 2 * n + 1}, 0xffff0000, v{cX + 4 * rd + n}')
    for n in range(4):
        a = cXu + 8 * rd + 2 * n
        P(f'v_pk_fma_f32 {vr(a, 2)}, {vr(cD + 2 * n, 2)}, {vr(cG + 8 * rd + 2 * n, 2)}, {vr(a, 2)}')
    for n in range(4):
        P(f'v_cvt_pk_bf16_f32 v{cE + 4 * rd + n}, v{cXu + 8 * rd + 2 * n}, v{cXu + 8 * rd + 2 * n + 1}')
    P(f'buffer_store_dwordx4 {vr(cE + 4 * rd)}, v{cXO}, {srd(SOUT)}, s{sXR + rd} offen' + (' sc1' if OPT['osc1'] else ''))
stamp(7) if OPT['ds'] == 4 else None
P.label('L_EXIT')
if DIAG:
    P('s_waitcnt vmcnt(0)')
    stamp(15)
    diag_dump()
P.label('L_END')
P('s_endpgm')

body = P.finalize()
ref = open('cdna_kernels/%s.s.ref' % NAME).read()
hdr = [l for l in ref.split('\n') if l.startswith(';') and '@launch' not in l]
out = '\n'.join(hdr) + '\n; @launch grid=(256,1,1) block=(512,1,1) lds=%d\n' % LDS_BYTES
out += f'''.amdgcn_target "amdgcn-amd-amdhsa--gfx950"
.text
.globl {NAME}_kernel
.p2align 8
.type {NAME}_kernel,@function
{NAME}_kernel:
{body}.section .rodata,"a"
.p2align 6
.amdhsa_kernel {NAME}_kernel
  .amdhsa_next_free_vgpr 256
  .amdhsa_next_free_sgpr 102
  .amdhsa_accum_offset 256
  .amdhsa_group_segment_fixed_size 0
  .amdhsa_kernarg_size 72
  .amdhsa_user_sgpr_count 2
  .amdhsa_user_sgpr_kernarg_segment_ptr 1
  .amdhsa_system_sgpr_workgroup_id_x 1
.end_amdhsa_kernel
'''
open(sys.argv[1], 'w').write(out)
print('instructions', len(P.ins), 'nops inserted', P.nops_inserted)
```

```python
import sys
import itertools
from asmlib import Prog, Q

NAME = 'recurrent_scan__sliding_local_dilated__dense_activation_relu__prompt'
OPT = dict(diag=0, pf_code=1, pf_w=4, la=5, hold=2, wstep=2, prio=1, osc1=1, lahead=13, tm=1,
           nfill=2, cs_it=5, fla=4, ds=0, lsl=2, hw=7, cap=7, relu=0, n5=2, p5=14,
           kh=0x58ffff, kq=0x47ffff, k0=0, sfn=5, gk=5, ssl=1, nt=0, fs=7, fl=32, swarm=1, w4=2, lpause=5, pe=4, lpl=8, cprio=1, fwarm=2, xh=1, qf=1, qhold=0, la0=20, gate=9, m1=2, abl=0, p7=1, pad=2816, spf=0, capp=3, cape=12, l0=13, qfirst=0, ipff=4, hst=0, rm=0, sk=3, lpp=2, xw=10, rf=2, sprio=0, ot=3, pfq=0, nsg=102, tk=3, p5q=14, dd=1, lp=1, f1=0, wf=0, pflip=1, xf=1, xo=0, na=0, fap=6, ncw2=0, nb=9, bd=5, on=33, dc=2, wl=28, ws=37, tw=0, twl=10, gp=1, esl=0, b6=0, n5q=2, qp=1, ps=6, nfq=2, xp=0, xq=2, nm=3, xs=0, xr=2, ipf=8, ipl=0)
for a in sys.argv[2:]:
    k, v = a.split('=')
    OPT[k] = int(v, 0)
PROBE = OPT.get('probe')
DIAG = OPT['diag'] or PROBE is not None

WS_FLAGS = 0x980000
FS = OPT['fs']
WS_STATS = 16384
WS_CSUM = 32768
WS_ACT = 262144
WS_XCH = 0xA00000
WS_DIAG = 0xE00000
WS_BYTES = 0xF00000
NS = 72
LST = 7

XS = [0, 16384, 32768]
WSL = [49152, 77824, 106496]
WO = 77824
NGRP = 14
HALO = 135168
WIN = 135168
ST = 157696
CS = 161792
SYNC = 163584
VSTR = 56
VREG = 141312
KX = 24576
DUMMY = 73728


def halo_off(s):
    return 2048 * ((s + 3) % 7)


DUMPF = 0
STILE = 65536
LDS_BYTES = 163840

sSPIN = 3
SPIN_MAX = 0x200000
SX, SW, SWO, SW2, SWS, SOUT = 24, 28, 32, 36, 40, 44
sWAVE, sRB, sIDX, sISQ, sCG, sRT, sCT, sROT, sTAG, sI = range(48, 58)
sT0, sT1, sT2, sT3 = 58, 59, 60, 61
sXO, sWO_, sMX, sMW, sHO, sKB = 62, 63, 64, 65, 66, 67
sA0, sA1 = 68, 69
sWF = 19
sPUB = 22
sST = 70

P = Prog()


def srd(b):
    return 's[%d:%d]' % (b, b + 3)


def vr(a, n=4):
    return 'v[%d:%d]' % (a, a + n - 1)


MUTE = False


def stamp(k):
    if DIAG and not MUTE:
        P('s_memrealtime s[%d:%d]' % (sST + 2 * k, sST + 2 * k + 1))


def cstamp(k):
    if DIAG and PROBE is None:
        P('s_memtime s[%d:%d]' % (sST + 2 * k, sST + 2 * k + 1))


def mk_srd(b, ptr, size):
    P('s_mov_b32 s%d, s%d\ns_mov_b32 s%d, s%d\ns_mov_b32 s%d, 0x%x\ns_mov_b32 s%d, 0x20000'
      % (b, ptr, b + 1, ptr + 1, b + 2, size, b + 3))


def diag_dump():
    if PROBE is not None:
        a, b = divmod(PROBE, 100)
        P(f'''s_waitcnt lgkmcnt(0)
s_cmp_lt_u32 s{sWAVE}, 4
s_cbranch_scc1 L_END
s_cmp_ge_u32 s{sCT}, 7
s_cbranch_scc1 L_END
s_sub_u32 s{sT0}, s{sST + 2 * b}, s{sST + 2 * a}
s_min_u32 s{sT0}, s{sT0}, 5000
s_lshl_b32 s{sT0}, s{sT0}, 2''')
        P.label('L_probe')
        P(f'''s_memrealtime s[{sT2}:{sT3}]
s_waitcnt lgkmcnt(0)
s_sub_u32 s{sT1}, s{sT2}, s{sST + 30}
s_cmp_lt_u32 s{sT1}, s{sT0}
s_cbranch_scc1 L_probe''')
    elif DIAG:
        P('s_lshl_b32 s%d, s2, 3\ns_add_u32 s%d, s%d, s%d\ns_lshl_b32 s%d, s%d, 6\ns_add_u32 s%d, s%d, 0x%x'
          % (sT0, sT0, sT0, sWAVE, sT0, sT0, sT0, sT0, WS_DIAG))
        P('v_mov_b32 v1, 0\ns_waitcnt lgkmcnt(0)')
        for k in range(16):
            P('v_mov_b32 v2, s%d\nbuffer_store_dword v2, v1, %s, s%d offen offset:%d' % (sST + 2 * k, srd(SWS), sT0, 4 * k))


def spin_guard(out):
    P(f's_add_u32 s{sSPIN}, s{sSPIN}, 1\ns_cmp_gt_u32 s{sSPIN}, {SPIN_MAX}\ns_cbranch_scc1 {out}')


def lds_cmp(tmp, val):
    P(f'v_min3_u32 v{tmp}, v{tmp}, v{tmp + 1}, v{tmp + 2}\nv_min_u32 v{tmp}, v{tmp}, v{tmp + 3}\nv_cmp_gt_u32 vcc, {val}, v{tmp}')


def lds_poll(name, tmp, vsync, off, val, sleep=0):
    P(f'ds_read_b128 {vr(tmp)}, v{vsync} offset:{off}\ns_waitcnt lgkmcnt(0)')
    lds_cmp(tmp, val)
    P(f's_cbranch_vccz {name}_ok')
    lds_spin(name, tmp, vsync, off, val, sleep)
    P.label(name + '_ok')


def lds_spin(name, tmp, vsync, off, val, sleep):
    P.label(name)
    spin_guard(name + '_ok')
    if sleep:
        P(f's_sleep {sleep}')
    P(f'ds_read_b128 {vr(tmp)}, v{vsync} offset:{off}\ns_waitcnt lgkmcnt(0)')
    lds_cmp(tmp, val)
    P(f's_cbranch_vccnz {name}')


def lds_signal(vaddr, tmp, val):
    P(f'v_mov_b32 v{tmp}, {val}\nds_write_b32 v{vaddr}, v{tmp}')


def w2_tr_addr(d, hi_shift, t0, t1):
    P(f'''v_bfe_u32 v{t0}, v0, 2, 3
v_lshlrev_b32 v{t0}, 7, v{t0}
v_lshrrev_b32 v{t1}, 5, v0
v_lshl_add_u32 v{t0}, v{t1}, {hi_shift}, v{t0}
v_and_b32 v{t1}, 3, v0
v_lshl_add_u32 v{t0}, v{t1}, 3, v{t0}
v_bfe_u32 v{t1}, v0, 3, 2
v_lshl_add_u32 v{d}, v{t1}, 5, v{t0}
v_xor_b32 v{d + 1}, 32, v{d}
v_xor_b32 v{d + 2}, 64, v{d}
v_xor_b32 v{d + 3}, 96, v{d}''')


def q_addr_parts(trow, tmask, tc, t):
    P(f'''v_lshrrev_b32 v{trow}, 4, v0
v_lshlrev_b32 v{trow}, 3, v{trow}
v_bfe_u32 v{t}, v0, 2, 2
v_add_u32 v{trow}, v{trow}, v{t}
v_lshlrev_b32 v{trow}, 7, v{trow}
v_bfe_u32 v{tmask}, v0, 3, 2
v_lshlrev_b32 v{tmask}, 5, v{tmask}
v_and_b32 v{tc}, 3, v0
v_lshlrev_b32 v{tc}, 3, v{tc}''')
    if OPT['p7']:
        P(f's_cmp_eq_u32 s{sIDX}, 7\ns_cselect_b32 s{sT0}, 16, 0\nv_add_u32 v{tc}, s{sT0}, v{tc}')


def q_addr(d, boff, trow, tmask, tc):
    P(f'v_add_u32 v{d}, {boff}, v{tc}\nv_min_u32 v{d}, 120, v{d}\nv_xor_b32 v{d}, v{d}, v{tmask}\nv_add_u32 v{d}, v{d}, v{trow}')


def h_addr(d, t0, t1):
    P(f'''v_lshrrev_b32 v{t0}, 4, v0
v_lshlrev_b32 v{t0}, 3, v{t0}
v_bfe_u32 v{t1}, v0, 2, 2
v_add_u32 v{t0}, v{t0}, v{t1}
v_mul_u32_u24 v{t0}, 448, v{t0}
v_bfe_u32 v{t1}, v0, 4, 1
v_lshl_add_u32 v{t0}, v{t1}, 5, v{t0}
v_and_b32 v{t1}, 3, v0
v_lshl_add_u32 v{d}, v{t1}, 3, v{t0}''')


def mfma(d, a, b, c):
    return f'v_mfma_f32_16x16x32_bf16 {vr(d)}, {vr(a)}, {vr(b)}, ' + ('0' if c is None else vr(c))


P(f'''s_cmp_ge_u32 s2, 256
s_cbranch_scc1 L_END
s_load_dwordx16 s[4:19], s[0:1], 0
s_load_dwordx2 s[20:21], s[0:1], 64''')
if OPT['pf_code']:
    P('s_getpc_b64 s[22:23]')
    P.label('L_pc')
    sh_ = OPT['pf_code'] - 1
    msk = (0x01010101, 0x00010001, 0x00000001)[sh_]
    P(f'''s_lshl_b32 s{sT0}, s2, {10 - sh_}
s_and_b32 s{sT0}, s{sT0}, {0x10000 - (0x2000 >> sh_):#x}
v_lshlrev_b32 v2, {4 - sh_}, v0
v_add_u32 v2, s{sT0}, v2
v_min_u32 v2, L_END-L_pc, v2
s_mov_b32 exec_lo, {msk:#x}
s_mov_b32 exec_hi, {msk:#x}
global_load_dword v247, v2, s[22:23]
s_mov_b64 exec, -1''')
P(f'''v_lshrrev_b32 v1, 6, v0
v_and_b32 v0, 63, v0
v_readfirstlane_b32 s{sWAVE}, v1
s_and_b32 s{sT0}, s2, 7
s_lshr_b32 s{sT1}, s2, 3
s_and_b32 s{sRB}, s{sT0}, 1
s_lshl_b32 s{sRB}, s{sRB}, 3
s_and_b32 s{sT2}, s{sT1}, 7
s_add_u32 s{sRB}, s{sRB}, s{sT2}
s_and_b32 s{sIDX}, s{sT0}, 6
s_bfe_u32 s{sT2}, s{sT1}, 0x10003
s_add_u32 s{sIDX}, s{sIDX}, s{sT2}
MAP1
s_lshr_b32 s{sISQ}, s{sT1}, 4
s_xor_b32 s{sISQ}, s{sISQ}, {OPT['qfirst']}
s_lshl_b32 s{sCG}, s{sISQ}, 3
s_add_u32 s{sCG}, s{sCG}, s{sIDX}
s_mul_i32 s{sT2}, s{sT1}, 9363
s_lshr_b32 s{sT2}, s{sT2}, 16
s_mul_i32 s{sT3}, s{sT2}, 7
s_sub_u32 s{sT3}, s{sT1}, s{sT3}
s_cmp_ge_u32 s{sT1}, 28
s_cselect_b32 s{sCT}, 7, s{sT3}
s_lshl_b32 s{sT2}, s{sT2}, 1
s_and_b32 s{sRT}, s{sT0}, 6
s_lshl_b32 s{sRT}, s{sRT}, 2
s_add_u32 s{sRT}, s{sRT}, s{sT2}
s_and_b32 s{sT2}, s{sT0}, 1
s_add_u32 s{sRT}, s{sRT}, s{sT2}
ROT1
s_mul_i32 s{sT2}, s{sROT}, 9363
s_lshr_b32 s{sT2}, s{sT2}, 16
s_mul_i32 s{sT2}, s{sT2}, 7
s_sub_u32 s{sROT}, s{sROT}, s{sT2}
s_and_b32 s{sPUB}, s{sROT}, 1
s_cmp_ge_u32 s{sRB}, 7
s_cselect_b32 s{sPUB}, 1, s{sPUB}
s_mov_b32 s{sSPIN}, 0
s_and_b32 s{sI}, s{sWAVE}, 3'''.replace('MAP1', '' if not OPT['m1'] else f'''s_and_b32 s{sT2}, s{sT0}, 2
s_lshl_b32 s{sT2}, s{sT2}, 1
s_and_b32 s{sT3}, s{sRB}, 11
s_add_u32 s{sT2}, s{sT2}, s{sT3}
s_and_b32 s{sT3}, s{sT0}, 4
s_bfe_u32 s{sCG}, s{sT1}, 0x20002
s_add_u32 s{sT3}, s{sT3}, s{sCG}
s_lshr_b32 s{sCG}, s{sT0}, 2
s_mul_i32 s{sCG}, s{sCG}, {3 * OPT['pflip']}
s_xor_b32 s{sT3}, s{sT3}, s{sCG}
s_cmp_ge_u32 s{sT1}, 16
s_cselect_b32 s{sRB}, s{sT2}, s{sRB}
s_cselect_b32 s{sIDX}, s{sT3}, s{sIDX}''' if OPT['m1'] == 2 else f'''s_lshr_b32 s{sRB}, s{sT0}, 1
s_lshl_b32 s{sRB}, s{sRB}, 2
s_and_b32 s{sT2}, s{sT1}, 3
s_add_u32 s{sRB}, s{sRB}, s{sT2}
s_and_b32 s{sIDX}, s{sT0}, 1
s_lshl_b32 s{sIDX}, s{sIDX}, 2
s_bfe_u32 s{sT2}, s{sT1}, 0x20002
s_add_u32 s{sIDX}, s{sIDX}, s{sT2}''').replace('ROT1', f'''s_lshr_b32 s{sROT}, s{sT1}, 3
s_lshl_b32 s{sROT}, s{sROT}, 1
s_add_u32 s{sROT}, s{sROT}, s{sRB}''' if not OPT['m1'] else f'''s_and_b32 s{sROT}, s{sIDX}, 1
s_mul_i32 s{sROT}, s{sROT}, 3
s_and_b32 s{sT2}, s{sIDX}, 3
s_lshl_b32 s{sT2}, s{sT2}, 1
s_add_u32 s{sT2}, s{sT2}, 1
s_cmp_ge_u32 s{sT1}, 16
s_cselect_b32 s{sROT}, s{sT2}, s{sROT}
s_lshl_b32 s{sT2}, s{sRB}, 1
s_add_u32 s{sROT}, s{sROT}, s{sT2}''' if OPT['m1'] == 2 else f'''s_lshr_b32 s{sROT}, s{sT1}, 2
s_lshl_b32 s{sT2}, s{sRB}, 1
s_add_u32 s{sROT}, s{sROT}, s{sT2}'''))
if DIAG:
    for k in range(16):
        P('s_mov_b32 s%d, 0' % (sST + 2 * k))
if PROBE is not None:
    stamp(2)
P(f'''s_cmp_ge_u32 s{sWAVE}, 4
s_cbranch_scc1 L_C''')

LW, LACC, LA, LADR = 24, 136, 200, 252
vX, vW, vH, vCA, vGA, vGS = 164, 168, 175, 176, 178, 179
vSEL, vCACC, vCF, vLT = 180, 196, 200, 232
vAD1, vAD2 = 180, 184
vS = 124
vSY, vSG, vPT = 244, 245, 248


def dma(vm, voff, srdb, soff, m0base, m0imm, tag=None, nt=False):
    P(f's_add_u32 m0, s{m0base}, {m0imm}')
    P(f'buffer_load_dwordx4 v{voff}, {srd(srdb)}, s{soff} offen {"nt " if nt else ""}lds')
    vm.issue(tag)


def red32(a, t):
    for sh in (8, 4, 2, 1):
        P(f'v_add_f32_dpp v{a}, v{a}, v{a} row_ror:{sh} row_mask:0xf bank_mask:0xf')
    P(f'v_mov_b32 v{t}, v{a}\nv_permlane16_swap_b32 v{t}, v{a}\nv_add_f32 v{a}, v{a}, v{t}')


def stats_rows():
    P(f'''v_and_b32 v{vS}, 31, v0
v_lshrrev_b32 v{vS + 1}, 5, v0
v_mul_u32_u24 v{vS + 2}, 896, v{vS + 1}
v_lshl_add_u32 v{vS + 2}, v{vS}, 4, v{vS + 2}
v_cmp_gt_u32 vcc, 28, v{vS}
v_mov_b32 v{vS + 3}, 0x10000000
v_cndmask_b32 v{vS + 2}, v{vS + 3}, v{vS + 2}, vcc
v_cndmask_b32 v{vS + 3}, 0, 1.0, vcc
s_lshl_b32 s{sT0}, s{sRB}, 7
s_lshl_b32 s{sT1}, s{sCG}, 3
s_add_u32 s{sT0}, s{sT0}, s{sT1}
s_lshl_b32 s{sT1}, s{sI}, 1
s_add_u32 s{sT3}, s{sT0}, s{sT1}
s_mul_i32 s{sT2}, s{sT3}, 896''')


def stats_load(vm):
    for u in range(2):
        P(f'buffer_load_dwordx4 {vr(vS + 4 + 4 * u)}, v{vS + 2}, {srd(SX)}, s{sT2} offen offset:{448 * u}')
        vm.issue('stats')

def stats_body():
    n0 = len(P.ins)
    a, d = vS + 12, vS + 16
    for n in range(8):
        P(f'v_lshlrev_b32 v{d + 2 * n}, 16, v{vS + 4 + n}\nv_and_b32 v{d + 1 + 2 * n}, 0xffff0000, v{vS + 4 + n}')
    P(f'v_add_f32 v{a}, v{d}, v{d + 1}\nv_add_f32 v{a + 1}, v{d + 2}, v{d + 3}')
    for n in range(4, 16):
        P(f'v_add_f32 v{a + n % 2}, v{a + n % 2}, v{d + n}')
    P(f'v_add_f32 v{a}, v{a}, v{a + 1}')
    red32(a, a + 1)
    P(f'v_mul_f32 v{a}, 0x3b124925, v{a}')
    for n in range(16):
        P(f'v_sub_f32 v{d + n}, v{d + n}, v{a}')
    P(f'v_mul_f32 v{a + 2}, v{d}, v{d}\nv_mul_f32 v{a + 3}, v{d + 1}, v{d + 1}')
    for n in range(2, 16):
        P(f'v_fmac_f32 v{a + 2 + n % 2}, v{d + n}, v{d + n}')
    P(f'v_add_f32 v{a + 2}, v{a + 2}, v{a + 3}\nv_mul_f32 v{a + 2}, v{a + 2}, v{vS + 3}')
    red32(a + 2, a + 1)
    P(f'''v_mul_f32 v{a + 2}, 0x3b124925, v{a + 2}
v_cvt_pk_bf16_f32 v{a + 2}, 0, v{a + 2}
v_add_f32 v{a + 2}, 0x3727c5ac, v{a + 2}
v_cvt_pk_bf16_f32 v{a + 2}, 0, v{a + 2}
v_sqrt_f32 v{a + 2}, v{a + 2}
v_cvt_pk_bf16_f32 v{a + 2}, v{a}, v{a + 2}
v_mov_b32 v{a + 3}, s{sTAG}
v_lshlrev_b32 v{a + 1}, 3, v{vS + 1}''')
    out = [x.text for x in P.ins[n0:]]
    del P.ins[n0:]
    return out

def stats_store(vm):
    a = vS + 12
    P(f'''s_lshl_b32 s{sT3}, s{sT3}, 3
s_add_u32 s{sT3}, s{sT3}, {WS_STATS}
s_mov_b32 exec_lo, 1
s_mov_b32 exec_hi, 1
buffer_store_dwordx2 {vr(a + 2, 2)}, v{a + 1}, {srd(SWS)}, s{sT3} offen sc1
s_mov_b64 exec, -1''')
    vm.issue()


sFB = 23
sFA = 18
AL = '\n'.join(f's_buffer_load_dword s{4 + g}, {srd(SWS)}, s{sFA} offset:{512 + (g << FS)} glc' for g in range(2))
F1 = f's_buffer_load_dword s4, {srd(SWS)}, s{sFA} glc'
BL = '\n'.join(f's_buffer_load_dword s{4 + g}, {srd(SWS)}, s{sFB} offset:{g << FS} glc' for g in range(4))


def of_addr(d, t0, t1):
    P(f'''s_lshr_b32 s{d}, s{sRT}, 1
s_lshl_b32 s{d}, s{d}, 14
s_and_b32 s{t0}, s{sRT}, 1
s_lshl_b32 s{t0}, s{t0}, 1
s_lshr_b32 s{t1}, s{sI}, 1
s_add_u32 s{t0}, s{t0}, s{t1}
s_lshl_b32 s{t0}, s{t0}, {FS}
s_add_u32 s{d}, s{d}, s{t0}
s_add_u32 s{d}, s{d}, {WS_FLAGS + 8192}''')


def ol(a):
    return '\n'.join(f's_buffer_load_dword s{4 + p_}, {srd(SWS)}, s{a} offset:{1024 * p_} glc' for p_ in range(8))


def xh_addr(d, w=None):
    P(f'''s_mul_i32 s{d}, s{sRT}, 7
s_add_u32 s{d}, s{d}, s{sCT}
s_lshl_b32 s{d}, s{d}, 4
s_add_u32 s{d}, s{d}, s{sI}
s_lshl_b32 s{d}, s{d}, 10
s_add_u32 s{d}, s{d}, {WS_XCH + 8192 + 1020}''')


class W2Plan:
    def __init__(self, vm):
        self.vm = vm
        self.pairs = []
        self.grp = set()
        self.loc = {}
        self.pending = []
        self.ncw = 0

    def wopair(self):
        c = [g for g in (0, 2, 4) if g in self.grp and g + 1 in self.grp]
        return c[0] if c else None

    def has_pair(self):
        return bool(self.pairs) or self.wopair() is not None

    def own(self, hs):
        for h in hs:
            if self.pairs:
                a = self.pairs.pop(0)
            else:
                g = self.wopair()
                self.grp -= {g, g + 1}
                a = WO + 4096 * g
            self.loc[h] = a
            for u in range(2):
                dma(self.vm, 2 + u, SW2, sA0, sMX, a + 4096 * u, ('own', h))
            P(f's_add_u32 s{sA0}, s{sA0}, {16 * 896}')

    def sync(self):
        if self.pending:
            P('s_waitcnt lgkmcnt(0)')
            for h in self.pending:
                a = self.loc[h]
                if WO <= a < WO + 4096 * NGRP:
                    self.grp |= {(a - WO) // 4096, (a - WO) // 4096 + 1}
                else:
                    self.pairs.append(a)
            self.pending = []

    def stage(self, hs):
        self.vm.wait(('own', hs[-1]))
        self.sync()
        for h in hs:
            o = self.loc[h]
            base = (LADR, vAD1, vAD2)[o >> 16]
            for ct in range(4):
                P(f'ds_read_b64_tr_b16 {vr(LW + 8 * (h & ~1) + 4 * ct + 2 * (h & 1), 2)}, v{base + ct} offset:{o & 0xffff}')
        self.pending = list(hs)

    def cw(self):
        if NGRP - self.ncw == OPT['pe'] and not OPT['na'] and not OPT['ncw2']:
            P(F1 if OPT['f1'] else BL)
        g = max(self.grp)
        self.grp.remove(g)
        P(f's_add_u32 s{sT0}, s{sA1}, {g * 28672 + (0x20000000 if (OPT["abl"] & 4 or (OPT["abl"] & 32 and not self.isq)) else 0)}')
        dma(self.vm, 2, SWO, sT0, sMX, WO + 4096 * g, ('cw', g))
        self.ncw += 1


def spoll(name, loads, nreg, onfail=None):
    P.label(name)
    P(loads)
    P.label(name + '_w')
    P('s_waitcnt lgkmcnt(0)')
    for n in range(nreg):
        P(f's_xor_b32 s{4 + n}, s{4 + n}, s{sTAG}')
    if nreg == 1:
        pass
    elif nreg == 2:
        P('s_or_b32 s4, s4, s5')
    elif nreg == 4:
        P('s_or_b64 s[4:5], s[4:5], s[6:7]')
    else:
        P('s_or_b64 s[4:5], s[4:5], s[6:7]\ns_or_b64 s[8:9], s[8:9], s[10:11]\ns_or_b64 s[4:5], s[4:5], s[8:9]')
    P(f's_cbranch_scc0 {name}_ok')
    if onfail:
        onfail()
    spin_guard(name + '_ok')
    P(f's_sleep {OPT["ssl"]}\ns_branch {name}')
    P.label(name + '_ok')


P(f'''v_lshrrev_b32 v{vLT}, 3, v0
v_lshl_add_u32 v{vLT}, s{sI}, 3, v{vLT}
v_mul_u32_u24 v{vX}, 896, v{vLT}
v_lshrrev_b32 v{vLT}, 1, v{vLT}
v_xor_b32 v{vLT}, v{vLT}, v0
v_and_b32 v{vLT}, 7, v{vLT}
v_lshl_add_u32 v{vX}, v{vLT}, 4, v{vX}
v_add_u32 v{vX + 1}, 28672, v{vX}
v_add_u32 v{vX + 2}, 57344, v{vX}
v_add_u32 v{vX + 3}, 86016, v{vX}
s_mul_i32 s{sXO}, s{sRB}, 114688
s_lshl_b32 s{sT0}, s{sROT}, 7
s_add_u32 s{sXO}, s{sXO}, s{sT0}
s_mov_b32 s{sKB}, s{sROT}
s_lshl_b32 s{sMX}, s{sI}, 10
s_cmp_eq_u32 s{sISQ}, {1 - OPT['qf']}
s_cbranch_scc1 L_LQ''')


def L_phase1(isq):
    t = 'Q' if isq else 'H'
    vm = Q(P, 'vmcnt', 63)
    wstr = 2688 if isq else 3584
    wsl = WSL
    globals()['MUTE'] = False

    def gen_st(s):
        wf = s < OPT['wf']
        if wf:
            for n in range(6):
                o = (n // 2) * 8192 + (n % 2) * 1024 if isq else n * 1024
                if n < (5 if isq else 6):
                    dma(vm, vW + n, SW, sWO_, sMW, wsl[s % 3] + o)
                    yield
        for n in range(4):
            dma(vm, vX + n, SX, sXO, sMX, XS[s % 3] + 4096 * n, nt=(OPT['nt'] & 1 and s < 1))
            yield
        if isq and s % 2 == 0:
            if s < 6:
                P(f'''s_lshr_b32 s{sT0}, s{sI}, 1
s_add_u32 s{sT0}, s{sT0}, s{sKB}
s_cmp_eq_u32 s{sT0}, 7
s_cselect_b32 s{sT0}, 0, s{sT0}
s_lshl_b32 s{sT0}, s{sT0}, 7
s_add_u32 s{sT0}, s{sT0}, s{sHO}''')
                dma(vm, vH, SX, sT0, sMX, HALO + halo_off(s))
            else:
                P(f'''s_lshl_b32 s{sT0}, s{sKB}, 7
s_add_u32 s{sT0}, s{sT0}, s{sHO}
s_and_b32 s{sT1}, s{sMX}, 1024''')
                dma(vm, vH, SX, sT0, sT1, HALO + halo_off(s))
            yield
        nw = 6 if isq else 7
        for n in range(nw - 1 if wf else 0, nw):
            o = (n // 2) * 8192 + (n % 2) * 1024 if isq else n * 1024
            dma(vm, vW + n, SW, sWO_, sMW, wsl[s % 3] + o, ('st', s), nt=(OPT['nt'] & 2 and s < 1))
            if n == nw - 1 and s < 6:
                P(f'''s_add_u32 s{sKB}, s{sKB}, 1
s_cmp_eq_u32 s{sKB}, 7
s_cselect_b32 s{sKB}, 0, s{sKB}
s_cselect_b32 s{sT0}, {7 * 128}, 0
s_cselect_b32 s{sT1}, {7 * 64 * wstr}, 0
s_add_u32 s{sXO}, s{sXO}, 128
s_add_u32 s{sWO_}, s{sWO_}, {64 * wstr}
s_sub_u32 s{sXO}, s{sXO}, s{sT0}
s_sub_u32 s{sWO_}, s{sWO_}, s{sT1}''')
            yield

    def run(g, n=1000):
        for _ in range(n):
            if next(g, 'end') == 'end':
                break

    if isq:
        P(f'''v_lshrrev_b32 v{vLT}, 3, v0
v_mul_u32_u24 v{vW}, 2688, v{vLT}
v_bfe_u32 v{vLT}, v0, 4, 1
v_lshlrev_b32 v{vLT}, 1, v{vLT}
v_xor_b32 v{vLT}, v{vLT}, v0
v_and_b32 v{vLT}, 7, v{vLT}
v_lshlrev_b32 v{vLT}, 4, v{vLT}
v_xor_b32 v{vLT + 1}, 64, v{vLT}
v_add_u32 v{vW + 1}, {8 * 2688}, v{vW}
v_add_u32 v{vW}, v{vW}, v{vLT}
v_add_u32 v{vW + 1}, v{vW + 1}, v{vLT + 1}''')
        for n in range(2, 6):
            P(f'v_add_u32 v{vW + n}, {(n // 2) * 896}, v{vW + n % 2}')
        P(f'''s_mul_i32 s{sT0}, s{sIDX}, 112
s_min_u32 s{sT0}, s{sT0}, {768 if OPT['p7'] else 1024}
s_and_b32 s{sT0}, s{sT0}, {0xff80 if OPT['abl'] & 8 else 0xffff}
s_lshl_b32 s{sMW}, s{sI}, 11
s_lshr_b32 s{sT1}, s{sI}, 1
s_mul_i32 s{sT1}, s{sT1}, {16 * 896}
v_subrev_u32 v{vH}, s{sT1}, v{vX}
s_mul_i32 s{sHO}, s{sRB}, 114688
s_max_u32 s{sHO}, s{sHO}, {16 * 896}
s_sub_u32 s{sHO}, s{sHO}, {16 * 896}''')
    else:
        P(f's_movk_i32 s{sT0}, 3136')
        for n in range(7):
            P(f'''v_add_u32 v{vLT}, {64 * n}, v0
v_mul_u32_u24 v{vLT + 1}, 2341, v{vLT}
v_lshrrev_b32 v{vLT + 1}, 16, v{vLT + 1}
v_lshlrev_b32 v{vLT}, 4, v{vLT}
v_mad_u32_u24 v{vW + n}, v{vLT + 1}, s{sT0}, v{vLT}''')
            if n == 3:
                P(f'v_and_b32 v{vLT + 1}, 8, v{vLT + 1}\nv_lshlrev_b32 v{vLT + 1}, 2, v{vLT + 1}\nv_xor_b32 v{vW + n}, v{vW + n}, v{vLT + 1}')
            elif n > 3:
                P(f'v_xor_b32 v{vW + n}, 32, v{vW + n}')
        P(f's_mul_i32 s{sT0}, s{sIDX}, 448\ns_mul_i32 s{sMW}, s{sI}, 7168')
    P(f'''s_lshl_b32 s{sT1}, s{sROT}, 2
s_add_u32 s{sT1}, s{sT1}, s{sI}
s_mul_i32 s{sWO_}, s{sT1}, {16 * wstr}
s_add_u32 s{sWO_}, s{sWO_}, s{sT0}''')
    P('s_waitcnt lgkmcnt(0)')
    mk_srd(SX, 4, 2048 * 896)
    mk_srd(SW, 6 if isq else 12, 448 * wstr)
    stamp(0)
    KS = [int(c, 16) for c in '%06x' % OPT['kq' if isq else 'kh']]
    gens = [gen_st(s) for s in range(7)]
    run(gens[0])
    run(gens[1], min(KS[0], OPT['k0']))
    P(f's_load_dword s{sTAG}, s[20:21], 0')
    mk_srd(SWO, 8, 448 * 896)
    mk_srd(SW2, 14, 1792 * 896)
    mk_srd(SWS, 20, WS_BYTES)
    mk_srd(SOUT, 16, 2048 * 896)
    P(f'v_bfe_u32 v{vLT}, v0, 2, 2\nv_mov_b32 v{vLT + 1}, 0x3f803f80')
    for m in range(4):
        P(f'v_cmp_eq_u32 vcc, {m}, v{vLT}\nv_cndmask_b32 v{vSEL + 4 * m}, 0, v{vLT + 1}, vcc')
        for r in range(1, 4):
            P(f'v_mov_b32 v{vSEL + 4 * m + r}, v{vSEL + 4 * m}')
    if isq:
        q_addr_parts(vLT, vLT + 1, vLT + 2, vLT + 3)
        P(f'''s_lshr_b32 s{sT0}, s{sI}, 1
s_mul_i32 s{sT0}, s{sT0}, 56
s_and_b32 s{sT1}, s{sI}, 1
s_lshl_b32 s{sT1}, s{sT1}, 5
s_add_u32 s{sT0}, s{sT0}, s{sT1}''')
        q_addr(vCA, f's{sT0}', vLT, vLT + 1, vLT + 2)
        ntile, tstr, rstr, kstr = 3, 8192, 128, 4096
    else:
        h_addr(vCA, vLT, vLT + 1)
        P(f'''s_and_b32 s{sT0}, s{sI}, 1
s_lshl_b32 s{sT0}, s{sT0}, 5
v_xor_b32 v{vCA}, s{sT0}, v{vCA}
s_lshr_b32 s{sT0}, s{sI}, 1
s_lshl_b32 s{sT0}, s{sT0}, 6
v_add_u32 v{vCA}, s{sT0}, v{vCA}''')
        ntile, tstr, rstr, kstr = 4, 128, 448, 32 * 448
    w2_tr_addr(LADR, 12, vLT, vLT + 1)
    for ct in range(4):
        P(f'v_add_u32 v{LADR + ct}, s{sMX}, v{LADR + ct}')
    P(f'''v_lshrrev_b32 v{vLT}, 3, v0
v_mul_u32_u24 v2, 896, v{vLT}
v_and_b32 v{vLT}, 6, v{vLT}
v_xor_b32 v{vLT}, v{vLT}, v0
v_and_b32 v{vLT}, 7, v{vLT}
v_lshl_add_u32 v2, v{vLT}, 4, v2
v_add_u32 v3, {8 * 896}, v2
v_lshlrev_b32 v1, 4, v0
s_and_b32 s{sT0}, s{sRT}, 1
s_lshl_b32 s{sT0}, s{sT0}, 2
s_add_u32 s{sT0}, s{sT0}, s{sI}
s_mul_i32 s{sA0}, s{sT0}, {LST * 32 * 896}
s_lshr_b32 s{sFB}, s{sRT}, 1
s_lshl_b32 s{sFB}, s{sFB}, 4
s_add_u32 s{sFB}, s{sFB}, s{sT0}
s_lshl_b32 s{sFB}, s{sFB}, 10
s_add_u32 s{sFB}, s{sFB}, {WS_FLAGS}
s_andn2_b32 s{sFA}, 1, s{sRT}
s_lshl_b32 s{sFA}, s{sFA}, {FS + 1}
s_add_u32 s{sFA}, s{sFA}, s{sFB}
s_lshl_b32 s{sT0}, s{sCT}, 7
s_cmp_lt_u32 s{sCT}, 7
s_cselect_b32 s{sT0}, s{sT0}, 0x40000000
s_add_u32 s{sA0}, s{sA0}, s{sT0}
s_mul_i32 s{sA1}, s{sI}, {8 * 896}
s_add_u32 s{sA1}, s{sA1}, s{sT0}
v_lshl_add_u32 v{vGA}, s{sI}, 6, v0
v_min_u32 v{vGS}, 143, v{vGA}
v_lshlrev_b32 v{vGA}, 3, v{vGA}
v_mov_b32 v{vSY}, {SYNC}
v_lshl_add_u32 v{vSG}, s{sI}, 2, v{vSY}''')
    run(gens[1], KS[0] - min(KS[0], OPT['k0']))

    def csum_part(s):
        lab = f'L_{t}cs{s}'
        P(f's_cmp_lg_u32 s{sPUB}, 0\ns_cbranch_scc1 {lab}')
        if s == 1:
            P(f's_cmp_eq_u32 s{sROT}, 6\ns_cbranch_scc1 {lab}b')
        P(f'v_add_u32 v{vCA + 1}, {wsl[s]}, v{vCA}')
        if not isq:
            P(f's_and_b32 s{sT0}, s{sI}, 2\ns_lshl_b32 s{sT0}, s{sT0}, 6\nv_subrev_u32 v{vLT + 4}, s{sT0}, v{vCA + 1}')
        for kk in range(2):
            for m in range(ntile):
                f = vCF + 16 * kk + 4 * m
                o = m * tstr + kk * kstr
                va = vLT + 4 if m == 3 else vCA + 1
                P(f'ds_read_b64_tr_b16 {vr(f, 2)}, v{va} offset:{o}')
                P(f'ds_read_b64_tr_b16 {vr(f + 2, 2)}, v{va} offset:{o + 4 * rstr}')
        P('s_waitcnt lgkmcnt(0)')
        for kk in range(2):
            for m in range(ntile):
                P(mfma(vCACC, vSEL + 4 * m, vCF + 16 * kk + 4 * m, None if (s, kk, m) == (0, 0, 0) else vCACC))
        if s == 1:
            P.label(lab + 'b')
        P.label(lab)
        if s == 1:
            P(f'''s_lshl_b32 s{sT0}, s{sCG}, 13
s_lshl_b32 s{sT1}, s{sROT}, 10
s_add_u32 s{sT0}, s{sT0}, s{sT1}
s_lshl_b32 s{sT1}, s{sI}, 7
s_add_u32 s{sT0}, s{sT0}, s{sT1}
s_add_u32 s{sT0}, s{sT0}, {WS_CSUM}
s_cmp_lg_u32 s{sPUB}, 0
s_cselect_b32 s{sT0}, 0x40000000, s{sT0}
v_lshrrev_b32 v{vLT}, 4, v0
v_lshlrev_b32 v{vLT}, 9, v{vLT}
v_and_b32 v{vLT + 1}, 15, v0
v_lshl_add_u32 v{vLT}, v{vLT + 1}, 3, v{vLT}
v_mov_b32 v{vCACC + 1}, s{sTAG}
buffer_store_dwordx2 {vr(vCACC, 2)}, v{vLT}, {srd(SWS)}, s{sT0} offen sc1''')
            vm.issue()

    def gather_issue(count=True):
        for pi in range(4):
            P(f'buffer_load_dwordx2 {vr(vCF + 2 * pi, 2)}, v{vGA}, {srd(SWS)}, s{sT2 + pi // 2} offen offset:{2048 * (pi % 2)} sc1')
            if count:
                vm.issue('gather')
        P(f'''s_lshl_b32 s{sT0}, s{sRB}, 7
s_sub_u32 s{sT0}, s{sT0}, 16
v_add_u32 v{vCF + 10}, s{sT0}, v{vGS}
v_max_i32 v{vCF + 10}, 0, v{vCF + 10}
v_lshlrev_b32 v{vCF + 10}, 3, v{vCF + 10}
s_movk_i32 s{sT0}, {WS_STATS}
buffer_load_dwordx2 {vr(vCF + 8, 2)}, v{vCF + 10}, {srd(SWS)}, s{sT0} offen sc1''')
        if count:
            vm.issue('gather')

    def gather_start():
        P(f'''s_lshl_b32 s{sT2}, s{sCG}, 13
s_add_u32 s{sT2}, s{sT2}, {WS_CSUM}
s_add_u32 s{sT3}, s{sT2}, 4096''')
        gather_issue()

    def gather_cmp():
        for pi in range(5):
            P(f'v_xor_b32 v{vLT + pi}, s{sTAG}, v{vCF + 2 * pi + 1}')
        P(f'''v_or3_b32 v{vLT}, v{vLT}, v{vLT + 1}, v{vLT + 4}
v_or3_b32 v{vLT}, v{vLT}, v{vLT + 2}, v{vLT + 3}
v_cmp_ne_u32 vcc, 0, v{vLT}''')

    def gather_fin():
        for x in gather_chk():
            P(x)

    def gather_chk():
        vm.wait('gather')
        gather_cmp()
        P(f's_cbranch_vccz L_{t}gok')
        P.label(f'L_{t}gre')
        spin_guard(f'L_{t}gok')
        P('s_sleep 1')
        gather_issue(False)
        P('s_waitcnt vmcnt(0)')
        gather_cmp()
        P(f's_cbranch_vccnz L_{t}gre')
        P.label(f'L_{t}gok')
        a, b = vCF, vLT + 2
        txt = (f'''v_add_f32 v{a}, v{a}, v{a + 2}
v_add_f32 v{a + 4}, v{a + 4}, v{a + 6}
v_add_f32 v{a}, v{a}, v{a + 4}
v_mul_f32 v{a}, 0x3e800000, v{a}
v_and_b32 v{a + 14}, 0xffff0000, v{a + 8}
v_and_b32 v{a + 13}, 0xffff, v{a + 8}
v_rcp_f32 v{a + 14}, v{a + 14}
v_xor_b32 v{a + 13}, 0x8000, v{a + 13}
v_lshl_or_b32 v{a + 12}, v{a + 13}, 16, v{a + 13}
v_mul_f32 v{a + 15}, 0x3e8b9a4d, v{a + 14}
v_lshlrev_b32 v{a + 10}, 4, v{vGS}
v_add_u32 v{a + 10}, {ST}, v{a + 10}
ds_write_b128 v{a + 10}, {vr(a + 12)}
v_cvt_pk_bf16_f32 v{b}, 0, v{a}
v_sub_f32 v{b + 2}, v{a}, v{b}
v_cvt_pk_bf16_f32 v{b}, v{a}, v{b + 2}
v_and_b32 v{b + 1}, 0xffff0000, v{b}
v_sub_f32 v{b + 1}, v{b + 2}, v{b + 1}
v_cvt_pk_bf16_f32 v{b + 1}, v{b + 1}, 0
v_add_u32 v{vLT}, {CS}, v{vGA}
v_cmp_gt_u32 vcc, {224 * 8}, v{vGA}
s_mov_b64 exec, vcc|ds_write_b64 v{vLT}, {vr(b, 2)}|s_mov_b64 exec, -1''')
        return [x.replace('|', '\n') for x in txt.split('\n')]

    def pf_w():
        if OPT['pfq']:
            if isq != 2 - OPT['pfq']:
                return
            P(f'''s_and_b32 s{sT1}, s2, 127
s_lshl_b32 s{sT1}, s{sT1}, 2
s_add_u32 s{sT1}, s{sT1}, s{sI}
s_mul_i32 s{sT0}, s{sT1}, {7 * 128}
s_mul_i32 s{sT1}, s{sT1}, {25 * 128}
v_lshlrev_b32 v{vLT + 8}, 7, v0
s_mov_b64 exec, 0x1ffffff
buffer_load_dword v{vLT + 9}, v{vLT + 8}, {srd(SW2)}, s{sT1} offen
s_mov_b64 exec, 0x7f
buffer_load_dword v{vLT + 9}, v{vLT + 8}, {srd(SWO)}, s{sT0} offen
s_mov_b64 exec, -1''')
            vm.issue()
            vm.issue()
            return
        P(f'''s_lshl_b32 s{sT1}, s2, 2
s_add_u32 s{sT1}, s{sT1}, s{sI}
s_lshl_b32 s{sT1}, s{sT1}, 11
v_lshlrev_b32 v{vLT + 8}, 7, v0
s_mov_b64 exec, 0xffff
buffer_load_dword v{vLT + 9}, v{vLT + 8}, {srd(SW2)}, s{sT1} offen
buffer_load_dword v{vLT + 9}, v{vLT + 8}, {srd(SWO)}, s{sT1} offen
s_mov_b64 exec, -1''')
        vm.issue()
        vm.issue()

    P(f's_waitcnt lgkmcnt(0)\ns_add_u32 s{sTAG}, s{sTAG}, 1')
    w2 = W2Plan(vm)
    w2.isq = isq
    if not isq:
        w2.pairs += [WIN, WIN + 8192]
    nown = 0
    nstg = 0

    def own(n):
        nonlocal nown
        n = min(n, 2 * LST - nown)
        w2.own(range(nown, nown + n))
        nown += n

    def stage(n):
        nonlocal nstg
        n = min(n, nown - nstg)
        if n > 0:
            w2.stage(list(range(nstg, nstg + n)))
        nstg += n

    def cwait(v):
        lds_poll(f'L_{t}cp{v}', vPT, vSY, 16, v, OPT['lsl'])

    def fwarm():
        P(BL)
        if OPT['na']:
            P(AL.replace('s4,', 's11,').replace('s5,', 's11,'))
        of_addr(sT0, sT1, 10)
        P(f's_and_b32 s{sT1}, s{sI}, 1\ns_lshl_b32 s{sT1}, s{sT1}, 12\ns_add_u32 s{sT0}, s{sT0}, s{sT1}')
        for p_ in range(4):
            P(f's_buffer_load_dword s11, {srd(SWS)}, s{sT0} offset:{1024 * p_} glc')
        xh_addr(sT0, sI)
        P(f's_buffer_load_dword s11, {srd(SWS)}, s{sT0} glc\ns_buffer_load_dword s11, {srd(SWS)}, s{sT0} offset:4096 glc')

    nspf = 0

    def spf(n):
        nonlocal nspf
        if nspf == 0:
            P(f'''s_lshl_b32 s9, s2, 2
s_add_u32 s9, s9, s{sI}
s_mul_i32 s8, s9, {25 * 64}
s_mul_i32 s9, s9, {7 * 64}''')
        for _ in range(n):
            if nspf < 25:
                P(f's_buffer_load_dword s12, {srd(SW2)}, s8 offset:{64 * nspf}')
            elif nspf < 32:
                P(f's_buffer_load_dword s12, {srd(SWO)}, s9 offset:{64 * (nspf - 25)}')
            nspf += 1
    if OPT['fwarm'] == 9:
        fwarm()
    spn = [int(c, 16) for c in '%05x' % OPT['spf']]
    fin = set()
    wbs = [int(c) for c in '%05d' % OPT['w4']]
    sfill = []
    for s in range(5):
        if OPT['ds'] == 3:
            stamp(1 + 3 * s)
            vm.wait(('st', s))
            stamp(2 + 3 * s)
            P('s_barrier')
            stamp(3 + 3 * s) if s < 4 else None
        else:
            stamp(13) if s == 4 else None
            vm.wait(('st', s))
            stamp(14) if s == 4 else None
            P('s_barrier')
            stamp({0: 1, 3: 3, 4: 5}[s]) if s in (0, 3, 4) else None
        def extras(st):
            if OPT['pf_w'] == st:
                pf_w()

        def stream():
            for st, lim in ((s + 1, 99), (s + 2, KS[s + 1])):
                if st in fin:
                    continue
                k = 0
                while k < lim:
                    if next(gens[st], 'end') == 'end':
                        fin.add(st)
                        extras(st)
                        break
                    k += 1
                    yield
        g = stream()
        if OPT['cs_it'] == 10 * s - 5 and s > 1:
            gather_start()
        if s < 2:
            run(g, 5)
            csum_part(s)
        if s == OPT['cs_it'] + 1 or (OPT['cs_it'] == 10 * s - 15 and s > 2):
            run(g, OPT['gk'])
            sfill = gather_chk()
        while next(g, 'end') != 'end':
            for _ in range(OPT['sfn']):
                if sfill:
                    P(sfill.pop(0))
        if s == OPT['cs_it']:
            gather_start()
        if True:
            while sfill:
                P(sfill.pop(0))
        if spn[s]:
            spf(spn[s])
        if s == OPT['fwarm']:
            fwarm()
        if s == 1:
            for ct in range(4):
                P(f'v_add_u32 v{vAD1 + ct}, 0x10000, v{LADR + ct}\nv_add_u32 v{vAD2 + ct}, 0x20000, v{LADR + ct}')
        if not isq and wbs[s]:
            if len(w2.pairs) < wbs[s]:
                stage(wbs[s] - len(w2.pairs))
                w2.sync()
            own(wbs[s])
    global MUTE
    MUTE = OPT['ds'] == 3

    def progress(total, cap=OPT['cap']):
        left = total
        while left > 0:
            isown = nown < 2 * LST
            if not (w2.has_pair() if isown else any(g_ >= OPT['ncw2'] for g_ in w2.grp)):
                if w2.pending:
                    w2.sync()
                elif nstg < nown:
                    stage(1)
                else:
                    break
                continue
            if isown:
                own(1)
                left -= 2
            else:
                w2.cw()
                left -= 1
            while nstg < nown and vm.n - vm.tags[('own', nstg)] >= cap:
                stage(1)
            if vm.n - vm.done > cap:
                vm.wait(vm.n - cap)
    vm.wait(('st', 5))
    stamp(2)
    P('s_barrier')
    stamp(4)
    w2.pairs += [16384] if isq else [16384, 24576]
    w2.grp |= set(range(7))
    for _ in gens[6]:
        pass
    if OPT['cs_it'] == 5:
        gather_start()
    if OPT['pf_w'] == 7:
        pf_w()
    own(OPT['n5q'] if isq else OPT['n5'])
    if OPT['cs_it'] in (4, 5, 35):
        gather_fin()
    vm.wait(('st', 6))
    P('s_waitcnt lgkmcnt(0)')
    if OPT['b6']:
        stamp(7)
        P('s_barrier')
    else:
        lds_signal(vSG, 246, 7)
    P(f's_cmp_ge_u32 s{sCT}, 7\ns_cbranch_scc1 L_IDLE')
    if not OPT['b6']:
        progress(OPT['p5q'] if isq else OPT['p5'])
        stamp(6)
        cwait(6)
    late2 = OPT['tk'] > 2 and not isq
    if not late2:
        w2.pairs += [32768, 40960]
        w2.grp |= set(range(7, 14))
    if OPT['b6']:
        progress(OPT['p5'])
        stamp(6)
    if OPT['lpause'] and not isq:
        progress(OPT['lpause'] - 1, OPT['capp'])
        stage(100)
        cwait(8)
    if late2:
        assert OPT['lpause'] and not OPT['b6']
        w2.pairs += [32768, 40960]
        w2.grp |= set(range(7, 14))
    progress(100, OPT['cap'] if isq else OPT['cape'])
    stage(100)
    w2.sync()
    assert nown == 2 * LST and nstg == nown and not w2.pending and w2.grp == set(range(OPT['ncw2']))
    globals()['W2'] = w2
    if isq and OPT['qhold']:
        cwait(9)
    if isq == OPT['qf']:
        P('s_branch L_P2L')
    return vm


def L_phase2(vm):
    P.label('L_P2L')
    lastcw = [vm.n]
    W2.vm = vm
    vm.done = 0
    stamp(8)
    lds_signal(vSG, 243, 8)
    NAE = OPT['na']
    if NAE or OPT['ncw2']:
        P(AL if NAE else BL)
    sF, sB, sS, sOF = 12, 62, 65, 66
    vDA, vSy, vSg, vWA, TMP, TMP2 = LADR, 246, 247, 20, 248, 12
    P(f'''v_mov_b32 v{vSg}, v{vSG}
v_mov_b32 v{vSy}, v{vSY}
s_and_b32 s{sT3}, s{sRT}, 1
s_lshl_b32 s{sT3}, s{sT3}, 2
s_add_u32 s{sT3}, s{sT3}, s{sI}
s_xor_b32 s{sT2}, s{sRT}, 1
s_mul_i32 s{sT2}, s{sT2}, {4 * NS * 1024}
s_mul_i32 s{sT3}, s{sT3}, {LST * 1024}
s_add_u32 s{sT3}, s{sT3}, {WS_ACT}
s_add_u32 s{sF}, s{sT2}, s{sT3}
s_add_u32 s{sF + 1}, s{sF}, {NS * 1024}
s_add_u32 s{sF + 2}, s{sF}, {2 * NS * 1024}
s_add_u32 s{sF + 3}, s{sF}, {3 * NS * 1024}
s_mul_i32 s{sB}, s{sRT}, {4 * NS * 1024}
s_mul_i32 s{sS}, s{sI}, {NS * 1024}
s_add_u32 s{sS}, s{sS}, s{sB}
s_add_u32 s{sS}, s{sS}, {WS_ACT + 56 * 1024}
s_add_u32 s{sB}, s{sB}, s{sT3}
v_and_b32 v{vDA}, 15, v0
v_lshrrev_b32 v{vDA + 1}, 4, v0
v_xor_b32 v{vDA + 1}, v{vDA + 1}, v{vDA}
v_lshlrev_b32 v{vDA + 1}, 4, v{vDA + 1}
v_lshl_add_u32 v{vDA}, v{vDA}, 8, v{vDA + 1}
s_lshl_b32 s{sT1}, s{sI}, 14
v_add_u32 v{vDA}, s{sT1}, v{vDA}
v_xor_b32 v{vDA + 1}, 64, v{vDA}
v_xor_b32 v{vDA + 2}, 128, v{vDA}
v_xor_b32 v{vDA + 3}, 192, v{vDA}
s_branch L_pb_w''')
    spoll('L_pb', *((AL, 2) if NAE else (F1, 1) if OPT['f1'] else (BL, 4)))
    stamp(9)
    xtra = [LACC + 32 + 4 * n for n in range(8)]
    slots = [LA + 4 * n for n in range(11)] + [4, 8, 16] + ([] if NAE else xtra)
    free = slots[:OPT['lahead'] + 1]
    vSG2 = 244
    aloc = {}
    nxt = 0
    NT = 8 * LST
    NA = NT + 16
    lim = 4 * NAE if NAE else 2 * LST if OPT['f1'] else NT
    order = [(t, k) for k in range(NAE) for t in range(4)] + [(t, k) for t in range(4) for k in range(NAE, LST)] + \
            [(t, k) for t in range(4, 8) for k in range(LST)] + [(8, k) for k in range(16)]
    dump_n = {t: order.index((t, LST - 1)) + OPT['dd'] for t in range(8)}

    def acc(t):
        return LACC + 16 * (t if (t < 4 and NAE) else t % 2)

    def load1():
        nonlocal nxt
        t, k = order[nxt]
        sb = sF + t if t < 4 else sB
        aloc[nxt] = free.pop(0)
        P(f'buffer_load_dwordx4 {vr(aloc[nxt])}, v1, {srd(SWS)}, s{sb} offen offset:{(k % 4) * 1024} sc1')
        vm.issue(('a', nxt))
        nxt += 1
        if k == LST - 1 and 4 <= t < 8:
            P(f's_mov_b32 s{sB}, s{sS}' if t == 7 else f's_add_u32 s{sB}, s{sB}, {NS * 1024 - 4096}')
        elif k % 4 == 3:
            P(f's_add_u32 s{sb}, s{sb}, 4096')

    def can_load(cur):
        return nxt < lim and free and nxt - cur < OPT['lahead']
    lg = Q(P, 'lgkmcnt', 15)
    fq = []
    cold = []

    def f_txt(x, cost=1, ds=None):
        def fn():
            P(x)
            if ds is not None:
                lg.issue(ds or None)
        fq.append((cost, fn))

    def f_chk(nm, rg, off, val):
        f_txt(f'v_min3_u32 v{rg}, v{rg}, v{rg + 1}, v{rg + 2}')
        f_txt(f'v_min_u32 v{rg}, v{rg}, v{rg + 3}')
        f_txt(f'v_cmp_gt_u32 vcc, {val}, v{rg}', 2)
        f_txt(f's_cbranch_vccnz {nm}\n{nm}_ok:')
        cold.append(lambda: (lds_spin(nm, rg, vSy, off, val, 0), P(f's_branch {nm}_ok')))
    while can_load(0) and nxt < OPT['l0']:
        load1()
        if OPT['f1'] and nxt == OPT['f1']:
            P(BL)
    if OPT['tw']:
        P(f'v_add_u32 v{vWA}, {WO}, v1')
    else:
        w2_tr_addr(vWA, 10, TMP, TMP + 1)
        for ct in range(4):
            P(f'v_add_u32 v{vWA + ct}, {WO}, v{vWA + ct}')
    of_addr(sOF, sT0, sT1)
    P(f'''v_and_b32 v{TMP}, 15, v0
v_lshlrev_b32 v{TMP}, 7, v{TMP}
v_lshrrev_b32 v{TMP + 1}, 5, v0
v_xor_b32 v{TMP + 1}, v{TMP + 1}, v0
v_and_b32 v{TMP + 1}, 7, v{TMP + 1}
v_lshl_add_u32 v{TMP}, v{TMP + 1}, 4, v{TMP}
v_bfe_u32 v{TMP + 1}, v0, 4, 1
v_lshl_add_u32 v{TMP}, v{TMP + 1}, 3, v{TMP}
s_lshl_b32 s{sT0}, s{sI}, 11
s_add_u32 s{sT0}, s{sT0}, {STILE}
v_add_u32 v{vSG2 + 1}, s{sT0}, v{TMP}''')
    stamp(10)
    cstamp(2) if OPT['ds'] == 5 else None
    wfree = [TMP2] + slots[OPT['lahead'] + 1:] + (xtra if NAE else [])
    wloc = {}
    nw = 0

    def wread():
        nonlocal nw
        f, j = divmod(nw, 2)
        if nw >= 128 or (j == 0 and not wfree):
            return False
        if j == 0:
            wloc[f] = wfree.pop(0)
        k, ct = divmod(f, 4)
        if OPT['tw']:
            P(f'ds_read_b128 {vr(wloc[f])}, v{vWA} offset:{1024 * f}')
            nw += 1
        else:
            P(f'ds_read_b64_tr_b16 {vr(wloc[f] + 2 * j, 2)}, v{vWA + (ct ^ (2 * (k % 2)))} offset:{28 * k * 128 + 2048 * j}')
        lg.issue(('w', f))
        nw += 1
        return True
    need = {0: 9, 4: 11, 6: 12}

    def set_lim(v):
        nonlocal lim
        lim = v

    def f_flags(nm, loads, nreg, newlim):
        fq.append((1, lambda: lg.force0()))
        for r in range(nreg):
            f_txt(f's_xor_b32 s{4 + r}, s{4 + r}, s{sTAG}')
        if nreg == 8:
            f_txt('s_or_b64 s[4:5], s[4:5], s[6:7]')
            f_txt('s_or_b64 s[6:7], s[8:9], s[10:11]')
        f_txt(f's_or_b64 s[4:5], s[4:5], s[6:7]\ns_cbranch_scc1 {nm}\n{nm}_bk:', 2)
        fq.append((0, lambda: set_lim(newlim)))
        cold.append(lambda: (spoll(nm, loads, nreg), P(f's_branch {nm}_bk')))
    for n in range(NA):
        t, k = order[n]
        if OPT['ds'] == 6 and n % LST == 0 and 0 < n <= NT:
            stamp(n // LST)
        for td, dn in dump_n.items():
            if td in need and n == dn - 4:
                f_txt(f'ds_read_b128 {vr(TMP)}, v{vSy} offset:16', 1, 'c')
                if td == 0:
                    f_txt(f'ds_read_b128 {vr(TMP2)}, v{vSy}', 1, 'c')
            if td in need and n == dn - 2:
                fq.append((1, lambda: lg.wait('c')))
                f_chk(f'L_d{td}', TMP, 16, need[td])
                if td == 0:
                    f_chk('L_d1l', TMP2, 0, 8)
            if n == dn + OPT['sk'] - 1:
                fq.append((1, lambda td=td: lg.wait(('d', td))))
                if td % 2:
                    if td == 1:
                        fq.append((0, lambda: vm.wait(lastcw[0])))
                    f_txt(f'v_mov_b32 v{vSG2}, {10 + td}')
                    f_txt(f'ds_write_b32 v{vSg}, v{vSG2}', 1, '')
            if n == dn:
                for ct in range(4):
                    f_txt(f'ds_write_b128 v{vDA + ct}, {vr(acc(td) + 4 * ct)} offset:{DUMPF + 4096 * (td % 4)}', OPT['dc'], ('d', td))
        if NAE and n == OPT['nb'] - OPT['bd']:
            for x in BL.split('\n'):
                f_txt(x)
        if (NAE and n == OPT['nb']) or (OPT['f1'] and n == 0):
            f_flags('L_pbb', BL, 4, NT)
        if n == OPT['on'] - LST:
            for x in ol(sOF).split('\n'):
                f_txt(x)
        if n == OPT['on']:
            f_flags('L_po', ol(sOF), 8, NA)
        if (t, k) == (8, 13):
            for c_ in range(4):
                f_txt(f'v_xor_b32 v{vDA + c_}, {32 * c_}, v{vSG2 + 1}')
        stamp(11) if n == 4 * LST else None
        stamp(12) if n == NT else None
        if k == 0 and t >= (4 if NAE else 2):
            assert lg.done >= lg.tags[('d', t - 4 if (t < 6 and NAE) else t - 2)], (t, 'dump not drained')
        while n not in aloc:
            if can_load(n):
                load1()
            else:
                fq.pop(0)[1]()
        vm.wait(('a', n))
        for ct in range(4):
            a = acc(t) + 4 * ct
            if t == 8:
                f = 4 * k + ct
                if ct % 2 == 0:
                    while nw < 2 * f + 4:
                        assert wread()
                    lg.wait(('w', f + 1))
                P(mfma(a, wloc[f], aloc[n], None if k == 0 else a))
                if f:
                    wfree.append(wloc[f - 1])
            else:
                P(mfma(a, LW + 16 * k + 4 * ct, aloc[n], None if k == 0 else a))
                if t == 7 and 4 * k + ct:
                    wfree.append(LW + 16 * k + 4 * ct - 4)
            bud = 2 if ct < 3 else 1
            if t == 8 and ct == 1:
                bud = 1
            if ct in (0, 2) and can_load(n):
                load1()
                bud -= 2
            elif ct in (0, 2) and W2.grp and (nxt >= lim or not NAE):
                W2.cw()
                lastcw[0] = vm.n
                bud -= 2
            while t == 8 and nw < min(128, 2 * (4 * k + ct) + OPT['wl']):
                assert wread()
                bud -= 1
            if fq and bud <= 0 and t == 8 and ct == 0:
                bud = 1
            while bud > 0:
                if fq:
                    c, fn = fq.pop(0)
                    fn()
                    bud -= c
                elif n >= OPT['ws'] and wread():
                    bud -= 1
                else:
                    break
        (free if nxt < NA else wfree).append(aloc[n])
        if n == dump_n[0]:
            while W2.grp:
                W2.cw()
                lastcw[0] = vm.n
    while fq:
        fq.pop(0)[1]()
    stamp(13)
    cstamp(4) if OPT['ds'] == 5 else None
    if OPT['lp']:
        P('s_setprio 2')
    for ct in range(4):
        for r in (2 * ct, 2 * ct + 1):
            P(f'v_cvt_pk_bf16_f32 v{LACC + r}, v{LACC + 2 * r}, v{LACC + 2 * r + 1}')
        P(f'ds_write_b64 v{vDA + ct}, {vr(LACC + 2 * ct, 2)}')
    P('s_waitcnt lgkmcnt(0)')
    stamp(14)
    P('s_barrier\ns_branch L_EXIT')
    for fn in cold:
        fn()


vmh = L_phase1(OPT['qf'])
P.label('L_LQ')
vmq = L_phase1(1 - OPT['qf'])
L_phase2(vmq)
P.label('L_IDLE')
if OPT['ipl']:
    P(f'''s_bfe_u32 s{sT1}, s2, 0x20003
v_min_u32 v4, 55, v0
v_lshlrev_b32 v4, 7, v4''')
    if OPT['ipl'] & 1:
        P(f's_lshl_b32 s{sT2}, s{sT1}, 2\ns_add_u32 s{sT2}, s{sT2}, s{sI}\ns_mul_i32 s{sT2}, s{sT2}, {56 * 128}\ns_add_u32 s{sT2}, s{sT2}, {3 * 16 * 56 * 128}')
        for n in range(4):
            P(f'buffer_load_dword v5, v4, {srd(SWO)}, s{sT2} offen\ns_sub_u32 s{sT2}, s{sT2}, {16 * 56 * 128}')
    if OPT['ipl'] & 2:
        P(f'''s_lshl_b32 s{sT1}, s{sT1}, 1
s_add_u32 s{sT1}, s{sT1}, s{sRT}
s_sub_u32 s{sT1}, s{sT1}, 8
s_lshl_b32 s{sT1}, s{sT1}, 2
s_add_u32 s{sT1}, s{sT1}, s{sI}
s_mul_i32 s{sT1}, s{sT1}, {16 * 896}''')
        for n in range(2):
            P(f'buffer_load_dword v5, v4, {srd(SX)}, s{sT1} offen\ns_add_u32 s{sT1}, s{sT1}, {8 * 896}')
P('s_branch L_EXIT')

CW = 112
CX = 144
CHX = 168
cXA = 180
cHA = 182
cWA = 184
cWB = 190
cST = 196
cSO = 202
cBE = 204
cR = 196
cKXW, cHW, cPM, cONE = 216, 217, 219, 104
cM16, cM48, cL16, cCSA, cCSH = 221, 222, 223, 224, 225
cVW, cVWH, cVR, cKX, cSY, cSG = 226, 227, 228, 229, 230, 231
cF = 252
cBA, cBB, cBA0 = 232, 236, 240
cT = 244

MUTE = False
if OPT['pad'] >= 0:
    P('.p2align 12')
    if OPT['pad']:
        P('.fill %d, 4, 0xbf800000' % (OPT['pad'] // 4))
P.label('L_C')
vmS = Q(P, 'vmcnt', 63)
if True:
    vS = 16
    P('s_setprio 1')
    stats_rows()
    P('s_waitcnt lgkmcnt(0)')
    mk_srd(SX, 4, 2048 * 896)
    stats_load(vmS)
    if OPT['swarm']:
        P(f's_lshl_b32 s{sT0}, s{sT3}, 3\ns_and_b32 s{sT0}, s{sT0}, 0xffffff80\ns_add_u32 s{sT0}, s{sT0}, {WS_STATS}')
        P(f's_load_dword s10, s[20:21], s{sT0}\ns_load_dword s11, s[20:21], s{sT0} offset:64')
    P(f's_load_dword s{sTAG}, s[20:21], 0')
P(f'''v_mov_b32 v{cSY}, {SYNC}
v_lshl_add_u32 v{cSG}, s{sI}, 2, v{cSY}
v_add_u32 v{cSG}, 16, v{cSG}
v_mov_b32 v12, 0
v_lshlrev_b32 v13, 2, v0
v_add_u32 v13, {SYNC}, v13
ds_write_b32 v13, v12
v_lshlrev_b32 v{cL16}, 4, v0
v_and_b32 v11, 15, v0
v_lshrrev_b32 v10, 4, v0
v_lshrrev_b32 v13, 1, v11
v_xor_b32 v13, v13, v10
v_lshlrev_b32 v13, 4, v13
v_lshl_add_u32 v13, v11, 7, v13
s_lshl_b32 s{sT0}, s{sI}, 12
v_add_u32 v{cXA}, s{sT0}, v13
v_xor_b32 v{cXA + 1}, 64, v{cXA}
v_add_u32 v{cHA}, {HALO}, v13
v_xor_b32 v{cHA + 1}, 64, v{cHA}
v_lshlrev_b32 v12, 3, v11
v_add_u32 v{cCSA}, {CS}, v12
v_lshlrev_b32 v12, 4, v11
v_add_u32 v{cSO + 1}, {ST}, v12
s_lshl_b32 s{sT0}, s{sI}, 9
v_add_u32 v{cSO}, s{sT0}, v{cSO + 1}
v_mov_b32 v{cBE + 2}, 0
v_mov_b32 v{cBE + 3}, 0
v_mov_b32 v{cBE + 6}, 0
v_mov_b32 v{cBE + 7}, 0
v_mov_b32 v{cBE + 10}, 0
v_mov_b32 v{cBE + 11}, 0
s_lshl_b32 s{sXO}, s{sRB}, 2
s_add_u32 s{sXO}, s{sXO}, s{sI}
s_mul_i32 s{sA0}, s{sXO}, {2 * NS * 1024}
s_add_u32 s{sA0}, s{sA0}, {WS_ACT}
s_lshl_b32 s{sA1}, s{sRB}, 4
s_add_u32 s{sA1}, s{sA1}, s{sCG}
s_lshl_b32 s{sA1}, s{sA1}, 10
s_lshl_b32 s{sT1}, s{sI}, {FS}
s_add_u32 s{sA1}, s{sA1}, s{sT1}
s_add_u32 s{sA1}, s{sA1}, {WS_FLAGS}''')
stamp(0)
mk_srd(SWS, 20, WS_BYTES)
mk_srd(SOUT, 16, 2048 * 896)
P(f's_cmp_eq_u32 s{sISQ}, 1\ns_cbranch_scc1 L_CQ')


SLOW = []


def C_phase1(isq):
    t = 'Q' if isq else 'H'
    lg = Q(P, 'lgkmcnt', 15)
    LA_, HOLD, WSTEP, TM = OPT['la'], OPT['hold'], OPT['wstep'], OPT['tm']
    wsl = WSL
    if isq:
        q_addr_parts(12, 13, 14, 15)
        for e in range(2):
            for t01 in range(2):
                q_addr(cWB + 2 * e + t01, 56 * e + 32 * t01, 12, 13, 14)
        P(f'''s_bitcmp1_b32 s{sI}, 0
s_cselect_b64 vcc, -1, 0
s_lshr_b32 s{sT0}, s{sI}, 1
s_add_u32 s{sT0}, s{sT0}, 1
s_lshl_b32 s{sT0}, s{sT0}, 13
v_cndmask_b32 v{cWB + 4}, v{cWB}, v{cWB + 2}, vcc
v_cndmask_b32 v{cWB + 5}, v{cWB + 1}, v{cWB + 3}, vcc
v_add_u32 v{cWB + 4}, s{sT0}, v{cWB + 4}
v_add_u32 v{cWB + 5}, s{sT0}, v{cWB + 5}
s_lshl_b32 s{sT0}, s{sI}, 8
s_add_u32 s{sT0}, s{sT0}, 512
v_add_u32 v{cCSH}, s{sT0}, v{cCSA}
v_cmp_gt_u32 vcc, 48, v0
v_cndmask_b32 v{cM48}, 0, -1, vcc
v_lshlrev_b32 v13, 2, v10
v_sub_u32 v13, v11, v13
v_mov_b32 v15, 0xf149f2ca''')
        for r in range(4):
            for (d, add) in ((cBA, 16), (cBB, 0)):
                P(f'''v_add_u32 v14, {add - r}, v13
v_and_b32 v14, -15, v14
v_cmp_eq_u32 vcc, 0, v14
v_cndmask_b32 v{d + r}, v15, 0, vcc''')
        P(f's_cmp_eq_u32 s{sXO}, 0\ns_cselect_b64 vcc, -1, 0')
        for r in range(4):
            P(f'v_cndmask_b32 v{cBA0 + r}, v{cBA + r}, v15, vcc')
        P(f'''v_mul_u32_u24 v13, {VSTR}, v11
v_lshl_add_u32 v13, v10, 3, v13
s_mul_i32 s{sT0}, s{sI}, {32 * VSTR}
s_add_u32 s{sT1}, s{sT0}, {VREG + 16 * VSTR}
v_add_u32 v{cVW}, s{sT1}, v13
s_and_b32 s{sT1}, s{sI}, 1
s_mul_i32 s{sT1}, s{sT1}, {144 * VSTR}
s_add_u32 s{sT1}, s{sT1}, {VREG}
v_add_u32 v{cVWH}, s{sT1}, v13
v_lshrrev_b32 v13, 2, v0
v_mul_u32_u24 v13, {VSTR}, v13
v_and_b32 v14, 3, v0
v_lshl_add_u32 v13, v14, 3, v13
s_add_u32 s{sT0}, s{sT0}, {VREG}
v_add_u32 v{cVR}, s{sT0}, v13
s_lshl_b32 s{sT0}, s{sI}, 11
s_add_u32 s{sT0}, s{sT0}, {KX}
v_add_u32 v{cKX}, s{sT0}, v{cL16}
s_add_u32 s{sT1}, s{sT0}, 2048
s_cmp_eq_u32 s{sI}, 3
s_cselect_b32 s{sT1}, {DUMMY}, s{sT1}
v_add_u32 v{cKXW}, s{sT1}, v{cL16}
v_add_u32 v13, 32, v{cVWH}
v_mov_b32 v14, {DUMMY + 2048}
v_cmp_gt_u32 vcc, 48, v0
v_cndmask_b32 v13, v14, v13, vcc
s_lshl_b32 s{sT0}, s{sI}, 10
s_add_u32 s{sT0}, s{sT0}, {KX}
v_add_u32 v14, s{sT0}, v{cL16}
v_add_u32 v15, 8, v14
s_cmp_ge_u32 s{sI}, 2
s_cselect_b64 vcc, -1, 0
v_cndmask_b32 v{cHW}, v14, v{cVWH}, vcc
v_cndmask_b32 v{cHW + 1}, v15, v13, vcc
v_and_b32 v13, 1, v0
v_lshlrev_b32 v13, 4, v13
v_mov_b32 v14, 0xffff
v_lshlrev_b32 v{cPM}, v13, v14
v_mov_b32 v{cONE}, 0x3f803f80
v_mov_b32 v{cONE + 1}, 0x3f803f80
v_mov_b32 v{cONE + 2}, 0x3f803f80
v_mov_b32 v{cONE + 3}, 0x3f803f80''')
        nb = 6
        pairs = [(1, 0), (2, 0), (1, 1), (2, 1), (0, 0), (0, 1)]
        tiles = [(pi, t01) for pi in range(4) for t01 in range(2)] + [('H', 0), ('H', 1)] + \
                [(pi, t01) for pi in range(4, 6) for t01 in range(2)]
    else:
        h_addr(cWB, 12, 13)
        P(f'v_xor_b32 v{cWB + 1}, 32, v{cWB}')
        nb = 2
        tiles = [(pi, t01) for pi in range(6 if OPT['abl'] & 16 else 7) for t01 in range(2)]

    TK = 2 if isq else OPT['tk']

    def set_slot(s):
        for b in range(nb):
            P(f'v_add_u32 v{cWA + b + (2 if (s == 6 and TK > 2) else 0)}, {wsl[s % 3]}, v{cWB + b}')

    def xbuf(ks):
        if TK > 2 and ks >= 12:
            return ks - 10
        return 2 if (TM and ks == 13) else ks % 2

    units = []

    def unit(tile, ks):
        pi, t01 = tile
        u = dict(tile=tile, ks=ks, pre=[])
        if ks == 'E':
            u['stage'] = 6
            if pi == 'H':
                u['rd'] = [('b64', cCSH, 128 * t01)]
            elif isq:
                sg, e = pairs[pi]
                u['rd'] = [('b64', cCSA, 128 * (4 * sg + 2 * e + t01))]
            else:
                u['rd'] = [('b64', cCSA, 128 * (2 * pi + t01))]
        else:
            s, kk = divmod(ks, 2)
            u['stage'] = 6 if ks >= 14 - TK else s
            if pi == 'H':
                a, o, o2 = cWA + 4 + t01, kk * 4096, 512
            elif isq:
                sg, e = pairs[pi]
                a, o, o2 = cWA + 2 * e + t01, sg * 8192 + kk * 4096, 512
            else:
                a, o, o2 = cWA + t01 + (2 if (s == 6 and TK > 2) else 0), pi * 64 + kk * 32 * 448, 4 * 448
            u['rd'] = [('tr', a, o), ('tr', a, o + o2)]
        if pi == 'H':
            u['mm'] = [(96 + 4 * t01, cBE + 8 if ks == 'E' else CHX + 4 * xbuf(ks))]
        else:
            u['mm'] = [(16 * pi + 8 * tt + 4 * t01, cBE + 4 * tt if ks == 'E' else CX + 8 * xbuf(ks) + 4 * tt)
                       for tt in range(2)]
        return u
    seen_x, seen_h = set(), set()
    order = []
    for ks in range(14 - TK if TM else 14):
        order += [(tl, ks) for tl in tiles]
    if TM:
        for tl in tiles:
            order += [(tl, ks) for ks in range(14 - TK, 14)] + [(tl, 'E')]
    else:
        order += [(tl, 'E') for tl in tiles]
    for tl, ks in order:
        u = unit(tl, ks)
        if ks != 'E':
            s, kk = divmod(ks, 2)
            if tl[0] == 'H':
                if ks not in seen_h:
                    seen_h.add(ks)
                    u['pre'].append(f'ds_read_b128 {vr(CHX + 4 * xbuf(ks))}, v{cHA + kk} offset:{halo_off(s)}')
            elif ks not in seen_x:
                seen_x.add(ks)
                for tt in range(2):
                    u['pre'].append(f'ds_read_b128 {vr(CX + 8 * xbuf(ks) + 4 * tt)}, v{cXA + kk} offset:{XS[s % 3] + 2048 * tt}')
        elif 'E' not in seen_x:
            seen_x.add('E')
            for tt in range(2):
                u['pre'].append(f'ds_read_b64 {vr(cBE + 4 * tt, 2)}, v{cSO} offset:{256 + 256 * tt}')
                if isq:
                    u['pre'].append(f'ds_read_b64 {vr(cR + 2 * tt, 2)}, v{cSO} offset:{256 + 256 * tt + 8}')
        elif tl == ('H', 0):
            u['pre'].append(f'ds_read_b64 {vr(cBE + 8, 2)}, v{cSO + 1}')
            u['pre'].append(f'ds_read_b64 {vr(cR + 4, 2)}, v{cSO + 1} offset:8')
        units.append(u)
    NU = len(units)
    last_ring = max(n for n, u in enumerate(units) if u['ks'] != 'E')
    done_at = {}
    for n, u in enumerate(units):
        done_at[u['tile'][0]] = n

    def rd_list(n):
        u = units[n]
        slot = CW + 4 * (n % 8)
        out = list(u['pre'])
        for j, (kind, a, o) in enumerate(u['rd']):
            if kind == 'tr':
                out.append(f'ds_read_b64_tr_b16 {vr(slot + 2 * j, 2)}, v{a} offset:{o}')
            else:
                out.append(f'ds_read_b64 {vr(slot, 2)}, v{a} offset:{o}')
        return out

    def pack(b):
        return [f'v_cvt_pk_bf16_f32 v{b + i}, v{b + 2 * i}, v{b + 2 * i + 1}' for i in range(4)]

    def scale(b, r):
        return [f'v_mul_f32 v{b + i}, v{b + i}, v{r}' for i in range(8)]

    def epi(pi):
        out = []
        if not isq:
            for tt in range(2):
                b = 16 * pi + 8 * tt
                if OPT['relu'] == 0:
                    out += [f'v_max_f32 v{b + i}, 0, v{b + i}' for i in range(8)]
                out += pack(b)
                if OPT['relu'] == 1:
                    out += [f'v_pk_max_i16 v{b + i}, v{b + i}, 0' for i in range(4)]
                out.append(f'buffer_store_dwordx4 {vr(b)}, v{cL16}, {srd(SWS)}, s{sT2 + tt} offen offset:{(pi % 4) * 1024} ' + ('sc1', '', 'nt', 'sc0 sc1')[OPT['hst']])
            if pi == 3:
                out += [f's_add_u32 s{sT2}, s{sT2}, 4096', f's_add_u32 s{sT3}, s{sT3}, 4096']
            if OPT['na'] and pi == OPT['fap']:
                k0 = [x.startswith('buffer_store') for x in out].index(True)
                out.insert(k0, f'''s_waitcnt vmcnt({2 * (pi - OPT['na'])})
s_mov_b32 exec_hi, 0
buffer_store_dword v{cT + 2}, v{cT + 3}, {srd(SWS)}, s{sA1} offen offset:512 sc1
s_mov_b32 exec_hi, -1''')
        elif pi == 'H':
            out += scale(96, cR + 4) + pack(96)
            out += [f'ds_write_b64 v{cHW + t01}, {vr(96 + 2 * t01, 2)}' for t01 in range(2)]
            out += ['MARK', 'NOP', 'NOP', 'NOP', 'NOP', 'PUB']
        else:
            sg, e = pairs[pi]
            for tt in range(2):
                b = 16 * pi + 8 * tt
                if sg:
                    out += scale(b, cR + 2 * tt)
                out += pack(b)
                if sg == 0:
                    out += [f'v_and_b32 v{b + i}, v{b + i}, v{cM48}' for i in (2, 3)]
                if sg == 1 and tt == 1:
                    out.append(f'ds_write_b128 v{cKXW}, {vr(b)} offset:{1024 * e}')
                if sg == 2:
                    o = e * 144 * VSTR + tt * 16 * VSTR
                    out.append(f'ds_write_b64 v{cVW}, {vr(b, 2)} offset:{o}')
                    out.append(f's_mov_b32 exec_hi, 0xffff\nds_write_b64 v{cVW}, {vr(b + 2, 2)} offset:{o + 32}\ns_mov_b32 exec_hi, -1')
        return out

    set_slot(0)
    P(f's_waitcnt lgkmcnt(0)\ns_add_u32 s{sTAG}, s{sTAG}, 1')
    if True:
        vmS.done = 0
        vmS.wait('stats')
        for x in stats_body():
            P(x)
        stats_store(Q(P, 'vmcnt', 63))
        P('s_setprio 0')
        stamp(13) if OPT['ds'] == 3 else None
    if not isq:
        P(f'''s_mul_i32 s{sT2}, s{sIDX}, {7 * 1024}
s_add_u32 s{sT2}, s{sT2}, s{sA0}
s_add_u32 s{sT3}, s{sT2}, {NS * 1024}
v_mov_b32 v{cT + 2}, s{sTAG}
v_lshrrev_b32 v{cT + 3}, 2, v{cL16}''')
    P('s_barrier')
    stamp(1)
    cstamp(2)
    pend = []
    fill = []
    nr = 0
    cur_stage = 0
    b7_done = False

    def queue_reads(n):
        l = rd_list(n)
        for j, x in enumerate(l):
            pend.append((x, ('w', n) if j == len(l) - 1 else None))

    def flush(k=1000):
        while pend and k > 0:
            x, tag = pend.pop(0)
            P(x)
            lg.issue(tag)
            k -= 1

    slow = []

    def emit_fill():
        x = fill.pop(0)
        if x == 'MARK':
            lg.tags['kv'] = lg.n
        elif x == 'PUB':
            lg.wait('kv')
            P(f'v_mov_b32 v{cT + 6}, 1\nds_write_b32 v{cSG}, v{cT + 6} offset:16')
            lg.issue()
        elif x != 'NOP':
            P(x)
            if 'ds_write' in x:
                lg.issue()
    last_of = {}
    first_of = {}
    for n, u in enumerate(units):
        if u['ks'] != 'E':
            last_of[u['stage']] = n
        first_of.setdefault(u['stage'], n)
    while nr < LA_:
        queue_reads(nr)
        nr += 1
    flush()
    ups = len(tiles) * 2
    for n in range(NU):
        u = units[n]
        w = n
        if n % WSTEP == 0:
            while w + 1 < min(n + WSTEP, NU) and ('w', w + 1) in lg.tags:
                w += 1
        lg.wait(('w', w))
        for j, (acc, b) in enumerate(u['mm']):
            P(mfma(acc, CW + 4 * (n % 8), b, None if u['ks'] == 0 else acc))
            if j == 0 and nr < NU and units[nr]['stage'] != cur_stage and units[nr]['stage'] <= 5 + OPT['b6']:
                if nr - n <= LA_ - HOLD:
                    cur_stage = units[nr]['stage']
                    set_slot(cur_stage)
                    if HOLD:
                        lg.all()
                    stamp(3) if cur_stage == 4 else None
                    P('s_barrier')
                    stamp(5) if cur_stage == 4 else None
                    stamp(6) if cur_stage == 6 else None
                    while nr <= n + LA_:
                        queue_reads(nr)
                        nr += 1
                    flush()
            elif j == 0 and nr < NU:
                s1 = units[nr]['stage']
                if s1 != cur_stage:
                    cur_stage = s1
                    set_slot(s1)
                    if OPT['ds'] == 2:
                        stamp({5: 9, 6: 13}[s1])
                    lg.wait(('f', s1))
                    lds_cmp(cF, s1 + 1)
                    P(f's_cbranch_vccnz L_{t}w{s1}')
                    P.label(f'L_{t}w{s1}_ok')
                    slow.append(s1)
                    stamp(6) if s1 == 6 else None
                    stamp(10) if (s1 == 5 and OPT['ds'] == 2) else None
                queue_reads(nr)
                if nr + OPT['fla'] == first_of[6] and not OPT['b6']:
                    pend.append((f'ds_read_b128 {vr(cF)}, v{cSY}', ('f', units[nr + OPT['fla']]['stage'])))
                nr += 1
            last = j == len(u['mm']) - 1
            flush(1000 if last else (len(pend) + 1) // 2)
            for _ in range(OPT['nfq'] if isq else OPT['nfill']):
                if fill:
                    emit_fill()
        if n == last_of[u['stage']] and u['stage'] >= 5 + OPT['b6']:
            lds_signal(cSG, cT + 7, u['stage'] + 1)
            lg.issue()
            stamp(7) if u['stage'] == 6 else None
        if n == (NU - 1 if (isq and not OPT['qp']) else first_of[6]) and OPT['prio']:
            P('s_setprio %d' % OPT['prio'])
        for pi, dn in done_at.items():
            if dn == n - 2:
                fill += epi(pi)
    SLOW.extend((t, s1) for s1 in slow)
    stamp(8)
    cstamp(4)
    for pi, dn in done_at.items():
        if dn >= NU - 2:
            fill += epi(pi)
    if not isq:
        while fill:
            emit_fill()
        stamp(9)
        lds_signal(cSG, cT + 1, 9)
        P('s_waitcnt vmcnt(0)\ns_branch L_CFLAG')
        return
    if 'PUB' in fill:
        k0 = fill.index('PUB')
        fill[:] = fill[:k0] + fill[k0 + 1:k0 + 9] + ['PUB'] + fill[k0 + 9:]
    while fill:
        emit_fill()
    stamp(3) if OPT['ds'] == 1 else None
    KP, VO, S = 136, 112, 144
    au = [(0, 1), (1, 1), (0, 0), (1, 0)]
    P(f'ds_read_b128 {vr(cF)}, v{cSY} offset:32')
    for n, (e, tq) in enumerate(au):
        P(mfma(S + 8 * n + 4, 32 * e + 8 * tq, 64 + 16 * e + 8 * tq, cBB))
    for n, (e, tq) in enumerate(au[:2]):
        P(mfma(S + 8 * n, 32 * e, 64 + 16 * e + 8 * tq, cBA))
    stamp(5) if OPT['ds'] == 1 else None
    P('s_waitcnt lgkmcnt(0)')
    lds_cmp(cF, 1)
    P('s_cbranch_vccz L_attp_ok')
    lds_spin('L_attp', cF, cSY, 32, 1, 0)
    P.label('L_attp_ok')
    stamp(6) if OPT['ds'] == 1 else None
    for e in range(2):
        P(f'ds_read_b128 {vr(KP + 4 * e)}, v{cKX} offset:{1024 * e}')
    for e in range(2):
        for dt in range(2):
            for kt in range(3):
                P(f'ds_read_b64_tr_b16 {vr(VO + 12 * e + 6 * dt + 2 * kt, 2)}, v{cVR} offset:{e * 144 * VSTR + kt * 16 * VSTR + 32 * dt}')
    M = cT
    U = range(4)

    def sel(n, i):
        P(f'v_max_f32 v{S + 8 * n + i}, v{S + 8 * n + 2 * i}, v{S + 8 * n + 2 * i + 1}')
    for n in (0, 1):
        for i in range(4):
            sel(n, i)
    P('s_waitcnt lgkmcnt(12)')
    for n, (e, tq) in list(enumerate(au))[2:]:
        P(mfma(S + 8 * n, KP + 4 * e, 64 + 16 * e + 8 * tq, cBA0))
    for ns in ((0, 1), (2, 3)):
        if ns[0]:
            for n in ns:
                for i in range(4):
                    sel(n, i)
        for n in ns:
            P(f'v_max3_f32 v{M + n}, v{S + 8 * n}, v{S + 8 * n + 1}, v{S + 8 * n + 2}')
        for n in ns:
            P(f'v_max_f32 v{M + n}, v{M + n}, v{S + 8 * n + 3}')
        P(f'v_permlane16_swap_b32 v{M + ns[0]}, v{M + ns[1]}\nv_max_f32 v{M + ns[0]}, v{M + ns[0]}, v{M + ns[1]}')
    P(f'''v_permlane32_swap_b32 v{M}, v{M + 2}
v_max_f32 v{M}, v{M}, v{M + 2}
v_mov_b32 v{M + 2}, v{M}
v_permlane32_swap_b32 v{M}, v{M + 2}
v_mov_b32 v{M + 1}, v{M}
v_mov_b32 v{M + 3}, v{M + 2}
v_permlane16_swap_b32 v{M}, v{M + 1}
v_permlane16_swap_b32 v{M + 2}, v{M + 3}''')
    for n in U:
        P(f'v_mul_f32 v{M + n}, v{cR + 1 + 2 * au[n][1]}, v{M + n}')
    for n in U:
        for i in range(4):
            P(f'v_fma_f32 v{S + 8 * n + i}, v{S + 8 * n + i}, v{cR + 1 + 2 * au[n][1]}, -v{M + n}')
    for n in U:
        for i in range(4):
            P(f'v_exp_f32 v{S + 8 * n + i}, v{S + 8 * n + i}')
    stamp(7) if OPT['ds'] == 1 else None
    P(f'''s_lshl_b32 s{sT2}, s{sIDX}, 11
s_add_u32 s{sT2}, s{sT2}, s{sA0}
s_add_u32 s{sT2}, s{sT2}, {56 * 1024}
s_add_u32 s{sT3}, s{sT2}, {NS * 1024}
s_waitcnt lgkmcnt(0)''')
    O = 64

    def pv(n):
        e, tq = au[n]
        P(mfma(S + 8 * n + 4, cONE, S + 8 * n, None))
        for dt in range(2):
            P(mfma(O + 8 * n + 4 * dt, VO + 12 * e + 6 * dt + 2 * tq, S + 8 * n, None))
    for n in U:
        for i in range(4):
            P(f'v_cvt_pk_bf16_f32 v{S + 8 * n + i}, v{S + 8 * n + i}, v{S + 8 * n + i}')
        for i in range(4):
            P(f'v_and_b32 v{S + 8 * n + i}, v{S + 8 * n + i}, v{cPM}')
        if n:
            pv(n - 1)
    pv(3)
    stamp(13) if OPT['ds'] == 1 else None
    for n, (e, tq) in enumerate(au):
        P(f'v_rcp_f32 v{M + n}, v{S + 8 * n + 4}')
        for i in range(8):
            P(f'v_mul_f32 v{O + 8 * n + i}, v{O + 8 * n + i}, v{M + n}')
        for x in pack(O + 8 * n):
            P(x)
        P(f'v_and_b32 v{O + 8 * n + 2}, v{O + 8 * n + 2}, v{cM48}\nv_and_b32 v{O + 8 * n + 3}, v{O + 8 * n + 3}, v{cM48}')
        P(f'buffer_store_dwordx4 {vr(O + 8 * n)}, v{cL16}, {srd(SWS)}, s{sT2 + tq} offen offset:{1024 * e} sc1')


C_phase1(0)
P.label('L_CQ')
C_phase1(1)
stamp(9)
lds_signal(cSG, cT + 1, 9)
P('s_waitcnt vmcnt(0)')
P.label('L_CFLAG')
_st = stamp
if OPT['ds'] == 1:
    def stamp(k):
        if k not in (3, 13):
            _st(k)
P(f'''v_lshrrev_b32 v1, 2, v{cL16}
v_mov_b32 v2, s{sTAG}
s_mov_b32 exec_lo, {(1 << OPT['fl']) - 1:#x}
s_mov_b32 exec_hi, 0
buffer_store_dword v2, v1, {srd(SWS)}, s{sA1} offen sc1
s_mov_b64 exec, -1
v_lshrrev_b32 v0, 4, v{cL16}''')
stamp(10)
P(f'''s_cmp_lt_u32 s{sCT}, 7
s_cbranch_scc1 L_P2C''')
if OPT['ipf']:
    P(f'''s_lshr_b32 s{sT0}, s2, 3
s_and_b32 s{sT0}, s{sT0}, 3
s_lshl_b32 s{sT0}, s{sT0}, 1
s_add_u32 s{sRT}, s{sRT}, s{sT0}
s_sub_u32 s{sRT}, s{sRT}, 8
s_and_b32 s{sT0}, s{sRT}, 1
s_lshl_b32 s{sT0}, s{sT0}, 2
s_add_u32 s{sT0}, s{sT0}, s{sI}
s_lshr_b32 s{sFB}, s{sRT}, 1
s_lshl_b32 s{sFB}, s{sFB}, 4
s_add_u32 s{sFB}, s{sFB}, s{sT0}
s_lshl_b32 s{sFB}, s{sFB}, 10
s_add_u32 s{sFB}, s{sFB}, {WS_FLAGS}
s_mul_i32 s{sT2}, s{sRT}, {4 * NS * 1024}
s_add_u32 s{sT2}, s{sT2}, {WS_ACT}
s_mul_i32 s{sT3}, s{sT0}, {LST * 1024}
s_add_u32 s{sT3}, s{sT3}, s{sT2}
v_min_u32 v4, {47 if OPT['abl'] & 16 else 55}, v0
v_lshlrev_b32 v4, 7, v4
v_lshlrev_b32 v6, 7, v0''')
    P(f'''s_and_b32 s{sT0}, s{sRT}, 1
s_mul_i32 s{sT0}, s{sT0}, {8 * NS * 1024}
s_add_u32 s62, s{sT3}, {4 * NS * 1024}
s_sub_u32 s62, s62, s{sT0}
s_mul_i32 s{sT0}, s{sI}, {NS * 1024}
s_add_u32 s{sT2}, s{sT2}, s{sT0}
s_add_u32 s{sT2}, s{sT2}, {56 * 1024}''')
    of_addr(63, sT0, sT1)
    spoll('L_ip1', BL, 4)
    for c_ in str(OPT['ipf']):
        c_ = int(c_)
        if c_ < 8:
            P(f's_add_u32 s{sT0}, s{62 if c_ < 4 else sT3}, {(c_ % 4) * NS * 1024}\nbuffer_load_dword v5, v4, {srd(SWS)}, s{sT0} offen sc1')
        else:
            spoll('L_ip2', ol(63), 8)
            for q_ in range(2):
                P(f'buffer_load_dword v5, v6, {srd(SWS)}, s{sT2} offen sc1\ns_add_u32 s{sT2}, s{sT2}, 8192')
P(f'''s_cmp_lg_u32 s2, 255
s_cbranch_scc1 L_EXIT
s_cmp_lg_u32 s{sWAVE}, 4
s_cbranch_scc1 L_EXIT
v_lshlrev_b32 v3, 12, v0
v_add_u32 v3, {WS_FLAGS}, v3''')
P.label('L_bump')
spin_guard('L_EXIT')
P('s_sleep 32')
for n in range(4):
    P(f'buffer_load_dword v{4 + n}, v3, {srd(SWS)}, 0 offen offset:{1024 * n} sc1')
P('s_waitcnt vmcnt(0)')
for n in range(4):
    P(f'v_xor_b32 v{4 + n}, v{4 + n}, v2')
for n in range(1, 4):
    P(f'v_or_b32 v4, v4, v{4 + n}')
P(f'''v_cmp_ne_u32 vcc, 0, v4
s_cbranch_vccnz L_bump
s_mov_b64 exec, 1
buffer_store_dword v2, v1, {srd(SWS)}, 0 offen sc1
s_mov_b64 exec, -1
s_branch L_EXIT''')

for t_, s_ in SLOW:
    lds_spin(f'L_{t_}w{s_}', cF, cSY, 0, s_ + 1, 0)
    P(f's_branch L_{t_}w{s_}_ok')

cX, cSt, cPp, cXu, cG, cD, cE, RO = 8, 16, 24, 40, 56, 72, 104, 112
cDA, cSA, cXO, cPO, cSO2 = 2, 4, 5, 6, 7
sXA, sXH, sPA, sXR = 62, 64, 66, 12
P.label('L_P2C')
P('s_setprio %d' % OPT['cprio'])
P(f'''v_lshrrev_b32 v1, 3, v0
v_lshl_add_u32 v1, s{sI}, 3, v1
v_and_b32 v20, 7, v0
v_mul_u32_u24 v{cXO}, 896, v1
v_lshl_add_u32 v{cXO}, v20, 4, v{cXO}
s_mul_i32 s{sXR}, s{sRT}, {64 * 896}
s_lshl_b32 s{sT0}, s{sCT}, 7
s_add_u32 s{sXR}, s{sXR}, s{sT0}
s_add_u32 s{sXR + 1}, s{sXR}, {32 * 896}
buffer_load_dwordx4 {vr(cX)}, v{cXO}, {srd(SX)}, s{sXR} offen
buffer_load_dwordx4 {vr(cX + 4)}, v{cXO}, {srd(SX)}, s{sXR + 1} offen
v_lshlrev_b32 v21, 1, v20
v_xor_b32 v21, v21, v1
v_and_b32 v21, 15, v21
v_lshlrev_b32 v21, 4, v21
v_lshl_add_u32 v{cDA}, v1, 8, v21
v_xor_b32 v{cDA + 1}, 16, v{cDA}
v_xor_b32 v21, v1, v20
v_and_b32 v21, 7, v21
v_lshlrev_b32 v21, 4, v21
v_lshl_add_u32 v21, v1, 7, v21
v_add_u32 v{cSA}, {STILE}, v21
s_lshl_b32 s{sT0}, s{sI}, 10
v_add_u32 v{cPO}, s{sT0}, v{cL16}
v_lshlrev_b32 v{cSO2}, 3, v1
s_xor_b32 s{sXA}, s{sRT}, 1
s_mul_i32 s{sXA}, s{sXA}, 7
s_add_u32 s{sXA}, s{sXA}, s{sCT}
s_lshl_b32 s{sXA}, s{sXA}, 14
s_add_u32 s{sXA}, s{sXA}, {WS_XCH}
s_add_u32 s{sXA + 1}, s{sXA}, 8192
s_mul_i32 s{sPA}, s{sRT}, 7
s_add_u32 s{sPA}, s{sPA}, s{sCT}
s_lshl_b32 s{sPA}, s{sPA}, 14
s_add_u32 s{sPA}, s{sPA}, {WS_XCH}
s_add_u32 s{sPA + 1}, s{sPA}, 8192
s_lshl_b32 s{sT1}, s{sRT}, 9
s_add_u32 s{sT1}, s{sT1}, {WS_STATS}''')
xh_addr(sXH)
XF = OPT['xf']
for n in range(1 if XF else 8):
    P(f'v_mov_b32 v{RO + 2 * n + 1}, s{sTAG}')
if XF:
    P(f's_lshl_b32 s{sT0}, s{sI}, 10\nv_lshl_add_u32 v{RO}, v0, 2, s{sT0}')


if OPT['tw']:
    cA2, cWF = 128, 132
    w2_tr_addr(cA2, 10, 20, 21)
    P(f's_mul_i32 s{sT0}, s{sI}, {4 * 28 * 128}\ns_add_u32 s{sT0}, s{sT0}, {WO}')
    for ct in range(4):
        P(f'v_add_u32 v{cA2 + ct}, s{sT0}, v{cA2 + ct}')
    P(f's_lshl_b32 s{sT0}, s{sI}, 14\ns_add_u32 s{sT0}, s{sT0}, {WO}\nv_add_u32 v20, s{sT0}, v{cL16}')
    lds_poll('L_cwl', cF, cSY, 0, 10, 2)
    for k in range(4):
        for ct in range(4):
            for j in range(2):
                P(f'ds_read_b64_tr_b16 {vr(cWF + 16 * k + 4 * ct + 2 * j, 2)}, v{cA2 + (ct ^ (2 * (k % 2)))} offset:{28 * k * 128 + 2048 * j}')
    P('s_waitcnt lgkmcnt(0)')
    lds_signal(cSG, cT, 10)
    lds_poll('L_cwt', cF, cSY, 16, 10, 0)
    P('s_setprio 0')
    for f in range(16):
        P(f'ds_write_b128 v20, {vr(cWF + 4 * f)} offset:{1024 * f}')
    P('s_setprio %d' % OPT['cprio'])


def dump_reads(rd):
    for part in range(4):
        for hf in range(2):
            P(f'ds_read_b128 {vr(cD + 8 * part + 4 * hf)}, v{cDA + hf} offset:{DUMPF + 16384 * part + 8192 * rd}')


for rd in range(2):
    lds_poll(f'L_cr{rd}', cF, cSY, 0, 11 + 2 * rd, 1)
    stamp(11) if rd else None
    dump_reads(rd)
    P('s_waitcnt lgkmcnt(4)')
    for r in range(8):
        P(f'v_add_f32 v{cD + r}, v{cD + r}, v{cD + 8 + r}')
    P('s_waitcnt lgkmcnt(0)')
    lds_signal(cSG, cT, 11 + rd)
    for r in range(8):
        P(f'v_add_f32 v{cD + 16 + r}, v{cD + 16 + r}, v{cD + 24 + r}')
    for r in range(8):
        P(f'v_add_f32 v{cD + r}, v{cD + r}, v{cD + 16 + r}')
    for r in range(4):
        P(f'v_cvt_pk_bf16_f32 v{RO + 8 * rd + (4 + r if XF else 2 * r)}, v{cD + 2 * r}, v{cD + 2 * r + 1}')
    if XF:
        P(f'''buffer_store_dwordx4 {vr(RO + 8 * rd + 4)}, v{cPO}, {srd(SWS)}, s{sXA} offen sc1
s_waitcnt vmcnt(0)
s_mov_b32 exec_hi, 0
buffer_store_dword v{RO + 1}, v{RO}, {srd(SWS)}, s{sXA + 1} offen offset:896 sc1
s_mov_b32 exec_hi, -1''')
    else:
        for u in range(2):
            P(f'buffer_store_dwordx4 {vr(RO + 8 * rd + 4 * u)}, v{cPO}, {srd(SWS)}, s{sXA + u} offen sc1')
    if rd == 0:
        P(f's_add_u32 s{sXA}, s{sXA}, 4096\ns_add_u32 s{sXA + 1}, s{sXA + 1}, 4096')
        for r2 in range(2):
            P(f'buffer_load_dword v{cSt + 2 * r2}, v{cSO2}, {srd(SWS)}, s{sT1} offen offset:{256 * r2} sc1')
        P('s_waitcnt vmcnt(4)')
        for n in range(8):
            P(f'v_lshlrev_b32 v{cXu + 2 * n}, 16, v{cX + n}\nv_and_b32 v{cXu + 2 * n + 1}, 0xffff0000, v{cX + n}')
stamp(13)
P('s_setprio %d' % OPT['gp'])


def pload(rd):
    for u in range(1 if XF else 2):
        P(f'buffer_load_dwordx4 {vr(cPp + 8 * rd + 4 * u)}, v{cPO}, {srd(SWS)}, s{(sPA, 14)[rd] + u} offen sc1')


def pchk(rd, cnt):
    P(f's_waitcnt vmcnt({cnt})')
    for n in range(4):
        P(f'v_xor_b32 v{cE + n}, s{sTAG}, v{cPp + 8 * rd + 2 * n + 1}')
    P(f'v_or_b32 v{cE}, v{cE}, v{cE + 1}\nv_or3_b32 v{cE}, v{cE}, v{cE + 2}, v{cE + 3}\nv_cmp_ne_u32 vcc, 0, v{cE}')


P(f's_add_u32 s14, s{sPA}, 4096\ns_add_u32 s15, s{sPA + 1}, 4096')


def fetch(rd):
    spoll(f'L_cx{rd}', f's_buffer_load_dword s4, {srd(SWS)}, s{sXH} offset:{4096 * rd} glc', 1)
    stamp(3) if rd else None
    pload(rd)


if not OPT['xo']:
    fetch(0)
    fetch(1)
for rd in range(2):
    if OPT['xo'] == 2 and rd:
        P(f's_cmp_eq_u32 s5, s{sTAG}\ns_cbranch_scc1 L_gotb')
    if OPT['xo']:
        fetch(rd)
    if OPT['xo'] == 2 and rd:
        P.label('L_gotb')
    lds_poll(f'L_cg{rd}', cF, cSY, 0, 15 + 2 * rd, 1 - rd)
    stamp(12) if rd else None
    dump_reads(rd)
    g = cG + 8 * rd
    P('s_waitcnt lgkmcnt(4)')
    for r in range(8):
        P(f'v_add_f32 v{cD + r}, v{cD + r}, v{cD + 8 + r}')
    P('s_waitcnt lgkmcnt(0)')
    for r in range(8):
        P(f'v_add_f32 v{cD + 16 + r}, v{cD + 16 + r}, v{cD + 24 + r}')
    for r in range(8):
        P(f'v_add_f32 v{cD + r}, v{cD + r}, v{cD + 16 + r}')
    if OPT['xo'] == 2 and rd == 0:
        P(f's_buffer_load_dword s5, {srd(SWS)}, s{sXH} offset:4096 glc')
    if XF:
        P(f's_waitcnt vmcnt({(1 - rd) if not OPT["xo"] else 0})')
    else:
        pchk(rd, (2 - 2 * rd) if not OPT['xo'] else 0)
        P(f's_cbranch_vccz L_px{rd}_ok')
        P.label(f'L_px{rd}')
        spin_guard(f'L_px{rd}_ok')
        P('s_sleep 1')
        pload(rd)
        pchk(rd, 0)
        P(f's_cbranch_vccnz L_px{rd}')
        P.label(f'L_px{rd}_ok')
    if rd == 0:
        for r2 in range(2):
            st = cSt + 2 * r2
            P(f'v_and_b32 v{st}, 0xffff0000, v{st}\nv_rcp_f32 v{st + 1}, v{st}\nv_mul_f32 v{st + 1}, 0xbfb8aa3b, v{st + 1}')
    for n in range(4):
        pp = cPp + 8 * rd + (n if XF else 2 * n)
        P(f'v_lshlrev_b32 v{g + 2 * n}, 16, v{pp}\nv_and_b32 v{g + 2 * n + 1}, 0xffff0000, v{pp}')
    for r in range(8):
        P(f'v_add_f32 v{g + r}, v{g + r}, v{cD + r}')
    for r in range(8):
        P(f'v_mul_f32 v{cE + r}, v{cSt + 2 * rd + 1}, v{g + r}')
    for r in range(8):
        P(f'v_exp_f32 v{cE + r}, v{cE + r}')
    for r in range(8):
        P(f'v_fma_f32 v{cE + r}, v{cE + r}, v{cSt + 2 * rd}, v{cSt + 2 * rd}')
    for r in range(8):
        P(f'v_rcp_f32 v{cE + r}, v{cE + r}')
    if OPT['xo'] == 2 and rd == 0:
        P(f's_waitcnt lgkmcnt(0)\ns_cmp_lg_u32 s5, s{sTAG}\ns_cbranch_scc1 L_nob')
        pload(1)
        P.label('L_nob')
    for r in range(8):
        P(f'v_mul_f32 v{g + r}, v{g + r}, v{cE + r}')
        if OPT.get('pert'):
            import struct
            P(f'v_mul_f32 v{g + r}, {struct.unpack("<I", struct.pack("<f", 1 + OPT["pert"] / 1000))[0]:#x}, v{g + r}')
stamp(14)
P('s_barrier')
stamp(6) if OPT['ds'] == 4 else None
for rd in range(2):
    P(f'ds_read_b128 {vr(cX + 4 * rd)}, v{cSA} offset:{4096 * rd}')
for rd in range(2):
    P(f's_waitcnt lgkmcnt({1 - rd})')
    for n in range(4):
        P(f'v_lshlrev_b32 v{cD + 2 * n}, 16, v{cX + 4 * rd + n}\nv_and_b32 v{cD + 2 * n + 1}, 0xffff0000, v{cX + 4 * rd + n}')
    for n in range(4):
        a = cXu + 8 * rd + 2 * n
        P(f'v_pk_fma_f32 {vr(a, 2)}, {vr(cD + 2 * n, 2)}, {vr(cG + 8 * rd + 2 * n, 2)}, {vr(a, 2)}')
    for n in range(4):
        P(f'v_cvt_pk_bf16_f32 v{cE + 4 * rd + n}, v{cXu + 8 * rd + 2 * n}, v{cXu + 8 * rd + 2 * n + 1}')
    P(f'buffer_store_dwordx4 {vr(cE + 4 * rd)}, v{cXO}, {srd(SOUT)}, s{sXR + rd} offen' + ('', ' sc1', ' nt', ' sc0 sc1', ' sc1 nt')[OPT['osc1']])
stamp(7) if OPT['ds'] == 4 else None
P.label('L_EXIT')
if DIAG:
    P('s_waitcnt vmcnt(0)')
    stamp(15)
    diag_dump()
P.label('L_END')
P('s_endpgm')

body = P.finalize()
ref = open('cdna_kernels/%s.s.ref' % NAME).read()
hdr = [l for l in ref.split('\n') if l.startswith(';') and '@launch' not in l]
out = '\n'.join(hdr) + '\n; @launch grid=(256,1,1) block=(512,1,1) lds=%d\n' % LDS_BYTES
out += f'''.amdgcn_target "amdgcn-amd-amdhsa--gfx950"
.text
.globl {NAME}_kernel
.p2align 8
.type {NAME}_kernel,@function
{NAME}_kernel:
{body}.section .rodata,"a"
.p2align 6
.amdhsa_kernel {NAME}_kernel
  .amdhsa_next_free_vgpr 256
  .amdhsa_next_free_sgpr {102 if DIAG else OPT['nsg']}
  .amdhsa_accum_offset 256
  .amdhsa_group_segment_fixed_size 0
  .amdhsa_kernarg_size 72
  .amdhsa_user_sgpr_count 2
  .amdhsa_user_sgpr_kernarg_segment_ptr 1
  .amdhsa_system_sgpr_workgroup_id_x 1
.end_amdhsa_kernel
'''
open(sys.argv[1], 'w').write(out)
print('instructions', len(P.ins), 'nops inserted', P.nops_inserted)
```

```python
import sys
import itertools
from asmlib import Prog, Q

NAME = 'recurrent_scan__sliding_local_dilated__dense_activation_relu__prompt'
OPT = dict(diag=0, pf_code=1, pf_w=4, la=5, hold=2, wstep=2, prio=1, osc1=1, lahead=13, tm=1,
           nfill=2, cs_it=5, fla=4, ds=0, lsl=2, hw=7, cap=7, relu=0, n5=2, p5=14,
           kh=0x58ffff, kq=0x47ffff, k0=0, sfn=5, gk=5, ssl=1, nt=0, fs=7, fl=32, swarm=1, w4=2, lpause=5, pe=4, lpl=8, cprio=1, fwarm=2, xh=1, qf=1, qhold=0, la0=20, gate=9, m1=2, abl=0, p7=1, pad=0, spf=0, capp=3, cape=12, l0=13, qfirst=0, ipff=4, hst=0, rm=0, sk=3, lpp=2, xw=10, rf=2, sprio=0, ot=3, pfq=0, hop=0, bs=0, nsg=102, tk=3, p5q=14, dd=1, lp=1, f1=0, wf=0, pflip=1, xf=1, xo=0, na=0, fap=6, ncw2=0, nb=9, bd=5, on=33, dc=2, wl=28, ws=37, tw=0, twl=10, gp=1, esl=0, b6=0, n5q=2, qp=1, ps=6, nfq=2, xp=0, xq=2, nm=3, xs=0, xr=2, ipf=8, ipl=0)
for a in sys.argv[2:]:
    k, v = a.split('=')
    OPT[k] = int(v, 0)
PROBE = OPT.get('probe')
DIAG = OPT['diag'] or PROBE is not None

WS_FLAGS = 0x980000
FS = OPT['fs']
WS_STATS = 16384
WS_CSUM = 32768
WS_ACT = 262144
WS_XCH = 0xA00000
WS_DIAG = 0xE00000
WS_BYTES = 0xF00000
NS = 72
LST = 7

XS = [0, 16384, 32768]
WSL = [49152, 77824, 106496]
WO = 77824
NGRP = 14
HALO = 135168
WIN = 135168
ST = 157696
CS = 161792
SYNC = 163584
VSTR = 56
VREG = 141312
KX = 24576
DUMMY = 73728


def halo_off(s):
    return 2048 * ((s + 3) % 7)


DUMPF = 0
STILE = 65536
LDS_BYTES = 163840

sSPIN = 3
SPIN_MAX = 0x200000
SX, SW, SWO, SW2, SWS, SOUT = 24, 28, 32, 36, 40, 44
sWAVE, sRB, sIDX, sISQ, sCG, sRT, sCT, sROT, sTAG, sI = range(48, 58)
sT0, sT1, sT2, sT3 = 58, 59, 60, 61
sXO, sWO_, sMX, sMW, sHO, sKB = 62, 63, 64, 65, 66, 67
sA0, sA1 = 68, 69
sWF = 19
sPUB = 22
sST = 70

P = Prog()


def srd(b):
    return 's[%d:%d]' % (b, b + 3)


def vr(a, n=4):
    return 'v[%d:%d]' % (a, a + n - 1)


MUTE = False


def stamp(k):
    if DIAG and not MUTE:
        P('s_memrealtime s[%d:%d]' % (sST + 2 * k, sST + 2 * k + 1))


def cstamp(k):
    if DIAG and PROBE is None:
        P('s_memtime s[%d:%d]' % (sST + 2 * k, sST + 2 * k + 1))


def mk_srd(b, ptr, size):
    P('s_mov_b32 s%d, s%d\ns_mov_b32 s%d, s%d\ns_mov_b32 s%d, 0x%x\ns_mov_b32 s%d, 0x20000'
      % (b, ptr, b + 1, ptr + 1, b + 2, size, b + 3))


def diag_dump():
    if PROBE is not None:
        a, b = divmod(PROBE, 100)
        P(f'''s_waitcnt lgkmcnt(0)
s_cmp_lt_u32 s{sWAVE}, 4
s_cbranch_scc1 L_END
s_cmp_ge_u32 s{sCT}, 7
s_cbranch_scc1 L_END
s_sub_u32 s{sT0}, s{sST + 2 * b}, s{sST + 2 * a}
s_min_u32 s{sT0}, s{sT0}, 5000
s_lshl_b32 s{sT0}, s{sT0}, 2''')
        P.label('L_probe')
        P(f'''s_memrealtime s[{sT2}:{sT3}]
s_waitcnt lgkmcnt(0)
s_sub_u32 s{sT1}, s{sT2}, s{sST + 30}
s_cmp_lt_u32 s{sT1}, s{sT0}
s_cbranch_scc1 L_probe''')
    elif DIAG:
        P('s_lshl_b32 s%d, s2, 3\ns_add_u32 s%d, s%d, s%d\ns_lshl_b32 s%d, s%d, 6\ns_add_u32 s%d, s%d, 0x%x'
          % (sT0, sT0, sT0, sWAVE, sT0, sT0, sT0, sT0, WS_DIAG))
        P('v_mov_b32 v1, 0\ns_waitcnt lgkmcnt(0)')
        for k in range(16):
            P('v_mov_b32 v2, s%d\nbuffer_store_dword v2, v1, %s, s%d offen offset:%d' % (sST + 2 * k, srd(SWS), sT0, 4 * k))


JN = [0]


def jitter():
    if OPT.get('jit'):
        JN[0] += 1
        k = JN[0]
        P(f'''s_lshl_b32 s98, s2, 3
s_add_u32 s98, s98, s{sWAVE}
s_add_u32 s98, s98, {k * 977 + OPT['jit'] * 131}
s_mul_i32 s98, s98, 0x9e3779b1
s_lshr_b32 s99, s98, 15
s_xor_b32 s98, s98, s99
s_mul_i32 s98, s98, 0x85ebca6b
s_lshr_b32 s98, s98, 27''')
        P.label(f'L_j{k}')
        P(f's_cmp_lt_u32 s98, 24\ns_cbranch_scc1 L_j{k}x\ns_sleep 20\ns_sub_u32 s98, s98, 1\ns_branch L_j{k}')
        P.label(f'L_j{k}x')


def spin_guard(out):
    P(f's_add_u32 s{sSPIN}, s{sSPIN}, 1\ns_cmp_gt_u32 s{sSPIN}, {SPIN_MAX}\ns_cbranch_scc1 {out}')


def lds_cmp(tmp, val):
    P(f'v_min3_u32 v{tmp}, v{tmp}, v{tmp + 1}, v{tmp + 2}\nv_min_u32 v{tmp}, v{tmp}, v{tmp + 3}\nv_cmp_gt_u32 vcc, {val}, v{tmp}')


def lds_poll(name, tmp, vsync, off, val, sleep=0):
    P(f'ds_read_b128 {vr(tmp)}, v{vsync} offset:{off}\ns_waitcnt lgkmcnt(0)')
    lds_cmp(tmp, val)
    P(f's_cbranch_vccz {name}_ok')
    lds_spin(name, tmp, vsync, off, val, sleep)
    P.label(name + '_ok')


def lds_spin(name, tmp, vsync, off, val, sleep):
    P.label(name)
    spin_guard(name + '_ok')
    if sleep:
        P(f's_sleep {sleep}')
    P(f'ds_read_b128 {vr(tmp)}, v{vsync} offset:{off}\ns_waitcnt lgkmcnt(0)')
    lds_cmp(tmp, val)
    P(f's_cbranch_vccnz {name}')


def lds_signal(vaddr, tmp, val):
    P(f'v_mov_b32 v{tmp}, {val}\nds_write_b32 v{vaddr}, v{tmp}')


def w2_tr_addr(d, hi_shift, t0, t1):
    P(f'''v_bfe_u32 v{t0}, v0, 2, 3
v_lshlrev_b32 v{t0}, 7, v{t0}
v_lshrrev_b32 v{t1}, 5, v0
v_lshl_add_u32 v{t0}, v{t1}, {hi_shift}, v{t0}
v_and_b32 v{t1}, 3, v0
v_lshl_add_u32 v{t0}, v{t1}, 3, v{t0}
v_bfe_u32 v{t1}, v0, 3, 2
v_lshl_add_u32 v{d}, v{t1}, 5, v{t0}
v_xor_b32 v{d + 1}, 32, v{d}
v_xor_b32 v{d + 2}, 64, v{d}
v_xor_b32 v{d + 3}, 96, v{d}''')


def q_addr_parts(trow, tmask, tc, t):
    P(f'''v_lshrrev_b32 v{trow}, 4, v0
v_lshlrev_b32 v{trow}, 3, v{trow}
v_bfe_u32 v{t}, v0, 2, 2
v_add_u32 v{trow}, v{trow}, v{t}
v_lshlrev_b32 v{trow}, 7, v{trow}
v_bfe_u32 v{tmask}, v0, 3, 2
v_lshlrev_b32 v{tmask}, 5, v{tmask}
v_and_b32 v{tc}, 3, v0
v_lshlrev_b32 v{tc}, 3, v{tc}''')
    if OPT['p7']:
        P(f's_cmp_eq_u32 s{sIDX}, 7\ns_cselect_b32 s{sT0}, 16, 0\nv_add_u32 v{tc}, s{sT0}, v{tc}')


def q_addr(d, boff, trow, tmask, tc):
    P(f'v_add_u32 v{d}, {boff}, v{tc}\nv_min_u32 v{d}, 120, v{d}\nv_xor_b32 v{d}, v{d}, v{tmask}\nv_add_u32 v{d}, v{d}, v{trow}')


def h_addr(d, t0, t1):
    P(f'''v_lshrrev_b32 v{t0}, 4, v0
v_lshlrev_b32 v{t0}, 3, v{t0}
v_bfe_u32 v{t1}, v0, 2, 2
v_add_u32 v{t0}, v{t0}, v{t1}
v_mul_u32_u24 v{t0}, 448, v{t0}
v_bfe_u32 v{t1}, v0, 4, 1
v_lshl_add_u32 v{t0}, v{t1}, 5, v{t0}
v_and_b32 v{t1}, 3, v0
v_lshl_add_u32 v{d}, v{t1}, 3, v{t0}''')


def mfma(d, a, b, c):
    return f'v_mfma_f32_16x16x32_bf16 {vr(d)}, {vr(a)}, {vr(b)}, ' + ('0' if c is None else vr(c))


if OPT['ds'] == 7:
    stamp(0)
P(f'''s_cmp_ge_u32 s2, 256
s_cbranch_scc1 L_END
s_load_dwordx16 s[4:19], s[0:1], 0
s_load_dwordx2 s[20:21], s[0:1], 64''')
if OPT['pf_code']:
    P('s_getpc_b64 s[22:23]')
    P.label('L_pc')
    sh_ = OPT['pf_code'] - 1
    msk = (0x01010101, 0x00010001, 0x00000001)[sh_]
    P(f'''s_lshl_b32 s{sT0}, s2, {10 - sh_}
s_and_b32 s{sT0}, s{sT0}, {0x10000 - (0x2000 >> sh_):#x}
v_lshlrev_b32 v2, {4 - sh_}, v0
v_add_u32 v2, s{sT0}, v2
v_min_u32 v2, L_END-L_pc, v2
s_mov_b32 exec_lo, {msk:#x}
s_mov_b32 exec_hi, {msk:#x}
global_load_dword v247, v2, s[22:23]
s_mov_b64 exec, -1''')
P(f'''v_lshrrev_b32 v1, 6, v0
v_and_b32 v0, 63, v0
v_readfirstlane_b32 s{sWAVE}, v1
s_and_b32 s{sT0}, s2, 7
s_lshr_b32 s{sT1}, s2, 3
s_and_b32 s{sRB}, s{sT0}, 1
s_lshl_b32 s{sRB}, s{sRB}, 3
s_and_b32 s{sT2}, s{sT1}, 7
s_add_u32 s{sRB}, s{sRB}, s{sT2}
s_and_b32 s{sIDX}, s{sT0}, 6
s_bfe_u32 s{sT2}, s{sT1}, 0x10003
s_add_u32 s{sIDX}, s{sIDX}, s{sT2}
MAP1
s_lshr_b32 s{sISQ}, s{sT1}, 4
s_xor_b32 s{sISQ}, s{sISQ}, {OPT['qfirst']}
s_lshl_b32 s{sCG}, s{sISQ}, 3
s_add_u32 s{sCG}, s{sCG}, s{sIDX}
s_mul_i32 s{sT2}, s{sT1}, 9363
s_lshr_b32 s{sT2}, s{sT2}, 16
s_mul_i32 s{sT3}, s{sT2}, 7
s_sub_u32 s{sT3}, s{sT1}, s{sT3}
s_cmp_ge_u32 s{sT1}, 28
s_cselect_b32 s{sCT}, 7, s{sT3}
s_lshl_b32 s{sT2}, s{sT2}, 1
s_and_b32 s{sRT}, s{sT0}, 6
s_lshl_b32 s{sRT}, s{sRT}, 2
s_add_u32 s{sRT}, s{sRT}, s{sT2}
s_and_b32 s{sT2}, s{sT0}, 1
s_add_u32 s{sRT}, s{sRT}, s{sT2}
ROT1
s_mul_i32 s{sT2}, s{sROT}, 9363
s_lshr_b32 s{sT2}, s{sT2}, 16
s_mul_i32 s{sT2}, s{sT2}, 7
s_sub_u32 s{sROT}, s{sROT}, s{sT2}
s_and_b32 s{sPUB}, s{sROT}, 1
s_cmp_ge_u32 s{sRB}, 7
s_cselect_b32 s{sPUB}, 1, s{sPUB}
s_mov_b32 s{sSPIN}, 0
s_and_b32 s{sI}, s{sWAVE}, 3'''.replace('MAP1', '' if not OPT['m1'] else f'''s_and_b32 s{sT2}, s{sT0}, 2
s_lshl_b32 s{sT2}, s{sT2}, 1
s_and_b32 s{sT3}, s{sRB}, 11
s_add_u32 s{sT2}, s{sT2}, s{sT3}
s_and_b32 s{sT3}, s{sT0}, 4
s_bfe_u32 s{sCG}, s{sT1}, 0x20002
s_add_u32 s{sT3}, s{sT3}, s{sCG}
s_lshr_b32 s{sCG}, s{sT0}, 2
s_mul_i32 s{sCG}, s{sCG}, {3 * OPT['pflip']}
s_xor_b32 s{sT3}, s{sT3}, s{sCG}
s_cmp_ge_u32 s{sT1}, 16
s_cselect_b32 s{sRB}, s{sT2}, s{sRB}
s_cselect_b32 s{sIDX}, s{sT3}, s{sIDX}''' if OPT['m1'] == 2 else f'''s_lshr_b32 s{sRB}, s{sT0}, 1
s_lshl_b32 s{sRB}, s{sRB}, 2
s_and_b32 s{sT2}, s{sT1}, 3
s_add_u32 s{sRB}, s{sRB}, s{sT2}
s_and_b32 s{sIDX}, s{sT0}, 1
s_lshl_b32 s{sIDX}, s{sIDX}, 2
s_bfe_u32 s{sT2}, s{sT1}, 0x20002
s_add_u32 s{sIDX}, s{sIDX}, s{sT2}''').replace('ROT1', f'''s_lshr_b32 s{sROT}, s{sT1}, 3
s_lshl_b32 s{sROT}, s{sROT}, 1
s_add_u32 s{sROT}, s{sROT}, s{sRB}''' if not OPT['m1'] else f'''s_and_b32 s{sROT}, s{sIDX}, 1
s_mul_i32 s{sROT}, s{sROT}, 3
s_and_b32 s{sT2}, s{sIDX}, 3
s_lshl_b32 s{sT2}, s{sT2}, 1
s_add_u32 s{sT2}, s{sT2}, 1
s_cmp_ge_u32 s{sT1}, 16
s_cselect_b32 s{sROT}, s{sT2}, s{sROT}
s_lshl_b32 s{sT2}, s{sRB}, 1
s_add_u32 s{sROT}, s{sROT}, s{sT2}''' if OPT['m1'] == 2 else f'''s_lshr_b32 s{sROT}, s{sT1}, 2
s_lshl_b32 s{sT2}, s{sRB}, 1
s_add_u32 s{sROT}, s{sROT}, s{sT2}'''))
if DIAG:
    for k in range(1 if OPT['ds'] == 7 else 0, 16):
        P('s_mov_b32 s%d, 0' % (sST + 2 * k))
    stamp(7) if OPT['ds'] == 7 else None
if PROBE is not None:
    stamp(2)
jitter()
P(f'''s_cmp_ge_u32 s{sWAVE}, 4
s_cbranch_scc1 L_C''')

LW, LACC, LA, LADR = 24, 136, 200, 252
vX, vW, vH, vCA, vGA, vGS = 164, 168, 175, 176, 178, 179
vSEL, vCACC, vCF, vLT = 180, 196, 200, 232
vAD1, vAD2 = 180, 184
vS = 124
vSY, vSG, vPT = 244, 245, 248


def dma(vm, voff, srdb, soff, m0base, m0imm, tag=None, nt=False):
    P(f's_add_u32 m0, s{m0base}, {m0imm}')
    P(f'buffer_load_dwordx4 v{voff}, {srd(srdb)}, s{soff} offen {"nt " if nt else ""}lds')
    vm.issue(tag)


def red32(a, t):
    for sh in (8, 4, 2, 1):
        P(f'v_add_f32_dpp v{a}, v{a}, v{a} row_ror:{sh} row_mask:0xf bank_mask:0xf')
    P(f'v_mov_b32 v{t}, v{a}\nv_permlane16_swap_b32 v{t}, v{a}\nv_add_f32 v{a}, v{a}, v{t}')


def stats_rows():
    P(f'''v_and_b32 v{vS}, 31, v0
v_lshrrev_b32 v{vS + 1}, 5, v0
v_mul_u32_u24 v{vS + 2}, 896, v{vS + 1}
v_lshl_add_u32 v{vS + 2}, v{vS}, 4, v{vS + 2}
v_cmp_gt_u32 vcc, 28, v{vS}
v_mov_b32 v{vS + 3}, 0x10000000
v_cndmask_b32 v{vS + 2}, v{vS + 3}, v{vS + 2}, vcc
v_cndmask_b32 v{vS + 3}, 0, 1.0, vcc
s_lshl_b32 s{sT0}, s{sRB}, 7
s_lshl_b32 s{sT1}, s{sCG}, 3
s_add_u32 s{sT0}, s{sT0}, s{sT1}
s_lshl_b32 s{sT1}, s{sI}, 1
s_add_u32 s{sT3}, s{sT0}, s{sT1}
s_mul_i32 s{sT2}, s{sT3}, 896''')


def stats_load(vm):
    for u in range(2):
        P(f'buffer_load_dwordx4 {vr(vS + 4 + 4 * u)}, v{vS + 2}, {srd(SX)}, s{sT2} offen offset:{448 * u}')
        vm.issue('stats')

def stats_body():
    n0 = len(P.ins)
    a, d = vS + 12, vS + 16
    for n in range(8):
        P(f'v_lshlrev_b32 v{d + 2 * n}, 16, v{vS + 4 + n}\nv_and_b32 v{d + 1 + 2 * n}, 0xffff0000, v{vS + 4 + n}')
    P(f'v_add_f32 v{a}, v{d}, v{d + 1}\nv_add_f32 v{a + 1}, v{d + 2}, v{d + 3}')
    for n in range(4, 16):
        P(f'v_add_f32 v{a + n % 2}, v{a + n % 2}, v{d + n}')
    P(f'v_add_f32 v{a}, v{a}, v{a + 1}')
    red32(a, a + 1)
    P(f'v_mul_f32 v{a}, 0x3b124925, v{a}')
    for n in range(16):
        P(f'v_sub_f32 v{d + n}, v{d + n}, v{a}')
    P(f'v_mul_f32 v{a + 2}, v{d}, v{d}\nv_mul_f32 v{a + 3}, v{d + 1}, v{d + 1}')
    for n in range(2, 16):
        P(f'v_fmac_f32 v{a + 2 + n % 2}, v{d + n}, v{d + n}')
    P(f'v_add_f32 v{a + 2}, v{a + 2}, v{a + 3}\nv_mul_f32 v{a + 2}, v{a + 2}, v{vS + 3}')
    red32(a + 2, a + 1)
    P(f'''v_mul_f32 v{a + 2}, 0x3b124925, v{a + 2}
v_cvt_pk_bf16_f32 v{a + 2}, 0, v{a + 2}
v_add_f32 v{a + 2}, 0x3727c5ac, v{a + 2}
v_cvt_pk_bf16_f32 v{a + 2}, 0, v{a + 2}
v_sqrt_f32 v{a + 2}, v{a + 2}
v_cvt_pk_bf16_f32 v{a + 2}, v{a}, v{a + 2}
v_mov_b32 v{a + 3}, s{sTAG}
v_lshlrev_b32 v{a + 1}, 3, v{vS + 1}''')
    out = [x.text for x in P.ins[n0:]]
    del P.ins[n0:]
    return out

def stats_store(vm):
    a = vS + 12
    P(f'''s_lshl_b32 s{sT3}, s{sT3}, 3
s_add_u32 s{sT3}, s{sT3}, {WS_STATS}
s_mov_b32 exec_lo, 1
s_mov_b32 exec_hi, 1
buffer_store_dwordx2 {vr(a + 2, 2)}, v{a + 1}, {srd(SWS)}, s{sT3} offen sc1
s_mov_b64 exec, -1''')
    vm.issue()


sFB = 23
sFA = 18
AL = '\n'.join(f's_buffer_load_dword s{4 + g}, {srd(SWS)}, s{sFA} offset:{512 + (g << FS)} glc' for g in range(2))
F1 = f's_buffer_load_dword s4, {srd(SWS)}, s{sFA} glc'
BL = '\n'.join(f's_buffer_load_dword s{4 + g}, {srd(SWS)}, s{sFB} offset:{g << FS} glc' for g in range(4))


def of_addr(d, t0, t1):
    P(f'''s_lshr_b32 s{d}, s{sRT}, 1
s_lshl_b32 s{d}, s{d}, 14
s_and_b32 s{t0}, s{sRT}, 1
s_lshl_b32 s{t0}, s{t0}, 1
s_lshr_b32 s{t1}, s{sI}, 1
s_add_u32 s{t0}, s{t0}, s{t1}
s_lshl_b32 s{t0}, s{t0}, {FS}
s_add_u32 s{d}, s{d}, s{t0}
s_add_u32 s{d}, s{d}, {WS_FLAGS + 8192}''')


def ol(a):
    return '\n'.join(f's_buffer_load_dword s{4 + p_}, {srd(SWS)}, s{a} offset:{1024 * p_} glc' for p_ in range(8))


def xh_addr(d, w=None):
    P(f'''s_mul_i32 s{d}, s{sRT}, 7
s_add_u32 s{d}, s{d}, s{sCT}
s_lshl_b32 s{d}, s{d}, 4
s_add_u32 s{d}, s{d}, s{sI}
s_lshl_b32 s{d}, s{d}, 10
s_add_u32 s{d}, s{d}, {WS_XCH + 8192 + 1020}''')


class W2Plan:
    def __init__(self, vm):
        self.vm = vm
        self.pairs = []
        self.grp = set()
        self.loc = {}
        self.pending = []
        self.ncw = 0

    def wopair(self):
        c = [g for g in (0, 2, 4) if g in self.grp and g + 1 in self.grp]
        return c[0] if c else None

    def has_pair(self):
        return bool(self.pairs) or self.wopair() is not None

    def own(self, hs):
        for h in hs:
            if self.pairs:
                a = self.pairs.pop(0)
            else:
                g = self.wopair()
                self.grp -= {g, g + 1}
                a = WO + 4096 * g
            self.loc[h] = a
            for u in range(2):
                dma(self.vm, 2 + u, SW2, sA0, sMX, a + 4096 * u, ('own', h))
            P(f's_add_u32 s{sA0}, s{sA0}, {16 * 896}')

    def sync(self):
        if self.pending:
            P('s_waitcnt lgkmcnt(0)')
            for h in self.pending:
                a = self.loc[h]
                if WO <= a < WO + 4096 * NGRP:
                    self.grp |= {(a - WO) // 4096, (a - WO) // 4096 + 1}
                else:
                    self.pairs.append(a)
            self.pending = []

    def stage(self, hs):
        self.vm.wait(('own', hs[-1]))
        self.sync()
        for h in hs:
            o = self.loc[h]
            base = (LADR, vAD1, vAD2)[o >> 16]
            for ct in range(4):
                P(f'ds_read_b64_tr_b16 {vr(LW + 8 * (h & ~1) + 4 * ct + 2 * (h & 1), 2)}, v{base + ct} offset:{o & 0xffff}')
        self.pending = list(hs)

    def cw(self):
        if NGRP - self.ncw == OPT['pe'] and not OPT['na'] and not OPT['ncw2']:
            P(F1 if OPT['f1'] else BL)
        g = max(self.grp)
        self.grp.remove(g)
        P(f's_add_u32 s{sT0}, s{sA1}, {g * 28672 + (0x20000000 if (OPT["abl"] & 4 or (OPT["abl"] & 32 and not self.isq)) else 0)}')
        dma(self.vm, 2, SWO, sT0, sMX, WO + 4096 * g, ('cw', g))
        self.ncw += 1


def spoll(name, loads, nreg, onfail=None):
    P.label(name)
    P(loads)
    P.label(name + '_w')
    P('s_waitcnt lgkmcnt(0)')
    for n in range(nreg):
        P(f's_xor_b32 s{4 + n}, s{4 + n}, s{sTAG}')
    if nreg == 1:
        pass
    elif nreg == 2:
        P('s_or_b32 s4, s4, s5')
    elif nreg == 4:
        P('s_or_b64 s[4:5], s[4:5], s[6:7]')
    else:
        P('s_or_b64 s[4:5], s[4:5], s[6:7]\ns_or_b64 s[8:9], s[8:9], s[10:11]\ns_or_b64 s[4:5], s[4:5], s[8:9]')
    P(f's_cbranch_scc0 {name}_ok')
    if onfail:
        onfail()
    spin_guard(name + '_ok')
    P(f's_sleep {OPT["ssl"]}\ns_branch {name}')
    P.label(name + '_ok')


P(f'''v_lshrrev_b32 v{vLT}, 3, v0
v_lshl_add_u32 v{vLT}, s{sI}, 3, v{vLT}
v_mul_u32_u24 v{vX}, 896, v{vLT}
v_lshrrev_b32 v{vLT}, 1, v{vLT}
v_xor_b32 v{vLT}, v{vLT}, v0
v_and_b32 v{vLT}, 7, v{vLT}
v_lshl_add_u32 v{vX}, v{vLT}, 4, v{vX}
v_add_u32 v{vX + 1}, 28672, v{vX}
v_add_u32 v{vX + 2}, 57344, v{vX}
v_add_u32 v{vX + 3}, 86016, v{vX}
s_mul_i32 s{sXO}, s{sRB}, 114688
s_lshl_b32 s{sT0}, s{sROT}, 7
s_add_u32 s{sXO}, s{sXO}, s{sT0}
s_mov_b32 s{sKB}, s{sROT}
s_lshl_b32 s{sMX}, s{sI}, 10
s_cmp_eq_u32 s{sISQ}, {1 - OPT['qf']}
s_cbranch_scc1 L_LQ''')


def L_phase1(isq):
    t = 'Q' if isq else 'H'
    vm = Q(P, 'vmcnt', 63)
    wstr = 2688 if isq else 3584
    wsl = WSL
    globals()['MUTE'] = False

    def gen_st(s):
        wf = s < OPT['wf']
        if wf:
            for n in range(6):
                o = (n // 2) * 8192 + (n % 2) * 1024 if isq else n * 1024
                if n < (5 if isq else 6):
                    dma(vm, vW + n, SW, sWO_, sMW, wsl[s % 3] + o)
                    yield
        for n in range(4):
            dma(vm, vX + n, SX, sXO, sMX, XS[s % 3] + 4096 * n, nt=(OPT['nt'] & 1 and s < 1))
            yield
        if isq and s % 2 == 0:
            if s < 6:
                P(f'''s_lshr_b32 s{sT0}, s{sI}, 1
s_add_u32 s{sT0}, s{sT0}, s{sKB}
s_cmp_eq_u32 s{sT0}, 7
s_cselect_b32 s{sT0}, 0, s{sT0}
s_lshl_b32 s{sT0}, s{sT0}, 7
s_add_u32 s{sT0}, s{sT0}, s{sHO}''')
                dma(vm, vH, SX, sT0, sMX, HALO + halo_off(s))
            else:
                P(f'''s_lshl_b32 s{sT0}, s{sKB}, 7
s_add_u32 s{sT0}, s{sT0}, s{sHO}
s_and_b32 s{sT1}, s{sMX}, 1024''')
                dma(vm, vH, SX, sT0, sT1, HALO + halo_off(s))
            yield
        nw = 6 if isq else 7
        for n in range(nw - 1 if wf else 0, nw):
            o = (n // 2) * 8192 + (n % 2) * 1024 if isq else n * 1024
            dma(vm, vW + n, SW, sWO_, sMW, wsl[s % 3] + o, ('st', s), nt=(OPT['nt'] & 2 and s < 1))
            if n == nw - 1 and s < 6:
                P(f'''s_add_u32 s{sKB}, s{sKB}, 1
s_cmp_eq_u32 s{sKB}, 7
s_cselect_b32 s{sKB}, 0, s{sKB}
s_cselect_b32 s{sT0}, {7 * 128}, 0
s_cselect_b32 s{sT1}, {7 * 64 * wstr}, 0
s_add_u32 s{sXO}, s{sXO}, 128
s_add_u32 s{sWO_}, s{sWO_}, {64 * wstr}
s_sub_u32 s{sXO}, s{sXO}, s{sT0}
s_sub_u32 s{sWO_}, s{sWO_}, s{sT1}''')
            yield

    def run(g, n=1000):
        for _ in range(n):
            if next(g, 'end') == 'end':
                break

    if isq:
        P(f'''v_lshrrev_b32 v{vLT}, 3, v0
v_mul_u32_u24 v{vW}, 2688, v{vLT}
v_bfe_u32 v{vLT}, v0, 4, 1
v_lshlrev_b32 v{vLT}, 1, v{vLT}
v_xor_b32 v{vLT}, v{vLT}, v0
v_and_b32 v{vLT}, 7, v{vLT}
v_lshlrev_b32 v{vLT}, 4, v{vLT}
v_xor_b32 v{vLT + 1}, 64, v{vLT}
v_add_u32 v{vW + 1}, {8 * 2688}, v{vW}
v_add_u32 v{vW}, v{vW}, v{vLT}
v_add_u32 v{vW + 1}, v{vW + 1}, v{vLT + 1}''')
        for n in range(2, 6):
            P(f'v_add_u32 v{vW + n}, {(n // 2) * 896}, v{vW + n % 2}')
        P(f'''s_mul_i32 s{sT0}, s{sIDX}, 112
s_min_u32 s{sT0}, s{sT0}, {768 if OPT['p7'] else 1024}
s_and_b32 s{sT0}, s{sT0}, {0xff80 if OPT['abl'] & 8 else 0xffff}
s_lshl_b32 s{sMW}, s{sI}, 11
s_lshr_b32 s{sT1}, s{sI}, 1
s_mul_i32 s{sT1}, s{sT1}, {16 * 896}
v_subrev_u32 v{vH}, s{sT1}, v{vX}
s_mul_i32 s{sHO}, s{sRB}, 114688
s_max_u32 s{sHO}, s{sHO}, {16 * 896}
s_sub_u32 s{sHO}, s{sHO}, {16 * 896}''')
    else:
        P(f's_movk_i32 s{sT0}, 3136')
        for n in range(7):
            P(f'''v_add_u32 v{vLT}, {64 * n}, v0
v_mul_u32_u24 v{vLT + 1}, 2341, v{vLT}
v_lshrrev_b32 v{vLT + 1}, 16, v{vLT + 1}
v_lshlrev_b32 v{vLT}, 4, v{vLT}
v_mad_u32_u24 v{vW + n}, v{vLT + 1}, s{sT0}, v{vLT}''')
            if n == 3:
                P(f'v_and_b32 v{vLT + 1}, 8, v{vLT + 1}\nv_lshlrev_b32 v{vLT + 1}, 2, v{vLT + 1}\nv_xor_b32 v{vW + n}, v{vW + n}, v{vLT + 1}')
            elif n > 3:
                P(f'v_xor_b32 v{vW + n}, 32, v{vW + n}')
        P(f's_mul_i32 s{sT0}, s{sIDX}, 448\ns_mul_i32 s{sMW}, s{sI}, 7168')
    P(f'''s_lshl_b32 s{sT1}, s{sROT}, 2
s_add_u32 s{sT1}, s{sT1}, s{sI}
s_mul_i32 s{sWO_}, s{sT1}, {16 * wstr}
s_add_u32 s{sWO_}, s{sWO_}, s{sT0}''')
    stamp(11) if OPT['ds'] == 7 else None
    P('s_waitcnt lgkmcnt(0)')
    mk_srd(SX, 4, 2048 * 896)
    mk_srd(SW, 6 if isq else 12, 448 * wstr)
    stamp(12 if OPT['ds'] == 7 else 0)
    KS = [int(c, 16) for c in '%06x' % OPT['kq' if isq else 'kh']]
    gens = [gen_st(s) for s in range(7)]
    run(gens[0])
    run(gens[1], min(KS[0], OPT['k0']))
    P(f's_load_dword s{sTAG}, s[20:21], 0')
    mk_srd(SWO, 8, 448 * 896)
    mk_srd(SW2, 14, 1792 * 896)
    mk_srd(SWS, 20, WS_BYTES)
    mk_srd(SOUT, 16, 2048 * 896)
    P(f'v_bfe_u32 v{vLT}, v0, 2, 2\nv_mov_b32 v{vLT + 1}, 0x3f803f80')
    for m in range(4):
        P(f'v_cmp_eq_u32 vcc, {m}, v{vLT}\nv_cndmask_b32 v{vSEL + 4 * m}, 0, v{vLT + 1}, vcc')
        for r in range(1, 4):
            P(f'v_mov_b32 v{vSEL + 4 * m + r}, v{vSEL + 4 * m}')
    if isq:
        q_addr_parts(vLT, vLT + 1, vLT + 2, vLT + 3)
        P(f'''s_lshr_b32 s{sT0}, s{sI}, 1
s_mul_i32 s{sT0}, s{sT0}, 56
s_and_b32 s{sT1}, s{sI}, 1
s_lshl_b32 s{sT1}, s{sT1}, 5
s_add_u32 s{sT0}, s{sT0}, s{sT1}''')
        q_addr(vCA, f's{sT0}', vLT, vLT + 1, vLT + 2)
        ntile, tstr, rstr, kstr = 3, 8192, 128, 4096
    else:
        h_addr(vCA, vLT, vLT + 1)
        P(f'''s_and_b32 s{sT0}, s{sI}, 1
s_lshl_b32 s{sT0}, s{sT0}, 5
v_xor_b32 v{vCA}, s{sT0}, v{vCA}
s_lshr_b32 s{sT0}, s{sI}, 1
s_lshl_b32 s{sT0}, s{sT0}, 6
v_add_u32 v{vCA}, s{sT0}, v{vCA}''')
        ntile, tstr, rstr, kstr = 4, 128, 448, 32 * 448
    w2_tr_addr(LADR, 12, vLT, vLT + 1)
    for ct in range(4):
        P(f'v_add_u32 v{LADR + ct}, s{sMX}, v{LADR + ct}')
    P(f'''v_lshrrev_b32 v{vLT}, 3, v0
v_mul_u32_u24 v2, 896, v{vLT}
v_and_b32 v{vLT}, 6, v{vLT}
v_xor_b32 v{vLT}, v{vLT}, v0
v_and_b32 v{vLT}, 7, v{vLT}
v_lshl_add_u32 v2, v{vLT}, 4, v2
v_add_u32 v3, {8 * 896}, v2
v_lshlrev_b32 v1, 4, v0
s_and_b32 s{sT0}, s{sRT}, 1
s_lshl_b32 s{sT0}, s{sT0}, 2
s_add_u32 s{sT0}, s{sT0}, s{sI}
s_mul_i32 s{sA0}, s{sT0}, {LST * 32 * 896}
s_lshr_b32 s{sFB}, s{sRT}, 1
s_lshl_b32 s{sFB}, s{sFB}, 4
s_add_u32 s{sFB}, s{sFB}, s{sT0}
s_lshl_b32 s{sFB}, s{sFB}, 10
s_add_u32 s{sFB}, s{sFB}, {WS_FLAGS}
s_andn2_b32 s{sFA}, 1, s{sRT}
s_lshl_b32 s{sFA}, s{sFA}, {FS + 1}
s_add_u32 s{sFA}, s{sFA}, s{sFB}
s_lshl_b32 s{sT0}, s{sCT}, 7
s_cmp_lt_u32 s{sCT}, 7
s_cselect_b32 s{sT0}, s{sT0}, 0x40000000
s_add_u32 s{sA0}, s{sA0}, s{sT0}
s_mul_i32 s{sA1}, s{sI}, {8 * 896}
s_add_u32 s{sA1}, s{sA1}, s{sT0}
v_lshl_add_u32 v{vGA}, s{sI}, 6, v0
v_min_u32 v{vGS}, 143, v{vGA}
v_lshlrev_b32 v{vGA}, 3, v{vGA}
v_mov_b32 v{vSY}, {SYNC}
v_lshl_add_u32 v{vSG}, s{sI}, 2, v{vSY}''')
    run(gens[1], KS[0] - min(KS[0], OPT['k0']))

    def csum_part(s):
        lab = f'L_{t}cs{s}'
        P(f's_cmp_lg_u32 s{sPUB}, 0\ns_cbranch_scc1 {lab}')
        if s == 1:
            P(f's_cmp_eq_u32 s{sROT}, 6\ns_cbranch_scc1 {lab}b')
        P(f'v_add_u32 v{vCA + 1}, {wsl[s]}, v{vCA}')
        if not isq:
            P(f's_and_b32 s{sT0}, s{sI}, 2\ns_lshl_b32 s{sT0}, s{sT0}, 6\nv_subrev_u32 v{vLT + 4}, s{sT0}, v{vCA + 1}')
        for kk in range(2):
            for m in range(ntile):
                f = vCF + 16 * kk + 4 * m
                o = m * tstr + kk * kstr
                va = vLT + 4 if m == 3 else vCA + 1
                P(f'ds_read_b64_tr_b16 {vr(f, 2)}, v{va} offset:{o}')
                P(f'ds_read_b64_tr_b16 {vr(f + 2, 2)}, v{va} offset:{o + 4 * rstr}')
        P('s_waitcnt lgkmcnt(0)')
        for kk in range(2):
            for m in range(ntile):
                P(mfma(vCACC, vSEL + 4 * m, vCF + 16 * kk + 4 * m, None if (s, kk, m) == (0, 0, 0) else vCACC))
        if s == 1:
            P.label(lab + 'b')
        P.label(lab)
        if s == 1:
            P(f'''s_lshl_b32 s{sT0}, s{sCG}, 13
s_lshl_b32 s{sT1}, s{sROT}, 10
s_add_u32 s{sT0}, s{sT0}, s{sT1}
s_lshl_b32 s{sT1}, s{sI}, 7
s_add_u32 s{sT0}, s{sT0}, s{sT1}
s_add_u32 s{sT0}, s{sT0}, {WS_CSUM}
s_cmp_lg_u32 s{sPUB}, 0
s_cselect_b32 s{sT0}, 0x40000000, s{sT0}
v_lshrrev_b32 v{vLT}, 4, v0
v_lshlrev_b32 v{vLT}, 9, v{vLT}
v_and_b32 v{vLT + 1}, 15, v0
v_lshl_add_u32 v{vLT}, v{vLT + 1}, 3, v{vLT}
v_mov_b32 v{vCACC + 1}, s{sTAG}
buffer_store_dwordx2 {vr(vCACC, 2)}, v{vLT}, {srd(SWS)}, s{sT0} offen sc1''')
            vm.issue()

    def gather_issue(count=True):
        for pi in range(4):
            P(f'buffer_load_dwordx2 {vr(vCF + 2 * pi, 2)}, v{vGA}, {srd(SWS)}, s{sT2 + pi // 2} offen offset:{2048 * (pi % 2)} sc1')
            if count:
                vm.issue('gather')
        P(f'''s_lshl_b32 s{sT0}, s{sRB}, 7
s_sub_u32 s{sT0}, s{sT0}, 16
v_add_u32 v{vCF + 10}, s{sT0}, v{vGS}
v_max_i32 v{vCF + 10}, 0, v{vCF + 10}
v_lshlrev_b32 v{vCF + 10}, 3, v{vCF + 10}
s_movk_i32 s{sT0}, {WS_STATS}
buffer_load_dwordx2 {vr(vCF + 8, 2)}, v{vCF + 10}, {srd(SWS)}, s{sT0} offen sc1''')
        if count:
            vm.issue('gather')

    def gather_start():
        P(f'''s_lshl_b32 s{sT2}, s{sCG}, 13
s_add_u32 s{sT2}, s{sT2}, {WS_CSUM}
s_add_u32 s{sT3}, s{sT2}, 4096''')
        gather_issue()

    def gather_cmp():
        for pi in range(5):
            P(f'v_xor_b32 v{vLT + pi}, s{sTAG}, v{vCF + 2 * pi + 1}')
        P(f'''v_or3_b32 v{vLT}, v{vLT}, v{vLT + 1}, v{vLT + 4}
v_or3_b32 v{vLT}, v{vLT}, v{vLT + 2}, v{vLT + 3}
v_cmp_ne_u32 vcc, 0, v{vLT}''')

    def gather_fin():
        for x in gather_chk():
            P(x)

    def gather_chk():
        vm.wait('gather')
        gather_cmp()
        P(f's_cbranch_vccz L_{t}gok')
        P.label(f'L_{t}gre')
        spin_guard(f'L_{t}gok')
        P('s_sleep 1')
        gather_issue(False)
        P('s_waitcnt vmcnt(0)')
        gather_cmp()
        P(f's_cbranch_vccnz L_{t}gre')
        P.label(f'L_{t}gok')
        a, b = vCF, vLT + 2
        txt = (f'''v_add_f32 v{a}, v{a}, v{a + 2}
v_add_f32 v{a + 4}, v{a + 4}, v{a + 6}
v_add_f32 v{a}, v{a}, v{a + 4}
v_mul_f32 v{a}, 0x3e800000, v{a}
v_and_b32 v{a + 14}, 0xffff0000, v{a + 8}
v_and_b32 v{a + 13}, 0xffff, v{a + 8}
v_rcp_f32 v{a + 14}, v{a + 14}
v_xor_b32 v{a + 13}, 0x8000, v{a + 13}
v_lshl_or_b32 v{a + 12}, v{a + 13}, 16, v{a + 13}
v_mul_f32 v{a + 15}, 0x3e8b9a4d, v{a + 14}
v_lshlrev_b32 v{a + 10}, 4, v{vGS}
v_add_u32 v{a + 10}, {ST}, v{a + 10}
ds_write_b128 v{a + 10}, {vr(a + 12)}
v_cvt_pk_bf16_f32 v{b}, 0, v{a}
v_sub_f32 v{b + 2}, v{a}, v{b}
v_cvt_pk_bf16_f32 v{b}, v{a}, v{b + 2}
v_and_b32 v{b + 1}, 0xffff0000, v{b}
v_sub_f32 v{b + 1}, v{b + 2}, v{b + 1}
v_cvt_pk_bf16_f32 v{b + 1}, v{b + 1}, 0
v_add_u32 v{vLT}, {CS}, v{vGA}
v_cmp_gt_u32 vcc, {224 * 8}, v{vGA}
s_mov_b64 exec, vcc|ds_write_b64 v{vLT}, {vr(b, 2)}|s_mov_b64 exec, -1''')
        return [x.replace('|', '\n') for x in txt.split('\n')]

    def pf_w():
        if OPT['pfq']:
            if isq != 2 - OPT['pfq']:
                return
            P(f'''s_and_b32 s{sT1}, s2, 127
s_lshl_b32 s{sT1}, s{sT1}, 2
s_add_u32 s{sT1}, s{sT1}, s{sI}
s_mul_i32 s{sT0}, s{sT1}, {7 * 128}
s_mul_i32 s{sT1}, s{sT1}, {25 * 128}
v_lshlrev_b32 v{vLT + 8}, 7, v0
s_mov_b64 exec, 0x1ffffff
buffer_load_dword v{vLT + 9}, v{vLT + 8}, {srd(SW2)}, s{sT1} offen
s_mov_b64 exec, 0x7f
buffer_load_dword v{vLT + 9}, v{vLT + 8}, {srd(SWO)}, s{sT0} offen
s_mov_b64 exec, -1''')
            vm.issue()
            vm.issue()
            return
        P(f'''s_lshl_b32 s{sT1}, s2, 2
s_add_u32 s{sT1}, s{sT1}, s{sI}
s_lshl_b32 s{sT1}, s{sT1}, 11
v_lshlrev_b32 v{vLT + 8}, 7, v0
s_mov_b64 exec, 0xffff
buffer_load_dword v{vLT + 9}, v{vLT + 8}, {srd(SW2)}, s{sT1} offen
buffer_load_dword v{vLT + 9}, v{vLT + 8}, {srd(SWO)}, s{sT1} offen
s_mov_b64 exec, -1''')
        vm.issue()
        vm.issue()

    P(f's_waitcnt lgkmcnt(0)\ns_mul_i32 s{sTAG}, s{sTAG}, 0x9e3779b1\ns_add_u32 s{sTAG}, s{sTAG}, 0x7f4a7c15')
    w2 = W2Plan(vm)
    w2.isq = isq
    if not isq:
        w2.pairs += [WIN, WIN + 8192]
    nown = 0
    nstg = 0

    def own(n):
        nonlocal nown
        n = min(n, 2 * LST - nown)
        w2.own(range(nown, nown + n))
        nown += n

    def stage(n):
        nonlocal nstg
        n = min(n, nown - nstg)
        if n > 0:
            w2.stage(list(range(nstg, nstg + n)))
        nstg += n

    def cwait(v):
        lds_poll(f'L_{t}cp{v}', vPT, vSY, 16, v, OPT['lsl'])

    def fwarm():
        P(BL)
        if OPT['na']:
            P(AL.replace('s4,', 's11,').replace('s5,', 's11,'))
        of_addr(sT0, sT1, 10)
        P(f's_and_b32 s{sT1}, s{sI}, 1\ns_lshl_b32 s{sT1}, s{sT1}, 12\ns_add_u32 s{sT0}, s{sT0}, s{sT1}')
        for p_ in range(4):
            P(f's_buffer_load_dword s11, {srd(SWS)}, s{sT0} offset:{1024 * p_} glc')
        xh_addr(sT0, sI)
        P(f's_buffer_load_dword s11, {srd(SWS)}, s{sT0} glc\ns_buffer_load_dword s11, {srd(SWS)}, s{sT0} offset:4096 glc')

    nspf = 0

    def spf(n):
        nonlocal nspf
        if nspf == 0:
            P(f'''s_lshl_b32 s9, s2, 2
s_add_u32 s9, s9, s{sI}
s_mul_i32 s8, s9, {25 * 64}
s_mul_i32 s9, s9, {7 * 64}''')
        for _ in range(n):
            if nspf < 25:
                P(f's_buffer_load_dword s12, {srd(SW2)}, s8 offset:{64 * nspf}')
            elif nspf < 32:
                P(f's_buffer_load_dword s12, {srd(SWO)}, s9 offset:{64 * (nspf - 25)}')
            nspf += 1
    if OPT['fwarm'] == 9:
        fwarm()
    spn = [int(c, 16) for c in '%05x' % OPT['spf']]
    fin = set()
    wbs = [int(c) for c in '%05d' % OPT['w4']]
    sfill = []
    for s in range(5):
        if OPT['ds'] == 3:
            stamp(1 + 3 * s)
            vm.wait(('st', s))
            stamp(2 + 3 * s)
            P('s_barrier')
            stamp(3 + 3 * s) if s < 4 else None
        else:
            stamp(13) if s == 4 else None
            vm.wait(('st', s))
            stamp(14) if s == 4 else None
            P('s_barrier')
            stamp({0: 1, 3: 3, 4: 5}[s]) if s in (0, 3, 4) else None
        def extras(st):
            if OPT['pf_w'] == st:
                pf_w()

        def stream():
            for st, lim in ((s + 1, 99), (s + 2, KS[s + 1])):
                if st in fin:
                    continue
                k = 0
                while k < lim:
                    if next(gens[st], 'end') == 'end':
                        fin.add(st)
                        extras(st)
                        break
                    k += 1
                    yield
        g = stream()
        if OPT['cs_it'] == 10 * s - 5 and s > 1:
            gather_start()
        if s < 2:
            run(g, 5)
            csum_part(s)
        if s == OPT['cs_it'] + 1 or (OPT['cs_it'] == 10 * s - 15 and s > 2):
            run(g, OPT['gk'])
            sfill = gather_chk()
        while next(g, 'end') != 'end':
            for _ in range(OPT['sfn']):
                if sfill:
                    P(sfill.pop(0))
        if s == OPT['cs_it']:
            gather_start()
        if True:
            while sfill:
                P(sfill.pop(0))
        if spn[s]:
            spf(spn[s])
        if s == OPT['fwarm']:
            fwarm()
        if s == 1:
            for ct in range(4):
                P(f'v_add_u32 v{vAD1 + ct}, 0x10000, v{LADR + ct}\nv_add_u32 v{vAD2 + ct}, 0x20000, v{LADR + ct}')
        if not isq and wbs[s]:
            if len(w2.pairs) < wbs[s]:
                stage(wbs[s] - len(w2.pairs))
                w2.sync()
            own(wbs[s])
    global MUTE
    MUTE = OPT['ds'] in (3, 7)

    def progress(total, cap=OPT['cap']):
        left = total
        while left > 0:
            isown = nown < 2 * LST
            if not (w2.has_pair() if isown else any(g_ >= OPT['ncw2'] for g_ in w2.grp)):
                if w2.pending:
                    w2.sync()
                elif nstg < nown:
                    stage(1)
                else:
                    break
                continue
            if isown:
                own(1)
                left -= 2
            else:
                w2.cw()
                left -= 1
            while nstg < nown and vm.n - vm.tags[('own', nstg)] >= cap:
                stage(1)
            if vm.n - vm.done > cap:
                vm.wait(vm.n - cap)
    vm.wait(('st', 5))
    stamp(2)
    P('s_barrier')
    jitter()
    stamp(4)
    w2.pairs += [16384] if isq else [16384, 24576]
    w2.grp |= set(range(7))
    for _ in gens[6]:
        pass
    if OPT['cs_it'] == 5:
        gather_start()
    if OPT['pf_w'] == 7:
        pf_w()
    own(OPT['n5q'] if isq else OPT['n5'])
    if OPT['cs_it'] in (4, 5, 35):
        gather_fin()
    vm.wait(('st', 6))
    P('s_waitcnt lgkmcnt(0)')
    if OPT['b6']:
        stamp(7)
        P('s_barrier')
    else:
        lds_signal(vSG, 246, 7)
    P(f's_cmp_ge_u32 s{sCT}, 7\ns_cbranch_scc1 L_IDLE')
    if not OPT['b6']:
        progress(OPT['p5q'] if isq else OPT['p5'])
        stamp(6)
        cwait(6)
    late2 = OPT['tk'] > 2 and not isq
    if not late2:
        w2.pairs += [32768, 40960]
        w2.grp |= set(range(7, 14))
    if OPT['b6']:
        progress(OPT['p5'])
        stamp(6)
    if OPT['lpause'] and not isq:
        progress(OPT['lpause'] - 1, OPT['capp'])
        stage(100)
        cwait(8)
    if late2:
        assert OPT['lpause'] and not OPT['b6']
        w2.pairs += [32768, 40960]
        w2.grp |= set(range(7, 14))
    progress(100, OPT['cap'] if isq else OPT['cape'])
    stage(100)
    w2.sync()
    assert nown == 2 * LST and nstg == nown and not w2.pending and w2.grp == set(range(OPT['ncw2']))
    globals()['W2'] = w2
    if isq and OPT['qhold']:
        cwait(9)
    if isq == OPT['qf']:
        P('s_branch L_P2L')
    return vm


def L_phase2(vm):
    P.label('L_P2L')
    jitter()
    lastcw = [vm.n]
    W2.vm = vm
    vm.done = 0
    stamp(8)
    lds_signal(vSG, 243, 8)
    NAE = OPT['na']
    if NAE or OPT['ncw2']:
        P(AL if NAE else BL)
    sF, sB, sS, sOF = 12, 62, 65, 66
    vDA, vSy, vSg, vWA, TMP, TMP2 = LADR, 246, 247, 20, 248, 12
    P(f'''v_mov_b32 v{vSg}, v{vSG}
v_mov_b32 v{vSy}, v{vSY}
s_and_b32 s{sT3}, s{sRT}, 1
s_lshl_b32 s{sT3}, s{sT3}, 2
s_add_u32 s{sT3}, s{sT3}, s{sI}
s_xor_b32 s{sT2}, s{sRT}, 1
s_mul_i32 s{sT2}, s{sT2}, {4 * NS * 1024}
s_mul_i32 s{sT3}, s{sT3}, {LST * 1024}
s_add_u32 s{sT3}, s{sT3}, {WS_ACT}
s_add_u32 s{sF}, s{sT2}, s{sT3}
s_add_u32 s{sF + 1}, s{sF}, {NS * 1024}
s_add_u32 s{sF + 2}, s{sF}, {2 * NS * 1024}
s_add_u32 s{sF + 3}, s{sF}, {3 * NS * 1024}
s_mul_i32 s{sB}, s{sRT}, {4 * NS * 1024}
s_mul_i32 s{sS}, s{sI}, {NS * 1024}
s_add_u32 s{sS}, s{sS}, s{sB}
s_add_u32 s{sS}, s{sS}, {WS_ACT + 56 * 1024}
s_add_u32 s{sB}, s{sB}, s{sT3}
v_and_b32 v{vDA}, 15, v0
v_lshrrev_b32 v{vDA + 1}, 4, v0
v_xor_b32 v{vDA + 1}, v{vDA + 1}, v{vDA}
v_lshlrev_b32 v{vDA + 1}, 4, v{vDA + 1}
v_lshl_add_u32 v{vDA}, v{vDA}, 8, v{vDA + 1}
s_lshl_b32 s{sT1}, s{sI}, 14
v_add_u32 v{vDA}, s{sT1}, v{vDA}
v_xor_b32 v{vDA + 1}, 64, v{vDA}
v_xor_b32 v{vDA + 2}, 128, v{vDA}
v_xor_b32 v{vDA + 3}, 192, v{vDA}
s_branch L_pb_w''')
    spoll('L_pb', *((AL, 2) if NAE else (F1, 1) if OPT['f1'] else (BL, 4)))
    stamp(9)
    xtra = [LACC + 32 + 4 * n for n in range(8)]
    slots = [LA + 4 * n for n in range(11)] + [4, 8, 16] + ([] if NAE else xtra)
    free = slots[:OPT['lahead'] + 1]
    vSG2 = 244
    aloc = {}
    nxt = 0
    NT = 8 * LST
    NA = NT + 16
    lim = 4 * NAE if NAE else 2 * LST if OPT['f1'] else NT
    order = [(t, k) for k in range(NAE) for t in range(4)] + [(t, k) for t in range(4) for k in range(NAE, LST)] + \
            [(t, k) for t in range(4, 8) for k in range(LST)] + [(8, k) for k in range(16)]
    dump_n = {t: order.index((t, LST - 1)) + OPT['dd'] for t in range(8)}

    def acc(t):
        return LACC + 16 * (t if (t < 4 and NAE) else t % 2)

    def load1():
        nonlocal nxt
        t, k = order[nxt]
        sb = sF + t if t < 4 else sB
        aloc[nxt] = free.pop(0)
        P(f'buffer_load_dwordx4 {vr(aloc[nxt])}, v1, {srd(SWS)}, s{sb} offen offset:{(k % 4) * 1024} sc1')
        vm.issue(('a', nxt))
        nxt += 1
        if k == LST - 1 and 4 <= t < 8:
            P(f's_mov_b32 s{sB}, s{sS}' if t == 7 else f's_add_u32 s{sB}, s{sB}, {NS * 1024 - 4096}')
        elif k % 4 == 3:
            P(f's_add_u32 s{sb}, s{sb}, 4096')

    def can_load(cur):
        return nxt < lim and free and nxt - cur < OPT['lahead']
    lg = Q(P, 'lgkmcnt', 15)
    fq = []
    cold = []

    def f_txt(x, cost=1, ds=None):
        def fn():
            P(x)
            if ds is not None:
                lg.issue(ds or None)
        fq.append((cost, fn))

    def f_chk(nm, rg, off, val):
        f_txt(f'v_min3_u32 v{rg}, v{rg}, v{rg + 1}, v{rg + 2}')
        f_txt(f'v_min_u32 v{rg}, v{rg}, v{rg + 3}')
        f_txt(f'v_cmp_gt_u32 vcc, {val}, v{rg}', 2)
        f_txt(f's_cbranch_vccnz {nm}\n{nm}_ok:')
        cold.append(lambda: (lds_spin(nm, rg, vSy, off, val, 0), P(f's_branch {nm}_ok')))
    while can_load(0) and nxt < OPT['l0']:
        load1()
        if OPT['f1'] and nxt == OPT['f1']:
            P(BL)
    if OPT['tw']:
        P(f'v_add_u32 v{vWA}, {WO}, v1')
    else:
        w2_tr_addr(vWA, 10, TMP, TMP + 1)
        for ct in range(4):
            P(f'v_add_u32 v{vWA + ct}, {WO}, v{vWA + ct}')
    of_addr(sOF, sT0, sT1)
    P(f'''v_and_b32 v{TMP}, 15, v0
v_lshlrev_b32 v{TMP}, 7, v{TMP}
v_lshrrev_b32 v{TMP + 1}, 5, v0
v_xor_b32 v{TMP + 1}, v{TMP + 1}, v0
v_and_b32 v{TMP + 1}, 7, v{TMP + 1}
v_lshl_add_u32 v{TMP}, v{TMP + 1}, 4, v{TMP}
v_bfe_u32 v{TMP + 1}, v0, 4, 1
v_lshl_add_u32 v{TMP}, v{TMP + 1}, 3, v{TMP}
s_lshl_b32 s{sT0}, s{sI}, 11
s_add_u32 s{sT0}, s{sT0}, {STILE}
v_add_u32 v{vSG2 + 1}, s{sT0}, v{TMP}''')
    stamp(10)
    cstamp(2) if OPT['ds'] == 5 else None
    wfree = [TMP2] + slots[OPT['lahead'] + 1:] + (xtra if NAE else [])
    wloc = {}
    nw = 0

    def wread():
        nonlocal nw
        f, j = divmod(nw, 2)
        if nw >= 128 or (j == 0 and not wfree):
            return False
        if j == 0:
            wloc[f] = wfree.pop(0)
        k, ct = divmod(f, 4)
        if OPT['tw']:
            P(f'ds_read_b128 {vr(wloc[f])}, v{vWA} offset:{1024 * f}')
            nw += 1
        else:
            P(f'ds_read_b64_tr_b16 {vr(wloc[f] + 2 * j, 2)}, v{vWA + (ct ^ (2 * (k % 2)))} offset:{28 * k * 128 + 2048 * j}')
        lg.issue(('w', f))
        nw += 1
        return True
    need = {0: 9, 4: 11, 6: 12}

    def set_lim(v):
        nonlocal lim
        lim = v

    def f_flags(nm, loads, nreg, newlim):
        fq.append((1, lambda: lg.force0()))
        for r in range(nreg):
            f_txt(f's_xor_b32 s{4 + r}, s{4 + r}, s{sTAG}')
        if nreg == 8:
            f_txt('s_or_b64 s[4:5], s[4:5], s[6:7]')
            f_txt('s_or_b64 s[6:7], s[8:9], s[10:11]')
        f_txt(f's_or_b64 s[4:5], s[4:5], s[6:7]\ns_cbranch_scc1 {nm}\n{nm}_bk:', 2)
        fq.append((0, lambda: set_lim(newlim)))
        cold.append(lambda: (spoll(nm, loads, nreg), P(f's_branch {nm}_bk')))
    for n in range(NA):
        t, k = order[n]
        if OPT['ds'] == 6 and n % LST == 0 and 0 < n <= NT:
            stamp(n // LST)
        for td, dn in dump_n.items():
            if td in need and n == dn - 4:
                f_txt(f'ds_read_b128 {vr(TMP)}, v{vSy} offset:16', 1, 'c')
                if td == 0:
                    f_txt(f'ds_read_b128 {vr(TMP2)}, v{vSy}', 1, 'c')
            if td in need and n == dn - 2:
                fq.append((1, lambda: lg.wait('c')))
                f_chk(f'L_d{td}', TMP, 16, need[td])
                if td == 0:
                    f_chk('L_d1l', TMP2, 0, 8)
            if n == dn + OPT['sk'] - 1:
                fq.append((1, lambda td=td: lg.wait(('d', td))))
                if td % 2:
                    if td == 1:
                        fq.append((0, lambda: vm.wait(lastcw[0])))
                    f_txt(f'v_mov_b32 v{vSG2}, {10 + td}')
                    f_txt(f'ds_write_b32 v{vSg}, v{vSG2}', 1, '')
            if n == dn:
                for ct in range(4):
                    f_txt(f'ds_write_b128 v{vDA + ct}, {vr(acc(td) + 4 * ct)} offset:{DUMPF + 4096 * (td % 4)}', OPT['dc'], ('d', td))
        if NAE and n == OPT['nb'] - OPT['bd']:
            for x in BL.split('\n'):
                f_txt(x)
        if (NAE and n == OPT['nb']) or (OPT['f1'] and n == 0):
            f_flags('L_pbb', BL, 4, NT)
        if n == OPT['on'] - LST:
            for x in ol(sOF).split('\n'):
                f_txt(x)
        if n == OPT['on']:
            f_flags('L_po', ol(sOF), 8, NA)
        if (t, k) == (8, 13):
            for c_ in range(4):
                f_txt(f'v_xor_b32 v{vDA + c_}, {32 * c_}, v{vSG2 + 1}')
        if n in (9, 30, 44, 58):
            jitter()
        stamp(11) if n == 4 * LST else None
        stamp(12) if n == NT else None
        if k == 0 and t >= (4 if NAE else 2):
            assert lg.done >= lg.tags[('d', t - 4 if (t < 6 and NAE) else t - 2)], (t, 'dump not drained')
        while n not in aloc:
            if can_load(n):
                load1()
            else:
                fq.pop(0)[1]()
        vm.wait(('a', n))
        for ct in range(4):
            a = acc(t) + 4 * ct
            if t == 8:
                f = 4 * k + ct
                if ct % 2 == 0:
                    while nw < 2 * f + 4:
                        assert wread()
                    lg.wait(('w', f + 1))
                P(mfma(a, wloc[f], aloc[n], None if k == 0 else a))
                if f:
                    wfree.append(wloc[f - 1])
            else:
                P(mfma(a, LW + 16 * k + 4 * ct, aloc[n], None if k == 0 else a))
                if t == 7 and 4 * k + ct:
                    wfree.append(LW + 16 * k + 4 * ct - 4)
            bud = 2 if ct < 3 else 1
            if t == 8 and ct == 1:
                bud = 1
            if ct in (0, 2) and can_load(n):
                load1()
                bud -= 2
            elif ct in (0, 2) and W2.grp and (nxt >= lim or not NAE):
                W2.cw()
                lastcw[0] = vm.n
                bud -= 2
            while t == 8 and nw < min(128, 2 * (4 * k + ct) + OPT['wl']):
                assert wread()
                bud -= 1
            if fq and bud <= 0 and t == 8 and ct == 0:
                bud = 1
            while bud > 0:
                if fq:
                    c, fn = fq.pop(0)
                    fn()
                    bud -= c
                elif n >= OPT['ws'] and wread():
                    bud -= 1
                else:
                    break
        (free if nxt < NA else wfree).append(aloc[n])
        if n == dump_n[0]:
            while W2.grp:
                W2.cw()
                lastcw[0] = vm.n
    while fq:
        fq.pop(0)[1]()
    stamp(13)
    cstamp(4) if OPT['ds'] == 5 else None
    if OPT['lp']:
        P('s_setprio 2')
    for ct in range(4):
        for r in (2 * ct, 2 * ct + 1):
            P(f'v_cvt_pk_bf16_f32 v{LACC + r}, v{LACC + 2 * r}, v{LACC + 2 * r + 1}')
        P(f'ds_write_b64 v{vDA + ct}, {vr(LACC + 2 * ct, 2)}')
    P('s_waitcnt lgkmcnt(0)')
    stamp(14)
    P('s_barrier\ns_branch L_EXIT')
    for fn in cold:
        fn()


vmh = L_phase1(OPT['qf'])
P.label('L_LQ')
vmq = L_phase1(1 - OPT['qf'])
L_phase2(vmq)
P.label('L_IDLE')
if OPT['ipl']:
    P(f'''s_bfe_u32 s{sT1}, s2, 0x20003
v_min_u32 v4, 55, v0
v_lshlrev_b32 v4, 7, v4''')
    if OPT['ipl'] & 1:
        P(f's_lshl_b32 s{sT2}, s{sT1}, 2\ns_add_u32 s{sT2}, s{sT2}, s{sI}\ns_mul_i32 s{sT2}, s{sT2}, {56 * 128}\ns_add_u32 s{sT2}, s{sT2}, {3 * 16 * 56 * 128}')
        for n in range(4):
            P(f'buffer_load_dword v5, v4, {srd(SWO)}, s{sT2} offen\ns_sub_u32 s{sT2}, s{sT2}, {16 * 56 * 128}')
    if OPT['ipl'] & 2:
        P(f'''s_lshl_b32 s{sT1}, s{sT1}, 1
s_add_u32 s{sT1}, s{sT1}, s{sRT}
s_sub_u32 s{sT1}, s{sT1}, 8
s_lshl_b32 s{sT1}, s{sT1}, 2
s_add_u32 s{sT1}, s{sT1}, s{sI}
s_mul_i32 s{sT1}, s{sT1}, {16 * 896}''')
        for n in range(2):
            P(f'buffer_load_dword v5, v4, {srd(SX)}, s{sT1} offen\ns_add_u32 s{sT1}, s{sT1}, {8 * 896}')
P('s_branch L_EXIT')

CW = 112
CX = 144
CHX = 168
cXA = 180
cHA = 182
cWA = 184
cWB = 190
cST = 196
cSO = 202
cBE = 204
cR = 196
cKXW, cHW, cPM, cONE = 216, 217, 219, 104
cM16, cM48, cL16, cCSA, cCSH = 221, 222, 223, 224, 225
cVW, cVWH, cVR, cKX, cSY, cSG = 226, 227, 228, 229, 230, 231
cF = 252
cBA, cBB, cBA0 = 232, 236, 240
cT = 244

MUTE = False
if OPT['pad'] >= 0:
    P('.p2align 12')
    if OPT['pad']:
        P('.fill %d, 4, 0xbf800000' % (OPT['pad'] // 4))
P.label('L_C')
vmS = Q(P, 'vmcnt', 63)
if True:
    vS = 16
    P('s_setprio 1')
    stats_rows()
    P('s_waitcnt lgkmcnt(0)')
    mk_srd(SX, 4, 2048 * 896)
    stats_load(vmS)
    if OPT['swarm']:
        P(f's_lshl_b32 s{sT0}, s{sT3}, 3\ns_and_b32 s{sT0}, s{sT0}, 0xffffff80\ns_add_u32 s{sT0}, s{sT0}, {WS_STATS}')
        P(f's_load_dword s10, s[20:21], s{sT0}\ns_load_dword s11, s[20:21], s{sT0} offset:64')
    P(f's_load_dword s{sTAG}, s[20:21], 0')
P(f'''v_mov_b32 v{cSY}, {SYNC}
v_lshl_add_u32 v{cSG}, s{sI}, 2, v{cSY}
v_add_u32 v{cSG}, 16, v{cSG}
v_mov_b32 v12, 0
v_lshlrev_b32 v13, 2, v0
v_add_u32 v13, {SYNC}, v13
ds_write_b32 v13, v12
v_lshlrev_b32 v{cL16}, 4, v0
v_and_b32 v11, 15, v0
v_lshrrev_b32 v10, 4, v0
v_lshrrev_b32 v13, 1, v11
v_xor_b32 v13, v13, v10
v_lshlrev_b32 v13, 4, v13
v_lshl_add_u32 v13, v11, 7, v13
s_lshl_b32 s{sT0}, s{sI}, 12
v_add_u32 v{cXA}, s{sT0}, v13
v_xor_b32 v{cXA + 1}, 64, v{cXA}
v_add_u32 v{cHA}, {HALO}, v13
v_xor_b32 v{cHA + 1}, 64, v{cHA}
v_lshlrev_b32 v12, 3, v11
v_add_u32 v{cCSA}, {CS}, v12
v_lshlrev_b32 v12, 4, v11
v_add_u32 v{cSO + 1}, {ST}, v12
s_lshl_b32 s{sT0}, s{sI}, 9
v_add_u32 v{cSO}, s{sT0}, v{cSO + 1}
v_mov_b32 v{cBE + 2}, 0
v_mov_b32 v{cBE + 3}, 0
v_mov_b32 v{cBE + 6}, 0
v_mov_b32 v{cBE + 7}, 0
v_mov_b32 v{cBE + 10}, 0
v_mov_b32 v{cBE + 11}, 0
s_lshl_b32 s{sXO}, s{sRB}, 2
s_add_u32 s{sXO}, s{sXO}, s{sI}
s_mul_i32 s{sA0}, s{sXO}, {2 * NS * 1024}
s_add_u32 s{sA0}, s{sA0}, {WS_ACT}
s_lshl_b32 s{sA1}, s{sRB}, 4
s_add_u32 s{sA1}, s{sA1}, s{sCG}
s_lshl_b32 s{sA1}, s{sA1}, 10
s_lshl_b32 s{sT1}, s{sI}, {FS}
s_add_u32 s{sA1}, s{sA1}, s{sT1}
s_add_u32 s{sA1}, s{sA1}, {WS_FLAGS}''')
stamp(0) if OPT['ds'] != 7 else None
mk_srd(SWS, 20, WS_BYTES)
mk_srd(SOUT, 16, 2048 * 896)
P(f's_cmp_eq_u32 s{sISQ}, 1\ns_cbranch_scc1 L_CQ')
if OPT['hop']:
    P('s_branch L_CH')
    P.label('L_warm')
    P('s_mov_b64 exec, 0')
    for w_ in range(1, 4):
        P(f's_cmp_eq_u32 s{sI}, {w_}\ns_cbranch_scc1 L_hop{w_}')
    P('s_branch L_hop0')
    P.label('L_wret')
    P(f's_mov_b64 exec, -1\ns_cmp_eq_u32 s{sISQ}, 1\ns_cbranch_scc1 L_wrQ\ns_branch L_wrH')
    P.label('L_CH')


SLOW = []


def C_phase1(isq):
    t = 'Q' if isq else 'H'
    lg = Q(P, 'lgkmcnt', 15)
    LA_, HOLD, WSTEP, TM = OPT['la'], OPT['hold'], OPT['wstep'], OPT['tm']
    wsl = WSL
    if isq:
        q_addr_parts(12, 13, 14, 15)
        for e in range(2):
            for t01 in range(2):
                q_addr(cWB + 2 * e + t01, 56 * e + 32 * t01, 12, 13, 14)
        P(f'''s_bitcmp1_b32 s{sI}, 0
s_cselect_b64 vcc, -1, 0
s_lshr_b32 s{sT0}, s{sI}, 1
s_add_u32 s{sT0}, s{sT0}, 1
s_lshl_b32 s{sT0}, s{sT0}, 13
v_cndmask_b32 v{cWB + 4}, v{cWB}, v{cWB + 2}, vcc
v_cndmask_b32 v{cWB + 5}, v{cWB + 1}, v{cWB + 3}, vcc
v_add_u32 v{cWB + 4}, s{sT0}, v{cWB + 4}
v_add_u32 v{cWB + 5}, s{sT0}, v{cWB + 5}
s_lshl_b32 s{sT0}, s{sI}, 8
s_add_u32 s{sT0}, s{sT0}, 512
v_add_u32 v{cCSH}, s{sT0}, v{cCSA}
v_cmp_gt_u32 vcc, 48, v0
v_cndmask_b32 v{cM48}, 0, -1, vcc
v_lshlrev_b32 v13, 2, v10
v_sub_u32 v13, v11, v13
v_mov_b32 v15, 0xf149f2ca''')
        for r in range(4):
            for (d, add) in ((cBA, 16), (cBB, 0)):
                P(f'''v_add_u32 v14, {add - r}, v13
v_and_b32 v14, -15, v14
v_cmp_eq_u32 vcc, 0, v14
v_cndmask_b32 v{d + r}, v15, 0, vcc''')
        P(f's_cmp_eq_u32 s{sXO}, 0\ns_cselect_b64 vcc, -1, 0')
        for r in range(4):
            P(f'v_cndmask_b32 v{cBA0 + r}, v{cBA + r}, v15, vcc')
        P(f'''v_mul_u32_u24 v13, {VSTR}, v11
v_lshl_add_u32 v13, v10, 3, v13
s_mul_i32 s{sT0}, s{sI}, {32 * VSTR}
s_add_u32 s{sT1}, s{sT0}, {VREG + 16 * VSTR}
v_add_u32 v{cVW}, s{sT1}, v13
s_and_b32 s{sT1}, s{sI}, 1
s_mul_i32 s{sT1}, s{sT1}, {144 * VSTR}
s_add_u32 s{sT1}, s{sT1}, {VREG}
v_add_u32 v{cVWH}, s{sT1}, v13
v_lshrrev_b32 v13, 2, v0
v_mul_u32_u24 v13, {VSTR}, v13
v_and_b32 v14, 3, v0
v_lshl_add_u32 v13, v14, 3, v13
s_add_u32 s{sT0}, s{sT0}, {VREG}
v_add_u32 v{cVR}, s{sT0}, v13
s_lshl_b32 s{sT0}, s{sI}, 11
s_add_u32 s{sT0}, s{sT0}, {KX}
v_add_u32 v{cKX}, s{sT0}, v{cL16}
s_add_u32 s{sT1}, s{sT0}, 2048
s_cmp_eq_u32 s{sI}, 3
s_cselect_b32 s{sT1}, {DUMMY}, s{sT1}
v_add_u32 v{cKXW}, s{sT1}, v{cL16}
v_add_u32 v13, 32, v{cVWH}
v_mov_b32 v14, {DUMMY + 2048}
v_cmp_gt_u32 vcc, 48, v0
v_cndmask_b32 v13, v14, v13, vcc
s_lshl_b32 s{sT0}, s{sI}, 10
s_add_u32 s{sT0}, s{sT0}, {KX}
v_add_u32 v14, s{sT0}, v{cL16}
v_add_u32 v15, 8, v14
s_cmp_ge_u32 s{sI}, 2
s_cselect_b64 vcc, -1, 0
v_cndmask_b32 v{cHW}, v14, v{cVWH}, vcc
v_cndmask_b32 v{cHW + 1}, v15, v13, vcc
v_and_b32 v13, 1, v0
v_lshlrev_b32 v13, 4, v13
v_mov_b32 v14, 0xffff
v_lshlrev_b32 v{cPM}, v13, v14
v_mov_b32 v{cONE}, 0x3f803f80
v_mov_b32 v{cONE + 1}, 0x3f803f80
v_mov_b32 v{cONE + 2}, 0x3f803f80
v_mov_b32 v{cONE + 3}, 0x3f803f80''')
        nb = 6
        pairs = [(1, 0), (2, 0), (1, 1), (2, 1), (0, 0), (0, 1)]
        tiles = [(pi, t01) for pi in range(4) for t01 in range(2)] + [('H', 0), ('H', 1)] + \
                [(pi, t01) for pi in range(4, 6) for t01 in range(2)]
    else:
        h_addr(cWB, 12, 13)
        P(f'v_xor_b32 v{cWB + 1}, 32, v{cWB}')
        nb = 2
        tiles = [(pi, t01) for pi in range(6 if OPT['abl'] & 16 else 7) for t01 in range(2)]

    TK = 2 if isq else OPT['tk']

    def set_slot(s):
        for b in range(nb):
            P(f'v_add_u32 v{cWA + b + (2 if (s == 6 and TK > 2) else 0)}, {wsl[s % 3]}, v{cWB + b}')

    def xbuf(ks):
        if TK > 2 and ks >= 12:
            return ks - 10
        return 2 if (TM and ks == 13) else ks % 2

    units = []

    def unit(tile, ks):
        pi, t01 = tile
        u = dict(tile=tile, ks=ks, pre=[])
        if ks == 'E':
            u['stage'] = 6
            if pi == 'H':
                u['rd'] = [('b64', cCSH, 128 * t01)]
            elif isq:
                sg, e = pairs[pi]
                u['rd'] = [('b64', cCSA, 128 * (4 * sg + 2 * e + t01))]
            else:
                u['rd'] = [('b64', cCSA, 128 * (2 * pi + t01))]
        else:
            s, kk = divmod(ks, 2)
            u['stage'] = 6 if ks >= 14 - TK else s
            if pi == 'H':
                a, o, o2 = cWA + 4 + t01, kk * 4096, 512
            elif isq:
                sg, e = pairs[pi]
                a, o, o2 = cWA + 2 * e + t01, sg * 8192 + kk * 4096, 512
            else:
                a, o, o2 = cWA + t01 + (2 if (s == 6 and TK > 2) else 0), pi * 64 + kk * 32 * 448, 4 * 448
            u['rd'] = [('tr', a, o), ('tr', a, o + o2)]
        if pi == 'H':
            u['mm'] = [(96 + 4 * t01, cBE + 8 if ks == 'E' else CHX + 4 * xbuf(ks))]
        else:
            u['mm'] = [(16 * pi + 8 * tt + 4 * t01, cBE + 4 * tt if ks == 'E' else CX + 8 * xbuf(ks) + 4 * tt)
                       for tt in range(2)]
        return u
    seen_x, seen_h = set(), set()
    order = []
    for ks in range(14 - TK if TM else 14):
        order += [(tl, ks) for tl in tiles]
    if TM:
        for tl in tiles:
            order += [(tl, ks) for ks in range(14 - TK, 14)] + [(tl, 'E')]
    else:
        order += [(tl, 'E') for tl in tiles]
    for tl, ks in order:
        u = unit(tl, ks)
        if ks != 'E':
            s, kk = divmod(ks, 2)
            if tl[0] == 'H':
                if ks not in seen_h:
                    seen_h.add(ks)
                    u['pre'].append(f'ds_read_b128 {vr(CHX + 4 * xbuf(ks))}, v{cHA + kk} offset:{halo_off(s)}')
            elif ks not in seen_x:
                seen_x.add(ks)
                for tt in range(2):
                    u['pre'].append(f'ds_read_b128 {vr(CX + 8 * xbuf(ks) + 4 * tt)}, v{cXA + kk} offset:{XS[s % 3] + 2048 * tt}')
        elif 'E' not in seen_x:
            seen_x.add('E')
            for tt in range(2):
                u['pre'].append(f'ds_read_b64 {vr(cBE + 4 * tt, 2)}, v{cSO} offset:{256 + 256 * tt}')
                if isq:
                    u['pre'].append(f'ds_read_b64 {vr(cR + 2 * tt, 2)}, v{cSO} offset:{256 + 256 * tt + 8}')
        elif tl == ('H', 0):
            u['pre'].append(f'ds_read_b64 {vr(cBE + 8, 2)}, v{cSO + 1}')
            u['pre'].append(f'ds_read_b64 {vr(cR + 4, 2)}, v{cSO + 1} offset:8')
        units.append(u)
    NU = len(units)
    last_ring = max(n for n, u in enumerate(units) if u['ks'] != 'E')
    done_at = {}
    for n, u in enumerate(units):
        done_at[u['tile'][0]] = n

    def rd_list(n):
        u = units[n]
        slot = CW + 4 * (n % 8)
        out = list(u['pre'])
        for j, (kind, a, o) in enumerate(u['rd']):
            if kind == 'tr':
                out.append(f'ds_read_b64_tr_b16 {vr(slot + 2 * j, 2)}, v{a} offset:{o}')
            else:
                out.append(f'ds_read_b64 {vr(slot, 2)}, v{a} offset:{o}')
        return out

    def pack(b):
        return [f'v_cvt_pk_bf16_f32 v{b + i}, v{b + 2 * i}, v{b + 2 * i + 1}' for i in range(4)]

    def scale(b, r):
        return [f'v_mul_f32 v{b + i}, v{b + i}, v{r}' for i in range(8)]

    def epi(pi):
        out = []
        if not isq:
            for tt in range(2):
                b = 16 * pi + 8 * tt
                if OPT['relu'] == 0:
                    out += [f'v_max_f32 v{b + i}, 0, v{b + i}' for i in range(8)]
                out += pack(b)
                if OPT['relu'] == 1:
                    out += [f'v_pk_max_i16 v{b + i}, v{b + i}, 0' for i in range(4)]
                out.append(f'buffer_store_dwordx4 {vr(b)}, v{cL16}, {srd(SWS)}, s{sT2 + tt} offen offset:{(pi % 4) * 1024} ' + ('sc1', '', 'nt', 'sc0 sc1')[OPT['hst']])
            if pi == 3:
                out += [f's_add_u32 s{sT2}, s{sT2}, 4096', f's_add_u32 s{sT3}, s{sT3}, 4096']
            if OPT['na'] and pi == OPT['fap']:
                k0 = [x.startswith('buffer_store') for x in out].index(True)
                out.insert(k0, f'''s_waitcnt vmcnt({2 * (pi - OPT['na'])})
s_mov_b32 exec_hi, 0
buffer_store_dword v{cT + 2}, v{cT + 3}, {srd(SWS)}, s{sA1} offen offset:512 sc1
s_mov_b32 exec_hi, -1''')
        elif pi == 'H':
            out += scale(96, cR + 4) + pack(96)
            out += [f'ds_write_b64 v{cHW + t01}, {vr(96 + 2 * t01, 2)}' for t01 in range(2)]
            out += ['MARK', 'NOP', 'NOP', 'NOP', 'NOP', 'PUB']
        else:
            sg, e = pairs[pi]
            for tt in range(2):
                b = 16 * pi + 8 * tt
                if sg:
                    out += scale(b, cR + 2 * tt)
                out += pack(b)
                if sg == 0:
                    out += [f'v_and_b32 v{b + i}, v{b + i}, v{cM48}' for i in (2, 3)]
                if sg == 1 and tt == 1:
                    out.append(f'ds_write_b128 v{cKXW}, {vr(b)} offset:{1024 * e}')
                if sg == 2:
                    o = e * 144 * VSTR + tt * 16 * VSTR
                    out.append(f'ds_write_b64 v{cVW}, {vr(b, 2)} offset:{o}')
                    out.append(f's_mov_b32 exec_hi, 0xffff\nds_write_b64 v{cVW}, {vr(b + 2, 2)} offset:{o + 32}\ns_mov_b32 exec_hi, -1')
        return out

    set_slot(0)
    P(f's_waitcnt lgkmcnt(0)\ns_mul_i32 s{sTAG}, s{sTAG}, 0x9e3779b1\ns_add_u32 s{sTAG}, s{sTAG}, 0x7f4a7c15')
    if True:
        vmS.done = 0
        vmS.wait('stats')
        for x in stats_body():
            P(x)
        stats_store(Q(P, 'vmcnt', 63))
        P('s_setprio 0')
        if OPT['hop']:
            P('s_branch L_warm')
            P.label(f'L_wr{t}')
        stamp(13) if OPT['ds'] == 3 else None
    if not isq:
        P(f'''s_mul_i32 s{sT2}, s{sIDX}, {7 * 1024}
s_add_u32 s{sT2}, s{sT2}, s{sA0}
s_add_u32 s{sT3}, s{sT2}, {NS * 1024}
v_mov_b32 v{cT + 2}, s{sTAG}
v_lshrrev_b32 v{cT + 3}, 2, v{cL16}''')
    P('s_barrier')
    stamp(1)
    cstamp(2)
    pend = []
    fill = []
    nr = 0
    cur_stage = 0
    b7_done = False

    def queue_reads(n):
        l = rd_list(n)
        for j, x in enumerate(l):
            pend.append((x, ('w', n) if j == len(l) - 1 else None))

    def flush(k=1000):
        while pend and k > 0:
            x, tag = pend.pop(0)
            P(x)
            lg.issue(tag)
            k -= 1

    slow = []

    def emit_fill():
        x = fill.pop(0)
        if x == 'MARK':
            lg.tags['kv'] = lg.n
        elif x == 'PUB':
            lg.wait('kv')
            P(f'v_mov_b32 v{cT + 6}, 1\nds_write_b32 v{cSG}, v{cT + 6} offset:16')
            lg.issue()
        elif x != 'NOP':
            P(x)
            if 'ds_write' in x:
                lg.issue()
    last_of = {}
    first_of = {}
    for n, u in enumerate(units):
        if u['ks'] != 'E':
            last_of[u['stage']] = n
        first_of.setdefault(u['stage'], n)
    while nr < LA_:
        queue_reads(nr)
        nr += 1
    flush()
    ups = len(tiles) * 2
    for n in range(NU):
        u = units[n]
        w = n
        if n % WSTEP == 0:
            while w + 1 < min(n + WSTEP, NU) and ('w', w + 1) in lg.tags:
                w += 1
        lg.wait(('w', w))
        for j, (acc, b) in enumerate(u['mm']):
            P(mfma(acc, CW + 4 * (n % 8), b, None if u['ks'] == 0 else acc))
            if j == 0 and nr < NU and units[nr]['stage'] != cur_stage and units[nr]['stage'] <= 5 + OPT['b6']:
                if nr - n <= LA_ - HOLD:
                    cur_stage = units[nr]['stage']
                    set_slot(cur_stage)
                    if HOLD:
                        lg.all()
                    stamp(3) if cur_stage == 4 else None
                    P('s_barrier')
                    stamp(5) if cur_stage == 4 else None
                    stamp(6) if cur_stage == 6 else None
                    while nr <= n + LA_:
                        queue_reads(nr)
                        nr += 1
                    flush()
            elif j == 0 and nr < NU:
                s1 = units[nr]['stage']
                if s1 != cur_stage:
                    cur_stage = s1
                    set_slot(s1)
                    if OPT['ds'] == 2:
                        stamp({5: 9, 6: 13}[s1])
                    lg.wait(('f', s1))
                    lds_cmp(cF, s1 + 1)
                    P(f's_cbranch_vccnz L_{t}w{s1}')
                    P.label(f'L_{t}w{s1}_ok')
                    slow.append(s1)
                    stamp(6) if s1 == 6 else None
                    stamp(10) if (s1 == 5 and OPT['ds'] == 2) else None
                queue_reads(nr)
                if nr + OPT['fla'] == first_of[6] and not OPT['b6']:
                    pend.append((f'ds_read_b128 {vr(cF)}, v{cSY}', ('f', units[nr + OPT['fla']]['stage'])))
                nr += 1
            last = j == len(u['mm']) - 1
            flush(1000 if last else (len(pend) + 1) // 2)
            for _ in range(OPT['nfq'] if isq else OPT['nfill']):
                if fill:
                    emit_fill()
        if n in (5 * ups + 3, NU - 20, NU - 1):
            jitter()
        if n == last_of[u['stage']] and u['stage'] >= 5 + OPT['b6']:
            lds_signal(cSG, cT + 7, u['stage'] + 1)
            lg.issue()
            stamp(7) if u['stage'] == 6 else None
        if n == (NU - 1 if (isq and not OPT['qp']) else first_of[6]) and OPT['prio']:
            P('s_setprio %d' % OPT['prio'])
        for pi, dn in done_at.items():
            if dn == n - 2:
                fill += epi(pi)
    SLOW.extend((t, s1) for s1 in slow)
    stamp(8)
    cstamp(4)
    for pi, dn in done_at.items():
        if dn >= NU - 2:
            fill += epi(pi)
    if not isq:
        while fill:
            emit_fill()
        stamp(9)
        lds_signal(cSG, cT + 1, 9)
        P('s_waitcnt vmcnt(0)\ns_branch L_CFLAG')
        return
    if 'PUB' in fill:
        k0 = fill.index('PUB')
        fill[:] = fill[:k0] + fill[k0 + 1:k0 + 9] + ['PUB'] + fill[k0 + 9:]
    while fill:
        emit_fill()
    stamp(3) if OPT['ds'] == 1 else None
    KP, VO, S = 136, 112, 144
    au = [(0, 1), (1, 1), (0, 0), (1, 0)]
    P(f'ds_read_b128 {vr(cF)}, v{cSY} offset:32')
    for n, (e, tq) in enumerate(au):
        P(mfma(S + 8 * n + 4, 32 * e + 8 * tq, 64 + 16 * e + 8 * tq, cBB))
    for n, (e, tq) in enumerate(au[:2]):
        P(mfma(S + 8 * n, 32 * e, 64 + 16 * e + 8 * tq, cBA))
    stamp(5) if OPT['ds'] == 1 else None
    P('s_waitcnt lgkmcnt(0)')
    lds_cmp(cF, 1)
    P('s_cbranch_vccz L_attp_ok')
    lds_spin('L_attp', cF, cSY, 32, 1, 0)
    P.label('L_attp_ok')
    jitter()
    stamp(6) if OPT['ds'] == 1 else None
    for e in range(2):
        P(f'ds_read_b128 {vr(KP + 4 * e)}, v{cKX} offset:{1024 * e}')
    for e in range(2):
        for dt in range(2):
            for kt in range(3):
                P(f'ds_read_b64_tr_b16 {vr(VO + 12 * e + 6 * dt + 2 * kt, 2)}, v{cVR} offset:{e * 144 * VSTR + kt * 16 * VSTR + 32 * dt}')
    M = cT
    U = range(4)

    def sel(n, i):
        P(f'v_max_f32 v{S + 8 * n + i}, v{S + 8 * n + 2 * i}, v{S + 8 * n + 2 * i + 1}')
    for n in (0, 1):
        for i in range(4):
            sel(n, i)
    P('s_waitcnt lgkmcnt(12)')
    for n, (e, tq) in list(enumerate(au))[2:]:
        P(mfma(S + 8 * n, KP + 4 * e, 64 + 16 * e + 8 * tq, cBA0))
    for ns in ((0, 1), (2, 3)):
        if ns[0]:
            for n in ns:
                for i in range(4):
                    sel(n, i)
        for n in ns:
            P(f'v_max3_f32 v{M + n}, v{S + 8 * n}, v{S + 8 * n + 1}, v{S + 8 * n + 2}')
        for n in ns:
            P(f'v_max_f32 v{M + n}, v{M + n}, v{S + 8 * n + 3}')
        P(f'v_permlane16_swap_b32 v{M + ns[0]}, v{M + ns[1]}\nv_max_f32 v{M + ns[0]}, v{M + ns[0]}, v{M + ns[1]}')
    P(f'''v_permlane32_swap_b32 v{M}, v{M + 2}
v_max_f32 v{M}, v{M}, v{M + 2}
v_mov_b32 v{M + 2}, v{M}
v_permlane32_swap_b32 v{M}, v{M + 2}
v_mov_b32 v{M + 1}, v{M}
v_mov_b32 v{M + 3}, v{M + 2}
v_permlane16_swap_b32 v{M}, v{M + 1}
v_permlane16_swap_b32 v{M + 2}, v{M + 3}''')
    for n in U:
        P(f'v_mul_f32 v{M + n}, v{cR + 1 + 2 * au[n][1]}, v{M + n}')
    for n in U:
        for i in range(4):
            P(f'v_fma_f32 v{S + 8 * n + i}, v{S + 8 * n + i}, v{cR + 1 + 2 * au[n][1]}, -v{M + n}')
    for n in U:
        for i in range(4):
            P(f'v_exp_f32 v{S + 8 * n + i}, v{S + 8 * n + i}')
    stamp(7) if OPT['ds'] == 1 else None
    P(f'''s_lshl_b32 s{sT2}, s{sIDX}, 11
s_add_u32 s{sT2}, s{sT2}, s{sA0}
s_add_u32 s{sT2}, s{sT2}, {56 * 1024}
s_add_u32 s{sT3}, s{sT2}, {NS * 1024}
s_waitcnt lgkmcnt(0)''')
    O = 64

    def pv(n):
        e, tq = au[n]
        P(mfma(S + 8 * n + 4, cONE, S + 8 * n, None))
        for dt in range(2):
            P(mfma(O + 8 * n + 4 * dt, VO + 12 * e + 6 * dt + 2 * tq, S + 8 * n, None))
    for n in U:
        for i in range(4):
            P(f'v_cvt_pk_bf16_f32 v{S + 8 * n + i}, v{S + 8 * n + i}, v{S + 8 * n + i}')
        for i in range(4):
            P(f'v_and_b32 v{S + 8 * n + i}, v{S + 8 * n + i}, v{cPM}')
        if n:
            pv(n - 1)
    pv(3)
    stamp(13) if OPT['ds'] == 1 else None
    for n, (e, tq) in enumerate(au):
        P(f'v_rcp_f32 v{M + n}, v{S + 8 * n + 4}')
        for i in range(8):
            P(f'v_mul_f32 v{O + 8 * n + i}, v{O + 8 * n + i}, v{M + n}')
        for x in pack(O + 8 * n):
            P(x)
        P(f'v_and_b32 v{O + 8 * n + 2}, v{O + 8 * n + 2}, v{cM48}\nv_and_b32 v{O + 8 * n + 3}, v{O + 8 * n + 3}, v{cM48}')
        P(f'buffer_store_dwordx4 {vr(O + 8 * n)}, v{cL16}, {srd(SWS)}, s{sT2 + tq} offen offset:{1024 * e} sc1')


C_phase1(0)
P.label('L_CQ')
C_phase1(1)
stamp(9)
lds_signal(cSG, cT + 1, 9)
P('s_waitcnt vmcnt(0)')
P.label('L_CFLAG')
_st = stamp
if OPT['ds'] == 1:
    def stamp(k):
        if k not in (3, 13):
            _st(k)
P(f'''v_lshrrev_b32 v1, 2, v{cL16}
v_mov_b32 v2, s{sTAG}
s_mov_b32 exec_lo, {(1 << OPT['fl']) - 1:#x}
s_mov_b32 exec_hi, 0
buffer_store_dword v2, v1, {srd(SWS)}, s{sA1} offen sc1
s_mov_b64 exec, -1
v_lshrrev_b32 v0, 4, v{cL16}''')
stamp(10)
P(f'''s_cmp_lt_u32 s{sCT}, 7
s_cbranch_scc1 L_P2C''')
if OPT['ipf']:
    P(f'''s_lshr_b32 s{sT0}, s2, 3
s_and_b32 s{sT0}, s{sT0}, 3
s_lshl_b32 s{sT0}, s{sT0}, 1
s_add_u32 s{sRT}, s{sRT}, s{sT0}
s_sub_u32 s{sRT}, s{sRT}, 8
s_and_b32 s{sT0}, s{sRT}, 1
s_lshl_b32 s{sT0}, s{sT0}, 2
s_add_u32 s{sT0}, s{sT0}, s{sI}
s_lshr_b32 s{sFB}, s{sRT}, 1
s_lshl_b32 s{sFB}, s{sFB}, 4
s_add_u32 s{sFB}, s{sFB}, s{sT0}
s_lshl_b32 s{sFB}, s{sFB}, 10
s_add_u32 s{sFB}, s{sFB}, {WS_FLAGS}
s_mul_i32 s{sT2}, s{sRT}, {4 * NS * 1024}
s_add_u32 s{sT2}, s{sT2}, {WS_ACT}
s_mul_i32 s{sT3}, s{sT0}, {LST * 1024}
s_add_u32 s{sT3}, s{sT3}, s{sT2}
v_min_u32 v4, {47 if OPT['abl'] & 16 else 55}, v0
v_lshlrev_b32 v4, 7, v4
v_lshlrev_b32 v6, 7, v0''')
    P(f'''s_and_b32 s{sT0}, s{sRT}, 1
s_mul_i32 s{sT0}, s{sT0}, {8 * NS * 1024}
s_add_u32 s62, s{sT3}, {4 * NS * 1024}
s_sub_u32 s62, s62, s{sT0}
s_mul_i32 s{sT0}, s{sI}, {NS * 1024}
s_add_u32 s{sT2}, s{sT2}, s{sT0}
s_add_u32 s{sT2}, s{sT2}, {56 * 1024}''')
    of_addr(63, sT0, sT1)
    spoll('L_ip1', BL, 4)
    for c_ in str(OPT['ipf']):
        c_ = int(c_)
        if c_ < 8:
            P(f's_add_u32 s{sT0}, s{62 if c_ < 4 else sT3}, {(c_ % 4) * NS * 1024}\nbuffer_load_dword v5, v4, {srd(SWS)}, s{sT0} offen sc1')
        else:
            spoll('L_ip2', ol(63), 8)
            for q_ in range(2):
                P(f'buffer_load_dword v5, v6, {srd(SWS)}, s{sT2} offen sc1\ns_add_u32 s{sT2}, s{sT2}, 8192')
P(f'''s_cmp_lg_u32 s2, 255
s_cbranch_scc1 L_EXIT
s_cmp_lg_u32 s{sWAVE}, 4
s_cbranch_scc1 L_EXIT
v_lshlrev_b32 v3, 12, v0
v_add_u32 v3, {WS_FLAGS}, v3''')
if OPT['bs']:
    P('s_branch L_bump1')
P.label('L_bump')
spin_guard('L_EXIT')
P('s_sleep 32')
P.label('L_bump1')
for n in range(4):
    P(f'buffer_load_dword v{4 + n}, v3, {srd(SWS)}, 0 offen offset:{1024 * n} sc1')
P('s_waitcnt vmcnt(0)')
for n in range(4):
    P(f'v_xor_b32 v{4 + n}, v{4 + n}, v2')
for n in range(1, 4):
    P(f'v_or_b32 v4, v4, v{4 + n}')
P(f'''v_cmp_ne_u32 vcc, 0, v4
s_cbranch_vccnz L_bump
s_mov_b64 exec, 1
buffer_store_dword v2, v1, {srd(SWS)}, 0 offen sc1
s_mov_b64 exec, -1
s_branch L_EXIT''')

for t_, s_ in SLOW:
    lds_spin(f'L_{t_}w{s_}', cF, cSY, 0, s_ + 1, 0)
    P(f's_branch L_{t_}w{s_}_ok')

cX, cSt, cPp, cXu, cG, cD, cE, RO = 8, 16, 24, 40, 56, 72, 104, 112
cDA, cSA, cXO, cPO, cSO2 = 2, 4, 5, 6, 7
sXA, sXH, sPA, sXR = 62, 64, 66, 12
P.label('L_P2C')
jitter()
P('s_setprio %d' % OPT['cprio'])
P(f'''v_lshrrev_b32 v1, 3, v0
v_lshl_add_u32 v1, s{sI}, 3, v1
v_and_b32 v20, 7, v0
v_mul_u32_u24 v{cXO}, 896, v1
v_lshl_add_u32 v{cXO}, v20, 4, v{cXO}
s_mul_i32 s{sXR}, s{sRT}, {64 * 896}
s_lshl_b32 s{sT0}, s{sCT}, 7
s_add_u32 s{sXR}, s{sXR}, s{sT0}
s_add_u32 s{sXR + 1}, s{sXR}, {32 * 896}
buffer_load_dwordx4 {vr(cX)}, v{cXO}, {srd(SX)}, s{sXR} offen
buffer_load_dwordx4 {vr(cX + 4)}, v{cXO}, {srd(SX)}, s{sXR + 1} offen
v_lshlrev_b32 v21, 1, v20
v_xor_b32 v21, v21, v1
v_and_b32 v21, 15, v21
v_lshlrev_b32 v21, 4, v21
v_lshl_add_u32 v{cDA}, v1, 8, v21
v_xor_b32 v{cDA + 1}, 16, v{cDA}
v_xor_b32 v21, v1, v20
v_and_b32 v21, 7, v21
v_lshlrev_b32 v21, 4, v21
v_lshl_add_u32 v21, v1, 7, v21
v_add_u32 v{cSA}, {STILE}, v21
s_lshl_b32 s{sT0}, s{sI}, 10
v_add_u32 v{cPO}, s{sT0}, v{cL16}
v_lshlrev_b32 v{cSO2}, 3, v1
s_xor_b32 s{sXA}, s{sRT}, 1
s_mul_i32 s{sXA}, s{sXA}, 7
s_add_u32 s{sXA}, s{sXA}, s{sCT}
s_lshl_b32 s{sXA}, s{sXA}, 14
s_add_u32 s{sXA}, s{sXA}, {WS_XCH}
s_add_u32 s{sXA + 1}, s{sXA}, 8192
s_mul_i32 s{sPA}, s{sRT}, 7
s_add_u32 s{sPA}, s{sPA}, s{sCT}
s_lshl_b32 s{sPA}, s{sPA}, 14
s_add_u32 s{sPA}, s{sPA}, {WS_XCH}
s_add_u32 s{sPA + 1}, s{sPA}, 8192
s_lshl_b32 s{sT1}, s{sRT}, 9
s_add_u32 s{sT1}, s{sT1}, {WS_STATS}''')
xh_addr(sXH)
XF = OPT['xf']
for n in range(1 if XF else 8):
    P(f'v_mov_b32 v{RO + 2 * n + 1}, s{sTAG}')
if XF:
    P(f's_lshl_b32 s{sT0}, s{sI}, 10\nv_lshl_add_u32 v{RO}, v0, 2, s{sT0}')


if OPT['tw']:
    cA2, cWF = 128, 132
    w2_tr_addr(cA2, 10, 20, 21)
    P(f's_mul_i32 s{sT0}, s{sI}, {4 * 28 * 128}\ns_add_u32 s{sT0}, s{sT0}, {WO}')
    for ct in range(4):
        P(f'v_add_u32 v{cA2 + ct}, s{sT0}, v{cA2 + ct}')
    P(f's_lshl_b32 s{sT0}, s{sI}, 14\ns_add_u32 s{sT0}, s{sT0}, {WO}\nv_add_u32 v20, s{sT0}, v{cL16}')
    lds_poll('L_cwl', cF, cSY, 0, 10, 2)
    for k in range(4):
        for ct in range(4):
            for j in range(2):
                P(f'ds_read_b64_tr_b16 {vr(cWF + 16 * k + 4 * ct + 2 * j, 2)}, v{cA2 + (ct ^ (2 * (k % 2)))} offset:{28 * k * 128 + 2048 * j}')
    P('s_waitcnt lgkmcnt(0)')
    lds_signal(cSG, cT, 10)
    lds_poll('L_cwt', cF, cSY, 16, 10, 0)
    P('s_setprio 0')
    for f in range(16):
        P(f'ds_write_b128 v20, {vr(cWF + 4 * f)} offset:{1024 * f}')
    P('s_setprio %d' % OPT['cprio'])


def dump_reads(rd):
    for part in range(4):
        for hf in range(2):
            P(f'ds_read_b128 {vr(cD + 8 * part + 4 * hf)}, v{cDA + hf} offset:{DUMPF + 16384 * part + 8192 * rd}')


for rd in range(2):
    lds_poll(f'L_cr{rd}', cF, cSY, 0, 11 + 2 * rd, 1)
    jitter()
    stamp(11) if rd else None
    dump_reads(rd)
    P('s_waitcnt lgkmcnt(4)')
    for r in range(8):
        P(f'v_add_f32 v{cD + r}, v{cD + r}, v{cD + 8 + r}')
    P('s_waitcnt lgkmcnt(0)')
    lds_signal(cSG, cT, 11 + rd)
    for r in range(8):
        P(f'v_add_f32 v{cD + 16 + r}, v{cD + 16 + r}, v{cD + 24 + r}')
    for r in range(8):
        P(f'v_add_f32 v{cD + r}, v{cD + r}, v{cD + 16 + r}')
    for r in range(4):
        P(f'v_cvt_pk_bf16_f32 v{RO + 8 * rd + (4 + r if XF else 2 * r)}, v{cD + 2 * r}, v{cD + 2 * r + 1}')
    if XF:
        P(f'''buffer_store_dwordx4 {vr(RO + 8 * rd + 4)}, v{cPO}, {srd(SWS)}, s{sXA} offen sc1
s_waitcnt vmcnt(0)
s_mov_b32 exec_hi, 0
buffer_store_dword v{RO + 1}, v{RO}, {srd(SWS)}, s{sXA + 1} offen offset:896 sc1
s_mov_b32 exec_hi, -1''')
    else:
        for u in range(2):
            P(f'buffer_store_dwordx4 {vr(RO + 8 * rd + 4 * u)}, v{cPO}, {srd(SWS)}, s{sXA + u} offen sc1')
    if rd == 0:
        P(f's_add_u32 s{sXA}, s{sXA}, 4096\ns_add_u32 s{sXA + 1}, s{sXA + 1}, 4096')
        for r2 in range(2):
            P(f'buffer_load_dword v{cSt + 2 * r2}, v{cSO2}, {srd(SWS)}, s{sT1} offen offset:{256 * r2} sc1')
        P('s_waitcnt vmcnt(4)')
        for n in range(8):
            P(f'v_lshlrev_b32 v{cXu + 2 * n}, 16, v{cX + n}\nv_and_b32 v{cXu + 2 * n + 1}, 0xffff0000, v{cX + n}')
stamp(13)
P('s_setprio %d' % OPT['gp'])


def pload(rd):
    for u in range(1 if XF else 2):
        P(f'buffer_load_dwordx4 {vr(cPp + 8 * rd + 4 * u)}, v{cPO}, {srd(SWS)}, s{(sPA, 14)[rd] + u} offen sc1')


def pchk(rd, cnt):
    P(f's_waitcnt vmcnt({cnt})')
    for n in range(4):
        P(f'v_xor_b32 v{cE + n}, s{sTAG}, v{cPp + 8 * rd + 2 * n + 1}')
    P(f'v_or_b32 v{cE}, v{cE}, v{cE + 1}\nv_or3_b32 v{cE}, v{cE}, v{cE + 2}, v{cE + 3}\nv_cmp_ne_u32 vcc, 0, v{cE}')


P(f's_add_u32 s14, s{sPA}, 4096\ns_add_u32 s15, s{sPA + 1}, 4096')


def fetch(rd):
    spoll(f'L_cx{rd}', f's_buffer_load_dword s4, {srd(SWS)}, s{sXH} offset:{4096 * rd} glc', 1)
    stamp(3) if rd else None
    pload(rd)


if not OPT['xo']:
    fetch(0)
    fetch(1)
for rd in range(2):
    if OPT['xo'] == 2 and rd:
        P(f's_cmp_eq_u32 s5, s{sTAG}\ns_cbranch_scc1 L_gotb')
    if OPT['xo']:
        fetch(rd)
    if OPT['xo'] == 2 and rd:
        P.label('L_gotb')
    lds_poll(f'L_cg{rd}', cF, cSY, 0, 15 + 2 * rd, 1 - rd)
    jitter()
    stamp(12) if rd else None
    dump_reads(rd)
    g = cG + 8 * rd
    P('s_waitcnt lgkmcnt(4)')
    for r in range(8):
        P(f'v_add_f32 v{cD + r}, v{cD + r}, v{cD + 8 + r}')
    P('s_waitcnt lgkmcnt(0)')
    for r in range(8):
        P(f'v_add_f32 v{cD + 16 + r}, v{cD + 16 + r}, v{cD + 24 + r}')
    for r in range(8):
        P(f'v_add_f32 v{cD + r}, v{cD + r}, v{cD + 16 + r}')
    if OPT['xo'] == 2 and rd == 0:
        P(f's_buffer_load_dword s5, {srd(SWS)}, s{sXH} offset:4096 glc')
    if XF:
        P(f's_waitcnt vmcnt({(1 - rd) if not OPT["xo"] else 0})')
    else:
        pchk(rd, (2 - 2 * rd) if not OPT['xo'] else 0)
        P(f's_cbranch_vccz L_px{rd}_ok')
        P.label(f'L_px{rd}')
        spin_guard(f'L_px{rd}_ok')
        P('s_sleep 1')
        pload(rd)
        pchk(rd, 0)
        P(f's_cbranch_vccnz L_px{rd}')
        P.label(f'L_px{rd}_ok')
    if rd == 0:
        for r2 in range(2):
            st = cSt + 2 * r2
            P(f'v_and_b32 v{st}, 0xffff0000, v{st}\nv_rcp_f32 v{st + 1}, v{st}\nv_mul_f32 v{st + 1}, 0xbfb8aa3b, v{st + 1}')
    for n in range(4):
        pp = cPp + 8 * rd + (n if XF else 2 * n)
        P(f'v_lshlrev_b32 v{g + 2 * n}, 16, v{pp}\nv_and_b32 v{g + 2 * n + 1}, 0xffff0000, v{pp}')
    for r in range(8):
        P(f'v_add_f32 v{g + r}, v{g + r}, v{cD + r}')
    for r in range(8):
        P(f'v_mul_f32 v{cE + r}, v{cSt + 2 * rd + 1}, v{g + r}')
    for r in range(8):
        P(f'v_exp_f32 v{cE + r}, v{cE + r}')
    for r in range(8):
        P(f'v_fma_f32 v{cE + r}, v{cE + r}, v{cSt + 2 * rd}, v{cSt + 2 * rd}')
    for r in range(8):
        P(f'v_rcp_f32 v{cE + r}, v{cE + r}')
    if OPT['xo'] == 2 and rd == 0:
        P(f's_waitcnt lgkmcnt(0)\ns_cmp_lg_u32 s5, s{sTAG}\ns_cbranch_scc1 L_nob')
        pload(1)
        P.label('L_nob')
    for r in range(8):
        P(f'v_mul_f32 v{g + r}, v{g + r}, v{cE + r}')
        if OPT.get('pert'):
            import struct
            P(f'v_mul_f32 v{g + r}, {struct.unpack("<I", struct.pack("<f", 1 + OPT["pert"] / 1000))[0]:#x}, v{g + r}')
stamp(14)
P('s_barrier')
stamp(6) if OPT['ds'] == 4 else None
for rd in range(2):
    P(f'ds_read_b128 {vr(cX + 4 * rd)}, v{cSA} offset:{4096 * rd}')
for rd in range(2):
    P(f's_waitcnt lgkmcnt({1 - rd})')
    for n in range(4):
        P(f'v_lshlrev_b32 v{cD + 2 * n}, 16, v{cX + 4 * rd + n}\nv_and_b32 v{cD + 2 * n + 1}, 0xffff0000, v{cX + 4 * rd + n}')
    for n in range(4):
        a = cXu + 8 * rd + 2 * n
        P(f'v_pk_fma_f32 {vr(a, 2)}, {vr(cD + 2 * n, 2)}, {vr(cG + 8 * rd + 2 * n, 2)}, {vr(a, 2)}')
    for n in range(4):
        P(f'v_cvt_pk_bf16_f32 v{cE + 4 * rd + n}, v{cXu + 8 * rd + 2 * n}, v{cXu + 8 * rd + 2 * n + 1}')
    P(f'buffer_store_dwordx4 {vr(cE + 4 * rd)}, v{cXO}, {srd(SOUT)}, s{sXR + rd} offen' + ('', ' sc1', ' nt', ' sc0 sc1', ' sc1 nt')[OPT['osc1']])
stamp(7) if OPT['ds'] == 4 else None
P.label('L_EXIT')
if DIAG:
    P('s_waitcnt vmcnt(0)')
    stamp(15)
    diag_dump()
P.label('L_END')
P('s_endpgm')

if OPT['hop']:
    for w_ in range(4):
        P.label(f'L_hop{w_}')
body = P.finalize()
if OPT['hop']:
    import subprocess
    import os
    from asmlib import Ins
    del P.ins[-4:]

    def addresses():
        txt = f'.amdgcn_target "amdgcn-amd-amdhsa--gfx950"\n.text\n.fill 192, 4, 0\n{NAME}_kernel:\n'
        for i_, x in enumerate(P.ins):
            if x.kind not in ('label', 'dir'):
                txt += f'LX{i_}:\n'
            txt += ('s_nop 0' if 'L_hop' in x.text and x.kind != 'label' else x.text) + '\n'
        tmp = sys.argv[1] + '.tmp'
        open(tmp + '.s', 'w').write(txt)
        subprocess.check_call(['clang', '-x', 'assembler', '-target', 'amdgcn-amd-amdhsa', '-mcpu=gfx950',
                               '-c', tmp + '.s', '-o', tmp + '.o'])
        o = subprocess.check_output(['llvm-readelf', '-s', '-W', tmp + '.o']).decode()
        os.remove(tmp + '.s')
        os.remove(tmp + '.o')
        return {int(l.split()[-1][2:]): int(l.split()[1], 16) for l in o.split('\n') if l.split() and l.split()[-1].startswith('LX')}
    nh = 0
    page = 1
    while True:
        ad = addresses()
        if max(ad.values()) < 4096 * page:
            break
        for j_ in range(OPT['hop'] - 1, -1, -1):
            c_ = [i_ for i_, a_ in ad.items() if 4096 * page + 64 * j_ <= a_ + 4 * j_ < 4096 * (page + 1)]
            if c_:
                i_ = min(c_)
                P.ins[i_:i_] = [Ins('HOPL:'), Ins('s_cbranch_execz L_hopX')]
                P.ins[i_].text = f'HL{page}_{j_}:'
        page += 1
    hops = [i_ for i_, x in enumerate(P.ins) if x.text.startswith('s_cbranch_execz L_hopX')]
    lab = {x.label: i_ for i_, x in enumerate(P.ins) if x.kind == 'label'}
    assert not any(lab['L_warm'] <= i_ <= lab['L_CH'] for i_ in hops) and len(hops) >= 4
    for n_, i_ in enumerate(hops):
        P.ins[i_ - 1].text = f'L_hop{n_}:'
        P.ins[i_].text = 's_cbranch_execz ' + (f'L_hop{n_ + 4}' if n_ + 4 < len(hops) else 'L_wret')
    body = '\n'.join(('' if x.kind == 'label' else '    ') + x.text for x in P.ins) + '\n'
ref = open('cdna_kernels/%s.s.ref' % NAME).read()
hdr = [l for l in ref.split('\n') if l.startswith(';') and '@launch' not in l]
out = '\n'.join(hdr) + '\n; @launch grid=(256,1,1) block=(512,1,1) lds=%d\n' % LDS_BYTES
out += f'''.amdgcn_target "amdgcn-amd-amdhsa--gfx950"
; One persistent launch, 256 workgroups x 8 waves (waves 0-3 "L": loaders / phase-2 GEMM, waves 4-7 "C": phase-1 GEMM, epilogues).
; Phase 1: raw x @ [w1 | wqkv] tiles of 128 rows; LayerNorm is applied afterwards (mean * column-sum correction as one
;          extra MFMA step, 1/sd on the outputs); relu / windowed attention; h and o go to d_ws in MFMA fragment order.
; Phase 2: 64x64 output tiles, K of h @ w2 split over a pair of workgroups, s = o @ wo, out = x + s * silu(f).
; Hand-offs carry a per-launch tag (derived from word 0 of d_ws, which is advanced once every workgroup has read it).
.text
.globl {NAME}_kernel
.p2align 8
.type {NAME}_kernel,@function
{NAME}_kernel:
{body}.section .rodata,"a"
.p2align 6
.amdhsa_kernel {NAME}_kernel
  .amdhsa_next_free_vgpr 256
  .amdhsa_next_free_sgpr {102 if DIAG else OPT['nsg']}
  .amdhsa_accum_offset 256
  .amdhsa_group_segment_fixed_size 0
  .amdhsa_kernarg_size 72
  .amdhsa_user_sgpr_count 2
  .amdhsa_user_sgpr_kernarg_segment_ptr 1
  .amdhsa_system_sgpr_workgroup_id_x 1
.end_amdhsa_kernel
'''
open(sys.argv[1], 'w').write(out)
print('instructions', len(P.ins), 'nops inserted', P.nops_inserted)
```

```python
import sys
import itertools
from asmlib import Prog, Q

NAME = 'recurrent_scan__sliding_local_dilated__dense_activation_relu__prompt'
OPT = dict(diag=0, pf_code=1, pf_w=4, la=5, hold=2, wstep=2, prio=1, osc1=1, lahead=13, tm=1,
           nfill=2, cs_it=35, fla=4, ds=0, lsl=2, hw=7, cap=7, relu=0, n5=2, p5=16,
           kh=0x58ffff, kq=0x47ffff, k0=0, sfn=5, gk=5, ssl=1, nt=0, fs=7, fl=32, swarm=1, w4=0, lpause=5, pe=4, lpl=8, cprio=1, fwarm=2, xh=1, qf=1, qhold=0, la0=20, gate=9, m1=2, abl=0, p7=1, pad=0, spf=0, capp=3, cape=12, l0=13, qfirst=0, ipff=4, hst=0, rm=0, sk=3, lpp=2, xw=10, rf=2, sprio=0, ot=3, pfq=0, wsb=0, pc2=0, gw=0, qw=0, gf=1, c1q=5, c1h=0, c1s=0, hop=0, bs=0, nsg=102, tk=2, p5q=14, dd=1, lp=1, f1=0, wf=0, pflip=1, xf=1, xo=0, na=0, fap=6, ncw2=0, nb=9, bd=5, on=33, dc=2, wl=28, ws=37, tw=0, twl=10, gp=1, esl=0, b6=0, n5q=2, qp=1, ps=6, nfq=2, xp=0, xq=2, nm=3, xs=0, xr=2, ipf=8, ipl=0)
for a in sys.argv[2:]:
    k, v = a.split('=')
    OPT[k] = int(v, 0)
PROBE = OPT.get('probe')
DIAG = OPT['diag'] or PROBE is not None

WS_FLAGS = 0x980000
FS = OPT['fs']
WS_STATS = 16384
WS_CSUM = 65536
WS_ACT = 262144
WS_XCH = 0xA00000
WS_DIAG = 0xE00000
WS_BYTES = 0xF00000
NS = 72
LST = 7

XS = [0, 16384, 32768]
WSL = [49152, 77824, 106496]
WO = 77824
NGRP = 14
HALO = 135168
WIN = 135168
ST = 157696
CS = 160000
CSB = [151552, 73728]
SYNC = 163584
VSTR = 56
VREG = 141312
KX = 24576
DUMMY = 135168


def halo_off(s):
    return 2048 * ((s + 3) % 7)


DUMPF = 0
STILE = 65536
LDS_BYTES = 163840

sSPIN = 3
SPIN_MAX = 0x200000
SX, SW, SWO, SW2, SWS, SOUT = 24, 28, 32, 36, 40, 44
sWAVE, sRB, sIDX, sISQ, sCG, sRT, sCT, sROT, sTAG, sI = range(48, 58)
sT0, sT1, sT2, sT3 = 58, 59, 60, 61
sXO, sWO_, sMX, sMW, sHO, sKB = 62, 63, 64, 65, 66, 67
sA0, sA1 = 68, 69
sWF = 19
sPUB = 22
sST = 70

P = Prog()


def srd(b):
    return 's[%d:%d]' % (b, b + 3)


def vr(a, n=4):
    return 'v[%d:%d]' % (a, a + n - 1)


MUTE = False


def stamp(k):
    if DIAG and not MUTE:
        P('s_memrealtime s[%d:%d]' % (sST + 2 * k, sST + 2 * k + 1))


def cstamp(k):
    if DIAG and PROBE is None:
        P('s_memtime s[%d:%d]' % (sST + 2 * k, sST + 2 * k + 1))


def mk_srd(b, ptr, size):
    if b == SX and OPT['wsb']:
        P(f's_add_u32 s20, s20, {OPT["wsb"] << 20}\ns_addc_u32 s21, s21, 0')
    P('s_mov_b32 s%d, s%d\ns_mov_b32 s%d, s%d\ns_mov_b32 s%d, 0x%x\ns_mov_b32 s%d, 0x20000'
      % (b, ptr, b + 1, ptr + 1, b + 2, size, b + 3))


def diag_dump():
    if PROBE is not None:
        a, b = divmod(PROBE, 100)
        P(f'''s_waitcnt lgkmcnt(0)
s_cmp_lt_u32 s{sWAVE}, 4
s_cbranch_scc1 L_END
s_cmp_ge_u32 s{sCT}, 7
s_cbranch_scc1 L_END
s_sub_u32 s{sT0}, s{sST + 2 * b}, s{sST + 2 * a}
s_min_u32 s{sT0}, s{sT0}, 5000
s_lshl_b32 s{sT0}, s{sT0}, 2''')
        P.label('L_probe')
        P(f'''s_memrealtime s[{sT2}:{sT3}]
s_waitcnt lgkmcnt(0)
s_sub_u32 s{sT1}, s{sT2}, s{sST + 30}
s_cmp_lt_u32 s{sT1}, s{sT0}
s_cbranch_scc1 L_probe''')
    elif DIAG:
        P('s_lshl_b32 s%d, s2, 3\ns_add_u32 s%d, s%d, s%d\ns_lshl_b32 s%d, s%d, 6\ns_add_u32 s%d, s%d, 0x%x'
          % (sT0, sT0, sT0, sWAVE, sT0, sT0, sT0, sT0, WS_DIAG))
        P('v_mov_b32 v1, 0\ns_waitcnt lgkmcnt(0)')
        for k in range(16):
            P('v_mov_b32 v2, s%d\nbuffer_store_dword v2, v1, %s, s%d offen offset:%d' % (sST + 2 * k, srd(SWS), sT0, 4 * k))


JN = [0]


def jitter():
    if OPT.get('jit'):
        JN[0] += 1
        k = JN[0]
        P(f'''s_lshl_b32 s98, s2, 3
s_add_u32 s98, s98, s{sWAVE}
s_add_u32 s98, s98, {k * 977 + OPT['jit'] * 131}
s_mul_i32 s98, s98, 0x9e3779b1
s_lshr_b32 s99, s98, 15
s_xor_b32 s98, s98, s99
s_mul_i32 s98, s98, 0x85ebca6b
s_lshr_b32 s98, s98, 27''')
        P.label(f'L_j{k}')
        P(f's_cmp_lt_u32 s98, 24\ns_cbranch_scc1 L_j{k}x\ns_sleep 20\ns_sub_u32 s98, s98, 1\ns_branch L_j{k}')
        P.label(f'L_j{k}x')


def spin_guard(out):
    P(f's_add_u32 s{sSPIN}, s{sSPIN}, 1\ns_cmp_gt_u32 s{sSPIN}, {SPIN_MAX}\ns_cbranch_scc1 {out}')


def lds_cmp(tmp, val):
    P(f'v_min3_u32 v{tmp}, v{tmp}, v{tmp + 1}, v{tmp + 2}\nv_min_u32 v{tmp}, v{tmp}, v{tmp + 3}\nv_cmp_gt_u32 vcc, {val}, v{tmp}')


def lds_poll(name, tmp, vsync, off, val, sleep=0):
    P(f'ds_read_b128 {vr(tmp)}, v{vsync} offset:{off}\ns_waitcnt lgkmcnt(0)')
    lds_cmp(tmp, val)
    P(f's_cbranch_vccz {name}_ok')
    lds_spin(name, tmp, vsync, off, val, sleep)
    P.label(name + '_ok')


def lds_spin(name, tmp, vsync, off, val, sleep):
    P.label(name)
    spin_guard(name + '_ok')
    if sleep:
        P(f's_sleep {sleep}')
    P(f'ds_read_b128 {vr(tmp)}, v{vsync} offset:{off}\ns_waitcnt lgkmcnt(0)')
    lds_cmp(tmp, val)
    P(f's_cbranch_vccnz {name}')


def lds_signal(vaddr, tmp, val):
    P(f'v_mov_b32 v{tmp}, {val}\nds_write_b32 v{vaddr}, v{tmp}')


def w2_tr_addr(d, hi_shift, t0, t1):
    P(f'''v_bfe_u32 v{t0}, v0, 2, 3
v_lshlrev_b32 v{t0}, 7, v{t0}
v_lshrrev_b32 v{t1}, 5, v0
v_lshl_add_u32 v{t0}, v{t1}, {hi_shift}, v{t0}
v_and_b32 v{t1}, 3, v0
v_lshl_add_u32 v{t0}, v{t1}, 3, v{t0}
v_bfe_u32 v{t1}, v0, 3, 2
v_lshl_add_u32 v{d}, v{t1}, 5, v{t0}
v_xor_b32 v{d + 1}, 32, v{d}
v_xor_b32 v{d + 2}, 64, v{d}
v_xor_b32 v{d + 3}, 96, v{d}''')


def q_addr_parts(trow, tmask, tc, t):
    P(f'''v_lshrrev_b32 v{trow}, 4, v0
v_lshlrev_b32 v{trow}, 3, v{trow}
v_bfe_u32 v{t}, v0, 2, 2
v_add_u32 v{trow}, v{trow}, v{t}
v_lshlrev_b32 v{trow}, 7, v{trow}
v_bfe_u32 v{tmask}, v0, 3, 2
v_lshlrev_b32 v{tmask}, 5, v{tmask}
v_and_b32 v{tc}, 3, v0
v_lshlrev_b32 v{tc}, 3, v{tc}''')
    if OPT['p7']:
        P(f's_cmp_eq_u32 s{sIDX}, 7\ns_cselect_b32 s{sT0}, 16, 0\nv_add_u32 v{tc}, s{sT0}, v{tc}')


def q_addr(d, boff, trow, tmask, tc):
    P(f'v_add_u32 v{d}, {boff}, v{tc}\nv_min_u32 v{d}, 120, v{d}\nv_xor_b32 v{d}, v{d}, v{tmask}\nv_add_u32 v{d}, v{d}, v{trow}')


def h_addr(d, t0, t1):
    P(f'''v_lshrrev_b32 v{t0}, 4, v0
v_lshlrev_b32 v{t0}, 3, v{t0}
v_bfe_u32 v{t1}, v0, 2, 2
v_add_u32 v{t0}, v{t0}, v{t1}
v_mul_u32_u24 v{t0}, 448, v{t0}
v_bfe_u32 v{t1}, v0, 4, 1
v_lshl_add_u32 v{t0}, v{t1}, 5, v{t0}
v_and_b32 v{t1}, 3, v0
v_lshl_add_u32 v{d}, v{t1}, 3, v{t0}''')


def mfma(d, a, b, c):
    return f'v_mfma_f32_16x16x32_bf16 {vr(d)}, {vr(a)}, {vr(b)}, ' + ('0' if c is None else vr(c))


if OPT['ds'] == 7:
    stamp(0)
P(f'''s_cmp_ge_u32 s2, 256
s_cbranch_scc1 L_END
s_load_dwordx16 s[4:19], s[0:1], 0
s_load_dwordx2 s[20:21], s[0:1], 64''')
if OPT['pf_code']:
    P('s_getpc_b64 s[22:23]')
    P.label('L_pc')
    sh_ = OPT['pf_code'] - 1
    msk = (0x01010101, 0x00010001, 0x00000001)[sh_]
    P(f'''s_lshl_b32 s{sT0}, s2, {10 - sh_}
s_and_b32 s{sT0}, s{sT0}, {0x10000 - (0x2000 >> sh_):#x}
v_lshlrev_b32 v2, {4 - sh_}, v0
v_add_u32 v2, s{sT0}, v2
v_min_u32 v2, L_END-L_pc, v2
s_mov_b32 exec_lo, {msk:#x}
s_mov_b32 exec_hi, {msk:#x}
global_load_dword v247, v2, s[22:23]
s_mov_b64 exec, -1''')
P(f'''v_lshrrev_b32 v1, 6, v0
v_and_b32 v0, 63, v0
v_readfirstlane_b32 s{sWAVE}, v1
s_and_b32 s{sT0}, s2, 7
s_lshr_b32 s{sT1}, s2, 3
s_and_b32 s{sRB}, s{sT0}, 1
s_lshl_b32 s{sRB}, s{sRB}, 3
s_and_b32 s{sT2}, s{sT1}, 7
s_add_u32 s{sRB}, s{sRB}, s{sT2}
s_and_b32 s{sIDX}, s{sT0}, 6
s_bfe_u32 s{sT2}, s{sT1}, 0x10003
s_add_u32 s{sIDX}, s{sIDX}, s{sT2}
MAP1
s_lshr_b32 s{sISQ}, s{sT1}, 4
s_xor_b32 s{sISQ}, s{sISQ}, {OPT['qfirst']}
s_lshl_b32 s{sCG}, s{sISQ}, 3
s_add_u32 s{sCG}, s{sCG}, s{sIDX}
s_mul_i32 s{sT2}, s{sT1}, 9363
s_lshr_b32 s{sT2}, s{sT2}, 16
s_mul_i32 s{sT3}, s{sT2}, 7
s_sub_u32 s{sT3}, s{sT1}, s{sT3}
s_cmp_ge_u32 s{sT1}, 28
s_cselect_b32 s{sCT}, 7, s{sT3}
s_lshl_b32 s{sT2}, s{sT2}, 1
s_and_b32 s{sRT}, s{sT0}, 6
s_lshl_b32 s{sRT}, s{sRT}, 2
s_add_u32 s{sRT}, s{sRT}, s{sT2}
s_and_b32 s{sT2}, s{sT0}, 1
s_add_u32 s{sRT}, s{sRT}, s{sT2}
ROT1
s_mul_i32 s{sT2}, s{sROT}, 9363
s_lshr_b32 s{sT2}, s{sT2}, 16
s_mul_i32 s{sT2}, s{sT2}, 7
s_sub_u32 s{sROT}, s{sROT}, s{sT2}
s_and_b32 s{sPUB}, s{sROT}, 1
s_cmp_ge_u32 s{sRB}, 7
s_cselect_b32 s{sPUB}, 1, s{sPUB}
s_mov_b32 s{sSPIN}, 0
s_and_b32 s{sI}, s{sWAVE}, 3'''.replace('MAP1', '' if not OPT['m1'] else f'''s_and_b32 s{sT2}, s{sT0}, 2
s_lshl_b32 s{sT2}, s{sT2}, 1
s_and_b32 s{sT3}, s{sRB}, 11
s_add_u32 s{sT2}, s{sT2}, s{sT3}
s_and_b32 s{sT3}, s{sT0}, 4
s_bfe_u32 s{sCG}, s{sT1}, 0x20002
s_add_u32 s{sT3}, s{sT3}, s{sCG}
s_lshr_b32 s{sCG}, s{sT0}, 2
s_mul_i32 s{sCG}, s{sCG}, {3 * OPT['pflip']}
s_xor_b32 s{sT3}, s{sT3}, s{sCG}
s_cmp_ge_u32 s{sT1}, 16
s_cselect_b32 s{sRB}, s{sT2}, s{sRB}
s_cselect_b32 s{sIDX}, s{sT3}, s{sIDX}''' if OPT['m1'] == 2 else f'''s_lshr_b32 s{sRB}, s{sT0}, 1
s_lshl_b32 s{sRB}, s{sRB}, 2
s_and_b32 s{sT2}, s{sT1}, 3
s_add_u32 s{sRB}, s{sRB}, s{sT2}
s_and_b32 s{sIDX}, s{sT0}, 1
s_lshl_b32 s{sIDX}, s{sIDX}, 2
s_bfe_u32 s{sT2}, s{sT1}, 0x20002
s_add_u32 s{sIDX}, s{sIDX}, s{sT2}''').replace('ROT1', f'''s_lshr_b32 s{sROT}, s{sT1}, 3
s_lshl_b32 s{sROT}, s{sROT}, 1
s_add_u32 s{sROT}, s{sROT}, s{sRB}''' if not OPT['m1'] else f'''s_and_b32 s{sROT}, s{sIDX}, 1
s_mul_i32 s{sROT}, s{sROT}, 3
s_and_b32 s{sT2}, s{sIDX}, 3
s_lshl_b32 s{sT2}, s{sT2}, 1
s_add_u32 s{sT2}, s{sT2}, 1
s_cmp_ge_u32 s{sT1}, 16
s_cselect_b32 s{sROT}, s{sT2}, s{sROT}
s_lshl_b32 s{sT2}, s{sRB}, 1
s_add_u32 s{sROT}, s{sROT}, s{sT2}''' if OPT['m1'] == 2 else f'''s_lshr_b32 s{sROT}, s{sT1}, 2
s_lshl_b32 s{sT2}, s{sRB}, 1
s_add_u32 s{sROT}, s{sROT}, s{sT2}'''))
if DIAG:
    for k in range(1 if OPT['ds'] == 7 else 0, 16):
        P('s_mov_b32 s%d, 0' % (sST + 2 * k))
    stamp(7) if OPT['ds'] == 7 else None
if PROBE is not None:
    stamp(2)
jitter()
P(f'''s_cmp_ge_u32 s{sWAVE}, 4
s_cbranch_scc1 L_C''')

LW, LACC, LA, LADR = 24, 136, 200, 252
vX, vW, vH, vCA, vGA, vGS = 164, 168, 175, 176, 178, 179
vSEL, vCACC, vCF, vLT = 180, 196, 200, 232
vGR, vGC, vPA = 140, 141, 143
vAD1, vAD2 = 144, 148
vS = 124
vSY, vSG, vPT = 244, 245, 248


def dma(vm, voff, srdb, soff, m0base, m0imm, tag=None, nt=False):
    P(f's_add_u32 m0, s{m0base}, {m0imm}')
    P(f'buffer_load_dwordx4 v{voff}, {srd(srdb)}, s{soff} offen {"nt " if nt else ""}lds')
    vm.issue(tag)


def red32(a, t):
    for sh in (8, 4, 2, 1):
        P(f'v_add_f32_dpp v{a}, v{a}, v{a} row_ror:{sh} row_mask:0xf bank_mask:0xf')
    P(f'v_mov_b32 v{t}, v{a}\nv_permlane16_swap_b32 v{t}, v{a}\nv_add_f32 v{a}, v{a}, v{t}')


def stats_rows():
    P(f'''v_and_b32 v{vS}, 31, v0
v_lshrrev_b32 v{vS + 1}, 5, v0
v_mul_u32_u24 v{vS + 2}, 896, v{vS + 1}
v_lshl_add_u32 v{vS + 2}, v{vS}, 4, v{vS + 2}
v_cmp_gt_u32 vcc, 28, v{vS}
v_mov_b32 v{vS + 3}, 0x10000000
v_cndmask_b32 v{vS + 2}, v{vS + 3}, v{vS + 2}, vcc
v_cndmask_b32 v{vS + 3}, 0, 1.0, vcc
s_lshl_b32 s{sT0}, s{sRB}, 7
s_lshl_b32 s{sT1}, s{sCG}, 3
s_add_u32 s{sT0}, s{sT0}, s{sT1}
s_lshl_b32 s{sT1}, s{sI}, 1
s_add_u32 s{sT3}, s{sT0}, s{sT1}
s_mul_i32 s{sT2}, s{sT3}, 896''')


def stats_load(vm):
    for u in range(2):
        P(f'buffer_load_dwordx4 {vr(vS + 4 + 4 * u)}, v{vS + 2}, {srd(SX)}, s{sT2} offen offset:{448 * u}')
        vm.issue('stats')

def stats_body():
    n0 = len(P.ins)
    a, d = vS + 12, vS + 16
    for n in range(8):
        P(f'v_lshlrev_b32 v{d + 2 * n}, 16, v{vS + 4 + n}\nv_and_b32 v{d + 1 + 2 * n}, 0xffff0000, v{vS + 4 + n}')
    P(f'v_add_f32 v{a}, v{d}, v{d + 1}\nv_add_f32 v{a + 1}, v{d + 2}, v{d + 3}')
    for n in range(4, 16):
        P(f'v_add_f32 v{a + n % 2}, v{a + n % 2}, v{d + n}')
    P(f'v_add_f32 v{a}, v{a}, v{a + 1}')
    red32(a, a + 1)
    P(f'v_mul_f32 v{a}, 0x3b124925, v{a}')
    for n in range(16):
        P(f'v_sub_f32 v{d + n}, v{d + n}, v{a}')
    P(f'v_mul_f32 v{a + 2}, v{d}, v{d}\nv_mul_f32 v{a + 3}, v{d + 1}, v{d + 1}')
    for n in range(2, 16):
        P(f'v_fmac_f32 v{a + 2 + n % 2}, v{d + n}, v{d + n}')
    P(f'v_add_f32 v{a + 2}, v{a + 2}, v{a + 3}\nv_mul_f32 v{a + 2}, v{a + 2}, v{vS + 3}')
    red32(a + 2, a + 1)
    P(f'''v_mul_f32 v{a + 2}, 0x3b124925, v{a + 2}
v_cvt_pk_bf16_f32 v{a + 2}, 0, v{a + 2}
v_add_f32 v{a + 2}, 0x3727c5ac, v{a + 2}
v_cvt_pk_bf16_f32 v{a + 2}, 0, v{a + 2}
v_sqrt_f32 v{a + 2}, v{a + 2}
v_cvt_pk_bf16_f32 v{a}, -v{a}, -v{a}
v_cvt_pk_bf16_f32 v{a + 2}, 0, v{a + 2}
v_mov_b32 v{a + 1}, s{sTAG}
v_mov_b32 v{a + 3}, s{sTAG}
v_lshlrev_b32 v{a + 4}, 4, v{vS + 1}''')
    out = [x.text for x in P.ins[n0:]]
    del P.ins[n0:]
    return out

def stats_store(vm):
    a = vS + 12
    P(f'''s_lshl_b32 s{sT3}, s{sT3}, 4
s_add_u32 s{sT3}, s{sT3}, {WS_STATS}
s_mov_b32 exec_lo, 1
s_mov_b32 exec_hi, 1
buffer_store_dwordx4 {vr(a)}, v{a + 4}, {srd(SWS)}, s{sT3} offen sc1
s_mov_b64 exec, -1''')
    vm.issue()


sFB = 23
sFA, sGM = 18, 14
AL = '\n'.join(f's_buffer_load_dword s{4 + g}, {srd(SWS)}, s{sFA} offset:{512 + (g << FS)} glc' for g in range(2))
F1 = f's_buffer_load_dword s4, {srd(SWS)}, s{sFA} glc'
BL = '\n'.join(f's_buffer_load_dword s{4 + g}, {srd(SWS)}, s{sFB} offset:{g << FS} glc' for g in range(4))


def of_addr(d, t0, t1):
    P(f'''s_lshr_b32 s{d}, s{sRT}, 1
s_lshl_b32 s{d}, s{d}, 14
s_and_b32 s{t0}, s{sRT}, 1
s_lshl_b32 s{t0}, s{t0}, 1
s_lshr_b32 s{t1}, s{sI}, 1
s_add_u32 s{t0}, s{t0}, s{t1}
s_lshl_b32 s{t0}, s{t0}, {FS}
s_add_u32 s{d}, s{d}, s{t0}
s_add_u32 s{d}, s{d}, {WS_FLAGS + 8192}''')


def ol(a):
    return '\n'.join(f's_buffer_load_dword s{4 + p_}, {srd(SWS)}, s{a} offset:{1024 * p_} glc' for p_ in range(8))


def xh_addr(d, w=None):
    P(f'''s_mul_i32 s{d}, s{sRT}, 7
s_add_u32 s{d}, s{d}, s{sCT}
s_lshl_b32 s{d}, s{d}, 4
s_add_u32 s{d}, s{d}, s{sI}
s_lshl_b32 s{d}, s{d}, 10
s_add_u32 s{d}, s{d}, {WS_XCH + 8192 + 1020}''')


class W2Plan:
    def __init__(self, vm):
        self.vm = vm
        self.pairs = []
        self.grp = set()
        self.loc = {}
        self.pending = []
        self.ncw = 0

    def wopair(self):
        c = [g for g in (0, 2, 4) if g in self.grp and g + 1 in self.grp]
        return c[0] if c else None

    def has_pair(self):
        return bool(self.pairs) or self.wopair() is not None

    def own(self, hs):
        for h in hs:
            if self.pairs:
                a = self.pairs.pop(0)
            else:
                g = self.wopair()
                self.grp -= {g, g + 1}
                a = WO + 4096 * g
            self.loc[h] = a
            for u in range(2):
                dma(self.vm, 2 + u, SW2, sA0, sMX, a + 4096 * u, ('own', h))
            P(f's_add_u32 s{sA0}, s{sA0}, {16 * 896}')

    def sync(self):
        if self.pending:
            P('s_waitcnt lgkmcnt(0)')
            for h in self.pending:
                a = self.loc[h]
                if WO <= a < WO + 4096 * NGRP:
                    self.grp |= {(a - WO) // 4096, (a - WO) // 4096 + 1}
                else:
                    self.pairs.append(a)
            self.pending = []

    def stage(self, hs):
        self.vm.wait(('own', hs[-1]))
        self.sync()
        for h in hs:
            o = self.loc[h]
            base = (LADR, vAD1, vAD2)[o >> 16]
            for ct in range(4):
                P(f'ds_read_b64_tr_b16 {vr(LW + 8 * (h & ~1) + 4 * ct + 2 * (h & 1), 2)}, v{base + ct} offset:{o & 0xffff}')
        self.pending = list(hs)

    def cw(self):
        if NGRP - self.ncw == OPT['pe'] and not OPT['na'] and not OPT['ncw2']:
            P(F1 if OPT['f1'] else BL)
        g = max(self.grp)
        self.grp.remove(g)
        P(f's_add_u32 s{sT0}, s{sA1}, {g * 28672 + (0x20000000 if (OPT["abl"] & 4 or (OPT["abl"] & 32 and not self.isq)) else 0)}')
        dma(self.vm, 2, SWO, sT0, sMX, WO + 4096 * g, ('cw', g))
        self.ncw += 1


def spoll(name, loads, nreg, onfail=None):
    P.label(name)
    P(loads)
    P.label(name + '_w')
    P('s_waitcnt lgkmcnt(0)')
    for n in range(nreg):
        P(f's_xor_b32 s{4 + n}, s{4 + n}, s{sTAG}')
    if nreg == 1:
        pass
    elif nreg == 2:
        P('s_or_b32 s4, s4, s5')
    elif nreg == 4:
        P('s_or_b64 s[4:5], s[4:5], s[6:7]')
    else:
        P('s_or_b64 s[4:5], s[4:5], s[6:7]\ns_or_b64 s[8:9], s[8:9], s[10:11]\ns_or_b64 s[4:5], s[4:5], s[8:9]')
    P(f's_cbranch_scc0 {name}_ok')
    if onfail:
        onfail()
    spin_guard(name + '_ok')
    P(f's_sleep {OPT["ssl"]}\ns_branch {name}')
    P.label(name + '_ok')


P(f'''v_lshrrev_b32 v{vLT}, 3, v0
v_lshl_add_u32 v{vLT}, s{sI}, 3, v{vLT}
v_mul_u32_u24 v{vX}, 896, v{vLT}
v_lshrrev_b32 v{vLT}, 1, v{vLT}
v_xor_b32 v{vLT}, v{vLT}, v0
v_and_b32 v{vLT}, 7, v{vLT}
v_lshl_add_u32 v{vX}, v{vLT}, 4, v{vX}
v_add_u32 v{vX + 1}, 28672, v{vX}
v_add_u32 v{vX + 2}, 57344, v{vX}
v_add_u32 v{vX + 3}, 86016, v{vX}
s_mul_i32 s{sXO}, s{sRB}, 114688
s_lshl_b32 s{sT0}, s{sROT}, 7
s_add_u32 s{sXO}, s{sXO}, s{sT0}
s_mov_b32 s{sKB}, s{sROT}
s_lshl_b32 s{sMX}, s{sI}, 10
s_cmp_eq_u32 s{sISQ}, {1 - OPT['qf']}
s_cbranch_scc1 L_LQ''')


def L_phase1(isq):
    t = 'Q' if isq else 'H'
    vm = Q(P, 'vmcnt', 63)
    wstr = 2688 if isq else 3584
    wsl = WSL
    globals()['MUTE'] = False

    def gen_st(s):
        wf = s < OPT['wf']
        if wf:
            for n in range(6):
                o = (n // 2) * 8192 + (n % 2) * 1024 if isq else n * 1024
                if n < (5 if isq else 6):
                    dma(vm, vW + n, SW, sWO_, sMW, wsl[s % 3] + o)
                    yield
        for n in range(4):
            dma(vm, vX + n, SX, sXO, sMX, XS[s % 3] + 4096 * n, nt=(OPT['nt'] & 1 and s < 1))
            yield
        if isq and s % 2 == 0:
            if s < 6:
                P(f'''s_lshr_b32 s{sT0}, s{sI}, 1
s_add_u32 s{sT0}, s{sT0}, s{sKB}
s_cmp_eq_u32 s{sT0}, 7
s_cselect_b32 s{sT0}, 0, s{sT0}
s_lshl_b32 s{sT0}, s{sT0}, 7
s_add_u32 s{sT0}, s{sT0}, s{sHO}''')
                dma(vm, vH, SX, sT0, sMX, HALO + halo_off(s))
            else:
                P(f'''s_lshl_b32 s{sT0}, s{sKB}, 7
s_add_u32 s{sT0}, s{sT0}, s{sHO}
s_and_b32 s{sT1}, s{sMX}, 1024''')
                dma(vm, vH, SX, sT0, sT1, HALO + halo_off(s))
            yield
        nw = 6 if isq else 7
        for n in range(nw - 1 if wf else 0, nw):
            o = (n // 2) * 8192 + (n % 2) * 1024 if isq else n * 1024
            dma(vm, vW + n, SW, sWO_, sMW, wsl[s % 3] + o, ('st', s), nt=(OPT['nt'] & 2 and s < 1))
            if n == nw - 1 and s < 6:
                P(f'''s_add_u32 s{sKB}, s{sKB}, 1
s_cmp_eq_u32 s{sKB}, 7
s_cselect_b32 s{sKB}, 0, s{sKB}
s_cselect_b32 s{sT0}, {7 * 128}, 0
s_cselect_b32 s{sT1}, {7 * 64 * wstr}, 0
s_add_u32 s{sXO}, s{sXO}, 128
s_add_u32 s{sWO_}, s{sWO_}, {64 * wstr}
s_sub_u32 s{sXO}, s{sXO}, s{sT0}
s_sub_u32 s{sWO_}, s{sWO_}, s{sT1}''')
            yield

    def run(g, n=1000):
        for _ in range(n):
            if next(g, 'end') == 'end':
                break

    if isq:
        P(f'''v_lshrrev_b32 v{vLT}, 3, v0
v_mul_u32_u24 v{vW}, 2688, v{vLT}
v_bfe_u32 v{vLT}, v0, 4, 1
v_lshlrev_b32 v{vLT}, 1, v{vLT}
v_xor_b32 v{vLT}, v{vLT}, v0
v_and_b32 v{vLT}, 7, v{vLT}
v_lshlrev_b32 v{vLT}, 4, v{vLT}
v_xor_b32 v{vLT + 1}, 64, v{vLT}
v_add_u32 v{vW + 1}, {8 * 2688}, v{vW}
v_add_u32 v{vW}, v{vW}, v{vLT}
v_add_u32 v{vW + 1}, v{vW + 1}, v{vLT + 1}''')
        for n in range(2, 6):
            P(f'v_add_u32 v{vW + n}, {(n // 2) * 896}, v{vW + n % 2}')
        P(f'''s_mul_i32 s{sT0}, s{sIDX}, 112
s_min_u32 s{sT0}, s{sT0}, {768 if OPT['p7'] else 1024}
s_and_b32 s{sT0}, s{sT0}, {0xff80 if OPT['abl'] & 8 else 0xffff}
s_lshl_b32 s{sMW}, s{sI}, 11
s_lshr_b32 s{sT1}, s{sI}, 1
s_mul_i32 s{sT1}, s{sT1}, {16 * 896}
v_subrev_u32 v{vH}, s{sT1}, v{vX}
s_mul_i32 s{sHO}, s{sRB}, 114688
s_max_u32 s{sHO}, s{sHO}, {16 * 896}
s_sub_u32 s{sHO}, s{sHO}, {16 * 896}''')
    else:
        P(f's_movk_i32 s{sT0}, 3136')
        for n in range(7):
            P(f'''v_add_u32 v{vLT}, {64 * n}, v0
v_mul_u32_u24 v{vLT + 1}, 2341, v{vLT}
v_lshrrev_b32 v{vLT + 1}, 16, v{vLT + 1}
v_lshlrev_b32 v{vLT}, 4, v{vLT}
v_mad_u32_u24 v{vW + n}, v{vLT + 1}, s{sT0}, v{vLT}''')
            if n == 3:
                P(f'v_and_b32 v{vLT + 1}, 8, v{vLT + 1}\nv_lshlrev_b32 v{vLT + 1}, 2, v{vLT + 1}\nv_xor_b32 v{vW + n}, v{vW + n}, v{vLT + 1}')
            elif n > 3:
                P(f'v_xor_b32 v{vW + n}, 32, v{vW + n}')
        P(f's_mul_i32 s{sT0}, s{sIDX}, 448\ns_mul_i32 s{sMW}, s{sI}, 7168')
    P(f'''s_lshl_b32 s{sT1}, s{sROT}, 2
s_add_u32 s{sT1}, s{sT1}, s{sI}
s_mul_i32 s{sWO_}, s{sT1}, {16 * wstr}
s_add_u32 s{sWO_}, s{sWO_}, s{sT0}''')
    stamp(11) if OPT['ds'] == 7 else None
    P('s_waitcnt lgkmcnt(0)')
    mk_srd(SX, 4, 2048 * 896)
    mk_srd(SW, 6 if isq else 12, 448 * wstr)
    stamp(12 if OPT['ds'] == 7 else 0)
    KS = [int(c, 16) for c in '%06x' % OPT['kq' if isq else 'kh']]
    gens = [gen_st(s) for s in range(7)]
    run(gens[0])
    run(gens[1], min(KS[0], OPT['k0']))
    P(f's_load_dword s{sTAG}, s[20:21], 0')
    mk_srd(SWO, 8, 448 * 896)
    mk_srd(SW2, 14, 1792 * 896)
    mk_srd(SWS, 20, WS_BYTES)
    mk_srd(SOUT, 16, 2048 * 896)
    P(f'v_bfe_u32 v{vLT}, v0, 2, 2\nv_mov_b32 v{vLT + 1}, 0x3f803f80')
    for m in range(4):
        P(f'v_cmp_eq_u32 vcc, {m}, v{vLT}\nv_cndmask_b32 v{vSEL + 4 * m}, 0, v{vLT + 1}, vcc')
        for r in range(1, 4):
            P(f'v_mov_b32 v{vSEL + 4 * m + r}, v{vSEL + 4 * m}')
    if isq:
        q_addr_parts(vLT, vLT + 1, vLT + 2, vLT + 3)
        P(f'''s_lshr_b32 s{sT0}, s{sI}, 1
s_mul_i32 s{sT0}, s{sT0}, 56
s_and_b32 s{sT1}, s{sI}, 1
s_lshl_b32 s{sT1}, s{sT1}, 5
s_add_u32 s{sT0}, s{sT0}, s{sT1}''')
        q_addr(vCA, f's{sT0}', vLT, vLT + 1, vLT + 2)
        ntile, tstr, rstr, kstr = 3, 8192, 128, 4096
    else:
        h_addr(vCA, vLT, vLT + 1)
        P(f'''s_and_b32 s{sT0}, s{sI}, 1
s_lshl_b32 s{sT0}, s{sT0}, 5
v_xor_b32 v{vCA}, s{sT0}, v{vCA}
s_lshr_b32 s{sT0}, s{sI}, 1
s_lshl_b32 s{sT0}, s{sT0}, 6
v_add_u32 v{vCA}, s{sT0}, v{vCA}''')
        ntile, tstr, rstr, kstr = 4, 128, 448, 32 * 448
    w2_tr_addr(LADR, 12, vLT, vLT + 1)
    for ct in range(4):
        P(f'v_add_u32 v{LADR + ct}, s{sMX}, v{LADR + ct}')
        P(f'v_add_u32 v{vAD1 + ct}, 0x10000, v{LADR + ct}\nv_add_u32 v{vAD2 + ct}, 0x20000, v{LADR + ct}')
    P(f'''v_lshrrev_b32 v{vLT}, 3, v0
v_mul_u32_u24 v2, 896, v{vLT}
v_and_b32 v{vLT}, 6, v{vLT}
v_xor_b32 v{vLT}, v{vLT}, v0
v_and_b32 v{vLT}, 7, v{vLT}
v_lshl_add_u32 v2, v{vLT}, 4, v2
v_add_u32 v3, {8 * 896}, v2
v_lshlrev_b32 v1, 4, v0
s_and_b32 s{sT0}, s{sRT}, 1
s_lshl_b32 s{sT0}, s{sT0}, 2
s_add_u32 s{sT0}, s{sT0}, s{sI}
s_mul_i32 s{sA0}, s{sT0}, {LST * 32 * 896}
s_lshr_b32 s{sFB}, s{sRT}, 1
s_lshl_b32 s{sFB}, s{sFB}, 4
s_add_u32 s{sFB}, s{sFB}, s{sT0}
s_lshl_b32 s{sFB}, s{sFB}, 10
s_add_u32 s{sFB}, s{sFB}, {WS_FLAGS}
s_andn2_b32 s{sFA}, 1, s{sRT}
s_lshl_b32 s{sFA}, s{sFA}, {FS + 1}
s_add_u32 s{sFA}, s{sFA}, s{sFB}
s_lshl_b32 s{sT0}, s{sCT}, 7
s_cmp_lt_u32 s{sCT}, 7
s_cselect_b32 s{sT0}, s{sT0}, 0x40000000
s_add_u32 s{sA0}, s{sA0}, s{sT0}
s_mul_i32 s{sA1}, s{sI}, {8 * 896}
s_add_u32 s{sA1}, s{sA1}, s{sT0}
v_lshl_add_u32 v{vGA}, s{sI}, 6, v0
v_min_u32 v{vGS}, 143, v{vGA}
v_lshlrev_b32 v{vGA}, 3, v{vGA}
s_lshl_b32 s{sT0}, s{sRB}, 7
s_sub_u32 s{sT0}, s{sT0}, 16
v_add_u32 v{vGR}, s{sT0}, v{vGS}
v_max_i32 v{vGR}, 0, v{vGR}
v_lshlrev_b32 v{vGR}, 4, v{vGR}
v_add_u32 v{vGR}, {WS_STATS}, v{vGR}
v_lshlrev_b32 v{vGS}, 4, v{vGS}
v_add_u32 v{vGS}, {ST}, v{vGS}
s_lshl_b32 s{sGM + 1}, s{sI}, 10
s_cmp_eq_u32 s{sI}, 3
s_cselect_b32 s16, 1, 0xffff
s_cselect_b32 s{sGM + 1}, {143 * 16}, s{sGM + 1}
s_add_u32 s{sGM + 1}, s{sGM + 1}, {ST}
s_and_b32 s{sGM}, s{sI}, 1
s_mul_i32 s{sGM}, s{sGM}, 1792
s_add_u32 s{sGM}, s{sGM}, {CS}
s_cmp_lt_u32 s{sI}, 2
s_cselect_b32 s16, -1, s16
s_cselect_b32 s17, -1, 0
s_cselect_b32 s{sT0}, 0, {CS - CSB[isq]}
s_sub_u32 s{sGM}, s{sGM}, s{sT0}
v_add_u32 v{vGC}, s{sGM}, v1
v_min_u32 v{vGC + 1}, 752, v1
v_add_u32 v{vGC + 1}, s{sGM}, v{vGC + 1}
v_add_u32 v{vGC + 1}, 1024, v{vGC + 1}
v_lshrrev_b32 v{vLT}, 4, v0
v_lshlrev_b32 v{vLT}, 9, v{vLT}
v_and_b32 v{vPA}, 15, v0
v_lshl_add_u32 v{vPA}, v{vPA}, 3, v{vLT}
v_mov_b32 v{vSY}, {SYNC}
v_lshl_add_u32 v{vSG}, s{sI}, 2, v{vSY}''')
    run(gens[1], KS[0] - min(KS[0], OPT['k0']))

    def csum_part(s):
        lab = f'L_{t}cs{s}'
        P(f's_cmp_lg_u32 s{sPUB}, 0\ns_cbranch_scc1 {lab}')
        if s == 1:
            P(f's_cmp_eq_u32 s{sROT}, 6\ns_cbranch_scc1 {lab}b')
        P(f'v_add_u32 v{vCA + 1}, {wsl[s]}, v{vCA}')
        if not isq:
            P(f's_and_b32 s{sT0}, s{sI}, 2\ns_lshl_b32 s{sT0}, s{sT0}, 6\nv_subrev_u32 v{vLT + 4}, s{sT0}, v{vCA + 1}')
        for kk in range(2):
            for m in range(ntile):
                f = vCF + 16 * kk + 4 * m
                o = m * tstr + kk * kstr
                va = vLT + 4 if m == 3 else vCA + 1
                P(f'ds_read_b64_tr_b16 {vr(f, 2)}, v{va} offset:{o}')
                P(f'ds_read_b64_tr_b16 {vr(f + 2, 2)}, v{va} offset:{o + 4 * rstr}')
        P('s_waitcnt lgkmcnt(0)')
        for kk in range(2):
            for m in range(ntile):
                P(mfma(vCACC, vSEL + 4 * m, vCF + 16 * kk + 4 * m, None if (s, kk, m) == (0, 0, 0) else vCACC))
        if s == 1:
            P.label(lab + 'b')
            P(f'''v_cvt_pk_bf16_f32 v{vCACC + 1}, 0, v{vCACC}
v_sub_f32 v{vCACC + 1}, v{vCACC}, v{vCACC + 1}
v_cvt_pk_bf16_f32 v{vCACC}, v{vCACC}, v{vCACC + 1}
v_mov_b32 v{vCACC + 1}, s{sTAG}''')
        P.label(lab)
        if s == 1:
            P(f'''s_lshl_b32 s{sT0}, s{sCG}, 13
s_lshl_b32 s{sT1}, s{sROT}, 10
s_add_u32 s{sT0}, s{sT0}, s{sT1}
s_lshl_b32 s{sT1}, s{sI}, 7
s_add_u32 s{sT0}, s{sT0}, s{sT1}
s_add_u32 s{sT0}, s{sT0}, {WS_CSUM}
s_cmp_lg_u32 s{sPUB}, 0
s_cselect_b32 s{sT0}, 0x40000000, s{sT0}
buffer_store_dwordx2 {vr(vCACC, 2)}, v{vPA}, {srd(SWS)}, s{sT0} offen sc1''')
            vm.issue()

    def gather_issue(count=True):
        P(f'''s_mov_b32 m0, s{sGM}
s_nop 0
buffer_load_dwordx4 v1, {srd(SWS)}, s{sT2} offen sc1 lds
s_mov_b32 exec_hi, 0xffff
buffer_load_dwordx4 v1, {srd(SWS)}, s{sT2} offen offset:1024 sc1 lds
s_mov_b32 m0, s{sGM + 1}
s_mov_b64 exec, s[16:17]
buffer_load_dwordx4 v{vGR}, {srd(SWS)}, 0 offen sc1 lds
s_mov_b64 exec, -1''')
        if count:
            for _ in range(3):
                vm.issue('gather')

    def gather_start():
        P(f'''s_lshl_b32 s{sT2}, s{sCG}, 2
s_add_u32 s{sT2}, s{sT2}, s{sI}
s_lshl_b32 s{sT2}, s{sT2}, 11
s_add_u32 s{sT2}, s{sT2}, {WS_CSUM}''')
        gather_issue()

    def gather_cmp():
        P(f'ds_read_b128 {vr(vCF)}, v{vGC}\nds_read_b128 {vr(vCF + 4)}, v{vGC + 1}\nds_read_b128 {vr(vCF + 8)}, v{vGS}\ns_waitcnt lgkmcnt(0)')
        P(f'v_cmp_ne_u32 vcc, s{sTAG}, v{vCF + 1}')
        for pi in range(1, 6):
            P(f'v_cmp_ne_u32 s[{2 + 2 * pi}:{3 + 2 * pi}], s{sTAG}, v{vCF + 2 * pi + 1}')
        P('s_or_b64 s[4:5], s[4:5], s[6:7]\ns_or_b64 vcc, vcc, s[8:9]\ns_or_b64 s[4:5], s[4:5], s[10:11]')
        P('s_or_b64 vcc, vcc, s[12:13]')
        P('s_or_b64 vcc, vcc, s[4:5]')

    def gather_fin():
        for x in gather_chk():
            P(x)

    def gather_chk():
        vm.wait('gather')
        gather_cmp()
        P(f's_cbranch_vccz L_{t}gok')
        P.label(f'L_{t}gre')
        spin_guard(f'L_{t}gok')
        P('s_sleep 1')
        gather_issue(False)
        P('s_waitcnt vmcnt(0)')
        gather_cmp()
        P(f's_cbranch_vccnz L_{t}gre')
        P.label(f'L_{t}gok')
        stamp(3) if OPT['ds'] == 8 else None
        return []

    def pf_w():
        if OPT['pfq']:
            if isq != 2 - OPT['pfq']:
                return
            P(f'''s_and_b32 s{sT1}, s2, 127
s_lshl_b32 s{sT1}, s{sT1}, 2
s_add_u32 s{sT1}, s{sT1}, s{sI}
s_mul_i32 s{sT0}, s{sT1}, {7 * 128}
s_mul_i32 s{sT1}, s{sT1}, {25 * 128}
v_lshlrev_b32 v{vLT + 8}, 7, v0
s_mov_b64 exec, 0x1ffffff
buffer_load_dword v{vLT + 9}, v{vLT + 8}, {srd(SW2)}, s{sT1} offen
s_mov_b64 exec, 0x7f
buffer_load_dword v{vLT + 9}, v{vLT + 8}, {srd(SWO)}, s{sT0} offen
s_mov_b64 exec, -1''')
            vm.issue()
            vm.issue()
            return
        P(f'''s_lshl_b32 s{sT1}, s2, 2
s_add_u32 s{sT1}, s{sT1}, s{sI}
s_lshl_b32 s{sT1}, s{sT1}, 11
v_lshlrev_b32 v{vLT + 8}, 7, v0
s_mov_b64 exec, 0xffff
buffer_load_dword v{vLT + 9}, v{vLT + 8}, {srd(SW2)}, s{sT1} offen
buffer_load_dword v{vLT + 9}, v{vLT + 8}, {srd(SWO)}, s{sT1} offen
s_mov_b64 exec, -1''')
        vm.issue()
        vm.issue()

    P(f's_waitcnt lgkmcnt(0)\ns_mul_i32 s{sTAG}, s{sTAG}, 0x9e3779b1\ns_add_u32 s{sTAG}, s{sTAG}, 0x7f4a7c15')
    w2 = W2Plan(vm)
    w2.isq = isq
    if not isq:
        w2.pairs += [WIN, WIN + 8192]
    nown = 0
    nstg = 0

    def own(n):
        nonlocal nown
        n = min(n, 2 * LST - nown)
        w2.own(range(nown, nown + n))
        nown += n

    def stage(n):
        nonlocal nstg
        n = min(n, nown - nstg)
        if n > 0:
            w2.stage(list(range(nstg, nstg + n)))
        nstg += n

    def cwait(v):
        lds_poll(f'L_{t}cp{v}', vPT, vSY, 16, v, OPT['lsl'])

    def fwarm():
        P(BL)
        if OPT['na']:
            P(AL.replace('s4,', 's11,').replace('s5,', 's11,'))
        of_addr(sT0, sT1, 10)
        P(f's_and_b32 s{sT1}, s{sI}, 1\ns_lshl_b32 s{sT1}, s{sT1}, 12\ns_add_u32 s{sT0}, s{sT0}, s{sT1}')
        for p_ in range(4):
            P(f's_buffer_load_dword s11, {srd(SWS)}, s{sT0} offset:{1024 * p_} glc')
        xh_addr(sT0, sI)
        P(f's_buffer_load_dword s11, {srd(SWS)}, s{sT0} glc\ns_buffer_load_dword s11, {srd(SWS)}, s{sT0} offset:4096 glc')

    nspf = 0

    def spf(n):
        nonlocal nspf
        if nspf == 0:
            P(f'''s_lshl_b32 s9, s2, 2
s_add_u32 s9, s9, s{sI}
s_mul_i32 s8, s9, {25 * 64}
s_mul_i32 s9, s9, {7 * 64}''')
        for _ in range(n):
            if nspf < 25:
                P(f's_buffer_load_dword s12, {srd(SW2)}, s8 offset:{64 * nspf}')
            elif nspf < 32:
                P(f's_buffer_load_dword s12, {srd(SWO)}, s9 offset:{64 * (nspf - 25)}')
            nspf += 1
    if OPT['fwarm'] == 9:
        fwarm()
    spn = [int(c, 16) for c in '%05x' % OPT['spf']]
    fin = set()
    wbs = [int(c) for c in '%05d' % OPT['w4']]
    sfill = []
    for s in range(5):
        if OPT['ds'] == 3:
            stamp(1 + 3 * s)
            vm.wait(('st', s))
            stamp(2 + 3 * s)
            P('s_barrier')
            stamp(3 + 3 * s) if s < 4 else None
        else:
            stamp(13) if s == 4 else None
            vm.wait(('st', s))
            stamp(14) if s == 4 else None
            P('s_barrier')
            stamp({0: 1, 3: 3, 4: 5}[s]) if s in (0, 3, 4) else None
        def extras(st):
            if OPT['pf_w'] == st:
                pf_w()
            if OPT['pc2'] == st:
                P('s_getpc_b64 s[8:9]')
                P.label(f'L_pc{t}')
                P(f'''s_sub_u32 s8, s8, L_pc{t}-L_pc
s_subb_u32 s9, s9, 0
s_lshr_b32 s{sT0}, s2, 3
s_lshl_b32 s{sT0}, s{sT0}, 2
s_add_u32 s{sT0}, s{sT0}, s{sI}
s_lshl_b32 s{sT0}, s{sT0}, 9
v_lshlrev_b32 v{vLT + 8}, 7, v0
v_add_u32 v{vLT + 8}, s{sT0}, v{vLT + 8}
v_min_u32 v{vLT + 8}, L_END-L_pc, v{vLT + 8}
s_mov_b64 exec, 15
global_load_dword v{vLT + 9}, v{vLT + 8}, s[8:9]
s_mov_b64 exec, -1''')
                vm.issue()

        def stream():
            for st, lim in ((s + 1, 99), (s + 2, KS[s + 1])):
                if st in fin:
                    continue
                k = 0
                while k < lim:
                    if next(gens[st], 'end') == 'end':
                        fin.add(st)
                        extras(st)
                        break
                    k += 1
                    cq = OPT['c1q' if isq else 'c1h']
                    if cq and s >= OPT['c1s'] and vm.n - vm.done > cq:
                        vm.wait(vm.n - cq)
                    yield
        g = stream()
        if (OPT['cs_it'] == 10 * s - 5 and s > 1) or (OPT['cs_it'] == 36 and s == 4):
            gather_start()
        if s < 2:
            run(g, 5)
            csum_part(s)
        if s == OPT['cs_it'] + 1 or (OPT['cs_it'] == 10 * s - 15 and s > 2) or (OPT['cs_it'] == 36 and s == 4):
            run(g, OPT['gk'])
            sfill = gather_chk()
        while next(g, 'end') != 'end':
            for _ in range(OPT['sfn']):
                if sfill:
                    P(sfill.pop(0))
        if s == OPT['cs_it']:
            gather_start()
        if True:
            while sfill:
                P(sfill.pop(0))
        if spn[s]:
            spf(spn[s])
        if s == OPT['fwarm']:
            fwarm()
        if not isq and wbs[s]:
            if len(w2.pairs) < wbs[s]:
                stage(wbs[s] - len(w2.pairs))
                w2.sync()
            own(wbs[s])
    global MUTE
    MUTE = OPT['ds'] in (3, 7)

    def progress(total, cap=OPT['cap']):
        left = total
        while left > 0:
            isown = nown < 2 * LST
            if not (w2.has_pair() if isown else any(g_ >= OPT['ncw2'] for g_ in w2.grp)):
                if w2.pending:
                    w2.sync()
                elif nstg < nown:
                    stage(1)
                else:
                    break
                continue
            if isown:
                own(1)
                left -= 2
            else:
                w2.cw()
                left -= 1
            while nstg < nown and vm.n - vm.tags[('own', nstg)] >= cap:
                stage(1)
            if vm.n - vm.done > cap:
                vm.wait(vm.n - cap)
    vm.wait(('st', 5))
    stamp(2)
    P('s_barrier')
    jitter()
    stamp(4)
    w2.pairs += [16384] if isq else [16384, 24576]
    w2.grp |= set(range(7))
    for _ in gens[6]:
        pass
    if OPT['cs_it'] == 5:
        gather_start()
    if OPT['pf_w'] == 7:
        pf_w()
    if OPT['gf']:
        if OPT['gf'] > 1:
            P('s_setprio 2')
        body = gather_chk()
        n5 = OPT['n5q'] if isq else OPT['n5']
        if OPT['gw']:
            vm.wait(('st', 6))
        for j_, x in enumerate(body):
            P(x)
        if OPT['gw'] and not OPT['b6']:
            P('s_waitcnt lgkmcnt(0)')
            lds_signal(vSG, 246, 7)
        own(n5)
        if OPT['gf'] > 1:
            P('s_setprio 0')
    else:
        own(OPT['n5q'] if isq else OPT['n5'])
    stamp(1) if OPT['ds'] == 8 else None
    if OPT['cs_it'] in (4, 5, 35) and not OPT['gf']:
        gather_fin()
    vm.wait(('st', 6))
    P('s_waitcnt lgkmcnt(0)')
    if OPT['b6']:
        stamp(7)
        P('s_barrier')
    elif not OPT['gw']:
        lds_signal(vSG, 246, 7)
    stamp(5) if OPT['ds'] == 8 else None
    P(f's_cmp_ge_u32 s{sCT}, 7\ns_cbranch_scc1 L_IDLE')
    if not OPT['b6']:
        progress(OPT['p5q'] if isq else OPT['p5'])
        stamp(6)
        cwait(6)
    late2 = OPT['tk'] > 2 and not isq
    if not late2:
        w2.pairs += [32768, 40960]
        w2.grp |= set(range(7, 14))
    if OPT['b6']:
        progress(OPT['p5'])
        stamp(6)
    if OPT['lpause'] and not isq:
        progress(OPT['lpause'] - 1, OPT['capp'])
        stage(100)
        stamp(7) if OPT['ds'] == 8 else None
        cwait(8)
        stamp(2) if OPT['ds'] == 8 else None
    if late2:
        assert OPT['lpause'] and not OPT['b6']
        w2.pairs += [32768, 40960]
        w2.grp |= set(range(7, 14))
    progress(100, OPT['cap'] if isq else OPT['cape'])
    stage(100)
    w2.sync()
    assert nown == 2 * LST and nstg == nown and not w2.pending and w2.grp == set(range(OPT['ncw2']))
    globals()['W2'] = w2
    if isq and OPT['qhold']:
        cwait(9)
    if isq == OPT['qf']:
        P('s_branch L_P2L')
    return vm


def L_phase2(vm):
    P.label('L_P2L')
    jitter()
    lastcw = [vm.n]
    W2.vm = vm
    vm.done = 0
    stamp(8)
    lds_signal(vSG, 243, 8)
    NAE = OPT['na']
    if NAE or OPT['ncw2']:
        P(AL if NAE else BL)
    sF, sB, sS, sOF = 12, 62, 65, 66
    vDA, vSy, vSg, vWA, TMP, TMP2 = LADR, 246, 247, 20, 248, 12
    P(f'''v_mov_b32 v{vSg}, v{vSG}
v_mov_b32 v{vSy}, v{vSY}
s_and_b32 s{sT3}, s{sRT}, 1
s_lshl_b32 s{sT3}, s{sT3}, 2
s_add_u32 s{sT3}, s{sT3}, s{sI}
s_xor_b32 s{sT2}, s{sRT}, 1
s_mul_i32 s{sT2}, s{sT2}, {4 * NS * 1024}
s_mul_i32 s{sT3}, s{sT3}, {LST * 1024}
s_add_u32 s{sT3}, s{sT3}, {WS_ACT}
s_add_u32 s{sF}, s{sT2}, s{sT3}
s_add_u32 s{sF + 1}, s{sF}, {NS * 1024}
s_add_u32 s{sF + 2}, s{sF}, {2 * NS * 1024}
s_add_u32 s{sF + 3}, s{sF}, {3 * NS * 1024}
s_mul_i32 s{sB}, s{sRT}, {4 * NS * 1024}
s_mul_i32 s{sS}, s{sI}, {NS * 1024}
s_add_u32 s{sS}, s{sS}, s{sB}
s_add_u32 s{sS}, s{sS}, {WS_ACT + 56 * 1024}
s_add_u32 s{sB}, s{sB}, s{sT3}
v_and_b32 v{vDA}, 15, v0
v_lshrrev_b32 v{vDA + 1}, 4, v0
v_xor_b32 v{vDA + 1}, v{vDA + 1}, v{vDA}
v_lshlrev_b32 v{vDA + 1}, 4, v{vDA + 1}
v_lshl_add_u32 v{vDA}, v{vDA}, 8, v{vDA + 1}
s_lshl_b32 s{sT1}, s{sI}, 14
v_add_u32 v{vDA}, s{sT1}, v{vDA}
v_xor_b32 v{vDA + 1}, 64, v{vDA}
v_xor_b32 v{vDA + 2}, 128, v{vDA}
v_xor_b32 v{vDA + 3}, 192, v{vDA}
s_branch L_pb_w''')
    spoll('L_pb', *((AL, 2) if NAE else (F1, 1) if OPT['f1'] else (BL, 4)))
    stamp(9)
    xtra = [LACC + 32 + 4 * n for n in range(8)]
    slots = [LA + 4 * n for n in range(11)] + [4, 8, 16] + ([] if NAE else xtra)
    free = slots[:OPT['lahead'] + 1]
    vSG2 = 244
    aloc = {}
    nxt = 0
    NT = 8 * LST
    NA = NT + 16
    lim = 4 * NAE if NAE else 2 * LST if OPT['f1'] else NT
    order = [(t, k) for k in range(NAE) for t in range(4)] + [(t, k) for t in range(4) for k in range(NAE, LST)] + \
            [(t, k) for t in range(4, 8) for k in range(LST)] + [(8, k) for k in range(16)]
    dump_n = {t: order.index((t, LST - 1)) + OPT['dd'] for t in range(8)}

    def acc(t):
        return LACC + 16 * (t if (t < 4 and NAE) else t % 2)

    def load1():
        nonlocal nxt
        t, k = order[nxt]
        sb = sF + t if t < 4 else sB
        aloc[nxt] = free.pop(0)
        P(f'buffer_load_dwordx4 {vr(aloc[nxt])}, v1, {srd(SWS)}, s{sb} offen offset:{(k % 4) * 1024} sc1')
        vm.issue(('a', nxt))
        nxt += 1
        if k == LST - 1 and 4 <= t < 8:
            P(f's_mov_b32 s{sB}, s{sS}' if t == 7 else f's_add_u32 s{sB}, s{sB}, {NS * 1024 - 4096}')
        elif k % 4 == 3:
            P(f's_add_u32 s{sb}, s{sb}, 4096')

    def can_load(cur):
        return nxt < lim and free and nxt - cur < OPT['lahead']
    lg = Q(P, 'lgkmcnt', 15)
    fq = []
    cold = []

    def f_txt(x, cost=1, ds=None):
        def fn():
            P(x)
            if ds is not None:
                lg.issue(ds or None)
        fq.append((cost, fn))

    def f_chk(nm, rg, off, val):
        f_txt(f'v_min3_u32 v{rg}, v{rg}, v{rg + 1}, v{rg + 2}')
        f_txt(f'v_min_u32 v{rg}, v{rg}, v{rg + 3}')
        f_txt(f'v_cmp_gt_u32 vcc, {val}, v{rg}', 2)
        f_txt(f's_cbranch_vccnz {nm}\n{nm}_ok:')
        cold.append(lambda: (lds_spin(nm, rg, vSy, off, val, 0), P(f's_branch {nm}_ok')))
    while can_load(0) and nxt < OPT['l0']:
        load1()
        if OPT['f1'] and nxt == OPT['f1']:
            P(BL)
    if OPT['tw']:
        P(f'v_add_u32 v{vWA}, {WO}, v1')
    else:
        w2_tr_addr(vWA, 10, TMP, TMP + 1)
        for ct in range(4):
            P(f'v_add_u32 v{vWA + ct}, {WO}, v{vWA + ct}')
    of_addr(sOF, sT0, sT1)
    P(f'''v_and_b32 v{TMP}, 15, v0
v_lshlrev_b32 v{TMP}, 7, v{TMP}
v_lshrrev_b32 v{TMP + 1}, 5, v0
v_xor_b32 v{TMP + 1}, v{TMP + 1}, v0
v_and_b32 v{TMP + 1}, 7, v{TMP + 1}
v_lshl_add_u32 v{TMP}, v{TMP + 1}, 4, v{TMP}
v_bfe_u32 v{TMP + 1}, v0, 4, 1
v_lshl_add_u32 v{TMP}, v{TMP + 1}, 3, v{TMP}
s_lshl_b32 s{sT0}, s{sI}, 11
s_add_u32 s{sT0}, s{sT0}, {STILE}
v_add_u32 v{vSG2 + 1}, s{sT0}, v{TMP}''')
    stamp(10)
    cstamp(2) if OPT['ds'] == 5 else None
    wfree = [TMP2] + slots[OPT['lahead'] + 1:] + (xtra if NAE else [])
    wloc = {}
    nw = 0

    def wread():
        nonlocal nw
        f, j = divmod(nw, 2)
        if nw >= 128 or (j == 0 and not wfree):
            return False
        if j == 0:
            wloc[f] = wfree.pop(0)
        k, ct = divmod(f, 4)
        if OPT['tw']:
            P(f'ds_read_b128 {vr(wloc[f])}, v{vWA} offset:{1024 * f}')
            nw += 1
        else:
            P(f'ds_read_b64_tr_b16 {vr(wloc[f] + 2 * j, 2)}, v{vWA + (ct ^ (2 * (k % 2)))} offset:{28 * k * 128 + 2048 * j}')
        lg.issue(('w', f))
        nw += 1
        return True
    need = {0: 9, 4: 11, 6: 12}

    def set_lim(v):
        nonlocal lim
        lim = v

    def f_flags(nm, loads, nreg, newlim):
        fq.append((1, lambda: lg.force0()))
        for r in range(nreg):
            f_txt(f's_xor_b32 s{4 + r}, s{4 + r}, s{sTAG}')
        if nreg == 8:
            f_txt('s_or_b64 s[4:5], s[4:5], s[6:7]')
            f_txt('s_or_b64 s[6:7], s[8:9], s[10:11]')
        f_txt(f's_or_b64 s[4:5], s[4:5], s[6:7]\ns_cbranch_scc1 {nm}\n{nm}_bk:', 2)
        fq.append((0, lambda: set_lim(newlim)))
        cold.append(lambda: (spoll(nm, loads, nreg), P(f's_branch {nm}_bk')))
    for n in range(NA):
        t, k = order[n]
        if OPT['ds'] == 6 and n % LST == 0 and 0 < n <= NT:
            stamp(n // LST)
        for td, dn in dump_n.items():
            if td in need and n == dn - 4:
                f_txt(f'ds_read_b128 {vr(TMP)}, v{vSy} offset:16', 1, 'c')
                if td == 0:
                    f_txt(f'ds_read_b128 {vr(TMP2)}, v{vSy}', 1, 'c')
            if td in need and n == dn - 2:
                fq.append((1, lambda: lg.wait('c')))
                f_chk(f'L_d{td}', TMP, 16, need[td])
                if td == 0:
                    f_chk('L_d1l', TMP2, 0, 8)
            if n == dn + OPT['sk'] - 1:
                fq.append((1, lambda td=td: lg.wait(('d', td))))
                if td % 2:
                    if td == 1:
                        fq.append((0, lambda: vm.wait(lastcw[0])))
                    f_txt(f'v_mov_b32 v{vSG2}, {10 + td}')
                    f_txt(f'ds_write_b32 v{vSg}, v{vSG2}', 1, '')
            if n == dn:
                for ct in range(4):
                    f_txt(f'ds_write_b128 v{vDA + ct}, {vr(acc(td) + 4 * ct)} offset:{DUMPF + 4096 * (td % 4)}', OPT['dc'], ('d', td))
        if NAE and n == OPT['nb'] - OPT['bd']:
            for x in BL.split('\n'):
                f_txt(x)
        if (NAE and n == OPT['nb']) or (OPT['f1'] and n == 0):
            f_flags('L_pbb', BL, 4, NT)
        if n == OPT['on'] - LST:
            for x in ol(sOF).split('\n'):
                f_txt(x)
        if n == OPT['on']:
            f_flags('L_po', ol(sOF), 8, NA)
        if (t, k) == (8, 13):
            for c_ in range(4):
                f_txt(f'v_xor_b32 v{vDA + c_}, {32 * c_}, v{vSG2 + 1}')
        if n in (9, 30, 44, 58):
            jitter()
        stamp(11) if n == 4 * LST else None
        stamp(12) if n == NT else None
        if k == 0 and t >= (4 if NAE else 2):
            assert lg.done >= lg.tags[('d', t - 4 if (t < 6 and NAE) else t - 2)], (t, 'dump not drained')
        while n not in aloc:
            if can_load(n):
                load1()
            else:
                fq.pop(0)[1]()
        vm.wait(('a', n))
        for ct in range(4):
            a = acc(t) + 4 * ct
            if t == 8:
                f = 4 * k + ct
                if ct % 2 == 0:
                    while nw < 2 * f + 4:
                        assert wread()
                    lg.wait(('w', f + 1))
                P(mfma(a, wloc[f], aloc[n], None if k == 0 else a))
                if f:
                    wfree.append(wloc[f - 1])
            else:
                P(mfma(a, LW + 16 * k + 4 * ct, aloc[n], None if k == 0 else a))
                if t == 7 and 4 * k + ct:
                    wfree.append(LW + 16 * k + 4 * ct - 4)
            bud = 2 if ct < 3 else 1
            if t == 8 and ct == 1:
                bud = 1
            if ct in (0, 2) and can_load(n):
                load1()
                bud -= 2
            elif ct in (0, 2) and W2.grp and (nxt >= lim or not NAE):
                W2.cw()
                lastcw[0] = vm.n
                bud -= 2
            while t == 8 and nw < min(128, 2 * (4 * k + ct) + OPT['wl']):
                assert wread()
                bud -= 1
            if fq and bud <= 0 and t == 8 and ct == 0:
                bud = 1
            while bud > 0:
                if fq:
                    c, fn = fq.pop(0)
                    fn()
                    bud -= c
                elif n >= OPT['ws'] and wread():
                    bud -= 1
                else:
                    break
        (free if nxt < NA else wfree).append(aloc[n])
        if n == dump_n[0]:
            while W2.grp:
                W2.cw()
                lastcw[0] = vm.n
    while fq:
        fq.pop(0)[1]()
    stamp(13)
    cstamp(4) if OPT['ds'] == 5 else None
    if OPT['lp']:
        P('s_setprio 2')
    for ct in range(4):
        for r in (2 * ct, 2 * ct + 1):
            P(f'v_cvt_pk_bf16_f32 v{LACC + r}, v{LACC + 2 * r}, v{LACC + 2 * r + 1}')
        P(f'ds_write_b64 v{vDA + ct}, {vr(LACC + 2 * ct, 2)}')
    P('s_waitcnt lgkmcnt(0)')
    stamp(14)
    P('s_barrier\ns_branch L_EXIT')
    for fn in cold:
        fn()


vmh = L_phase1(OPT['qf'])
P.label('L_LQ')
vmq = L_phase1(1 - OPT['qf'])
L_phase2(vmq)
P.label('L_IDLE')
if OPT['ipl']:
    P(f'''s_bfe_u32 s{sT1}, s2, 0x20003
v_min_u32 v4, 55, v0
v_lshlrev_b32 v4, 7, v4''')
    if OPT['ipl'] & 1:
        P(f's_lshl_b32 s{sT2}, s{sT1}, 2\ns_add_u32 s{sT2}, s{sT2}, s{sI}\ns_mul_i32 s{sT2}, s{sT2}, {56 * 128}\ns_add_u32 s{sT2}, s{sT2}, {3 * 16 * 56 * 128}')
        for n in range(4):
            P(f'buffer_load_dword v5, v4, {srd(SWO)}, s{sT2} offen\ns_sub_u32 s{sT2}, s{sT2}, {16 * 56 * 128}')
    if OPT['ipl'] & 2:
        P(f'''s_lshl_b32 s{sT1}, s{sT1}, 1
s_add_u32 s{sT1}, s{sT1}, s{sRT}
s_sub_u32 s{sT1}, s{sT1}, 8
s_lshl_b32 s{sT1}, s{sT1}, 2
s_add_u32 s{sT1}, s{sT1}, s{sI}
s_mul_i32 s{sT1}, s{sT1}, {16 * 896}''')
        for n in range(2):
            P(f'buffer_load_dword v5, v4, {srd(SX)}, s{sT1} offen\ns_add_u32 s{sT1}, s{sT1}, {8 * 896}')
P('s_branch L_EXIT')

CW = 112
CX = 144
CHX = 168
cXA = 180
cHA = 182
cWA = 184
cWB = 190
cST = 196
cSO = 202
cBE = 204
cR = 196
cKXW, cHW, cPM, cONE = 216, 217, 219, 104
cM16, cM48, cL16, cCSA, cCSH = 221, 222, 223, 224, 225
cVW, cVWH, cVR, cKX, cSY, cSG = 226, 227, 228, 229, 230, 231
cF = 252
cBA, cBB, cBA0 = 232, 236, 240
cT = 244

MUTE = False
if OPT['pad'] >= 0:
    P('.p2align 12')
    if OPT['pad']:
        P('.fill %d, 4, 0xbf800000' % (OPT['pad'] // 4))
P.label('L_C')
vmS = Q(P, 'vmcnt', 63)
if True:
    vS = 16
    P('s_setprio 1')
    stats_rows()
    P('s_waitcnt lgkmcnt(0)')
    mk_srd(SX, 4, 2048 * 896)
    stats_load(vmS)
    if OPT['swarm']:
        P(f's_lshl_b32 s{sT0}, s{sT3}, 4\ns_and_b32 s{sT0}, s{sT0}, 0xffffff80\ns_add_u32 s{sT0}, s{sT0}, {WS_STATS}')
        P(f's_load_dword s10, s[20:21], s{sT0}\ns_load_dword s11, s[20:21], s{sT0} offset:64')
    P(f's_load_dword s{sTAG}, s[20:21], 0')
P(f'''v_mov_b32 v{cSY}, {SYNC}
v_lshl_add_u32 v{cSG}, s{sI}, 2, v{cSY}
v_add_u32 v{cSG}, 16, v{cSG}
v_mov_b32 v12, 0
v_lshlrev_b32 v13, 2, v0
v_add_u32 v13, {SYNC}, v13
ds_write_b32 v13, v12
v_lshlrev_b32 v{cL16}, 4, v0
v_and_b32 v11, 15, v0
v_lshrrev_b32 v10, 4, v0
v_lshrrev_b32 v13, 1, v11
v_xor_b32 v13, v13, v10
v_lshlrev_b32 v13, 4, v13
v_lshl_add_u32 v13, v11, 7, v13
s_lshl_b32 s{sT0}, s{sI}, 12
v_add_u32 v{cXA}, s{sT0}, v13
v_xor_b32 v{cXA + 1}, 64, v{cXA}
v_add_u32 v{cHA}, {HALO}, v13
v_xor_b32 v{cHA + 1}, 64, v{cHA}
v_and_b32 v12, 1, v10
v_mul_u32_u24 v12, 1792, v12
v_lshl_add_u32 v12, v11, 3, v12
s_mul_i32 s{sT0}, s{sISQ}, {CSB[0] - CSB[1]}
s_add_u32 s{sT0}, s{sT0}, {CS - CSB[0]}
v_lshrrev_b32 v14, 1, v10
v_mul_lo_u32 v14, s{sT0}, v14
v_sub_u32 v12, v12, v14
v_add_u32 v{cCSA}, {CS}, v12
v_lshlrev_b32 v12, 4, v11
v_add_u32 v{cSO + 1}, {ST}, v12
s_lshl_b32 s{sT0}, s{sI}, 9
v_add_u32 v{cSO}, s{sT0}, v{cSO + 1}
v_mov_b32 v{cBE + 1}, 0
v_mov_b32 v{cBE + 5}, 0
v_mov_b32 v{cBE + 9}, 0
v_mov_b32 v{cBE + 2}, 0
v_mov_b32 v{cBE + 3}, 0
v_mov_b32 v{cBE + 6}, 0
v_mov_b32 v{cBE + 7}, 0
v_mov_b32 v{cBE + 10}, 0
v_mov_b32 v{cBE + 11}, 0
s_lshl_b32 s{sXO}, s{sRB}, 2
s_add_u32 s{sXO}, s{sXO}, s{sI}
s_mul_i32 s{sA0}, s{sXO}, {2 * NS * 1024}
s_add_u32 s{sA0}, s{sA0}, {WS_ACT}
s_lshl_b32 s{sA1}, s{sRB}, 4
s_add_u32 s{sA1}, s{sA1}, s{sCG}
s_lshl_b32 s{sA1}, s{sA1}, 10
s_lshl_b32 s{sT1}, s{sI}, {FS}
s_add_u32 s{sA1}, s{sA1}, s{sT1}
s_add_u32 s{sA1}, s{sA1}, {WS_FLAGS}''')
stamp(0) if OPT['ds'] != 7 else None
mk_srd(SWS, 20, WS_BYTES)
mk_srd(SOUT, 16, 2048 * 896)
P(f's_cmp_eq_u32 s{sISQ}, 1\ns_cbranch_scc1 L_CQ')
if OPT['hop']:
    P('s_branch L_CH')
    P.label('L_warm')
    P('s_mov_b64 exec, 0')
    for w_ in range(1, 4):
        P(f's_cmp_eq_u32 s{sI}, {w_}\ns_cbranch_scc1 L_hop{w_}')
    P('s_branch L_hop0')
    P.label('L_wret')
    P(f's_mov_b64 exec, -1\ns_cmp_eq_u32 s{sISQ}, 1\ns_cbranch_scc1 L_wrQ\ns_branch L_wrH')
    P.label('L_CH')


SLOW = []


def C_phase1(isq):
    t = 'Q' if isq else 'H'
    lg = Q(P, 'lgkmcnt', 15)
    LA_, HOLD, WSTEP, TM = OPT['la'], OPT['hold'], OPT['wstep'], OPT['tm']
    wsl = WSL
    if isq:
        q_addr_parts(12, 13, 14, 15)
        for e in range(2):
            for t01 in range(2):
                q_addr(cWB + 2 * e + t01, 56 * e + 32 * t01, 12, 13, 14)
        P(f'''s_bitcmp1_b32 s{sI}, 0
s_cselect_b64 vcc, -1, 0
s_lshr_b32 s{sT0}, s{sI}, 1
s_add_u32 s{sT0}, s{sT0}, 1
s_lshl_b32 s{sT0}, s{sT0}, 13
v_cndmask_b32 v{cWB + 4}, v{cWB}, v{cWB + 2}, vcc
v_cndmask_b32 v{cWB + 5}, v{cWB + 1}, v{cWB + 3}, vcc
v_add_u32 v{cWB + 4}, s{sT0}, v{cWB + 4}
v_add_u32 v{cWB + 5}, s{sT0}, v{cWB + 5}
s_lshl_b32 s{sT0}, s{sI}, 8
s_add_u32 s{sT0}, s{sT0}, 512
v_add_u32 v{cCSH}, s{sT0}, v{cCSA}
v_cmp_gt_u32 vcc, 48, v0
v_cndmask_b32 v{cM48}, 0, -1, vcc
v_lshlrev_b32 v13, 2, v10
v_sub_u32 v13, v11, v13
v_mov_b32 v15, 0xf149f2ca''')
        for r in range(4):
            for (d, add) in ((cBA, 16), (cBB, 0)):
                P(f'''v_add_u32 v14, {add - r}, v13
v_and_b32 v14, -15, v14
v_cmp_eq_u32 vcc, 0, v14
v_cndmask_b32 v{d + r}, v15, 0, vcc''')
        P(f's_cmp_eq_u32 s{sXO}, 0\ns_cselect_b64 vcc, -1, 0')
        for r in range(4):
            P(f'v_cndmask_b32 v{cBA0 + r}, v{cBA + r}, v15, vcc')
        P(f'''v_mul_u32_u24 v13, {VSTR}, v11
v_lshl_add_u32 v13, v10, 3, v13
s_mul_i32 s{sT0}, s{sI}, {32 * VSTR}
s_add_u32 s{sT1}, s{sT0}, {VREG + 16 * VSTR}
v_add_u32 v{cVW}, s{sT1}, v13
s_and_b32 s{sT1}, s{sI}, 1
s_mul_i32 s{sT1}, s{sT1}, {144 * VSTR}
s_add_u32 s{sT1}, s{sT1}, {VREG}
v_add_u32 v{cVWH}, s{sT1}, v13
v_lshrrev_b32 v13, 2, v0
v_mul_u32_u24 v13, {VSTR}, v13
v_and_b32 v14, 3, v0
v_lshl_add_u32 v13, v14, 3, v13
s_add_u32 s{sT0}, s{sT0}, {VREG}
v_add_u32 v{cVR}, s{sT0}, v13
s_lshl_b32 s{sT0}, s{sI}, 11
s_add_u32 s{sT0}, s{sT0}, {KX}
v_add_u32 v{cKX}, s{sT0}, v{cL16}
s_add_u32 s{sT1}, s{sT0}, 2048
s_cmp_eq_u32 s{sI}, 3
s_cselect_b32 s{sT1}, {DUMMY}, s{sT1}
v_add_u32 v{cKXW}, s{sT1}, v{cL16}
v_add_u32 v13, 32, v{cVWH}
v_mov_b32 v14, {SYNC + 128}
v_cmp_gt_u32 vcc, 48, v0
v_cndmask_b32 v13, v14, v13, vcc
s_lshl_b32 s{sT0}, s{sI}, 10
s_add_u32 s{sT0}, s{sT0}, {KX}
v_add_u32 v14, s{sT0}, v{cL16}
v_add_u32 v15, 8, v14
s_cmp_ge_u32 s{sI}, 2
s_cselect_b64 vcc, -1, 0
v_cndmask_b32 v{cHW}, v14, v{cVWH}, vcc
v_cndmask_b32 v{cHW + 1}, v15, v13, vcc
v_and_b32 v13, 1, v0
v_lshlrev_b32 v13, 4, v13
v_mov_b32 v14, 0xffff
v_lshlrev_b32 v{cPM}, v13, v14
v_mov_b32 v{cONE}, 0x3f803f80
v_mov_b32 v{cONE + 1}, 0x3f803f80
v_mov_b32 v{cONE + 2}, 0x3f803f80
v_mov_b32 v{cONE + 3}, 0x3f803f80''')
        nb = 6
        pairs = [(1, 0), (2, 0), (1, 1), (2, 1), (0, 0), (0, 1)]
        tiles = [(pi, t01) for pi in range(4) for t01 in range(2)] + [('H', 0), ('H', 1)] + \
                [(pi, t01) for pi in range(4, 6) for t01 in range(2)]
    else:
        h_addr(cWB, 12, 13)
        P(f'v_xor_b32 v{cWB + 1}, 32, v{cWB}')
        nb = 2
        tiles = [(pi, t01) for pi in range(6 if OPT['abl'] & 16 else 7) for t01 in range(2)]

    TK = 2 if isq else OPT['tk']

    def set_slot(s):
        for b in range(nb):
            P(f'v_add_u32 v{cWA + b + (2 if (s == 6 and TK > 2) else 0)}, {wsl[s % 3]}, v{cWB + b}')

    def xbuf(ks):
        if TK > 2 and ks >= 12:
            return ks - 10
        return 2 if (TM and ks == 13) else ks % 2

    units = []

    def unit(tile, ks):
        pi, t01 = tile
        u = dict(tile=tile, ks=ks, pre=[])
        if ks == 'E':
            u['stage'] = 6
            if pi == 'H':
                u['rd'] = [('b64', cCSH, 128 * t01)]
            elif isq:
                sg, e = pairs[pi]
                u['rd'] = [('b64', cCSA, 128 * (4 * sg + 2 * e + t01))]
            else:
                u['rd'] = [('b64', cCSA, 128 * (2 * pi + t01))]
        else:
            s, kk = divmod(ks, 2)
            u['stage'] = 6 if ks >= 14 - TK else s
            if pi == 'H':
                a, o, o2 = cWA + 4 + t01, kk * 4096, 512
            elif isq:
                sg, e = pairs[pi]
                a, o, o2 = cWA + 2 * e + t01, sg * 8192 + kk * 4096, 512
            else:
                a, o, o2 = cWA + t01 + (2 if (s == 6 and TK > 2) else 0), pi * 64 + kk * 32 * 448, 4 * 448
            u['rd'] = [('tr', a, o), ('tr', a, o + o2)]
        if pi == 'H':
            u['mm'] = [(96 + 4 * t01, cBE + 8 if ks == 'E' else CHX + 4 * xbuf(ks))]
        else:
            u['mm'] = [(16 * pi + 8 * tt + 4 * t01, cBE + 4 * tt if ks == 'E' else CX + 8 * xbuf(ks) + 4 * tt)
                       for tt in range(2)]
        return u
    seen_x, seen_h = set(), set()
    order = []
    for ks in range(14 - TK if TM else 14):
        order += [(tl, ks) for tl in tiles]
    if TM:
        for tl in tiles:
            order += [(tl, ks) for ks in range(14 - TK, 14)] + [(tl, 'E')]
    else:
        order += [(tl, 'E') for tl in tiles]
    for tl, ks in order:
        u = unit(tl, ks)
        if ks != 'E':
            s, kk = divmod(ks, 2)
            if tl[0] == 'H':
                if ks not in seen_h:
                    seen_h.add(ks)
                    u['pre'].append(f'ds_read_b128 {vr(CHX + 4 * xbuf(ks))}, v{cHA + kk} offset:{halo_off(s)}')
            elif ks not in seen_x:
                seen_x.add(ks)
                for tt in range(2):
                    u['pre'].append(f'ds_read_b128 {vr(CX + 8 * xbuf(ks) + 4 * tt)}, v{cXA + kk} offset:{XS[s % 3] + 2048 * tt}')
        elif 'E' not in seen_x:
            seen_x.add('E')
            for tt in range(2):
                u['pre'].append(f'ds_read_b32 v{cBE + 4 * tt}, v{cSO} offset:{256 + 256 * tt}')
                if isq:
                    u['pre'].append(f'ds_read_b32 v{cR + 2 * tt}, v{cSO} offset:{256 + 256 * tt + 8}')
        elif tl == ('H', 0):
            u['pre'].append(f'ds_read_b32 v{cBE + 8}, v{cSO + 1}')
            u['pre'].append(f'ds_read_b32 v{cR + 4}, v{cSO + 1} offset:8')
        units.append(u)
    NU = len(units)
    last_ring = max(n for n, u in enumerate(units) if u['ks'] != 'E')
    done_at = {}
    for n, u in enumerate(units):
        done_at[u['tile'][0]] = n

    def rd_list(n):
        u = units[n]
        slot = CW + 4 * (n % 8)
        out = list(u['pre'])
        for j, (kind, a, o) in enumerate(u['rd']):
            if kind == 'tr':
                out.append(f'ds_read_b64_tr_b16 {vr(slot + 2 * j, 2)}, v{a} offset:{o}')
            else:
                out.append(f'ds_read_b32 v{slot}, v{a} offset:{o}')
        return out

    def pack(b):
        return [f'v_cvt_pk_bf16_f32 v{b + i}, v{b + 2 * i}, v{b + 2 * i + 1}' for i in range(4)]

    def scale(b, r):
        return [f'v_mul_f32 v{b + i}, v{b + i}, v{r}' for i in range(8)]

    def epi(pi):
        out = []
        if not isq:
            for tt in range(2):
                b = 16 * pi + 8 * tt
                if OPT['relu'] == 0:
                    out += [f'v_max_f32 v{b + i}, 0, v{b + i}' for i in range(8)]
                out += pack(b)
                if OPT['relu'] == 1:
                    out += [f'v_pk_max_i16 v{b + i}, v{b + i}, 0' for i in range(4)]
                out.append(f'buffer_store_dwordx4 {vr(b)}, v{cL16}, {srd(SWS)}, s{sT2 + tt} offen offset:{(pi % 4) * 1024} ' + ('sc1', '', 'nt', 'sc0 sc1')[OPT['hst']])
            if pi == 3:
                out += [f's_add_u32 s{sT2}, s{sT2}, 4096', f's_add_u32 s{sT3}, s{sT3}, 4096']
            if OPT['na'] and pi == OPT['fap']:
                k0 = [x.startswith('buffer_store') for x in out].index(True)
                out.insert(k0, f'''s_waitcnt vmcnt({2 * (pi - OPT['na'])})
s_mov_b32 exec_hi, 0
buffer_store_dword v{cT + 2}, v{cT + 3}, {srd(SWS)}, s{sA1} offen offset:512 sc1
s_mov_b32 exec_hi, -1''')
        elif pi == 'H':
            out += [f'v_rcp_f32 v{cR + 4}, v{cR + 4}'] + scale(96, cR + 4) + pack(96)
            out += [f'ds_write_b64 v{cHW + t01}, {vr(96 + 2 * t01, 2)}' for t01 in range(2)]
            out += ['MARK', 'NOP', 'NOP', 'NOP', 'NOP', 'PUB']
        else:
            sg, e = pairs[pi]
            if pi == 0:
                out += [f'v_rcp_f32 v{cR + 2 * tt}, v{cR + 2 * tt}' for tt in range(2)]
                out += [f'v_mul_f32 v{cR + 2 * tt + 1}, 0x3e8b9a4d, v{cR + 2 * tt}' for tt in range(2)]
            for tt in range(2):
                b = 16 * pi + 8 * tt
                if sg:
                    out += scale(b, cR + 2 * tt)
                out += pack(b)
                if sg == 0:
                    out += [f'v_and_b32 v{b + i}, v{b + i}, v{cM48}' for i in (2, 3)]
                if sg == 1 and tt == 1:
                    out.append(f'ds_write_b128 v{cKXW}, {vr(b)} offset:{1024 * e}')
                if sg == 2:
                    o = e * 144 * VSTR + tt * 16 * VSTR
                    out.append(f'ds_write_b64 v{cVW}, {vr(b, 2)} offset:{o}')
                    out.append(f's_mov_b32 exec_hi, 0xffff\nds_write_b64 v{cVW}, {vr(b + 2, 2)} offset:{o + 32}\ns_mov_b32 exec_hi, -1')
        return out

    set_slot(0)
    P(f's_waitcnt lgkmcnt(0)\ns_mul_i32 s{sTAG}, s{sTAG}, 0x9e3779b1\ns_add_u32 s{sTAG}, s{sTAG}, 0x7f4a7c15')
    if True:
        vmS.done = 0
        vmS.wait('stats')
        for x in stats_body():
            P(x)
        stats_store(Q(P, 'vmcnt', 63))
        P('s_setprio 0')
        if OPT['hop']:
            P('s_branch L_warm')
            P.label(f'L_wr{t}')
        stamp(13) if OPT['ds'] == 3 else None
    if not isq:
        P(f'''s_mul_i32 s{sT2}, s{sIDX}, {7 * 1024}
s_add_u32 s{sT2}, s{sT2}, s{sA0}
s_add_u32 s{sT3}, s{sT2}, {NS * 1024}
v_mov_b32 v{cT + 2}, s{sTAG}
v_lshrrev_b32 v{cT + 3}, 2, v{cL16}''')
    P('s_barrier')
    stamp(1)
    cstamp(2)
    pend = []
    fill = []
    nr = 0
    cur_stage = 0
    b7_done = False

    def queue_reads(n):
        l = rd_list(n)
        for j, x in enumerate(l):
            pend.append((x, ('w', n) if j == len(l) - 1 else None))

    def flush(k=1000):
        while pend and k > 0:
            x, tag = pend.pop(0)
            P(x)
            lg.issue(tag)
            k -= 1

    slow = []
    late = []

    def emit_fill():
        x = fill.pop(0)
        if x == 'MARK':
            lg.tags['kv'] = lg.n
        elif x == 'PUB':
            lg.wait('kv')
            P(f'v_mov_b32 v{cT + 6}, 1\nds_write_b32 v{cSG}, v{cT + 6} offset:16')
            lg.issue()
        elif x != 'NOP':
            P(x)
            if 'ds_write' in x:
                lg.issue()
    last_of = {}
    first_of = {}
    for n, u in enumerate(units):
        if u['ks'] != 'E':
            last_of[u['stage']] = n
        first_of.setdefault(u['stage'], n)
    while nr < LA_:
        queue_reads(nr)
        nr += 1
    flush()
    ups = len(tiles) * 2
    for n in range(NU):
        u = units[n]
        w = n
        if n % WSTEP == 0:
            while w + 1 < min(n + WSTEP, NU) and ('w', w + 1) in lg.tags:
                w += 1
        lg.wait(('w', w))
        for j, (acc, b) in enumerate(u['mm']):
            P(mfma(acc, CW + 4 * (n % 8), b, None if u['ks'] == 0 else acc))
            if j == 0 and nr < NU and units[nr]['stage'] != cur_stage and units[nr]['stage'] <= 5 + OPT['b6']:
                if nr - n <= LA_ - HOLD:
                    cur_stage = units[nr]['stage']
                    set_slot(cur_stage)
                    if HOLD:
                        lg.all()
                    stamp(3) if cur_stage == 4 else None
                    P('s_barrier')
                    stamp(5) if cur_stage == 4 else None
                    stamp(6) if cur_stage == 6 else None
                    while nr <= n + LA_:
                        queue_reads(nr)
                        nr += 1
                    flush()
            elif j == 0 and nr < NU:
                s1 = units[nr]['stage']
                if s1 != cur_stage:
                    cur_stage = s1
                    set_slot(s1)
                    if OPT['ds'] == 2:
                        stamp({5: 9, 6: 13}[s1])
                    lg.wait(('f', s1))
                    stamp(5) if OPT['ds'] == 8 else None
                    lds_cmp(cF, s1 + 1)
                    P(f's_cbranch_vccz L_{t}w{s1}_ok')
                    lds_spin(f'L_{t}w{s1}', cF, cSY, 0, s1 + 1, 0)
                    P.label(f'L_{t}w{s1}_ok')
                    stamp(6) if s1 == 6 else None
                    stamp(10) if (s1 == 5 and OPT['ds'] == 2) else None
                queue_reads(nr)
                if nr + OPT['fla'] == first_of[6] and not OPT['b6']:
                    pend.append((f'ds_read_b128 {vr(cF)}, v{cSY}', ('f', units[nr + OPT['fla']]['stage'])))
                nr += 1
            last = j == len(u['mm']) - 1
            flush(1000 if last else (len(pend) + 1) // 2)
            for _ in range(OPT['nfq'] if isq else OPT['nfill']):
                if fill:
                    emit_fill()
        if n in (5 * ups + 3, NU - 20, NU - 1):
            jitter()
        if n == last_of[u['stage']] and u['stage'] >= 5 + OPT['b6']:
            if u['stage'] == 5:
                lds_signal(cSG, cT + 7, u['stage'] + 1)
                lg.issue()
            stamp(7) if u['stage'] == 6 else None
        if n == (NU - 1 if (isq and not OPT['qp']) else first_of[OPT['ps']] - (0 if OPT['ps'] == 6 else 3)) and OPT['prio']:
            P('s_setprio %d' % OPT['prio'])
        for pi, dn in done_at.items():
            if dn == n - 2:
                for x in epi(pi):
                    (late if (OPT['qw'] and ('ds_write' in x or x in ('MARK', 'NOP', 'PUB'))) else fill).append(x)
    SLOW.extend((t, s1) for s1 in slow)
    stamp(8)
    cstamp(4)
    for pi, dn in done_at.items():
        if dn >= NU - 2:
            fill += epi(pi)
    if not isq:
        while fill:
            emit_fill()
        stamp(9)
        lds_signal(cSG, cT + 1, 9)
        P('s_waitcnt vmcnt(0)\ns_branch L_CFLAG')
        return
    if late:
        q0 = fill.index(epi(4)[0]) if epi(4)[0] in fill else 0
        fill[q0:q0] = late
    if 'PUB' in fill:
        k0 = fill.index('PUB')
        fill[:] = fill[:k0] + fill[k0 + 1:k0 + 9] + ['PUB'] + fill[k0 + 9:]
    while fill:
        emit_fill()
    stamp(3) if OPT['ds'] == 1 else None
    KP, VO, S = 136, 112, 144
    au = [(0, 1), (1, 1), (0, 0), (1, 0)]
    P(f'ds_read_b128 {vr(cF)}, v{cSY} offset:32')
    for n, (e, tq) in enumerate(au):
        P(mfma(S + 8 * n + 4, 32 * e + 8 * tq, 64 + 16 * e + 8 * tq, cBB))
    for n, (e, tq) in enumerate(au[:2]):
        P(mfma(S + 8 * n, 32 * e, 64 + 16 * e + 8 * tq, cBA))
    stamp(5) if OPT['ds'] == 1 else None
    P('s_waitcnt lgkmcnt(0)')
    lds_cmp(cF, 1)
    P('s_cbranch_vccz L_attp_ok')
    lds_spin('L_attp', cF, cSY, 32, 1, 0)
    P.label('L_attp_ok')
    jitter()
    stamp(6) if OPT['ds'] == 1 else None
    for e in range(2):
        P(f'ds_read_b128 {vr(KP + 4 * e)}, v{cKX} offset:{1024 * e}')
    for e in range(2):
        for dt in range(2):
            for kt in range(3):
                P(f'ds_read_b64_tr_b16 {vr(VO + 12 * e + 6 * dt + 2 * kt, 2)}, v{cVR} offset:{e * 144 * VSTR + kt * 16 * VSTR + 32 * dt}')
    M = cT
    U = range(4)

    def sel(n, i):
        P(f'v_max_f32 v{S + 8 * n + i}, v{S + 8 * n + 2 * i}, v{S + 8 * n + 2 * i + 1}')
    for n in (0, 1):
        for i in range(4):
            sel(n, i)
    P('s_waitcnt lgkmcnt(12)')
    for n, (e, tq) in list(enumerate(au))[2:]:
        P(mfma(S + 8 * n, KP + 4 * e, 64 + 16 * e + 8 * tq, cBA0))
    for ns in ((0, 1), (2, 3)):
        if ns[0]:
            for n in ns:
                for i in range(4):
                    sel(n, i)
        for n in ns:
            P(f'v_max3_f32 v{M + n}, v{S + 8 * n}, v{S + 8 * n + 1}, v{S + 8 * n + 2}')
        for n in ns:
            P(f'v_max_f32 v{M + n}, v{M + n}, v{S + 8 * n + 3}')
        P(f'v_permlane16_swap_b32 v{M + ns[0]}, v{M + ns[1]}\nv_max_f32 v{M + ns[0]}, v{M + ns[0]}, v{M + ns[1]}')
    P(f'''v_permlane32_swap_b32 v{M}, v{M + 2}
v_max_f32 v{M}, v{M}, v{M + 2}
v_mov_b32 v{M + 2}, v{M}
v_permlane32_swap_b32 v{M}, v{M + 2}
v_mov_b32 v{M + 1}, v{M}
v_mov_b32 v{M + 3}, v{M + 2}
v_permlane16_swap_b32 v{M}, v{M + 1}
v_permlane16_swap_b32 v{M + 2}, v{M + 3}''')
    for n in U:
        P(f'v_mul_f32 v{M + n}, v{cR + 1 + 2 * au[n][1]}, v{M + n}')
    for n in U:
        for i in range(4):
            P(f'v_fma_f32 v{S + 8 * n + i}, v{S + 8 * n + i}, v{cR + 1 + 2 * au[n][1]}, -v{M + n}')
    for n in U:
        for i in range(4):
            P(f'v_exp_f32 v{S + 8 * n + i}, v{S + 8 * n + i}')
    stamp(7) if OPT['ds'] == 1 else None
    P(f'''s_lshl_b32 s{sT2}, s{sIDX}, 11
s_add_u32 s{sT2}, s{sT2}, s{sA0}
s_add_u32 s{sT2}, s{sT2}, {56 * 1024}
s_add_u32 s{sT3}, s{sT2}, {NS * 1024}
s_waitcnt lgkmcnt(0)''')
    O = 64

    def pv(n):
        e, tq = au[n]
        P(mfma(S + 8 * n + 4, cONE, S + 8 * n, None))
        for dt in range(2):
            P(mfma(O + 8 * n + 4 * dt, VO + 12 * e + 6 * dt + 2 * tq, S + 8 * n, None))
    for n in U:
        for i in range(4):
            P(f'v_cvt_pk_bf16_f32 v{S + 8 * n + i}, v{S + 8 * n + i}, v{S + 8 * n + i}')
        for i in range(4):
            P(f'v_and_b32 v{S + 8 * n + i}, v{S + 8 * n + i}, v{cPM}')
        if n:
            pv(n - 1)
    pv(3)
    stamp(13) if OPT['ds'] == 1 else None
    for n, (e, tq) in enumerate(au):
        P(f'v_rcp_f32 v{M + n}, v{S + 8 * n + 4}')
        for i in range(8):
            P(f'v_mul_f32 v{O + 8 * n + i}, v{O + 8 * n + i}, v{M + n}')
        for x in pack(O + 8 * n):
            P(x)
        P(f'v_and_b32 v{O + 8 * n + 2}, v{O + 8 * n + 2}, v{cM48}\nv_and_b32 v{O + 8 * n + 3}, v{O + 8 * n + 3}, v{cM48}')
        P(f'buffer_store_dwordx4 {vr(O + 8 * n)}, v{cL16}, {srd(SWS)}, s{sT2 + tq} offen offset:{1024 * e} sc1')


C_phase1(0)
P.label('L_CQ')
C_phase1(1)
stamp(9)
lds_signal(cSG, cT + 1, 9)
P('s_waitcnt vmcnt(0)')
P.label('L_CFLAG')
_st = stamp
if OPT['ds'] == 1:
    def stamp(k):
        if k not in (3, 13):
            _st(k)
P(f'''v_lshrrev_b32 v1, 2, v{cL16}
v_mov_b32 v2, s{sTAG}
s_mov_b32 exec_lo, {(1 << OPT['fl']) - 1:#x}
s_mov_b32 exec_hi, 0
buffer_store_dword v2, v1, {srd(SWS)}, s{sA1} offen sc1
s_mov_b64 exec, -1
v_lshrrev_b32 v0, 4, v{cL16}''')
stamp(10)
P(f'''s_cmp_lt_u32 s{sCT}, 7
s_cbranch_scc1 L_P2C''')
if OPT['ipf']:
    P(f'''s_lshr_b32 s{sT0}, s2, 3
s_and_b32 s{sT0}, s{sT0}, 3
s_lshl_b32 s{sT0}, s{sT0}, 1
s_add_u32 s{sRT}, s{sRT}, s{sT0}
s_sub_u32 s{sRT}, s{sRT}, 8
s_and_b32 s{sT0}, s{sRT}, 1
s_lshl_b32 s{sT0}, s{sT0}, 2
s_add_u32 s{sT0}, s{sT0}, s{sI}
s_lshr_b32 s{sFB}, s{sRT}, 1
s_lshl_b32 s{sFB}, s{sFB}, 4
s_add_u32 s{sFB}, s{sFB}, s{sT0}
s_lshl_b32 s{sFB}, s{sFB}, 10
s_add_u32 s{sFB}, s{sFB}, {WS_FLAGS}
s_mul_i32 s{sT2}, s{sRT}, {4 * NS * 1024}
s_add_u32 s{sT2}, s{sT2}, {WS_ACT}
s_mul_i32 s{sT3}, s{sT0}, {LST * 1024}
s_add_u32 s{sT3}, s{sT3}, s{sT2}
v_min_u32 v4, {47 if OPT['abl'] & 16 else 55}, v0
v_lshlrev_b32 v4, 7, v4
v_lshlrev_b32 v6, 7, v0''')
    P(f'''s_and_b32 s{sT0}, s{sRT}, 1
s_mul_i32 s{sT0}, s{sT0}, {8 * NS * 1024}
s_add_u32 s62, s{sT3}, {4 * NS * 1024}
s_sub_u32 s62, s62, s{sT0}
s_mul_i32 s{sT0}, s{sI}, {NS * 1024}
s_add_u32 s{sT2}, s{sT2}, s{sT0}
s_add_u32 s{sT2}, s{sT2}, {56 * 1024}''')
    of_addr(63, sT0, sT1)
    spoll('L_ip1', BL, 4)
    for c_ in str(OPT['ipf']):
        c_ = int(c_)
        if c_ < 8:
            P(f's_add_u32 s{sT0}, s{62 if c_ < 4 else sT3}, {(c_ % 4) * NS * 1024}\nbuffer_load_dword v5, v4, {srd(SWS)}, s{sT0} offen sc1')
        else:
            spoll('L_ip2', ol(63), 8)
            for q_ in range(2):
                P(f'buffer_load_dword v5, v6, {srd(SWS)}, s{sT2} offen sc1\ns_add_u32 s{sT2}, s{sT2}, 8192')
P(f'''s_cmp_lg_u32 s2, 255
s_cbranch_scc1 L_EXIT
s_cmp_lg_u32 s{sWAVE}, 4
s_cbranch_scc1 L_EXIT
v_lshlrev_b32 v3, 12, v0
v_add_u32 v3, {WS_FLAGS}, v3''')
if OPT['bs']:
    P('s_branch L_bump1')
P.label('L_bump')
spin_guard('L_EXIT')
P('s_sleep 32')
P.label('L_bump1')
for n in range(4):
    P(f'buffer_load_dword v{4 + n}, v3, {srd(SWS)}, 0 offen offset:{1024 * n} sc1')
P('s_waitcnt vmcnt(0)')
for n in range(4):
    P(f'v_xor_b32 v{4 + n}, v{4 + n}, v2')
for n in range(1, 4):
    P(f'v_or_b32 v4, v4, v{4 + n}')
P(f'''v_cmp_ne_u32 vcc, 0, v4
s_cbranch_vccnz L_bump
s_mov_b64 exec, 1
buffer_store_dword v2, v1, {srd(SWS)}, 0 offen sc1
s_mov_b64 exec, -1
s_branch L_EXIT''')

for t_, s_ in SLOW:
    lds_spin(f'L_{t_}w{s_}', cF, cSY, 0, s_ + 1, 0)
    P(f's_branch L_{t_}w{s_}_ok')

cX, cSt, cPp, cXu, cG, cD, cE, RO = 8, 16, 24, 40, 56, 72, 104, 112
cDA, cSA, cXO, cPO, cSO2 = 2, 4, 5, 6, 7
sXA, sXH, sPA, sXR = 62, 64, 66, 12
P.label('L_P2C')
jitter()
P('s_setprio %d' % OPT['cprio'])
P(f'''v_lshrrev_b32 v1, 3, v0
v_lshl_add_u32 v1, s{sI}, 3, v1
v_and_b32 v20, 7, v0
v_mul_u32_u24 v{cXO}, 896, v1
v_lshl_add_u32 v{cXO}, v20, 4, v{cXO}
s_mul_i32 s{sXR}, s{sRT}, {64 * 896}
s_lshl_b32 s{sT0}, s{sCT}, 7
s_add_u32 s{sXR}, s{sXR}, s{sT0}
s_add_u32 s{sXR + 1}, s{sXR}, {32 * 896}
buffer_load_dwordx4 {vr(cX)}, v{cXO}, {srd(SX)}, s{sXR} offen
buffer_load_dwordx4 {vr(cX + 4)}, v{cXO}, {srd(SX)}, s{sXR + 1} offen
v_lshlrev_b32 v21, 1, v20
v_xor_b32 v21, v21, v1
v_and_b32 v21, 15, v21
v_lshlrev_b32 v21, 4, v21
v_lshl_add_u32 v{cDA}, v1, 8, v21
v_xor_b32 v{cDA + 1}, 16, v{cDA}
v_xor_b32 v21, v1, v20
v_and_b32 v21, 7, v21
v_lshlrev_b32 v21, 4, v21
v_lshl_add_u32 v21, v1, 7, v21
v_add_u32 v{cSA}, {STILE}, v21
s_lshl_b32 s{sT0}, s{sI}, 10
v_add_u32 v{cPO}, s{sT0}, v{cL16}
v_lshlrev_b32 v{cSO2}, 4, v1
s_xor_b32 s{sXA}, s{sRT}, 1
s_mul_i32 s{sXA}, s{sXA}, 7
s_add_u32 s{sXA}, s{sXA}, s{sCT}
s_lshl_b32 s{sXA}, s{sXA}, 14
s_add_u32 s{sXA}, s{sXA}, {WS_XCH}
s_add_u32 s{sXA + 1}, s{sXA}, 8192
s_mul_i32 s{sPA}, s{sRT}, 7
s_add_u32 s{sPA}, s{sPA}, s{sCT}
s_lshl_b32 s{sPA}, s{sPA}, 14
s_add_u32 s{sPA}, s{sPA}, {WS_XCH}
s_add_u32 s{sPA + 1}, s{sPA}, 8192
s_lshl_b32 s{sT1}, s{sRT}, 10
s_add_u32 s{sT1}, s{sT1}, {WS_STATS + 8}''')
xh_addr(sXH)
XF = OPT['xf']
for n in range(1 if XF else 8):
    P(f'v_mov_b32 v{RO + 2 * n + 1}, s{sTAG}')
if XF:
    P(f's_lshl_b32 s{sT0}, s{sI}, 10\nv_lshl_add_u32 v{RO}, v0, 2, s{sT0}')


if OPT['tw']:
    cA2, cWF = 128, 132
    w2_tr_addr(cA2, 10, 20, 21)
    P(f's_mul_i32 s{sT0}, s{sI}, {4 * 28 * 128}\ns_add_u32 s{sT0}, s{sT0}, {WO}')
    for ct in range(4):
        P(f'v_add_u32 v{cA2 + ct}, s{sT0}, v{cA2 + ct}')
    P(f's_lshl_b32 s{sT0}, s{sI}, 14\ns_add_u32 s{sT0}, s{sT0}, {WO}\nv_add_u32 v20, s{sT0}, v{cL16}')
    lds_poll('L_cwl', cF, cSY, 0, 10, 2)
    for k in range(4):
        for ct in range(4):
            for j in range(2):
                P(f'ds_read_b64_tr_b16 {vr(cWF + 16 * k + 4 * ct + 2 * j, 2)}, v{cA2 + (ct ^ (2 * (k % 2)))} offset:{28 * k * 128 + 2048 * j}')
    P('s_waitcnt lgkmcnt(0)')
    lds_signal(cSG, cT, 10)
    lds_poll('L_cwt', cF, cSY, 16, 10, 0)
    P('s_setprio 0')
    for f in range(16):
        P(f'ds_write_b128 v20, {vr(cWF + 4 * f)} offset:{1024 * f}')
    P('s_setprio %d' % OPT['cprio'])


def dump_reads(rd):
    for part in range(4):
        for hf in range(2):
            P(f'ds_read_b128 {vr(cD + 8 * part + 4 * hf)}, v{cDA + hf} offset:{DUMPF + 16384 * part + 8192 * rd}')


for rd in range(2):
    lds_poll(f'L_cr{rd}', cF, cSY, 0, 11 + 2 * rd, 1)
    jitter()
    stamp(11) if rd else None
    dump_reads(rd)
    P('s_waitcnt lgkmcnt(4)')
    for r in range(8):
        P(f'v_add_f32 v{cD + r}, v{cD + r}, v{cD + 8 + r}')
    P('s_waitcnt lgkmcnt(0)')
    lds_signal(cSG, cT, 11 + rd)
    for r in range(8):
        P(f'v_add_f32 v{cD + 16 + r}, v{cD + 16 + r}, v{cD + 24 + r}')
    for r in range(8):
        P(f'v_add_f32 v{cD + r}, v{cD + r}, v{cD + 16 + r}')
    for r in range(4):
        P(f'v_cvt_pk_bf16_f32 v{RO + 8 * rd + (4 + r if XF else 2 * r)}, v{cD + 2 * r}, v{cD + 2 * r + 1}')
    if XF:
        P(f'''buffer_store_dwordx4 {vr(RO + 8 * rd + 4)}, v{cPO}, {srd(SWS)}, s{sXA} offen sc1
s_waitcnt vmcnt(0)
s_mov_b32 exec_hi, 0
buffer_store_dword v{RO + 1}, v{RO}, {srd(SWS)}, s{sXA + 1} offen offset:896 sc1
s_mov_b32 exec_hi, -1''')
    else:
        for u in range(2):
            P(f'buffer_store_dwordx4 {vr(RO + 8 * rd + 4 * u)}, v{cPO}, {srd(SWS)}, s{sXA + u} offen sc1')
    if rd == 0:
        P(f's_add_u32 s{sXA}, s{sXA}, 4096\ns_add_u32 s{sXA + 1}, s{sXA + 1}, 4096')
        for r2 in range(2):
            P(f'buffer_load_dword v{cSt + 2 * r2}, v{cSO2}, {srd(SWS)}, s{sT1} offen offset:{512 * r2} sc1')
        P('s_waitcnt vmcnt(4)')
        for n in range(8):
            P(f'v_lshlrev_b32 v{cXu + 2 * n}, 16, v{cX + n}\nv_and_b32 v{cXu + 2 * n + 1}, 0xffff0000, v{cX + n}')
stamp(13)
P('s_setprio %d' % OPT['gp'])


def pload(rd):
    for u in range(1 if XF else 2):
        P(f'buffer_load_dwordx4 {vr(cPp + 8 * rd + 4 * u)}, v{cPO}, {srd(SWS)}, s{(sPA, 14)[rd] + u} offen sc1')


def pchk(rd, cnt):
    P(f's_waitcnt vmcnt({cnt})')
    for n in range(4):
        P(f'v_xor_b32 v{cE + n}, s{sTAG}, v{cPp + 8 * rd + 2 * n + 1}')
    P(f'v_or_b32 v{cE}, v{cE}, v{cE + 1}\nv_or3_b32 v{cE}, v{cE}, v{cE + 2}, v{cE + 3}\nv_cmp_ne_u32 vcc, 0, v{cE}')


P(f's_add_u32 s14, s{sPA}, 4096\ns_add_u32 s15, s{sPA + 1}, 4096')


def fetch(rd):
    spoll(f'L_cx{rd}', f's_buffer_load_dword s4, {srd(SWS)}, s{sXH} offset:{4096 * rd} glc', 1)
    stamp(3) if rd else None
    pload(rd)


if not OPT['xo']:
    fetch(0)
    fetch(1)
for rd in range(2):
    if OPT['xo'] == 2 and rd:
        P(f's_cmp_eq_u32 s5, s{sTAG}\ns_cbranch_scc1 L_gotb')
    if OPT['xo']:
        fetch(rd)
    if OPT['xo'] == 2 and rd:
        P.label('L_gotb')
    lds_poll(f'L_cg{rd}', cF, cSY, 0, 15 + 2 * rd, 1 - rd)
    jitter()
    stamp(12) if rd else None
    dump_reads(rd)
    g = cG + 8 * rd
    P('s_waitcnt lgkmcnt(4)')
    for r in range(8):
        P(f'v_add_f32 v{cD + r}, v{cD + r}, v{cD + 8 + r}')
    P('s_waitcnt lgkmcnt(0)')
    for r in range(8):
        P(f'v_add_f32 v{cD + 16 + r}, v{cD + 16 + r}, v{cD + 24 + r}')
    for r in range(8):
        P(f'v_add_f32 v{cD + r}, v{cD + r}, v{cD + 16 + r}')
    if OPT['xo'] == 2 and rd == 0:
        P(f's_buffer_load_dword s5, {srd(SWS)}, s{sXH} offset:4096 glc')
    if XF:
        P(f's_waitcnt vmcnt({(1 - rd) if not OPT["xo"] else 0})')
    else:
        pchk(rd, (2 - 2 * rd) if not OPT['xo'] else 0)
        P(f's_cbranch_vccz L_px{rd}_ok')
        P.label(f'L_px{rd}')
        spin_guard(f'L_px{rd}_ok')
        P('s_sleep 1')
        pload(rd)
        pchk(rd, 0)
        P(f's_cbranch_vccnz L_px{rd}')
        P.label(f'L_px{rd}_ok')
    if rd == 0:
        for r2 in range(2):
            st = cSt + 2 * r2
            P(f'v_rcp_f32 v{st + 1}, v{st}\nv_mul_f32 v{st + 1}, 0xbfb8aa3b, v{st + 1}')
    for n in range(4):
        pp = cPp + 8 * rd + (n if XF else 2 * n)
        P(f'v_lshlrev_b32 v{g + 2 * n}, 16, v{pp}\nv_and_b32 v{g + 2 * n + 1}, 0xffff0000, v{pp}')
    for r in range(8):
        P(f'v_add_f32 v{g + r}, v{g + r}, v{cD + r}')
    for r in range(8):
        P(f'v_mul_f32 v{cE + r}, v{cSt + 2 * rd + 1}, v{g + r}')
    for r in range(8):
        P(f'v_exp_f32 v{cE + r}, v{cE + r}')
    for r in range(8):
        P(f'v_fma_f32 v{cE + r}, v{cE + r}, v{cSt + 2 * rd}, v{cSt + 2 * rd}')
    for r in range(8):
        P(f'v_rcp_f32 v{cE + r}, v{cE + r}')
    if OPT['xo'] == 2 and rd == 0:
        P(f's_waitcnt lgkmcnt(0)\ns_cmp_lg_u32 s5, s{sTAG}\ns_cbranch_scc1 L_nob')
        pload(1)
        P.label('L_nob')
    for r in range(8):
        P(f'v_mul_f32 v{g + r}, v{g + r}, v{cE + r}')
        if OPT.get('pert'):
            import struct
            P(f'v_mul_f32 v{g + r}, {struct.unpack("<I", struct.pack("<f", 1 + OPT["pert"] / 1000))[0]:#x}, v{g + r}')
stamp(14)
P('s_barrier')
stamp(6) if OPT['ds'] == 4 else None
for rd in range(2):
    P(f'ds_read_b128 {vr(cX + 4 * rd)}, v{cSA} offset:{4096 * rd}')
for rd in range(2):
    P(f's_waitcnt lgkmcnt({1 - rd})')
    for n in range(4):
        P(f'v_lshlrev_b32 v{cD + 2 * n}, 16, v{cX + 4 * rd + n}\nv_and_b32 v{cD + 2 * n + 1}, 0xffff0000, v{cX + 4 * rd + n}')
    for n in range(4):
        a = cXu + 8 * rd + 2 * n
        P(f'v_pk_fma_f32 {vr(a, 2)}, {vr(cD + 2 * n, 2)}, {vr(cG + 8 * rd + 2 * n, 2)}, {vr(a, 2)}')
    for n in range(4):
        P(f'v_cvt_pk_bf16_f32 v{cE + 4 * rd + n}, v{cXu + 8 * rd + 2 * n}, v{cXu + 8 * rd + 2 * n + 1}')
    P(f'buffer_store_dwordx4 {vr(cE + 4 * rd)}, v{cXO}, {srd(SOUT)}, s{sXR + rd} offen' + ('', ' sc1', ' nt', ' sc0 sc1', ' sc1 nt')[OPT['osc1']])
stamp(7) if OPT['ds'] == 4 else None
P.label('L_EXIT')
if DIAG:
    P('s_waitcnt vmcnt(0)')
    stamp(15)
    diag_dump()
P.label('L_END')
P('s_endpgm')

if OPT['hop']:
    for w_ in range(4):
        P.label(f'L_hop{w_}')
body = P.finalize()
if OPT['hop']:
    import subprocess
    import os
    from asmlib import Ins
    del P.ins[-4:]

    def addresses():
        txt = f'.amdgcn_target "amdgcn-amd-amdhsa--gfx950"\n.text\n.fill 192, 4, 0\n{NAME}_kernel:\n'
        for i_, x in enumerate(P.ins):
            if x.kind not in ('label', 'dir'):
                txt += f'LX{i_}:\n'
            txt += ('s_nop 0' if 'L_hop' in x.text and x.kind != 'label' else x.text) + '\n'
        tmp = sys.argv[1] + '.tmp'
        open(tmp + '.s', 'w').write(txt)
        subprocess.check_call(['clang', '-x', 'assembler', '-target', 'amdgcn-amd-amdhsa', '-mcpu=gfx950',
                               '-c', tmp + '.s', '-o', tmp + '.o'])
        o = subprocess.check_output(['llvm-readelf', '-s', '-W', tmp + '.o']).decode()
        os.remove(tmp + '.s')
        os.remove(tmp + '.o')
        return {int(l.split()[-1][2:]): int(l.split()[1], 16) for l in o.split('\n') if l.split() and l.split()[-1].startswith('LX')}
    nh = 0
    page = 1
    while True:
        ad = addresses()
        if max(ad.values()) < 4096 * page:
            break
        for j_ in range(OPT['hop'] - 1, -1, -1):
            c_ = [i_ for i_, a_ in ad.items() if 4096 * page + 64 * j_ <= a_ + 4 * j_ < 4096 * (page + 1)]
            if c_:
                i_ = min(c_)
                P.ins[i_:i_] = [Ins('HOPL:'), Ins('s_cbranch_execz L_hopX')]
                P.ins[i_].text = f'HL{page}_{j_}:'
        page += 1
    hops = [i_ for i_, x in enumerate(P.ins) if x.text.startswith('s_cbranch_execz L_hopX')]
    lab = {x.label: i_ for i_, x in enumerate(P.ins) if x.kind == 'label'}
    assert not any(lab['L_warm'] <= i_ <= lab['L_CH'] for i_ in hops) and len(hops) >= 4
    for n_, i_ in enumerate(hops):
        P.ins[i_ - 1].text = f'L_hop{n_}:'
        P.ins[i_].text = 's_cbranch_execz ' + (f'L_hop{n_ + 4}' if n_ + 4 < len(hops) else 'L_wret')
    body = '\n'.join(('' if x.kind == 'label' else '    ') + x.text for x in P.ins) + '\n'
ref = open('cdna_kernels/%s.s.ref' % NAME).read()
hdr = [l for l in ref.split('\n') if l.startswith(';') and '@launch' not in l]
out = '\n'.join(hdr) + '\n; @launch grid=(256,1,1) block=(512,1,1) lds=%d\n' % LDS_BYTES
out += f'''.amdgcn_target "amdgcn-amd-amdhsa--gfx950"
; One persistent launch, 256 workgroups x 8 waves (waves 0-3 "L": loaders / phase-2 GEMM, waves 4-7 "C": phase-1 GEMM, epilogues).
; Phase 1: raw x @ [w1 | wqkv] tiles of 128 rows; LayerNorm is applied afterwards (mean * column-sum correction as one
;          extra MFMA step, 1/sd on the outputs); relu / windowed attention; h and o go to d_ws in MFMA fragment order.
; Phase 2: 64x64 output tiles, K of h @ w2 split over a pair of workgroups, s = o @ wo, out = x + s * silu(f).
; Hand-offs carry a per-launch tag (derived from word 0 of d_ws, which is advanced once every workgroup has read it).
.text
.globl {NAME}_kernel
.p2align 8
.type {NAME}_kernel,@function
{NAME}_kernel:
{body}.section .rodata,"a"
.p2align 6
.amdhsa_kernel {NAME}_kernel
  .amdhsa_next_free_vgpr 256
  .amdhsa_next_free_sgpr {102 if DIAG else OPT['nsg']}
  .amdhsa_accum_offset 256
  .amdhsa_group_segment_fixed_size 0
  .amdhsa_kernarg_size 72
  .amdhsa_user_sgpr_count 2
  .amdhsa_user_sgpr_kernarg_segment_ptr 1
  .amdhsa_system_sgpr_workgroup_id_x 1
.end_amdhsa_kernel
'''
open(sys.argv[1], 'w').write(out)
print('instructions', len(P.ins), 'nops inserted', P.nops_inserted)
```

```python
import sys
import itertools
from asmlib import Prog, Q

NAME = 'recurrent_scan__sliding_local_dilated__dense_activation_relu__prompt'
OPT = dict(diag=0, pf_code=1, pf_w=4, la=5, hold=2, wstep=2, prio=1, osc1=1, lahead=13, tm=1,
           nfill=2, cs_it=35, fla=4, ds=0, lsl=2, hw=7, cap=7, relu=0, n5=2, p5=16,
           kh=0x58ffff, kq=0x47ffff, k0=0, sfn=5, gk=5, ssl=1, nt=0, fs=7, fl=32, swarm=1, w4=0, lpause=5, pe=4, lpl=8, cprio=1, fwarm=2, xh=1, qf=1, qhold=0, la0=20, gate=9, m1=2, abl=0, p7=1, pad=0, spf=0, capp=3, cape=12, l0=13, qfirst=0, ipff=4, hst=0, rm=0, sk=3, lpp=2, xw=10, rf=2, sprio=0, ot=3, pfq=0, crs=1, cgs=0, pfo=-1, sd=0, l2h=0, tw2=-1, twv=0, pfs=0, wsb=0, pc2=0, gw=0, qw=1, gf=1, c1q=5, c1h=0, c1s=0, hop=0, bs=0, nsg=102, tk=2, p5q=14, dd=1, lp=1, f1=0, wf=0, pflip=1, xf=1, xo=0, na=0, fap=6, ncw2=0, nb=9, bd=5, on=33, dc=2, wl=28, ws=37, tw=0, twl=10, gp=1, esl=0, b6=0, n5q=0, qp=1, ps=6, nfq=2, xp=0, xq=2, nm=3, xs=0, xr=2, ipf=8, ipl=0)
for a in sys.argv[2:]:
    k, v = a.split('=')
    OPT[k] = int(v, 0)
PROBE = OPT.get('probe')
DIAG = OPT['diag'] or PROBE is not None

WS_FLAGS = 0x980000
FS = OPT['fs']
WS_STATS = 16384
WS_CSUM = 65536
WS_ACT = 262144
WS_XCH = 0xA00000
WS_DIAG = 0xE00000
WS_BYTES = 0xF00000
NS = 72
LST = 7

XS = [0, 16384, 32768]
WSL = [49152, 77824, 106496]
WO = 77824
NGRP = 14
HALO = 135168
WIN = 135168
ST = 157696
CS = 160000
CSB = [151552, 73728]
SYNC = 163584
VSTR = 56
VREG = 141312
KX = 24576
DUMMY = 135168


def halo_off(s):
    return 2048 * ((s + 3) % 7)


DUMPF = 0
STILE = 65536
LDS_BYTES = 163840

sSPIN = 3
SPIN_MAX = 0x200000
SX, SW, SWO, SW2, SWS, SOUT = 24, 28, 32, 36, 40, 44
sWAVE, sRB, sIDX, sISQ, sCG, sRT, sCT, sROT, sTAG, sI = range(48, 58)
sT0, sT1, sT2, sT3 = 58, 59, 60, 61
sXO, sWO_, sMX, sMW, sHO, sKB = 62, 63, 64, 65, 66, 67
sA0, sA1 = 68, 69
sWF = 19
sPUB = 22
sST = 70

P = Prog()


def srd(b):
    return 's[%d:%d]' % (b, b + 3)


def vr(a, n=4):
    return 'v[%d:%d]' % (a, a + n - 1)


MUTE = False


def stamp(k):
    if DIAG and not MUTE:
        P('s_memrealtime s[%d:%d]' % (sST + 2 * k, sST + 2 * k + 1))


def cstamp(k):
    if DIAG and PROBE is None:
        P('s_memtime s[%d:%d]' % (sST + 2 * k, sST + 2 * k + 1))


def mk_srd(b, ptr, size):
    if b == SX and OPT['wsb']:
        P(f's_add_u32 s20, s20, {OPT["wsb"] << 20}\ns_addc_u32 s21, s21, 0')
    P('s_mov_b32 s%d, s%d\ns_mov_b32 s%d, s%d\ns_mov_b32 s%d, 0x%x\ns_mov_b32 s%d, 0x20000'
      % (b, ptr, b + 1, ptr + 1, b + 2, size, b + 3))


def diag_dump():
    if PROBE is not None:
        a, b = divmod(PROBE, 100)
        P(f'''s_waitcnt lgkmcnt(0)
s_cmp_lt_u32 s{sWAVE}, 4
s_cbranch_scc1 L_END
s_cmp_ge_u32 s{sCT}, 7
s_cbranch_scc1 L_END
s_sub_u32 s{sT0}, s{sST + 2 * b}, s{sST + 2 * a}
s_min_u32 s{sT0}, s{sT0}, 5000
s_lshl_b32 s{sT0}, s{sT0}, 2''')
        P.label('L_probe')
        P(f'''s_memrealtime s[{sT2}:{sT3}]
s_waitcnt lgkmcnt(0)
s_sub_u32 s{sT1}, s{sT2}, s{sST + 30}
s_cmp_lt_u32 s{sT1}, s{sT0}
s_cbranch_scc1 L_probe''')
    elif DIAG:
        P('s_lshl_b32 s%d, s2, 3\ns_add_u32 s%d, s%d, s%d\ns_lshl_b32 s%d, s%d, 6\ns_add_u32 s%d, s%d, 0x%x'
          % (sT0, sT0, sT0, sWAVE, sT0, sT0, sT0, sT0, WS_DIAG))
        P('v_mov_b32 v1, 0\ns_waitcnt lgkmcnt(0)')
        for k in range(16):
            P('v_mov_b32 v2, s%d\nbuffer_store_dword v2, v1, %s, s%d offen offset:%d' % (sST + 2 * k, srd(SWS), sT0, 4 * k))


JN = [0]
DS9 = {}


def jitter():
    if OPT.get('jit'):
        JN[0] += 1
        k = JN[0]
        P(f'''s_lshl_b32 s98, s2, 3
s_add_u32 s98, s98, s{sWAVE}
s_add_u32 s98, s98, {k * 977 + OPT['jit'] * 131}
s_mul_i32 s98, s98, 0x9e3779b1
s_lshr_b32 s99, s98, 15
s_xor_b32 s98, s98, s99
s_mul_i32 s98, s98, 0x85ebca6b
s_lshr_b32 s98, s98, 27''')
        P.label(f'L_j{k}')
        P(f's_cmp_lt_u32 s98, 24\ns_cbranch_scc1 L_j{k}x\ns_sleep 20\ns_sub_u32 s98, s98, 1\ns_branch L_j{k}')
        P.label(f'L_j{k}x')


def spin_guard(out):
    P(f's_add_u32 s{sSPIN}, s{sSPIN}, 1\ns_cmp_gt_u32 s{sSPIN}, {SPIN_MAX}\ns_cbranch_scc1 {out}')


def lds_cmp(tmp, val):
    P(f'v_min3_u32 v{tmp}, v{tmp}, v{tmp + 1}, v{tmp + 2}\nv_min_u32 v{tmp}, v{tmp}, v{tmp + 3}\nv_cmp_gt_u32 vcc, {val}, v{tmp}')


def lds_poll(name, tmp, vsync, off, val, sleep=0):
    P(f'ds_read_b128 {vr(tmp)}, v{vsync} offset:{off}\ns_waitcnt lgkmcnt(0)')
    lds_cmp(tmp, val)
    P(f's_cbranch_vccz {name}_ok')
    lds_spin(name, tmp, vsync, off, val, sleep)
    P.label(name + '_ok')


def lds_spin(name, tmp, vsync, off, val, sleep):
    P.label(name)
    spin_guard(name + '_ok')
    if sleep:
        P(f's_sleep {sleep}')
    P(f'ds_read_b128 {vr(tmp)}, v{vsync} offset:{off}\ns_waitcnt lgkmcnt(0)')
    lds_cmp(tmp, val)
    P(f's_cbranch_vccnz {name}')


def lds_signal(vaddr, tmp, val):
    P(f'v_mov_b32 v{tmp}, {val}\nds_write_b32 v{vaddr}, v{tmp}')


def w2_tr_addr(d, hi_shift, t0, t1):
    P(f'''v_bfe_u32 v{t0}, v0, 2, 3
v_lshlrev_b32 v{t0}, 7, v{t0}
v_lshrrev_b32 v{t1}, 5, v0
v_lshl_add_u32 v{t0}, v{t1}, {hi_shift}, v{t0}
v_and_b32 v{t1}, 3, v0
v_lshl_add_u32 v{t0}, v{t1}, 3, v{t0}
v_bfe_u32 v{t1}, v0, 3, 2
v_lshl_add_u32 v{d}, v{t1}, 5, v{t0}
v_xor_b32 v{d + 1}, 32, v{d}
v_xor_b32 v{d + 2}, 64, v{d}
v_xor_b32 v{d + 3}, 96, v{d}''')


def q_addr_parts(trow, tmask, tc, t):
    P(f'''v_lshrrev_b32 v{trow}, 4, v0
v_lshlrev_b32 v{trow}, 3, v{trow}
v_bfe_u32 v{t}, v0, 2, 2
v_add_u32 v{trow}, v{trow}, v{t}
v_lshlrev_b32 v{trow}, 7, v{trow}
v_bfe_u32 v{tmask}, v0, 3, 2
v_lshlrev_b32 v{tmask}, 5, v{tmask}
v_and_b32 v{tc}, 3, v0
v_lshlrev_b32 v{tc}, 3, v{tc}''')
    if OPT['p7']:
        P(f's_cmp_eq_u32 s{sIDX}, 7\ns_cselect_b32 s{sT0}, 16, 0\nv_add_u32 v{tc}, s{sT0}, v{tc}')


def q_addr(d, boff, trow, tmask, tc):
    P(f'v_add_u32 v{d}, {boff}, v{tc}\nv_min_u32 v{d}, 120, v{d}\nv_xor_b32 v{d}, v{d}, v{tmask}\nv_add_u32 v{d}, v{d}, v{trow}')


def h_addr(d, t0, t1):
    P(f'''v_lshrrev_b32 v{t0}, 4, v0
v_lshlrev_b32 v{t0}, 3, v{t0}
v_bfe_u32 v{t1}, v0, 2, 2
v_add_u32 v{t0}, v{t0}, v{t1}
v_mul_u32_u24 v{t0}, 448, v{t0}
v_bfe_u32 v{t1}, v0, 4, 1
v_lshl_add_u32 v{t0}, v{t1}, 5, v{t0}
v_and_b32 v{t1}, 3, v0
v_lshl_add_u32 v{d}, v{t1}, 3, v{t0}''')


def mfma(d, a, b, c):
    return f'v_mfma_f32_16x16x32_bf16 {vr(d)}, {vr(a)}, {vr(b)}, ' + ('0' if c is None else vr(c))


if OPT['ds'] == 7:
    stamp(0)
P(f'''s_cmp_ge_u32 s2, 256
s_cbranch_scc1 L_END
s_load_dwordx16 s[4:19], s[0:1], 0
s_load_dwordx2 s[20:21], s[0:1], 64''')
if OPT['pf_code']:
    P('s_getpc_b64 s[22:23]')
    P.label('L_pc')
    sh_ = OPT['pf_code'] - 1
    msk = (0x01010101, 0x00010001, 0x00000001)[sh_]
    P(f'''s_lshl_b32 s{sT0}, s2, {10 - sh_}
s_and_b32 s{sT0}, s{sT0}, {0x10000 - (0x2000 >> sh_):#x}
v_lshlrev_b32 v2, {4 - sh_}, v0
v_add_u32 v2, s{sT0}, v2
v_min_u32 v2, L_END-L_pc, v2
s_mov_b32 exec_lo, {msk:#x}
s_mov_b32 exec_hi, {msk:#x}
global_load_dword v247, v2, s[22:23]
s_mov_b64 exec, -1''')
P(f'''v_lshrrev_b32 v1, 6, v0
v_and_b32 v0, 63, v0
v_readfirstlane_b32 s{sWAVE}, v1
s_and_b32 s{sT0}, s2, 7
s_lshr_b32 s{sT1}, s2, 3
s_and_b32 s{sRB}, s{sT0}, 1
s_lshl_b32 s{sRB}, s{sRB}, 3
s_and_b32 s{sT2}, s{sT1}, 7
s_add_u32 s{sRB}, s{sRB}, s{sT2}
s_and_b32 s{sIDX}, s{sT0}, 6
s_bfe_u32 s{sT2}, s{sT1}, 0x10003
s_add_u32 s{sIDX}, s{sIDX}, s{sT2}
MAP1
s_lshr_b32 s{sISQ}, s{sT1}, 4
s_xor_b32 s{sISQ}, s{sISQ}, {OPT['qfirst']}
s_lshl_b32 s{sCG}, s{sISQ}, 3
s_add_u32 s{sCG}, s{sCG}, s{sIDX}
s_mul_i32 s{sT2}, s{sT1}, 9363
s_lshr_b32 s{sT2}, s{sT2}, 16
s_mul_i32 s{sT3}, s{sT2}, 7
s_sub_u32 s{sT3}, s{sT1}, s{sT3}
s_cmp_ge_u32 s{sT1}, 28
s_cselect_b32 s{sCT}, 7, s{sT3}
s_lshl_b32 s{sT2}, s{sT2}, 1
s_and_b32 s{sRT}, s{sT0}, 6
s_lshl_b32 s{sRT}, s{sRT}, 2
s_add_u32 s{sRT}, s{sRT}, s{sT2}
s_and_b32 s{sT2}, s{sT0}, 1
s_add_u32 s{sRT}, s{sRT}, s{sT2}
ROT1
s_mul_i32 s{sT2}, s{sROT}, 9363
s_lshr_b32 s{sT2}, s{sT2}, 16
s_mul_i32 s{sT2}, s{sT2}, 7
s_sub_u32 s{sROT}, s{sROT}, s{sT2}
s_and_b32 s{sPUB}, s{sROT}, 1
s_cmp_ge_u32 s{sRB}, 7
s_cselect_b32 s{sPUB}, 1, s{sPUB}
s_mov_b32 s{sSPIN}, 0
s_and_b32 s{sI}, s{sWAVE}, 3'''.replace('MAP1', '' if not OPT['m1'] else f'''s_and_b32 s{sT2}, s{sT0}, 2
s_lshl_b32 s{sT2}, s{sT2}, 1
s_and_b32 s{sT3}, s{sRB}, 11
s_add_u32 s{sT2}, s{sT2}, s{sT3}
s_and_b32 s{sT3}, s{sT0}, 4
s_bfe_u32 s{sCG}, s{sT1}, 0x20002
s_add_u32 s{sT3}, s{sT3}, s{sCG}
s_lshr_b32 s{sCG}, s{sT0}, 2
s_mul_i32 s{sCG}, s{sCG}, {3 * OPT['pflip']}
s_xor_b32 s{sT3}, s{sT3}, s{sCG}
s_cmp_ge_u32 s{sT1}, 16
s_cselect_b32 s{sRB}, s{sT2}, s{sRB}
s_cselect_b32 s{sIDX}, s{sT3}, s{sIDX}''' if OPT['m1'] == 2 else f'''s_lshr_b32 s{sRB}, s{sT0}, 1
s_lshl_b32 s{sRB}, s{sRB}, 2
s_and_b32 s{sT2}, s{sT1}, 3
s_add_u32 s{sRB}, s{sRB}, s{sT2}
s_and_b32 s{sIDX}, s{sT0}, 1
s_lshl_b32 s{sIDX}, s{sIDX}, 2
s_bfe_u32 s{sT2}, s{sT1}, 0x20002
s_add_u32 s{sIDX}, s{sIDX}, s{sT2}''').replace('ROT1', f'''s_lshr_b32 s{sROT}, s{sT1}, 3
s_lshl_b32 s{sROT}, s{sROT}, 1
s_add_u32 s{sROT}, s{sROT}, s{sRB}''' if not OPT['m1'] else f'''s_and_b32 s{sROT}, s{sIDX}, 1
s_mul_i32 s{sROT}, s{sROT}, 3
s_and_b32 s{sT2}, s{sIDX}, 3
s_lshl_b32 s{sT2}, s{sT2}, 1
s_add_u32 s{sT2}, s{sT2}, 1
s_cmp_ge_u32 s{sT1}, 16
s_cselect_b32 s{sROT}, s{sT2}, s{sROT}
s_lshl_b32 s{sT2}, s{sRB}, 1
s_add_u32 s{sROT}, s{sROT}, s{sT2}''' if OPT['m1'] == 2 else f'''s_lshr_b32 s{sROT}, s{sT1}, 2
s_lshl_b32 s{sT2}, s{sRB}, 1
s_add_u32 s{sROT}, s{sROT}, s{sT2}'''))
if DIAG:
    for k in range(1 if OPT['ds'] == 7 else 0, 16):
        P('s_mov_b32 s%d, 0' % (sST + 2 * k))
    stamp(7) if OPT['ds'] == 7 else None
if PROBE is not None:
    stamp(2)
if OPT.get('dly'):
    P('s_sleep %d' % OPT['dly'])
jitter()
P(f'''s_cmp_ge_u32 s{sWAVE}, 4
s_cbranch_scc1 L_C''')

LW, LACC, LA, LADR = 24, 136, 200, 252
vX, vW, vH, vCA, vGA, vGS = 164, 168, 175, 176, 178, 179
vSEL, vCACC, vCF, vLT = 180, 196, 200, 232
vGR, vGC, vPA = 140, 141, 143
vAD1, vAD2 = 144, 148
vS = 124
vSY, vSG, vPT = 244, 245, 248


def dma(vm, voff, srdb, soff, m0base, m0imm, tag=None, nt=False):
    P(f's_add_u32 m0, s{m0base}, {m0imm}')
    P(f'buffer_load_dwordx4 v{voff}, {srd(srdb)}, s{soff} offen {"nt " if nt else ""}lds')
    vm.issue(tag)


def red32(a, t):
    for sh in (8, 4, 2, 1):
        P(f'v_add_f32_dpp v{a}, v{a}, v{a} row_ror:{sh} row_mask:0xf bank_mask:0xf')
    P(f'v_mov_b32 v{t}, v{a}\nv_permlane16_swap_b32 v{t}, v{a}\nv_add_f32 v{a}, v{a}, v{t}')


def stats_rows():
    P(f'''v_and_b32 v{vS}, 31, v0
v_lshrrev_b32 v{vS + 1}, 5, v0
v_mul_u32_u24 v{vS + 2}, 896, v{vS + 1}
v_lshl_add_u32 v{vS + 2}, v{vS}, 4, v{vS + 2}
v_cmp_gt_u32 vcc, 28, v{vS}
v_mov_b32 v{vS + 3}, 0x10000000
v_cndmask_b32 v{vS + 2}, v{vS + 3}, v{vS + 2}, vcc
v_cndmask_b32 v{vS + 3}, 0, 1.0, vcc
s_lshl_b32 s{sT0}, s{sRB}, 7
s_lshl_b32 s{sT1}, s{sCG}, 3
s_add_u32 s{sT0}, s{sT0}, s{sT1}
s_lshl_b32 s{sT1}, s{sI}, 1
s_add_u32 s{sT3}, s{sT0}, s{sT1}
s_mul_i32 s{sT2}, s{sT3}, 896''')


def stats_load(vm):
    for u in range(2):
        P(f'buffer_load_dwordx4 {vr(vS + 4 + 4 * u)}, v{vS + 2}, {srd(SX)}, s{sT2} offen offset:{448 * u}')
        vm.issue('stats')

def stats_body():
    n0 = len(P.ins)
    a, d = vS + 12, vS + 16
    for n in range(8):
        P(f'v_lshlrev_b32 v{d + 2 * n}, 16, v{vS + 4 + n}\nv_and_b32 v{d + 1 + 2 * n}, 0xffff0000, v{vS + 4 + n}')
    P(f'v_add_f32 v{a}, v{d}, v{d + 1}\nv_add_f32 v{a + 1}, v{d + 2}, v{d + 3}')
    for n in range(4, 16):
        P(f'v_add_f32 v{a + n % 2}, v{a + n % 2}, v{d + n}')
    P(f'v_add_f32 v{a}, v{a}, v{a + 1}')
    red32(a, a + 1)
    P(f'v_mul_f32 v{a}, 0x3b124925, v{a}')
    for n in range(16):
        P(f'v_sub_f32 v{d + n}, v{d + n}, v{a}')
    P(f'v_mul_f32 v{a + 2}, v{d}, v{d}\nv_mul_f32 v{a + 3}, v{d + 1}, v{d + 1}')
    for n in range(2, 16):
        P(f'v_fmac_f32 v{a + 2 + n % 2}, v{d + n}, v{d + n}')
    P(f'v_add_f32 v{a + 2}, v{a + 2}, v{a + 3}\nv_mul_f32 v{a + 2}, v{a + 2}, v{vS + 3}')
    red32(a + 2, a + 1)
    P(f'''v_mul_f32 v{a + 2}, 0x3b124925, v{a + 2}
v_cvt_pk_bf16_f32 v{a + 2}, 0, v{a + 2}
v_add_f32 v{a + 2}, 0x3727c5ac, v{a + 2}
v_cvt_pk_bf16_f32 v{a + 2}, 0, v{a + 2}
v_sqrt_f32 v{a + 2}, v{a + 2}
v_cvt_pk_bf16_f32 v{a}, -v{a}, -v{a}
v_cvt_pk_bf16_f32 v{a + 2}, 0, v{a + 2}
v_mov_b32 v{a + 1}, s{sTAG}
v_mov_b32 v{a + 3}, s{sTAG}
v_lshlrev_b32 v{a + 4}, 4, v{vS + 1}''')
    out = [x.text for x in P.ins[n0:]]
    del P.ins[n0:]
    return out

def stats_store(vm):
    a = vS + 12
    P(f'''s_lshl_b32 s{sT3}, s{sT3}, 4
s_add_u32 s{sT3}, s{sT3}, {WS_STATS}
s_mov_b32 exec_lo, 1
s_mov_b32 exec_hi, 1
buffer_store_dwordx4 {vr(a)}, v{a + 4}, {srd(SWS)}, s{sT3} offen sc1
s_mov_b64 exec, -1''')
    vm.issue()


sFB = 23
sFA, sGM = 18, 14
AL = '\n'.join(f's_buffer_load_dword s{4 + g}, {srd(SWS)}, s{sFA} offset:{512 + (g << FS)} glc' for g in range(2))
F1 = f's_buffer_load_dword s4, {srd(SWS)}, s{sFA} glc'
BL = '\n'.join(f's_buffer_load_dword s{4 + g}, {srd(SWS)}, s{sFB} offset:{g << FS} glc' for g in range(4))


def of_addr(d, t0, t1):
    P(f'''s_lshr_b32 s{d}, s{sRT}, 1
s_lshl_b32 s{d}, s{d}, 14
s_and_b32 s{t0}, s{sRT}, 1
s_lshl_b32 s{t0}, s{t0}, 1
s_lshr_b32 s{t1}, s{sI}, 1
s_add_u32 s{t0}, s{t0}, s{t1}
s_lshl_b32 s{t0}, s{t0}, {FS}
s_add_u32 s{d}, s{d}, s{t0}
s_add_u32 s{d}, s{d}, {WS_FLAGS + 8192}''')


def ol(a):
    return '\n'.join(f's_buffer_load_dword s{4 + p_}, {srd(SWS)}, s{a} offset:{1024 * p_} glc' for p_ in range(8))


def xh_addr(d, w=None):
    P(f'''s_mul_i32 s{d}, s{sRT}, 7
s_add_u32 s{d}, s{d}, s{sCT}
s_lshl_b32 s{d}, s{d}, 4
s_add_u32 s{d}, s{d}, s{sI}
s_lshl_b32 s{d}, s{d}, 10
s_add_u32 s{d}, s{d}, {WS_XCH + 8192 + 1020}''')


class W2Plan:
    def __init__(self, vm):
        self.vm = vm
        self.pairs = []
        self.grp = set()
        self.loc = {}
        self.pending = []
        self.ncw = 0

    def wopair(self):
        c = [g for g in (0, 2, 4) if g in self.grp and g + 1 in self.grp]
        return c[0] if c else None

    def has_pair(self):
        return bool(self.pairs) or self.wopair() is not None

    def own(self, hs):
        for h in hs:
            if self.pairs:
                a = self.pairs.pop(0)
            else:
                g = self.wopair()
                self.grp -= {g, g + 1}
                a = WO + 4096 * g
            self.loc[h] = a
            for u in range(2):
                dma(self.vm, 2 + u, SW2, sA0, sMX, a + 4096 * u, ('own', h))
            P(f's_add_u32 s{sA0}, s{sA0}, {16 * 896}')

    def sync(self):
        if self.pending:
            P('s_waitcnt lgkmcnt(0)')
            for h in self.pending:
                a = self.loc[h]
                if WO <= a < WO + 4096 * NGRP:
                    self.grp |= {(a - WO) // 4096, (a - WO) // 4096 + 1}
                else:
                    self.pairs.append(a)
            self.pending = []

    def stage(self, hs):
        self.vm.wait(('own', hs[-1]))
        self.sync()
        for h in hs:
            o = self.loc[h]
            base = (LADR, vAD1, vAD2)[o >> 16]
            for ct in range(4):
                P(f'ds_read_b64_tr_b16 {vr(LW + 8 * (h & ~1) + 4 * ct + 2 * (h & 1), 2)}, v{base + ct} offset:{o & 0xffff}')
        self.pending = list(hs)

    def cw(self):
        if NGRP - self.ncw == OPT['pe'] and not OPT['na'] and not OPT['ncw2']:
            P(F1 if OPT['f1'] else BL)
        g = max(self.grp)
        self.grp.remove(g)
        P(f's_add_u32 s{sT0}, s{sA1}, {g * 28672 + (0x20000000 if (OPT["abl"] & 4 or (OPT["abl"] & 32 and not self.isq)) else 0)}')
        dma(self.vm, 2, SWO, sT0, sMX, WO + 4096 * g, ('cw', g))
        self.ncw += 1


def spoll(name, loads, nreg, onfail=None):
    P.label(name)
    P(loads)
    P.label(name + '_w')
    P('s_waitcnt lgkmcnt(0)')
    for n in range(nreg):
        P(f's_xor_b32 s{4 + n}, s{4 + n}, s{sTAG}')
    if nreg == 1:
        pass
    elif nreg == 2:
        P('s_or_b32 s4, s4, s5')
    elif nreg == 4:
        P('s_or_b64 s[4:5], s[4:5], s[6:7]')
    else:
        P('s_or_b64 s[4:5], s[4:5], s[6:7]\ns_or_b64 s[8:9], s[8:9], s[10:11]\ns_or_b64 s[4:5], s[4:5], s[8:9]')
    P(f's_cbranch_scc0 {name}_ok')
    if onfail:
        onfail()
    spin_guard(name + '_ok')
    P(f's_sleep {OPT["ssl"]}\ns_branch {name}')
    P.label(name + '_ok')


P(f'''v_lshrrev_b32 v{vLT}, 3, v0
v_lshl_add_u32 v{vLT}, s{sI}, 3, v{vLT}
v_mul_u32_u24 v{vX}, 896, v{vLT}
v_lshrrev_b32 v{vLT}, 1, v{vLT}
v_xor_b32 v{vLT}, v{vLT}, v0
v_and_b32 v{vLT}, 7, v{vLT}
v_lshl_add_u32 v{vX}, v{vLT}, 4, v{vX}
v_add_u32 v{vX + 1}, 28672, v{vX}
v_add_u32 v{vX + 2}, 57344, v{vX}
v_add_u32 v{vX + 3}, 86016, v{vX}
s_mul_i32 s{sXO}, s{sRB}, 114688
s_lshl_b32 s{sT0}, s{sROT}, 7
s_add_u32 s{sXO}, s{sXO}, s{sT0}
s_mov_b32 s{sKB}, s{sROT}
s_lshl_b32 s{sMX}, s{sI}, 10
s_cmp_eq_u32 s{sISQ}, {1 - OPT['qf']}
s_cbranch_scc1 L_LQ''')


def L_phase1(isq):
    t = 'Q' if isq else 'H'
    vm = Q(P, 'vmcnt', 63)
    wstr = 2688 if isq else 3584
    wsl = WSL
    globals()['MUTE'] = False

    def gen_st(s):
        wf = s < OPT['wf']
        if wf:
            for n in range(6):
                o = (n // 2) * 8192 + (n % 2) * 1024 if isq else n * 1024
                if n < (5 if isq else 6):
                    dma(vm, vW + n, SW, sWO_, sMW, wsl[s % 3] + o)
                    yield
        for n in range(4):
            dma(vm, vX + n, SX, sXO, sMX, XS[s % 3] + 4096 * n, nt=(OPT['nt'] & 1 and s < 1))
            yield
        if isq and s % 2 == 0:
            if s < 6:
                P(f'''s_lshr_b32 s{sT0}, s{sI}, 1
s_add_u32 s{sT0}, s{sT0}, s{sKB}
s_cmp_eq_u32 s{sT0}, 7
s_cselect_b32 s{sT0}, 0, s{sT0}
s_lshl_b32 s{sT0}, s{sT0}, 7
s_add_u32 s{sT0}, s{sT0}, s{sHO}''')
                dma(vm, vH, SX, sT0, sMX, HALO + halo_off(s))
            else:
                P(f'''s_lshl_b32 s{sT0}, s{sKB}, 7
s_add_u32 s{sT0}, s{sT0}, s{sHO}
s_and_b32 s{sT1}, s{sMX}, 1024''')
                dma(vm, vH, SX, sT0, sT1, HALO + halo_off(s))
            yield
        nw = 6 if isq else 7
        for n in range(nw - 1 if wf else 0, nw):
            o = (n // 2) * 8192 + (n % 2) * 1024 if isq else n * 1024
            dma(vm, vW + n, SW, sWO_, sMW, wsl[s % 3] + o, ('st', s), nt=(OPT['nt'] & 2 and s < 1))
            if n == nw - 1 and s < 6:
                P(f'''s_add_u32 s{sKB}, s{sKB}, 1
s_cmp_eq_u32 s{sKB}, 7
s_cselect_b32 s{sKB}, 0, s{sKB}
s_cselect_b32 s{sT0}, {7 * 128}, 0
s_cselect_b32 s{sT1}, {7 * 64 * wstr}, 0
s_add_u32 s{sXO}, s{sXO}, 128
s_add_u32 s{sWO_}, s{sWO_}, {64 * wstr}
s_sub_u32 s{sXO}, s{sXO}, s{sT0}
s_sub_u32 s{sWO_}, s{sWO_}, s{sT1}''')
            yield

    def run(g, n=1000):
        for _ in range(n):
            if next(g, 'end') == 'end':
                break

    if isq:
        P(f'''v_lshrrev_b32 v{vLT}, 3, v0
v_mul_u32_u24 v{vW}, 2688, v{vLT}
v_bfe_u32 v{vLT}, v0, 4, 1
v_lshlrev_b32 v{vLT}, 1, v{vLT}
v_xor_b32 v{vLT}, v{vLT}, v0
v_and_b32 v{vLT}, 7, v{vLT}
v_lshlrev_b32 v{vLT}, 4, v{vLT}
v_xor_b32 v{vLT + 1}, 64, v{vLT}
v_add_u32 v{vW + 1}, {8 * 2688}, v{vW}
v_add_u32 v{vW}, v{vW}, v{vLT}
v_add_u32 v{vW + 1}, v{vW + 1}, v{vLT + 1}''')
        for n in range(2, 6):
            P(f'v_add_u32 v{vW + n}, {(n // 2) * 896}, v{vW + n % 2}')
        P(f'''s_mul_i32 s{sT0}, s{sIDX}, 112
s_min_u32 s{sT0}, s{sT0}, {768 if OPT['p7'] else 1024}
s_and_b32 s{sT0}, s{sT0}, {0xff80 if OPT['abl'] & 8 else 0xffff}
s_lshl_b32 s{sMW}, s{sI}, 11
s_lshr_b32 s{sT1}, s{sI}, 1
s_mul_i32 s{sT1}, s{sT1}, {16 * 896}
v_subrev_u32 v{vH}, s{sT1}, v{vX}
s_mul_i32 s{sHO}, s{sRB}, 114688
s_max_u32 s{sHO}, s{sHO}, {16 * 896}
s_sub_u32 s{sHO}, s{sHO}, {16 * 896}''')
    else:
        P(f's_movk_i32 s{sT0}, 3136')
        for n in range(7):
            P(f'''v_add_u32 v{vLT}, {64 * n}, v0
v_mul_u32_u24 v{vLT + 1}, 2341, v{vLT}
v_lshrrev_b32 v{vLT + 1}, 16, v{vLT + 1}
v_lshlrev_b32 v{vLT}, 4, v{vLT}
v_mad_u32_u24 v{vW + n}, v{vLT + 1}, s{sT0}, v{vLT}''')
            if n == 3:
                P(f'v_and_b32 v{vLT + 1}, 8, v{vLT + 1}\nv_lshlrev_b32 v{vLT + 1}, 2, v{vLT + 1}\nv_xor_b32 v{vW + n}, v{vW + n}, v{vLT + 1}')
            elif n > 3:
                P(f'v_xor_b32 v{vW + n}, 32, v{vW + n}')
        P(f's_mul_i32 s{sT0}, s{sIDX}, 448\ns_mul_i32 s{sMW}, s{sI}, 7168')
    P(f'''s_lshl_b32 s{sT1}, s{sROT}, 2
s_add_u32 s{sT1}, s{sT1}, s{sI}
s_mul_i32 s{sWO_}, s{sT1}, {16 * wstr}
s_add_u32 s{sWO_}, s{sWO_}, s{sT0}''')
    stamp(11) if OPT['ds'] == 7 else None
    P('s_waitcnt lgkmcnt(0)')
    mk_srd(SX, 4, 2048 * 896)
    mk_srd(SW, 6 if isq else 12, 448 * wstr)
    stamp(12 if OPT['ds'] == 7 else 0)
    KS = [int(c, 16) for c in '%06x' % OPT['kq' if isq else 'kh']]
    gens = [gen_st(s) for s in range(7)]
    run(gens[0])
    run(gens[1], min(KS[0], OPT['k0']))
    P(f's_load_dword s{sTAG}, s[20:21], 0')
    mk_srd(SWO, 8, 448 * 896)
    mk_srd(SW2, 14, 1792 * 896)
    mk_srd(SWS, 20, WS_BYTES)
    mk_srd(SOUT, 16, 2048 * 896)
    P(f'v_bfe_u32 v{vLT}, v0, 2, 2\nv_mov_b32 v{vLT + 1}, 0x3f803f80')
    for m in range(4):
        P(f'v_cmp_eq_u32 vcc, {m}, v{vLT}\nv_cndmask_b32 v{vSEL + 4 * m}, 0, v{vLT + 1}, vcc')
        for r in range(1, 4):
            P(f'v_mov_b32 v{vSEL + 4 * m + r}, v{vSEL + 4 * m}')
    if isq:
        q_addr_parts(vLT, vLT + 1, vLT + 2, vLT + 3)
        P(f'''s_lshr_b32 s{sT0}, s{sI}, 1
s_mul_i32 s{sT0}, s{sT0}, 56
s_and_b32 s{sT1}, s{sI}, 1
s_lshl_b32 s{sT1}, s{sT1}, 5
s_add_u32 s{sT0}, s{sT0}, s{sT1}''')
        q_addr(vCA, f's{sT0}', vLT, vLT + 1, vLT + 2)
        ntile, tstr, rstr, kstr = 3, 8192, 128, 4096
    else:
        h_addr(vCA, vLT, vLT + 1)
        P(f'''s_and_b32 s{sT0}, s{sI}, 1
s_lshl_b32 s{sT0}, s{sT0}, 5
v_xor_b32 v{vCA}, s{sT0}, v{vCA}
s_lshr_b32 s{sT0}, s{sI}, 1
s_lshl_b32 s{sT0}, s{sT0}, 6
v_add_u32 v{vCA}, s{sT0}, v{vCA}''')
        ntile, tstr, rstr, kstr = 4, 128, 448, 32 * 448
    w2_tr_addr(LADR, 12, vLT, vLT + 1)
    for ct in range(4):
        P(f'v_add_u32 v{LADR + ct}, s{sMX}, v{LADR + ct}')
        P(f'v_add_u32 v{vAD1 + ct}, 0x10000, v{LADR + ct}\nv_add_u32 v{vAD2 + ct}, 0x20000, v{LADR + ct}')
    P(f'''v_lshrrev_b32 v{vLT}, 3, v0
v_mul_u32_u24 v2, 896, v{vLT}
v_and_b32 v{vLT}, 6, v{vLT}
v_xor_b32 v{vLT}, v{vLT}, v0
v_and_b32 v{vLT}, 7, v{vLT}
v_lshl_add_u32 v2, v{vLT}, 4, v2
v_add_u32 v3, {8 * 896}, v2
v_lshlrev_b32 v1, 4, v0
s_and_b32 s{sT0}, s{sRT}, 1
s_lshl_b32 s{sT0}, s{sT0}, 2
s_add_u32 s{sT0}, s{sT0}, s{sI}
s_mul_i32 s{sA0}, s{sT0}, {LST * 32 * 896}
s_lshr_b32 s{sFB}, s{sRT}, 1
s_lshl_b32 s{sFB}, s{sFB}, 4
s_add_u32 s{sFB}, s{sFB}, s{sT0}
s_lshl_b32 s{sFB}, s{sFB}, 10
s_add_u32 s{sFB}, s{sFB}, {WS_FLAGS}
s_andn2_b32 s{sFA}, 1, s{sRT}
s_lshl_b32 s{sFA}, s{sFA}, {FS + 1}
s_add_u32 s{sFA}, s{sFA}, s{sFB}
s_lshl_b32 s{sT0}, s{sCT}, 7
s_cmp_lt_u32 s{sCT}, 7
s_cselect_b32 s{sT0}, s{sT0}, 0x40000000
s_add_u32 s{sA0}, s{sA0}, s{sT0}
s_mul_i32 s{sA1}, s{sI}, {8 * 896}
s_add_u32 s{sA1}, s{sA1}, s{sT0}
v_lshl_add_u32 v{vGA}, s{sI}, 6, v0
v_min_u32 v{vGS}, 143, v{vGA}
v_lshlrev_b32 v{vGA}, 3, v{vGA}
s_lshl_b32 s{sT0}, s{sRB}, 7
s_sub_u32 s{sT0}, s{sT0}, 16
v_add_u32 v{vGR}, s{sT0}, v{vGS}
v_max_i32 v{vGR}, 0, v{vGR}
v_lshlrev_b32 v{vGR}, 4, v{vGR}
v_add_u32 v{vGR}, {WS_STATS}, v{vGR}
v_lshlrev_b32 v{vGS}, 4, v{vGS}
v_add_u32 v{vGS}, {ST}, v{vGS}
s_lshl_b32 s{sGM + 1}, s{sI}, 10
s_cmp_eq_u32 s{sI}, 3
s_cselect_b32 s16, 1, 0xffff
s_cselect_b32 s{sGM + 1}, {143 * 16}, s{sGM + 1}
s_add_u32 s{sGM + 1}, s{sGM + 1}, {ST}
s_and_b32 s{sGM}, s{sI}, 1
s_mul_i32 s{sGM}, s{sGM}, 1792
s_add_u32 s{sGM}, s{sGM}, {CS}
s_cmp_lt_u32 s{sI}, 2
s_cselect_b32 s16, -1, s16
s_cselect_b32 s17, -1, 0
s_cselect_b32 s{sT0}, 0, {CS - CSB[isq]}
s_sub_u32 s{sGM}, s{sGM}, s{sT0}
v_add_u32 v{vGC}, s{sGM}, v1
v_min_u32 v{vGC + 1}, 752, v1
v_add_u32 v{vGC + 1}, s{sGM}, v{vGC + 1}
v_add_u32 v{vGC + 1}, 1024, v{vGC + 1}
v_lshrrev_b32 v{vLT}, 4, v0
v_lshlrev_b32 v{vLT}, 9, v{vLT}
v_and_b32 v{vPA}, 15, v0
v_lshl_add_u32 v{vPA}, v{vPA}, 3, v{vLT}
v_mov_b32 v{vSY}, {SYNC}
v_lshl_add_u32 v{vSG}, s{sI}, 2, v{vSY}''')
    run(gens[1], KS[0] - min(KS[0], OPT['k0']))

    def csum_part(s):
        lab = f'L_{t}cs{s}'
        P(f's_cmp_lg_u32 s{sPUB}, 0\ns_cbranch_scc1 {lab}')
        if s == 1:
            P(f's_cmp_eq_u32 s{sROT}, 6\ns_cbranch_scc1 {lab}b')
        P(f'v_add_u32 v{vCA + 1}, {wsl[s]}, v{vCA}')
        if not isq:
            P(f's_and_b32 s{sT0}, s{sI}, 2\ns_lshl_b32 s{sT0}, s{sT0}, 6\nv_subrev_u32 v{vLT + 4}, s{sT0}, v{vCA + 1}')
        for kk in range(2):
            for m in range(ntile):
                f = vCF + 16 * kk + 4 * m
                o = m * tstr + kk * kstr
                va = vLT + 4 if m == 3 else vCA + 1
                P(f'ds_read_b64_tr_b16 {vr(f, 2)}, v{va} offset:{o}')
                P(f'ds_read_b64_tr_b16 {vr(f + 2, 2)}, v{va} offset:{o + 4 * rstr}')
        P('s_waitcnt lgkmcnt(0)')
        for kk in range(2):
            for m in range(ntile):
                P(mfma(vCACC, vSEL + 4 * m, vCF + 16 * kk + 4 * m, None if (s, kk, m) == (0, 0, 0) else vCACC))
        if s == 1:
            P.label(lab + 'b')
            P(f'''v_cvt_pk_bf16_f32 v{vCACC + 1}, 0, v{vCACC}
v_sub_f32 v{vCACC + 1}, v{vCACC}, v{vCACC + 1}
v_cvt_pk_bf16_f32 v{vCACC}, v{vCACC}, v{vCACC + 1}
v_mov_b32 v{vCACC + 1}, s{sTAG}''')
        P.label(lab)
        if s == 1:
            P(f'''s_lshl_b32 s{sT0}, s{sCG}, 13
s_lshl_b32 s{sT1}, s{sROT}, 10
s_add_u32 s{sT0}, s{sT0}, s{sT1}
s_lshl_b32 s{sT1}, s{sI}, 7
s_add_u32 s{sT0}, s{sT0}, s{sT1}
s_add_u32 s{sT0}, s{sT0}, {WS_CSUM}
s_cmp_lg_u32 s{sPUB}, 0
s_cselect_b32 s{sT0}, 0x40000000, s{sT0}
buffer_store_dwordx2 {vr(vCACC, 2)}, v{vPA}, {srd(SWS)}, s{sT0} offen sc1''')
            vm.issue()

    def gather_issue(count=True):
        P(f'''s_mov_b32 m0, s{sGM}
s_nop 0
buffer_load_dwordx4 v1, {srd(SWS)}, s{sT2} offen sc1 lds
s_mov_b32 exec_hi, 0xffff
buffer_load_dwordx4 v1, {srd(SWS)}, s{sT2} offen offset:1024 sc1 lds
s_mov_b32 m0, s{sGM + 1}
s_mov_b64 exec, s[16:17]
buffer_load_dwordx4 v{vGR}, {srd(SWS)}, 0 offen sc1 lds
s_mov_b64 exec, -1''')
        if count:
            for _ in range(3):
                vm.issue('gather')

    def gather_start():
        P(f'''s_lshl_b32 s{sT2}, s{sCG}, 2
s_add_u32 s{sT2}, s{sT2}, s{sI}
s_lshl_b32 s{sT2}, s{sT2}, 11
s_add_u32 s{sT2}, s{sT2}, {WS_CSUM}''')
        gather_issue()

    def gather_cmp():
        P(f'ds_read_b128 {vr(vCF)}, v{vGC}\nds_read_b128 {vr(vCF + 4)}, v{vGC + 1}\nds_read_b128 {vr(vCF + 8)}, v{vGS}\ns_waitcnt lgkmcnt(0)')
        P(f'v_cmp_ne_u32 vcc, s{sTAG}, v{vCF + 1}')
        for pi in range(1, 6):
            P(f'v_cmp_ne_u32 s[{2 + 2 * pi}:{3 + 2 * pi}], s{sTAG}, v{vCF + 2 * pi + 1}')
        P('s_or_b64 s[4:5], s[4:5], s[6:7]\ns_or_b64 vcc, vcc, s[8:9]\ns_or_b64 s[4:5], s[4:5], s[10:11]')
        P('s_or_b64 vcc, vcc, s[12:13]')
        P('s_or_b64 vcc, vcc, s[4:5]')

    def gather_fin():
        for x in gather_chk():
            P(x)

    def gather_chk():
        vm.wait('gather')
        gather_cmp()
        P(f's_cbranch_vccz L_{t}gok')
        P.label(f'L_{t}gre')
        spin_guard(f'L_{t}gok')
        P('s_sleep 1')
        gather_issue(False)
        P('s_waitcnt vmcnt(0)')
        gather_cmp()
        P(f's_cbranch_vccnz L_{t}gre')
        P.label(f'L_{t}gok')
        stamp(3) if OPT['ds'] == 8 else None
        return []

    def pf_w():
        if OPT['pfq']:
            if isq != 2 - OPT['pfq']:
                return
            P(f'''s_and_b32 s{sT1}, s2, 127
s_lshl_b32 s{sT1}, s{sT1}, 2
s_add_u32 s{sT1}, s{sT1}, s{sI}
s_mul_i32 s{sT0}, s{sT1}, {7 * 128}
s_mul_i32 s{sT1}, s{sT1}, {25 * 128}
v_lshlrev_b32 v{vLT + 8}, 7, v0
s_mov_b64 exec, 0x1ffffff
buffer_load_dword v{vLT + 9}, v{vLT + 8}, {srd(SW2)}, s{sT1} offen
s_mov_b64 exec, 0x7f
buffer_load_dword v{vLT + 9}, v{vLT + 8}, {srd(SWO)}, s{sT0} offen
s_mov_b64 exec, -1''')
            vm.issue()
            vm.issue()
            return
        P(f'''s_lshl_b32 s{sT1}, s2, 2
s_add_u32 s{sT1}, s{sT1}, s{sI}
s_lshl_b32 s{sT1}, s{sT1}, 11
v_lshlrev_b32 v{vLT + 8}, 7, v0
s_mov_b64 exec, 0xffff
buffer_load_dword v{vLT + 9}, v{vLT + 8}, {srd(SW2)}, s{sT1} offen''')
        vm.issue()
        if OPT['pfo'] != OPT['pf_w']:
            P(f'buffer_load_dword v{vLT + 9}, v{vLT + 8}, {srd(SWO)}, s{sT1} offen')
            vm.issue()
        P('s_mov_b64 exec, -1')

    def pf_o():
        P(f'''s_lshr_b32 s{sT1}, s2, 3
s_lshl_b32 s{sT1}, s{sT1}, 2
s_add_u32 s{sT1}, s{sT1}, s{sI}
s_mul_i32 s{sT1}, s{sT1}, {25 * 128}
v_lshlrev_b32 v{vLT + 8}, 7, v0
s_mov_b64 exec, 0x1ffffff
buffer_load_dword v{vLT + 9}, v{vLT + 8}, {srd(SWO)}, s{sT1} offen
s_mov_b64 exec, -1''')
        vm.issue()

    P(f's_waitcnt lgkmcnt(0)\ns_mul_i32 s{sTAG}, s{sTAG}, 0x9e3779b1\ns_add_u32 s{sTAG}, s{sTAG}, 0x7f4a7c15')
    w2 = W2Plan(vm)
    w2.isq = isq
    if not isq:
        w2.pairs += [WIN, WIN + 8192]
    nown = 0
    nstg = 0

    def own(n):
        nonlocal nown
        n = min(n, 2 * LST - nown)
        w2.own(range(nown, nown + n))
        nown += n

    def stage(n):
        nonlocal nstg
        n = min(n, nown - nstg)
        if n > 0:
            w2.stage(list(range(nstg, nstg + n)))
        nstg += n

    def cwait(v):
        lds_poll(f'L_{t}cp{v}', vPT, vSY, 16, v, OPT['lsl'])

    def fwarm():
        P(BL)
        if OPT['na']:
            P(AL.replace('s4,', 's11,').replace('s5,', 's11,'))
        of_addr(sT0, sT1, 10)
        P(f's_and_b32 s{sT1}, s{sI}, 1\ns_lshl_b32 s{sT1}, s{sT1}, 12\ns_add_u32 s{sT0}, s{sT0}, s{sT1}')
        for p_ in range(4):
            P(f's_buffer_load_dword s11, {srd(SWS)}, s{sT0} offset:{1024 * p_} glc')
        xh_addr(sT0, sI)
        P(f's_buffer_load_dword s11, {srd(SWS)}, s{sT0} glc\ns_buffer_load_dword s11, {srd(SWS)}, s{sT0} offset:4096 glc')

    nspf = 0

    def spf(n):
        nonlocal nspf
        if nspf == 0:
            P(f'''s_lshl_b32 s9, s2, 2
s_add_u32 s9, s9, s{sI}
s_mul_i32 s8, s9, {25 * 64}
s_mul_i32 s9, s9, {7 * 64}''')
        for _ in range(n):
            if nspf < 25:
                P(f's_buffer_load_dword s12, {srd(SW2)}, s8 offset:{64 * nspf}')
            elif nspf < 32:
                P(f's_buffer_load_dword s12, {srd(SWO)}, s9 offset:{64 * (nspf - 25)}')
            nspf += 1
    if OPT['fwarm'] == 9:
        fwarm()
    spn = [int(c, 16) for c in '%05x' % OPT['spf']]
    fin = set()
    wbs = [int(c) for c in '%05d' % OPT['w4']]
    sfill = []
    for s in range(5):
        if OPT['ds'] == 3:
            stamp(1 + 3 * s)
            vm.wait(('st', s))
            stamp(2 + 3 * s)
            P('s_barrier')
            stamp(3 + 3 * s) if s < 4 else None
        else:
            stamp(13) if s == 4 else None
            vm.wait(('st', s))
            stamp(14) if s == 4 else None
            P('s_barrier')
            stamp({0: 1, 3: 3, 4: 5}[s]) if s in (0, 3, 4) else None
        def extras(st):
            if OPT['pf_w'] == st:
                pf_w()
            if OPT['pfo'] == st:
                pf_o()
            pfs = [int(c) for c in str(OPT['pfs'])] if OPT['pfs'] else []
            if st in pfs:
                if st == pfs[0]:
                    P(f'''s_lshr_b32 s9, s2, 3
s_mul_i32 s8, s9, {-(-65536 // len(pfs))}
s_lshr_b32 s8, s8, 16
s_mul_i32 s8, s8, {len(pfs)}
s_sub_u32 s9, s9, s8
v_lshlrev_b32 v{vLT + 8}, 7, v0''')
                P(f'''s_lshl_b32 s{sT1}, s2, 2
s_add_u32 s{sT1}, s{sT1}, s{sI}
s_mul_i32 s{sT0}, s{sT1}, {13 * 128}
s_lshl_b32 s{sT1}, s{sT1}, 9
s_cmp_eq_u32 s9, {pfs.index(st)}
s_cselect_b32 s{sT0}, s{sT0}, 0x40000000
s_cselect_b32 s{sT1}, s{sT1}, 0x40000000
s_mov_b64 exec, 0x1fff
buffer_load_dword v{vLT + 9}, v{vLT + 8}, {srd(SW2)}, s{sT0} offen
s_mov_b64 exec, 15
buffer_load_dword v{vLT + 9}, v{vLT + 8}, {srd(SWO)}, s{sT1} offen
s_mov_b64 exec, -1''')
                vm.issue()
                vm.issue()
            if OPT['pc2'] == st:
                P('s_getpc_b64 s[8:9]')
                P.label(f'L_pc{t}')
                P(f'''s_sub_u32 s8, s8, L_pc{t}-L_pc
s_subb_u32 s9, s9, 0
s_lshr_b32 s{sT0}, s2, 3
s_lshl_b32 s{sT0}, s{sT0}, 2
s_add_u32 s{sT0}, s{sT0}, s{sI}
s_lshl_b32 s{sT0}, s{sT0}, 9
v_lshlrev_b32 v{vLT + 8}, 7, v0
v_add_u32 v{vLT + 8}, s{sT0}, v{vLT + 8}
v_min_u32 v{vLT + 8}, L_END-L_pc, v{vLT + 8}
s_mov_b64 exec, 15
global_load_dword v{vLT + 9}, v{vLT + 8}, s[8:9]
s_mov_b64 exec, -1''')
                vm.issue()

        def stream():
            for st, lim in ((s + 1, 99), (s + 2, KS[s + 1])):
                if st in fin:
                    continue
                k = 0
                while k < lim:
                    if next(gens[st], 'end') == 'end':
                        fin.add(st)
                        extras(st)
                        break
                    k += 1
                    cq = OPT['c1q' if isq else 'c1h']
                    if cq and s >= OPT['c1s'] and vm.n - vm.done > cq:
                        vm.wait(vm.n - cq)
                    yield
        g = stream()
        if (OPT['cs_it'] == 10 * s - 5 and s > 1) or (OPT['cs_it'] == 36 and s == 4):
            gather_start()
        if s < 2:
            run(g, 5)
            csum_part(s)
        if s == OPT['cs_it'] + 1 or (OPT['cs_it'] == 10 * s - 15 and s > 2) or (OPT['cs_it'] == 36 and s == 4):
            run(g, OPT['gk'])
            sfill = gather_chk()
        while next(g, 'end') != 'end':
            for _ in range(OPT['sfn']):
                if sfill:
                    P(sfill.pop(0))
        if s == OPT['cs_it']:
            gather_start()
        if True:
            while sfill:
                P(sfill.pop(0))
        if spn[s]:
            spf(spn[s])
        if s == OPT['fwarm']:
            fwarm()
        if s == OPT['tw2']:
            P(f'''s_lshr_b32 s{sT0}, s2, 3
s_lshl_b32 s{sT0}, s{sT0}, 2
s_add_u32 s{sT0}, s{sT0}, s{sI}
s_lshl_b32 s{sT0}, s{sT0}, 17''')
            if OPT['twv']:
                P(f'''s_mov_b64 exec, 1
buffer_load_dword v{vLT + 9}, v1, {srd(SWS)}, s{sT0} offen sc1
buffer_load_dword v{vLT + 9}, v1, {srd(SOUT)}, s{sT0} offen sc1
s_mov_b64 exec, -1''')
                vm.issue()
                vm.issue()
            else:
                P(f's_buffer_load_dword s11, {srd(SWS)}, s{sT0} glc\ns_buffer_load_dword s11, {srd(SOUT)}, s{sT0} glc')
        if not isq and wbs[s]:
            if len(w2.pairs) < wbs[s]:
                stage(wbs[s] - len(w2.pairs))
                w2.sync()
            own(wbs[s])
    global MUTE
    MUTE = OPT['ds'] in (3, 7, 9)

    def progress(total, cap=OPT['cap']):
        left = total
        while left > 0:
            isown = nown < 2 * LST
            if not (w2.has_pair() if isown else any(g_ >= OPT['ncw2'] for g_ in w2.grp)):
                if w2.pending:
                    w2.sync()
                elif nstg < nown:
                    stage(1)
                else:
                    break
                continue
            if isown:
                own(1)
                left -= 2
            else:
                w2.cw()
                left -= 1
            while nstg < nown and vm.n - vm.tags[('own', nstg)] >= cap:
                stage(1)
            if vm.n - vm.done > cap:
                vm.wait(vm.n - cap)
            if OPT['ds'] == 9:
                c_ = 2 * nown + w2.ncw
                if c_ // 4 != DS9.get(t) and c_ >= 8:
                    DS9[t] = c_ // 4
                    P('s_memrealtime s[%d:%d]' % (sST + 2 * (c_ // 4 + 3), sST + 2 * (c_ // 4 + 3) + 1))
    vm.wait(('st', 5))
    stamp(2)
    P('s_barrier')
    jitter()
    stamp(4)
    w2.pairs += [16384] if isq else [16384, 24576]
    w2.grp |= set(range(7))
    for _ in gens[6]:
        pass
    if OPT['cs_it'] == 5:
        gather_start()
    if OPT['pf_w'] == 7:
        pf_w()
    if OPT['pfo'] == 7:
        pf_o()
    if OPT['gf']:
        if OPT['gf'] > 1:
            P('s_setprio 2')
        body = gather_chk()
        n5 = OPT['n5q'] if isq else OPT['n5']
        if OPT['sd']:
            P(f'''s_lshl_b32 s{sT0}, s{sI}, 2
s_add_u32 m0, s{sT0}, {SYNC + 48 - 4}
s_mov_b64 exec, 1
buffer_load_dword v1, {srd(SWS)}, s{sT2} offen offset:4 sc1 lds
s_mov_b64 exec, -1''')
            vm.issue()
        if OPT['gw']:
            vm.wait(('st', 6))
        for j_, x in enumerate(body):
            P(x)
        if OPT['gw'] and not OPT['b6']:
            P('s_waitcnt lgkmcnt(0)')
            lds_signal(vSG, 246, 7)
        own(n5)
        if OPT['gf'] > 1:
            P('s_setprio 0')
    else:
        own(OPT['n5q'] if isq else OPT['n5'])
    stamp(1) if OPT['ds'] == 8 else None
    if OPT['cs_it'] in (4, 5, 35) and not OPT['gf']:
        gather_fin()
    if not OPT['sd']:
        vm.wait(('st', 6))
        P('s_waitcnt lgkmcnt(0)')
    if OPT['b6']:
        stamp(7)
        P('s_barrier')
    elif not OPT['gw'] and not OPT['sd']:
        lds_signal(vSG, 246, 7)
    stamp(5) if OPT['ds'] == 8 else None
    P(f's_cmp_ge_u32 s{sCT}, 7\ns_cbranch_scc1 L_IDLE')
    if not OPT['b6']:
        progress(OPT['p5q'] if isq else OPT['p5'])
        stamp(6)
        if isq or not OPT['l2h']:
            cwait(6)
    late2 = (OPT['tk'] > 2 or OPT['l2h']) and not isq
    if not late2:
        w2.pairs += [32768, 40960]
        w2.grp |= set(range(7, 14))
    if OPT['b6']:
        progress(OPT['p5'])
        stamp(6)
    if OPT['lpause'] and not isq:
        progress(OPT['lpause'] - 1, OPT['capp'])
        stage(100)
        stamp(7) if OPT['ds'] == 8 else None
        cwait(8)
        stamp(2) if OPT['ds'] == 8 else None
    if late2:
        assert OPT['lpause'] and not OPT['b6']
        w2.pairs += [32768, 40960]
        w2.grp |= set(range(7, 14))
    progress(100, OPT['cap'] if isq else OPT['cape'])
    stage(100)
    w2.sync()
    assert nown == 2 * LST and nstg == nown and not w2.pending and w2.grp == set(range(OPT['ncw2']))
    globals()['W2'] = w2
    if isq and OPT['qhold']:
        cwait(9)
    if isq == OPT['qf']:
        P('s_branch L_P2L')
    return vm


def L_phase2(vm):
    P.label('L_P2L')
    jitter()
    lastcw = [vm.n]
    W2.vm = vm
    vm.done = 0
    stamp(8)
    lds_signal(vSG, 243, 8)
    NAE = OPT['na']
    if NAE or OPT['ncw2']:
        P(AL if NAE else BL)
    sF, sB, sS, sOF = 12, 62, 65, 66
    vDA, vSy, vSg, vWA, TMP, TMP2 = LADR, 246, 247, 20, 248, 12
    P(f'''v_mov_b32 v{vSg}, v{vSG}
v_mov_b32 v{vSy}, v{vSY}
s_and_b32 s{sT3}, s{sRT}, 1
s_lshl_b32 s{sT3}, s{sT3}, 2
s_add_u32 s{sT3}, s{sT3}, s{sI}
s_xor_b32 s{sT2}, s{sRT}, 1
s_mul_i32 s{sT2}, s{sT2}, {4 * NS * 1024}
s_mul_i32 s{sT3}, s{sT3}, {LST * 1024}
s_add_u32 s{sT3}, s{sT3}, {WS_ACT}
s_add_u32 s{sF}, s{sT2}, s{sT3}
s_add_u32 s{sF + 1}, s{sF}, {NS * 1024}
s_add_u32 s{sF + 2}, s{sF}, {2 * NS * 1024}
s_add_u32 s{sF + 3}, s{sF}, {3 * NS * 1024}
s_mul_i32 s{sB}, s{sRT}, {4 * NS * 1024}
s_mul_i32 s{sS}, s{sI}, {NS * 1024}
s_add_u32 s{sS}, s{sS}, s{sB}
s_add_u32 s{sS}, s{sS}, {WS_ACT + 56 * 1024}
s_add_u32 s{sB}, s{sB}, s{sT3}
v_and_b32 v{vDA}, 15, v0
v_lshrrev_b32 v{vDA + 1}, 4, v0
v_xor_b32 v{vDA + 1}, v{vDA + 1}, v{vDA}
v_lshlrev_b32 v{vDA + 1}, 4, v{vDA + 1}
v_lshl_add_u32 v{vDA}, v{vDA}, 8, v{vDA + 1}
s_lshl_b32 s{sT1}, s{sI}, 14
v_add_u32 v{vDA}, s{sT1}, v{vDA}
v_xor_b32 v{vDA + 1}, 64, v{vDA}
v_xor_b32 v{vDA + 2}, 128, v{vDA}
v_xor_b32 v{vDA + 3}, 192, v{vDA}
s_branch L_pb_w''')
    spoll('L_pb', *((AL, 2) if NAE else (F1, 1) if OPT['f1'] else (BL, 4)))
    stamp(9)
    xtra = [LACC + 32 + 4 * n for n in range(8)]
    slots = [LA + 4 * n for n in range(11)] + [4, 8, 16] + ([] if NAE else xtra)
    free = slots[:OPT['lahead'] + 1]
    vSG2 = 244
    aloc = {}
    nxt = 0
    NT = 8 * LST
    NA = NT + 16
    lim = 4 * NAE if NAE else 2 * LST if OPT['f1'] else NT
    order = [(t, k) for k in range(NAE) for t in range(4)] + [(t, k) for t in range(4) for k in range(NAE, LST)] + \
            [(t, k) for t in range(4, 8) for k in range(LST)] + [(8, k) for k in range(16)]
    dump_n = {t: order.index((t, LST - 1)) + OPT['dd'] for t in range(8)}

    def acc(t):
        return LACC + 16 * (t if (t < 4 and NAE) else t % 2)

    def load1():
        nonlocal nxt
        t, k = order[nxt]
        sb = sF + t if t < 4 else sB
        aloc[nxt] = free.pop(0)
        P(f'buffer_load_dwordx4 {vr(aloc[nxt])}, v1, {srd(SWS)}, s{sb} offen offset:{(k % 4) * 1024} sc1')
        vm.issue(('a', nxt))
        nxt += 1
        if k == LST - 1 and 4 <= t < 8:
            P(f's_mov_b32 s{sB}, s{sS}' if t == 7 else f's_add_u32 s{sB}, s{sB}, {NS * 1024 - 4096}')
        elif k % 4 == 3:
            P(f's_add_u32 s{sb}, s{sb}, 4096')

    def can_load(cur):
        return nxt < lim and free and nxt - cur < OPT['lahead']
    lg = Q(P, 'lgkmcnt', 15)
    fq = []
    cold = []

    def f_txt(x, cost=1, ds=None):
        def fn():
            P(x)
            if ds is not None:
                lg.issue(ds or None)
        fq.append((cost, fn))

    def f_chk(nm, rg, off, val):
        f_txt(f'v_min3_u32 v{rg}, v{rg}, v{rg + 1}, v{rg + 2}')
        f_txt(f'v_min_u32 v{rg}, v{rg}, v{rg + 3}')
        f_txt(f'v_cmp_gt_u32 vcc, {val}, v{rg}', 2)
        f_txt(f's_cbranch_vccnz {nm}\n{nm}_ok:')
        cold.append(lambda: (lds_spin(nm, rg, vSy, off, val, 0), P(f's_branch {nm}_ok')))
    while can_load(0) and nxt < OPT['l0']:
        load1()
        if OPT['f1'] and nxt == OPT['f1']:
            P(BL)
    if OPT['tw']:
        P(f'v_add_u32 v{vWA}, {WO}, v1')
    else:
        w2_tr_addr(vWA, 10, TMP, TMP + 1)
        for ct in range(4):
            P(f'v_add_u32 v{vWA + ct}, {WO}, v{vWA + ct}')
    of_addr(sOF, sT0, sT1)
    P(f'''v_and_b32 v{TMP}, 15, v0
v_lshlrev_b32 v{TMP}, 7, v{TMP}
v_lshrrev_b32 v{TMP + 1}, 5, v0
v_xor_b32 v{TMP + 1}, v{TMP + 1}, v0
v_and_b32 v{TMP + 1}, 7, v{TMP + 1}
v_lshl_add_u32 v{TMP}, v{TMP + 1}, 4, v{TMP}
v_bfe_u32 v{TMP + 1}, v0, 4, 1
v_lshl_add_u32 v{TMP}, v{TMP + 1}, 3, v{TMP}
s_lshl_b32 s{sT0}, s{sI}, 11
s_add_u32 s{sT0}, s{sT0}, {STILE}
v_add_u32 v{vSG2 + 1}, s{sT0}, v{TMP}''')
    stamp(10)
    cstamp(2) if OPT['ds'] == 5 else None
    wfree = [TMP2] + slots[OPT['lahead'] + 1:] + (xtra if NAE else [])
    wloc = {}
    nw = 0

    def wread():
        nonlocal nw
        f, j = divmod(nw, 2)
        if nw >= 128 or (j == 0 and not wfree):
            return False
        if j == 0:
            wloc[f] = wfree.pop(0)
        k, ct = divmod(f, 4)
        if OPT['tw']:
            P(f'ds_read_b128 {vr(wloc[f])}, v{vWA} offset:{1024 * f}')
            nw += 1
        else:
            P(f'ds_read_b64_tr_b16 {vr(wloc[f] + 2 * j, 2)}, v{vWA + (ct ^ (2 * (k % 2)))} offset:{28 * k * 128 + 2048 * j}')
        lg.issue(('w', f))
        nw += 1
        return True
    need = {0: 9, 4: 11, 6: 12}

    def set_lim(v):
        nonlocal lim
        lim = v

    def f_flags(nm, loads, nreg, newlim):
        fq.append((1, lambda: lg.force0()))
        for r in range(nreg):
            f_txt(f's_xor_b32 s{4 + r}, s{4 + r}, s{sTAG}')
        if nreg == 8:
            f_txt('s_or_b64 s[4:5], s[4:5], s[6:7]')
            f_txt('s_or_b64 s[6:7], s[8:9], s[10:11]')
        f_txt(f's_or_b64 s[4:5], s[4:5], s[6:7]\ns_cbranch_scc1 {nm}\n{nm}_bk:', 2)
        fq.append((0, lambda: set_lim(newlim)))
        cold.append(lambda: (spoll(nm, loads, nreg), P(f's_branch {nm}_bk')))
    for n in range(NA):
        t, k = order[n]
        if OPT['ds'] == 6 and n % LST == 0 and 0 < n <= NT:
            stamp(n // LST)
        for td, dn in dump_n.items():
            if td in need and n == dn - 4:
                f_txt(f'ds_read_b128 {vr(TMP)}, v{vSy} offset:16', 1, 'c')
                if td == 0:
                    f_txt(f'ds_read_b128 {vr(TMP2)}, v{vSy}', 1, 'c')
            if td in need and n == dn - 2:
                fq.append((1, lambda: lg.wait('c')))
                f_chk(f'L_d{td}', TMP, 16, need[td])
                if td == 0:
                    f_chk('L_d1l', TMP2, 0, 8)
            if n == dn + OPT['sk'] - 1:
                fq.append((1, lambda td=td: lg.wait(('d', td))))
                if td % 2:
                    if td == 1:
                        fq.append((0, lambda: vm.wait(lastcw[0])))
                    f_txt(f'v_mov_b32 v{vSG2}, {10 + td}')
                    f_txt(f'ds_write_b32 v{vSg}, v{vSG2}', 1, '')
            if n == dn:
                for ct in range(4):
                    f_txt(f'ds_write_b128 v{vDA + ct}, {vr(acc(td) + 4 * ct)} offset:{DUMPF + 4096 * (td % 4)}', OPT['dc'], ('d', td))
        if NAE and n == OPT['nb'] - OPT['bd']:
            for x in BL.split('\n'):
                f_txt(x)
        if (NAE and n == OPT['nb']) or (OPT['f1'] and n == 0):
            f_flags('L_pbb', BL, 4, NT)
        if n == OPT['on'] - LST:
            for x in ol(sOF).split('\n'):
                f_txt(x)
        if n == OPT['on']:
            f_flags('L_po', ol(sOF), 8, NA)
        if (t, k) == (8, 13):
            for c_ in range(4):
                f_txt(f'v_xor_b32 v{vDA + c_}, {32 * c_}, v{vSG2 + 1}')
        if n in (9, 30, 44, 58):
            jitter()
        stamp(11) if n == 4 * LST else None
        stamp(12) if n == NT else None
        if k == 0 and t >= (4 if NAE else 2):
            assert lg.done >= lg.tags[('d', t - 4 if (t < 6 and NAE) else t - 2)], (t, 'dump not drained')
        while n not in aloc:
            if can_load(n):
                load1()
            else:
                fq.pop(0)[1]()
        vm.wait(('a', n))
        for ct in range(4):
            a = acc(t) + 4 * ct
            if t == 8:
                f = 4 * k + ct
                if ct % 2 == 0:
                    while nw < 2 * f + 4:
                        assert wread()
                    lg.wait(('w', f + 1))
                P(mfma(a, wloc[f], aloc[n], None if k == 0 else a))
                if f:
                    wfree.append(wloc[f - 1])
            else:
                P(mfma(a, LW + 16 * k + 4 * ct, aloc[n], None if k == 0 else a))
                if t == 7 and 4 * k + ct:
                    wfree.append(LW + 16 * k + 4 * ct - 4)
            bud = 2 if ct < 3 else 1
            if t == 8 and ct == 1:
                bud = 1
            if ct in (0, 2) and can_load(n):
                load1()
                bud -= 2
            elif ct in (0, 2) and W2.grp and (nxt >= lim or not NAE):
                W2.cw()
                lastcw[0] = vm.n
                bud -= 2
            while t == 8 and nw < min(128, 2 * (4 * k + ct) + OPT['wl']):
                assert wread()
                bud -= 1
            if fq and bud <= 0 and t == 8 and ct == 0:
                bud = 1
            while bud > 0:
                if fq:
                    c, fn = fq.pop(0)
                    fn()
                    bud -= c
                elif n >= OPT['ws'] and wread():
                    bud -= 1
                else:
                    break
        (free if nxt < NA else wfree).append(aloc[n])
        if n == dump_n[0]:
            while W2.grp:
                W2.cw()
                lastcw[0] = vm.n
    while fq:
        fq.pop(0)[1]()
    stamp(13)
    cstamp(4) if OPT['ds'] == 5 else None
    if OPT['lp']:
        P('s_setprio 2')
    for ct in range(4):
        for r in (2 * ct, 2 * ct + 1):
            P(f'v_cvt_pk_bf16_f32 v{LACC + r}, v{LACC + 2 * r}, v{LACC + 2 * r + 1}')
        P(f'ds_write_b64 v{vDA + ct}, {vr(LACC + 2 * ct, 2)}')
    P('s_waitcnt lgkmcnt(0)')
    stamp(14)
    P('s_barrier\ns_branch L_EXIT')
    for fn in cold:
        fn()


vmh = L_phase1(OPT['qf'])
P.label('L_LQ')
vmq = L_phase1(1 - OPT['qf'])
L_phase2(vmq)
P.label('L_IDLE')
if OPT['ipl']:
    P(f'''s_bfe_u32 s{sT1}, s2, 0x20003
v_min_u32 v4, 55, v0
v_lshlrev_b32 v4, 7, v4''')
    if OPT['ipl'] & 1:
        P(f's_lshl_b32 s{sT2}, s{sT1}, 2\ns_add_u32 s{sT2}, s{sT2}, s{sI}\ns_mul_i32 s{sT2}, s{sT2}, {56 * 128}\ns_add_u32 s{sT2}, s{sT2}, {3 * 16 * 56 * 128}')
        for n in range(4):
            P(f'buffer_load_dword v5, v4, {srd(SWO)}, s{sT2} offen\ns_sub_u32 s{sT2}, s{sT2}, {16 * 56 * 128}')
    if OPT['ipl'] & 2:
        P(f'''s_lshl_b32 s{sT1}, s{sT1}, 1
s_add_u32 s{sT1}, s{sT1}, s{sRT}
s_sub_u32 s{sT1}, s{sT1}, 8
s_lshl_b32 s{sT1}, s{sT1}, 2
s_add_u32 s{sT1}, s{sT1}, s{sI}
s_mul_i32 s{sT1}, s{sT1}, {16 * 896}''')
        for n in range(2):
            P(f'buffer_load_dword v5, v4, {srd(SX)}, s{sT1} offen\ns_add_u32 s{sT1}, s{sT1}, {8 * 896}')
P('s_branch L_EXIT')

CW = 112
CX = 144
CHX = 168
cXA = 180
cHA = 182
cWA = 184
cWB = 190
cST = 196
cSO = 202
cBE = 204
cR = 196
cKXW, cHW, cPM, cONE = 216, 217, 219, 104
cM16, cM48, cL16, cCSA, cCSH = 221, 222, 223, 224, 225
cVW, cVWH, cVR, cKX, cSY, cSG = 226, 227, 228, 229, 230, 231
cF = 252
cBA, cBB, cBA0 = 232, 236, 240
cT = 244

MUTE = False
if OPT['pad'] >= 0:
    P('.p2align 12')
    if OPT['pad']:
        P('.fill %d, 4, 0xbf800000' % (OPT['pad'] // 4))
P.label('L_C')
vmS = Q(P, 'vmcnt', 63)
if True:
    vS = 16
    P('s_setprio 1')
    stats_rows()
    P('s_waitcnt lgkmcnt(0)')
    mk_srd(SX, 4, 2048 * 896)
    stats_load(vmS)
    if OPT['swarm']:
        P(f's_lshl_b32 s{sT0}, s{sT3}, 4\ns_and_b32 s{sT0}, s{sT0}, 0xffffff80\ns_add_u32 s{sT0}, s{sT0}, {WS_STATS}')
        P(f's_load_dword s10, s[20:21], s{sT0}\ns_load_dword s11, s[20:21], s{sT0} offset:64')
    P(f's_load_dword s{sTAG}, s[20:21], 0')
P(f'''v_mov_b32 v{cSY}, {SYNC}
v_lshl_add_u32 v{cSG}, s{sI}, 2, v{cSY}
v_add_u32 v{cSG}, 16, v{cSG}
v_mov_b32 v12, 0
v_lshlrev_b32 v13, 2, v0
v_add_u32 v13, {SYNC}, v13
ds_write_b32 v13, v12
v_lshlrev_b32 v{cL16}, 4, v0
v_and_b32 v11, 15, v0
v_lshrrev_b32 v10, 4, v0
v_lshrrev_b32 v13, 1, v11
v_xor_b32 v13, v13, v10
v_lshlrev_b32 v13, 4, v13
v_lshl_add_u32 v13, v11, 7, v13
s_lshl_b32 s{sT0}, s{sI}, 12
v_add_u32 v{cXA}, s{sT0}, v13
v_xor_b32 v{cXA + 1}, 64, v{cXA}
v_add_u32 v{cHA}, {HALO}, v13
v_xor_b32 v{cHA + 1}, 64, v{cHA}
v_and_b32 v12, 1, v10
v_mul_u32_u24 v12, 1792, v12
v_lshl_add_u32 v12, v11, 3, v12
s_mul_i32 s{sT0}, s{sISQ}, {CSB[0] - CSB[1]}
s_add_u32 s{sT0}, s{sT0}, {CS - CSB[0]}
v_lshrrev_b32 v14, 1, v10
v_mul_lo_u32 v14, s{sT0}, v14
v_sub_u32 v12, v12, v14
v_add_u32 v{cCSA}, {CS}, v12
v_lshlrev_b32 v12, 4, v11
v_add_u32 v{cSO + 1}, {ST}, v12
s_lshl_b32 s{sT0}, s{sI}, 9
v_add_u32 v{cSO}, s{sT0}, v{cSO + 1}
v_mov_b32 v{cBE + 1}, 0
v_mov_b32 v{cBE + 5}, 0
v_mov_b32 v{cBE + 9}, 0
v_mov_b32 v{cBE + 2}, 0
v_mov_b32 v{cBE + 3}, 0
v_mov_b32 v{cBE + 6}, 0
v_mov_b32 v{cBE + 7}, 0
v_mov_b32 v{cBE + 10}, 0
v_mov_b32 v{cBE + 11}, 0
s_lshl_b32 s{sXO}, s{sRB}, 2
s_add_u32 s{sXO}, s{sXO}, s{sI}
s_mul_i32 s{sA0}, s{sXO}, {2 * NS * 1024}
s_add_u32 s{sA0}, s{sA0}, {WS_ACT}
s_lshl_b32 s{sA1}, s{sRB}, 4
s_add_u32 s{sA1}, s{sA1}, s{sCG}
s_lshl_b32 s{sA1}, s{sA1}, 10
s_lshl_b32 s{sT1}, s{sI}, {FS}
s_add_u32 s{sA1}, s{sA1}, s{sT1}
s_add_u32 s{sA1}, s{sA1}, {WS_FLAGS}''')
stamp(0) if OPT['ds'] != 7 else None
mk_srd(SWS, 20, WS_BYTES)
mk_srd(SOUT, 16, 2048 * 896)
P(f's_cmp_eq_u32 s{sISQ}, 1\ns_cbranch_scc1 L_CQ')
if OPT['hop']:
    P('s_branch L_CH')
    P.label('L_warm')
    P('s_mov_b64 exec, 0')
    for w_ in range(1, 4):
        P(f's_cmp_eq_u32 s{sI}, {w_}\ns_cbranch_scc1 L_hop{w_}')
    P('s_branch L_hop0')
    P.label('L_wret')
    P(f's_mov_b64 exec, -1\ns_cmp_eq_u32 s{sISQ}, 1\ns_cbranch_scc1 L_wrQ\ns_branch L_wrH')
    P.label('L_CH')


SLOW = []


def C_phase1(isq):
    t = 'Q' if isq else 'H'
    lg = Q(P, 'lgkmcnt', 15)
    LA_, HOLD, WSTEP, TM = OPT['la'], OPT['hold'], OPT['wstep'], OPT['tm']
    wsl = WSL
    if isq:
        q_addr_parts(12, 13, 14, 15)
        for e in range(2):
            for t01 in range(2):
                q_addr(cWB + 2 * e + t01, 56 * e + 32 * t01, 12, 13, 14)
        P(f'''s_bitcmp1_b32 s{sI}, 0
s_cselect_b64 vcc, -1, 0
s_lshr_b32 s{sT0}, s{sI}, 1
s_add_u32 s{sT0}, s{sT0}, 1
s_lshl_b32 s{sT0}, s{sT0}, 13
v_cndmask_b32 v{cWB + 4}, v{cWB}, v{cWB + 2}, vcc
v_cndmask_b32 v{cWB + 5}, v{cWB + 1}, v{cWB + 3}, vcc
v_add_u32 v{cWB + 4}, s{sT0}, v{cWB + 4}
v_add_u32 v{cWB + 5}, s{sT0}, v{cWB + 5}
s_lshl_b32 s{sT0}, s{sI}, 8
s_add_u32 s{sT0}, s{sT0}, 512
v_add_u32 v{cCSH}, s{sT0}, v{cCSA}
v_cmp_gt_u32 vcc, 48, v0
v_cndmask_b32 v{cM48}, 0, -1, vcc
v_lshlrev_b32 v13, 2, v10
v_sub_u32 v13, v11, v13
v_mov_b32 v15, 0xf149f2ca''')
        for r in range(4):
            for (d, add) in ((cBA, 16), (cBB, 0)):
                P(f'''v_add_u32 v14, {add - r}, v13
v_and_b32 v14, -15, v14
v_cmp_eq_u32 vcc, 0, v14
v_cndmask_b32 v{d + r}, v15, 0, vcc''')
        P(f's_cmp_eq_u32 s{sXO}, 0\ns_cselect_b64 vcc, -1, 0')
        for r in range(4):
            P(f'v_cndmask_b32 v{cBA0 + r}, v{cBA + r}, v15, vcc')
        P(f'''v_mul_u32_u24 v13, {VSTR}, v11
v_lshl_add_u32 v13, v10, 3, v13
s_mul_i32 s{sT0}, s{sI}, {32 * VSTR}
s_add_u32 s{sT1}, s{sT0}, {VREG + 16 * VSTR}
v_add_u32 v{cVW}, s{sT1}, v13
s_and_b32 s{sT1}, s{sI}, 1
s_mul_i32 s{sT1}, s{sT1}, {144 * VSTR}
s_add_u32 s{sT1}, s{sT1}, {VREG}
v_add_u32 v{cVWH}, s{sT1}, v13
v_lshrrev_b32 v13, 2, v0
v_mul_u32_u24 v13, {VSTR}, v13
v_and_b32 v14, 3, v0
v_lshl_add_u32 v13, v14, 3, v13
s_add_u32 s{sT0}, s{sT0}, {VREG}
v_add_u32 v{cVR}, s{sT0}, v13
s_lshl_b32 s{sT0}, s{sI}, 11
s_add_u32 s{sT0}, s{sT0}, {KX}
v_add_u32 v{cKX}, s{sT0}, v{cL16}
s_add_u32 s{sT1}, s{sT0}, 2048
s_cmp_eq_u32 s{sI}, 3
s_cselect_b32 s{sT1}, {DUMMY}, s{sT1}
v_add_u32 v{cKXW}, s{sT1}, v{cL16}
v_add_u32 v13, 32, v{cVWH}
v_mov_b32 v14, {SYNC + 128}
v_cmp_gt_u32 vcc, 48, v0
v_cndmask_b32 v13, v14, v13, vcc
s_lshl_b32 s{sT0}, s{sI}, 10
s_add_u32 s{sT0}, s{sT0}, {KX}
v_add_u32 v14, s{sT0}, v{cL16}
v_add_u32 v15, 8, v14
s_cmp_ge_u32 s{sI}, 2
s_cselect_b64 vcc, -1, 0
v_cndmask_b32 v{cHW}, v14, v{cVWH}, vcc
v_cndmask_b32 v{cHW + 1}, v15, v13, vcc
v_and_b32 v13, 1, v0
v_lshlrev_b32 v13, 4, v13
v_mov_b32 v14, 0xffff
v_lshlrev_b32 v{cPM}, v13, v14
v_mov_b32 v{cONE}, 0x3f803f80
v_mov_b32 v{cONE + 1}, 0x3f803f80
v_mov_b32 v{cONE + 2}, 0x3f803f80
v_mov_b32 v{cONE + 3}, 0x3f803f80''')
        nb = 6
        pairs = [(1, 0), (2, 0), (1, 1), (2, 1), (0, 0), (0, 1)]
        tiles = [(pi, t01) for pi in range(4) for t01 in range(2)] + [('H', 0), ('H', 1)] + \
                [(pi, t01) for pi in range(4, 6) for t01 in range(2)]
    else:
        h_addr(cWB, 12, 13)
        P(f'v_xor_b32 v{cWB + 1}, 32, v{cWB}')
        nb = 2
        tiles = [(pi, t01) for pi in range(6 if OPT['abl'] & 16 else 7) for t01 in range(2)]

    TK = 2 if isq else OPT['tk']

    def set_slot(s):
        for b in range(nb):
            P(f'v_add_u32 v{cWA + b + (2 if (s == 6 and TK > 2) else 0)}, {wsl[s % 3]}, v{cWB + b}')

    def xbuf(ks):
        if TK > 2 and ks >= 12:
            return ks - 10
        return 2 if (TM and ks == 13) else ks % 2

    units = []

    def unit(tile, ks):
        pi, t01 = tile
        u = dict(tile=tile, ks=ks, pre=[])
        if ks == 'E':
            u['stage'] = 6
            if pi == 'H':
                u['rd'] = [('b64', cCSH, 128 * t01)]
            elif isq:
                sg, e = pairs[pi]
                u['rd'] = [('b64', cCSA, 128 * (4 * sg + 2 * e + t01))]
            else:
                u['rd'] = [('b64', cCSA, 128 * (2 * pi + t01))]
        else:
            s, kk = divmod(ks, 2)
            u['stage'] = 6 if ks >= 14 - TK else s
            if pi == 'H':
                a, o, o2 = cWA + 4 + t01, kk * 4096, 512
            elif isq:
                sg, e = pairs[pi]
                a, o, o2 = cWA + 2 * e + t01, sg * 8192 + kk * 4096, 512
            else:
                a, o, o2 = cWA + t01 + (2 if (s == 6 and TK > 2) else 0), pi * 64 + kk * 32 * 448, 4 * 448
            u['rd'] = [('tr', a, o), ('tr', a, o + o2)]
        if pi == 'H':
            u['mm'] = [(96 + 4 * t01, cBE + 8 if ks == 'E' else CHX + 4 * xbuf(ks))]
        else:
            u['mm'] = [(16 * pi + 8 * tt + 4 * t01, cBE + 4 * tt if ks == 'E' else CX + 8 * xbuf(ks) + 4 * tt)
                       for tt in range(2)]
        return u
    seen_x, seen_h = set(), set()
    order = []
    for ks in range(14 - TK if TM else 14):
        order += [(tl, ks) for tl in tiles]
    if TM:
        for tl in tiles:
            order += [(tl, ks) for ks in range(14 - TK, 14)] + [(tl, 'E')]
    else:
        order += [(tl, 'E') for tl in tiles]
    for tl, ks in order:
        u = unit(tl, ks)
        if ks != 'E':
            s, kk = divmod(ks, 2)
            if tl[0] == 'H':
                if ks not in seen_h:
                    seen_h.add(ks)
                    u['pre'].append(f'ds_read_b128 {vr(CHX + 4 * xbuf(ks))}, v{cHA + kk} offset:{halo_off(s)}')
            elif ks not in seen_x:
                seen_x.add(ks)
                for tt in range(2):
                    u['pre'].append(f'ds_read_b128 {vr(CX + 8 * xbuf(ks) + 4 * tt)}, v{cXA + kk} offset:{XS[s % 3] + 2048 * tt}')
        elif 'E' not in seen_x:
            seen_x.add('E')
            for tt in range(2):
                u['pre'].append(f'ds_read_b32 v{cBE + 4 * tt}, v{cSO} offset:{256 + 256 * tt}')
                if isq:
                    u['pre'].append(f'ds_read_b32 v{cR + 2 * tt}, v{cSO} offset:{256 + 256 * tt + 8}')
        elif tl == ('H', 0):
            u['pre'].append(f'ds_read_b32 v{cBE + 8}, v{cSO + 1}')
            u['pre'].append(f'ds_read_b32 v{cR + 4}, v{cSO + 1} offset:8')
        units.append(u)
    NU = len(units)
    last_ring = max(n for n, u in enumerate(units) if u['ks'] != 'E')
    done_at = {}
    for n, u in enumerate(units):
        done_at[u['tile'][0]] = n

    def rd_list(n):
        u = units[n]
        slot = CW + 4 * (n % 8)
        out = list(u['pre'])
        for j, (kind, a, o) in enumerate(u['rd']):
            if kind == 'tr':
                out.append(f'ds_read_b64_tr_b16 {vr(slot + 2 * j, 2)}, v{a} offset:{o}')
            else:
                out.append(f'ds_read_b32 v{slot}, v{a} offset:{o}')
        return out

    def pack(b):
        return [f'v_cvt_pk_bf16_f32 v{b + i}, v{b + 2 * i}, v{b + 2 * i + 1}' for i in range(4)]

    def scale(b, r):
        return [f'v_mul_f32 v{b + i}, v{b + i}, v{r}' for i in range(8)]

    def epi(pi):
        out = []
        if not isq:
            for tt in range(2):
                b = 16 * pi + 8 * tt
                if OPT['relu'] == 0:
                    out += [f'v_max_f32 v{b + i}, 0, v{b + i}' for i in range(8)]
                out += pack(b)
                if OPT['relu'] == 1:
                    out += [f'v_pk_max_i16 v{b + i}, v{b + i}, 0' for i in range(4)]
                if not OPT['abl'] & 256:
                  out.append(f'buffer_store_dwordx4 {vr(b)}, v{cL16}, {srd(SWS)}, s{sT2 + tt} offen offset:{(pi % 4) * 1024} ' + ('sc1', '', 'nt', 'sc0 sc1')[OPT['hst']])
            if pi == 3:
                out += [f's_add_u32 s{sT2}, s{sT2}, 4096', f's_add_u32 s{sT3}, s{sT3}, 4096']
            if OPT['na'] and pi == OPT['fap']:
                k0 = [x.startswith('buffer_store') for x in out].index(True)
                out.insert(k0, f'''s_waitcnt vmcnt({2 * (pi - OPT['na'])})
s_mov_b32 exec_hi, 0
buffer_store_dword v{cT + 2}, v{cT + 3}, {srd(SWS)}, s{sA1} offen offset:512 sc1
s_mov_b32 exec_hi, -1''')
        elif pi == 'H':
            out += [f'v_rcp_f32 v{cR + 4}, v{cR + 4}'] + scale(96, cR + 4) + pack(96)
            out += [f'ds_write_b64 v{cHW + t01}, {vr(96 + 2 * t01, 2)}' for t01 in range(2)]
            out += ['MARK', 'NOP', 'NOP', 'NOP', 'NOP', 'PUB']
        else:
            sg, e = pairs[pi]
            if pi == 0:
                out += [f'v_rcp_f32 v{cR + 2 * tt}, v{cR + 2 * tt}' for tt in range(2)]
                out += [f'v_mul_f32 v{cR + 2 * tt + 1}, 0x3e8b9a4d, v{cR + 2 * tt}' for tt in range(2)]
            for tt in range(2):
                b = 16 * pi + 8 * tt
                if sg:
                    out += scale(b, cR + 2 * tt)
                out += pack(b)
                if sg == 0:
                    out += [f'v_and_b32 v{b + i}, v{b + i}, v{cM48}' for i in (2, 3)]
                if sg == 1 and tt == 1:
                    out.append(f'ds_write_b128 v{cKXW}, {vr(b)} offset:{1024 * e}')
                if sg == 2:
                    o = e * 144 * VSTR + tt * 16 * VSTR
                    out.append(f'ds_write_b64 v{cVW}, {vr(b, 2)} offset:{o}')
                    out.append(f's_mov_b32 exec_hi, 0xffff\nds_write_b64 v{cVW}, {vr(b + 2, 2)} offset:{o + 32}\ns_mov_b32 exec_hi, -1')
        return out

    set_slot(0)
    P(f's_waitcnt lgkmcnt(0)\ns_mul_i32 s{sTAG}, s{sTAG}, 0x9e3779b1\ns_add_u32 s{sTAG}, s{sTAG}, 0x7f4a7c15')
    if True:
        vmS.done = 0
        vmS.wait('stats')
        for x in stats_body():
            P(x)
        stats_store(Q(P, 'vmcnt', 63))
        P('s_setprio 0')
        if OPT['hop']:
            P('s_branch L_warm')
            P.label(f'L_wr{t}')
        stamp(13) if OPT['ds'] == 3 else None
    if not isq:
        P(f'''s_mul_i32 s{sT2}, s{sIDX}, {7 * 1024}
s_add_u32 s{sT2}, s{sT2}, s{sA0}
s_add_u32 s{sT3}, s{sT2}, {NS * 1024}
v_mov_b32 v{cT + 2}, s{sTAG}
v_lshrrev_b32 v{cT + 3}, 2, v{cL16}''')
    P('s_barrier')
    stamp(1)
    cstamp(2)
    pend = []
    fill = []
    nr = 0
    cur_stage = 0
    b7_done = False

    def queue_reads(n):
        l = rd_list(n)
        for j, x in enumerate(l):
            pend.append((x, ('w', n) if j == len(l) - 1 else None))

    def flush(k=1000):
        while pend and k > 0:
            x, tag = pend.pop(0)
            P(x)
            lg.issue(tag)
            k -= 1

    slow = []
    late = []

    def emit_fill():
        x = fill.pop(0)
        if x == 'MARK':
            lg.tags['kv'] = lg.n
        elif x == 'PUB':
            lg.wait('kv')
            P(f'v_mov_b32 v{cT + 6}, 1\nds_write_b32 v{cSG}, v{cT + 6} offset:16')
            lg.issue()
        elif x != 'NOP':
            P(x)
            if 'ds_write' in x:
                lg.issue()
    last_of = {}
    first_of = {}
    for n, u in enumerate(units):
        if u['ks'] != 'E':
            last_of[u['stage']] = n
        first_of.setdefault(u['stage'], n)
    while nr < LA_:
        queue_reads(nr)
        nr += 1
    flush()
    ups = len(tiles) * 2
    for n in range(NU):
        u = units[n]
        w = n
        if n % WSTEP == 0:
            while w + 1 < min(n + WSTEP, NU) and ('w', w + 1) in lg.tags:
                w += 1
        lg.wait(('w', w))
        for j, (acc, b) in enumerate(u['mm']):
            P(mfma(acc, CW + 4 * (n % 8), b, None if u['ks'] == 0 else acc))
            if j == 0 and nr < NU and units[nr]['stage'] != cur_stage and units[nr]['stage'] <= 5 + OPT['b6']:
                if nr - n <= LA_ - HOLD:
                    cur_stage = units[nr]['stage']
                    set_slot(cur_stage)
                    if HOLD:
                        lg.all()
                    stamp(3) if cur_stage == 4 else None
                    P('s_barrier')
                    stamp(5) if cur_stage == 4 else None
                    stamp(6) if cur_stage == 6 else None
                    while nr <= n + LA_:
                        queue_reads(nr)
                        nr += 1
                    flush()
            elif j == 0 and nr < NU:
                s1 = units[nr]['stage']
                if s1 != cur_stage:
                    cur_stage = s1
                    set_slot(s1)
                    if OPT['ds'] == 2:
                        stamp({5: 9, 6: 13}[s1])
                    lg.wait(('f', s1))
                    stamp(5) if OPT['ds'] == 8 else None
                    if OPT['sd']:
                        def tchk():
                            P(f'''v_xor_b32 v{cF}, s{sTAG}, v{cF}
v_xor_b32 v{cF + 1}, s{sTAG}, v{cF + 1}
v_xor_b32 v{cF + 2}, s{sTAG}, v{cF + 2}
v_xor_b32 v{cF + 3}, s{sTAG}, v{cF + 3}
v_or3_b32 v{cF}, v{cF}, v{cF + 1}, v{cF + 2}
v_or_b32 v{cF}, v{cF}, v{cF + 3}
v_cmp_ne_u32 vcc, 0, v{cF}''')
                        tchk()
                        P(f's_cbranch_vccz L_{t}w{s1}_ok')
                        P.label(f'L_{t}w{s1}')
                        spin_guard(f'L_{t}w{s1}_ok')
                        P(f'ds_read_b128 {vr(cF)}, v{cSY} offset:48\ns_waitcnt lgkmcnt(0)')
                        tchk()
                        P(f's_cbranch_vccnz L_{t}w{s1}')
                    else:
                        lds_cmp(cF, s1 + 1)
                        P(f's_cbranch_vccz L_{t}w{s1}_ok')
                        lds_spin(f'L_{t}w{s1}', cF, cSY, 0, s1 + 1, 0)
                    P.label(f'L_{t}w{s1}_ok')
                    stamp(6) if s1 == 6 else None
                    stamp(10) if (s1 == 5 and OPT['ds'] == 2) else None
                queue_reads(nr)
                if nr + OPT['fla'] == first_of[6] and not OPT['b6']:
                    pend.append((f'ds_read_b128 {vr(cF)}, v{cSY} offset:{48 if OPT["sd"] else 0}', ('f', units[nr + OPT['fla']]['stage'])))
                nr += 1
            last = j == len(u['mm']) - 1
            flush(1000 if last else (len(pend) + 1) // 2)
            for _ in range(OPT['nfq'] if isq else OPT['nfill']):
                if fill:
                    emit_fill()
        if n in (5 * ups + 3, NU - 20, NU - 1):
            jitter()
        if n == last_of[u['stage']] and u['stage'] >= 5 + OPT['b6']:
            if u['stage'] == 5 and (isq or not OPT['l2h']):
                lds_signal(cSG, cT + 7, u['stage'] + 1)
                lg.issue()
            stamp(7) if u['stage'] == 6 else None
        if n == (NU - 1 if (isq and not OPT['qp']) else first_of[OPT['ps']] - (0 if OPT['ps'] == 6 else 3)) and OPT['prio']:
            P('s_setprio %d' % OPT['prio'])
        for pi, dn in done_at.items():
            if dn == n - 2:
                for x in epi(pi):
                    (late if (OPT['qw'] and ('ds_write' in x or x in ('MARK', 'NOP', 'PUB'))) else fill).append(x)
    SLOW.extend((t, s1) for s1 in slow)
    stamp(8)
    cstamp(4)
    for pi, dn in done_at.items():
        if dn >= NU - 2:
            fill += epi(pi)
    if not isq:
        while fill:
            emit_fill()
        stamp(9)
        lds_signal(cSG, cT + 1, 9)
        P('s_waitcnt vmcnt(0)\ns_branch L_CFLAG')
        return
    if late:
        q0 = fill.index(epi(4)[0]) if epi(4)[0] in fill else 0
        fill[q0:q0] = late
    if 'PUB' in fill:
        k0 = fill.index('PUB')
        fill[:] = fill[:k0] + fill[k0 + 1:k0 + 9] + ['PUB'] + fill[k0 + 9:]
    while fill:
        emit_fill()
    stamp(3) if OPT['ds'] == 1 else None
    KP, VO, S = 136, 112, 144
    au = [(0, 1), (1, 1), (0, 0), (1, 0)]
    P(f'ds_read_b128 {vr(cF)}, v{cSY} offset:32')
    for n, (e, tq) in enumerate(au):
        P(mfma(S + 8 * n + 4, 32 * e + 8 * tq, 64 + 16 * e + 8 * tq, cBB))
    for n, (e, tq) in enumerate(au[:2]):
        P(mfma(S + 8 * n, 32 * e, 64 + 16 * e + 8 * tq, cBA))
    stamp(5) if OPT['ds'] == 1 else None
    P('s_waitcnt lgkmcnt(0)')
    lds_cmp(cF, 1)
    P('s_cbranch_vccz L_attp_ok')
    lds_spin('L_attp', cF, cSY, 32, 1, 0)
    P.label('L_attp_ok')
    jitter()
    stamp(6) if OPT['ds'] == 1 else None
    for e in range(2):
        P(f'ds_read_b128 {vr(KP + 4 * e)}, v{cKX} offset:{1024 * e}')
    for e in range(2):
        for dt in range(2):
            for kt in range(3):
                P(f'ds_read_b64_tr_b16 {vr(VO + 12 * e + 6 * dt + 2 * kt, 2)}, v{cVR} offset:{e * 144 * VSTR + kt * 16 * VSTR + 32 * dt}')
    M = cT
    U = range(4)

    def sel(n, i):
        P(f'v_max_f32 v{S + 8 * n + i}, v{S + 8 * n + 2 * i}, v{S + 8 * n + 2 * i + 1}')
    for n in (0, 1):
        for i in range(4):
            sel(n, i)
    P('s_waitcnt lgkmcnt(12)')
    for n, (e, tq) in list(enumerate(au))[2:]:
        P(mfma(S + 8 * n, KP + 4 * e, 64 + 16 * e + 8 * tq, cBA0))
    for ns in ((0, 1), (2, 3)):
        if ns[0]:
            for n in ns:
                for i in range(4):
                    sel(n, i)
        for n in ns:
            P(f'v_max3_f32 v{M + n}, v{S + 8 * n}, v{S + 8 * n + 1}, v{S + 8 * n + 2}')
        for n in ns:
            P(f'v_max_f32 v{M + n}, v{M + n}, v{S + 8 * n + 3}')
        P(f'v_permlane16_swap_b32 v{M + ns[0]}, v{M + ns[1]}\nv_max_f32 v{M + ns[0]}, v{M + ns[0]}, v{M + ns[1]}')
    P(f'''v_permlane32_swap_b32 v{M}, v{M + 2}
v_max_f32 v{M}, v{M}, v{M + 2}
v_mov_b32 v{M + 2}, v{M}
v_permlane32_swap_b32 v{M}, v{M + 2}
v_mov_b32 v{M + 1}, v{M}
v_mov_b32 v{M + 3}, v{M + 2}
v_permlane16_swap_b32 v{M}, v{M + 1}
v_permlane16_swap_b32 v{M + 2}, v{M + 3}''')
    for n in U:
        P(f'v_mul_f32 v{M + n}, v{cR + 1 + 2 * au[n][1]}, v{M + n}')
    for n in U:
        for i in range(4):
            P(f'v_fma_f32 v{S + 8 * n + i}, v{S + 8 * n + i}, v{cR + 1 + 2 * au[n][1]}, -v{M + n}')
    for n in U:
        for i in range(4):
            P(f'v_exp_f32 v{S + 8 * n + i}, v{S + 8 * n + i}')
    stamp(7) if OPT['ds'] == 1 else None
    P(f'''s_lshl_b32 s{sT2}, s{sIDX}, 11
s_add_u32 s{sT2}, s{sT2}, s{sA0}
s_add_u32 s{sT2}, s{sT2}, {56 * 1024}
s_add_u32 s{sT3}, s{sT2}, {NS * 1024}
s_waitcnt lgkmcnt(0)''')
    O = 64

    def pv(n):
        e, tq = au[n]
        P(mfma(S + 8 * n + 4, cONE, S + 8 * n, None))
        for dt in range(2):
            P(mfma(O + 8 * n + 4 * dt, VO + 12 * e + 6 * dt + 2 * tq, S + 8 * n, None))
    for n in U:
        for i in range(4):
            P(f'v_cvt_pk_bf16_f32 v{S + 8 * n + i}, v{S + 8 * n + i}, v{S + 8 * n + i}')
        for i in range(4):
            P(f'v_and_b32 v{S + 8 * n + i}, v{S + 8 * n + i}, v{cPM}')
        if n:
            pv(n - 1)
    pv(3)
    stamp(13) if OPT['ds'] == 1 else None
    for n, (e, tq) in enumerate(au):
        P(f'v_rcp_f32 v{M + n}, v{S + 8 * n + 4}')
        for i in range(8):
            P(f'v_mul_f32 v{O + 8 * n + i}, v{O + 8 * n + i}, v{M + n}')
        for x in pack(O + 8 * n):
            P(x)
        P(f'v_and_b32 v{O + 8 * n + 2}, v{O + 8 * n + 2}, v{cM48}\nv_and_b32 v{O + 8 * n + 3}, v{O + 8 * n + 3}, v{cM48}')
        P(f'buffer_store_dwordx4 {vr(O + 8 * n)}, v{cL16}, {srd(SWS)}, s{sT2 + tq} offen offset:{1024 * e} sc1')


C_phase1(0)
P.label('L_CQ')
C_phase1(1)
stamp(9)
lds_signal(cSG, cT + 1, 9)
P('s_waitcnt vmcnt(0)')
P.label('L_CFLAG')
_st = stamp
if OPT['ds'] == 1:
    def stamp(k):
        if k not in (3, 13):
            _st(k)
P(f'''v_lshrrev_b32 v1, 2, v{cL16}
v_mov_b32 v2, s{sTAG}
s_mov_b32 exec_lo, {(1 << OPT['fl']) - 1:#x}
s_mov_b32 exec_hi, 0
buffer_store_dword v2, v1, {srd(SWS)}, s{sA1} offen sc1
s_mov_b64 exec, -1
v_lshrrev_b32 v0, 4, v{cL16}''')
stamp(10)
P(f'''s_cmp_lt_u32 s{sCT}, 7
s_cbranch_scc1 L_P2C''')
if OPT['ipf']:
    P(f'''s_lshr_b32 s{sT0}, s2, 3
s_and_b32 s{sT0}, s{sT0}, 3
s_lshl_b32 s{sT0}, s{sT0}, 1
s_add_u32 s{sRT}, s{sRT}, s{sT0}
s_sub_u32 s{sRT}, s{sRT}, 8
s_and_b32 s{sT0}, s{sRT}, 1
s_lshl_b32 s{sT0}, s{sT0}, 2
s_add_u32 s{sT0}, s{sT0}, s{sI}
s_lshr_b32 s{sFB}, s{sRT}, 1
s_lshl_b32 s{sFB}, s{sFB}, 4
s_add_u32 s{sFB}, s{sFB}, s{sT0}
s_lshl_b32 s{sFB}, s{sFB}, 10
s_add_u32 s{sFB}, s{sFB}, {WS_FLAGS}
s_mul_i32 s{sT2}, s{sRT}, {4 * NS * 1024}
s_add_u32 s{sT2}, s{sT2}, {WS_ACT}
s_mul_i32 s{sT3}, s{sT0}, {LST * 1024}
s_add_u32 s{sT3}, s{sT3}, s{sT2}
v_min_u32 v4, {47 if OPT['abl'] & 16 else 55}, v0
v_lshlrev_b32 v4, 7, v4
v_lshlrev_b32 v6, 7, v0''')
    P(f'''s_and_b32 s{sT0}, s{sRT}, 1
s_mul_i32 s{sT0}, s{sT0}, {8 * NS * 1024}
s_add_u32 s62, s{sT3}, {4 * NS * 1024}
s_sub_u32 s62, s62, s{sT0}
s_mul_i32 s{sT0}, s{sI}, {NS * 1024}
s_add_u32 s{sT2}, s{sT2}, s{sT0}
s_add_u32 s{sT2}, s{sT2}, {56 * 1024}''')
    of_addr(63, sT0, sT1)
    spoll('L_ip1', BL, 4)
    for c_ in str(OPT['ipf']):
        c_ = int(c_)
        if c_ < 8:
            P(f's_add_u32 s{sT0}, s{62 if c_ < 4 else sT3}, {(c_ % 4) * NS * 1024}\nbuffer_load_dword v5, v4, {srd(SWS)}, s{sT0} offen sc1')
        else:
            spoll('L_ip2', ol(63), 8)
            for q_ in range(2):
                P(f'buffer_load_dword v5, v6, {srd(SWS)}, s{sT2} offen sc1\ns_add_u32 s{sT2}, s{sT2}, 8192')
P(f'''s_cmp_lg_u32 s2, 255
s_cbranch_scc1 L_EXIT
s_cmp_lg_u32 s{sWAVE}, 4
s_cbranch_scc1 L_EXIT
v_lshlrev_b32 v3, 12, v0
v_add_u32 v3, {WS_FLAGS}, v3''')
if OPT['bs']:
    P('s_branch L_bump1')
P.label('L_bump')
spin_guard('L_EXIT')
P('s_sleep 32')
P.label('L_bump1')
for n in range(4):
    P(f'buffer_load_dword v{4 + n}, v3, {srd(SWS)}, 0 offen offset:{1024 * n} sc1')
P('s_waitcnt vmcnt(0)')
for n in range(4):
    P(f'v_xor_b32 v{4 + n}, v{4 + n}, v2')
for n in range(1, 4):
    P(f'v_or_b32 v4, v4, v{4 + n}')
P(f'''v_cmp_ne_u32 vcc, 0, v4
s_cbranch_vccnz L_bump
s_mov_b64 exec, 1
buffer_store_dword v2, v1, {srd(SWS)}, 0 offen sc1
s_mov_b64 exec, -1
s_branch L_EXIT''')

for t_, s_ in SLOW:
    lds_spin(f'L_{t_}w{s_}', cF, cSY, 0, s_ + 1, 0)
    P(f's_branch L_{t_}w{s_}_ok')

cX, cSt, cPp, cXu, cG, cD, cE, RO = 8, 16, 24, 40, 56, 72, 104, 112
cDA, cSA, cXO, cPO, cSO2 = 2, 4, 5, 6, 7
sXA, sXH, sPA, sXR = 62, 64, 66, 12
P.label('L_P2C')
jitter()
P('s_setprio %d' % OPT['cprio'])
P(f'''v_lshrrev_b32 v1, 3, v0
v_lshl_add_u32 v1, s{sI}, 3, v1
v_and_b32 v20, 7, v0
v_mul_u32_u24 v{cXO}, 896, v1
v_lshl_add_u32 v{cXO}, v20, 4, v{cXO}
s_mul_i32 s{sXR}, s{sRT}, {64 * 896}
s_lshl_b32 s{sT0}, s{sCT}, 7
s_add_u32 s{sXR}, s{sXR}, s{sT0}
s_add_u32 s{sXR + 1}, s{sXR}, {32 * 896}
buffer_load_dwordx4 {vr(cX)}, v{cXO}, {srd(SX)}, s{sXR} offen
buffer_load_dwordx4 {vr(cX + 4)}, v{cXO}, {srd(SX)}, s{sXR + 1} offen
v_lshlrev_b32 v21, 1, v20
v_xor_b32 v21, v21, v1
v_and_b32 v21, 15, v21
v_lshlrev_b32 v21, 4, v21
v_lshl_add_u32 v{cDA}, v1, 8, v21
v_xor_b32 v{cDA + 1}, 16, v{cDA}
v_xor_b32 v21, v1, v20
v_and_b32 v21, 7, v21
v_lshlrev_b32 v21, 4, v21
v_lshl_add_u32 v21, v1, 7, v21
v_add_u32 v{cSA}, {STILE}, v21
s_lshl_b32 s{sT0}, s{sI}, 10
v_add_u32 v{cPO}, s{sT0}, v{cL16}
v_lshlrev_b32 v{cSO2}, 4, v1
s_xor_b32 s{sXA}, s{sRT}, 1
s_mul_i32 s{sXA}, s{sXA}, 7
s_add_u32 s{sXA}, s{sXA}, s{sCT}
s_lshl_b32 s{sXA}, s{sXA}, 14
s_add_u32 s{sXA}, s{sXA}, {WS_XCH}
s_add_u32 s{sXA + 1}, s{sXA}, 8192
s_mul_i32 s{sPA}, s{sRT}, 7
s_add_u32 s{sPA}, s{sPA}, s{sCT}
s_lshl_b32 s{sPA}, s{sPA}, 14
s_add_u32 s{sPA}, s{sPA}, {WS_XCH}
s_add_u32 s{sPA + 1}, s{sPA}, 8192
s_lshl_b32 s{sT1}, s{sRT}, 10
s_add_u32 s{sT1}, s{sT1}, {WS_STATS + 8}''')
xh_addr(sXH)
XF = OPT['xf']
for n in range(1 if XF else 8):
    P(f'v_mov_b32 v{RO + 2 * n + 1}, s{sTAG}')
if XF:
    P(f's_lshl_b32 s{sT0}, s{sI}, 10\nv_lshl_add_u32 v{RO}, v0, 2, s{sT0}')


if OPT['tw']:
    cA2, cWF = 128, 132
    w2_tr_addr(cA2, 10, 20, 21)
    P(f's_mul_i32 s{sT0}, s{sI}, {4 * 28 * 128}\ns_add_u32 s{sT0}, s{sT0}, {WO}')
    for ct in range(4):
        P(f'v_add_u32 v{cA2 + ct}, s{sT0}, v{cA2 + ct}')
    P(f's_lshl_b32 s{sT0}, s{sI}, 14\ns_add_u32 s{sT0}, s{sT0}, {WO}\nv_add_u32 v20, s{sT0}, v{cL16}')
    lds_poll('L_cwl', cF, cSY, 0, 10, 2)
    for k in range(4):
        for ct in range(4):
            for j in range(2):
                P(f'ds_read_b64_tr_b16 {vr(cWF + 16 * k + 4 * ct + 2 * j, 2)}, v{cA2 + (ct ^ (2 * (k % 2)))} offset:{28 * k * 128 + 2048 * j}')
    P('s_waitcnt lgkmcnt(0)')
    lds_signal(cSG, cT, 10)
    lds_poll('L_cwt', cF, cSY, 16, 10, 0)
    P('s_setprio 0')
    for f in range(16):
        P(f'ds_write_b128 v20, {vr(cWF + 4 * f)} offset:{1024 * f}')
    P('s_setprio %d' % OPT['cprio'])


def dump_reads(rd):
    for part in range(4):
        for hf in range(2):
            P(f'ds_read_b128 {vr(cD + 8 * part + 4 * hf)}, v{cDA + hf} offset:{DUMPF + 16384 * part + 8192 * rd}')


for rd in range(2):
    lds_poll(f'L_cr{rd}', cF, cSY, 0, 11 + 2 * rd, OPT['crs'])
    jitter()
    stamp(11) if rd else None
    dump_reads(rd)
    P('s_waitcnt lgkmcnt(4)')
    for r in range(8):
        P(f'v_add_f32 v{cD + r}, v{cD + r}, v{cD + 8 + r}')
    P('s_waitcnt lgkmcnt(0)')
    lds_signal(cSG, cT, 11 + rd)
    for r in range(8):
        P(f'v_add_f32 v{cD + 16 + r}, v{cD + 16 + r}, v{cD + 24 + r}')
    for r in range(8):
        P(f'v_add_f32 v{cD + r}, v{cD + r}, v{cD + 16 + r}')
    for r in range(4):
        P(f'v_cvt_pk_bf16_f32 v{RO + 8 * rd + (4 + r if XF else 2 * r)}, v{cD + 2 * r}, v{cD + 2 * r + 1}')
    if XF:
        P(f'''buffer_store_dwordx4 {vr(RO + 8 * rd + 4)}, v{cPO}, {srd(SWS)}, s{sXA} offen sc1
s_waitcnt vmcnt(0)
s_mov_b32 exec_hi, 0
buffer_store_dword v{RO + 1}, v{RO}, {srd(SWS)}, s{sXA + 1} offen offset:896 sc1
s_mov_b32 exec_hi, -1''')
    else:
        for u in range(2):
            P(f'buffer_store_dwordx4 {vr(RO + 8 * rd + 4 * u)}, v{cPO}, {srd(SWS)}, s{sXA + u} offen sc1')
    if rd == 0:
        P(f's_add_u32 s{sXA}, s{sXA}, 4096\ns_add_u32 s{sXA + 1}, s{sXA + 1}, 4096')
        for r2 in range(2):
            P(f'buffer_load_dword v{cSt + 2 * r2}, v{cSO2}, {srd(SWS)}, s{sT1} offen offset:{512 * r2} sc1')
        P('s_waitcnt vmcnt(4)')
        for n in range(8):
            P(f'v_lshlrev_b32 v{cXu + 2 * n}, 16, v{cX + n}\nv_and_b32 v{cXu + 2 * n + 1}, 0xffff0000, v{cX + n}')
stamp(13)
P('s_setprio %d' % OPT['gp'])


def pload(rd):
    for u in range(1 if XF else 2):
        P(f'buffer_load_dwordx4 {vr(cPp + 8 * rd + 4 * u)}, v{cPO}, {srd(SWS)}, s{(sPA, 14)[rd] + u} offen sc1')


def pchk(rd, cnt):
    P(f's_waitcnt vmcnt({cnt})')
    for n in range(4):
        P(f'v_xor_b32 v{cE + n}, s{sTAG}, v{cPp + 8 * rd + 2 * n + 1}')
    P(f'v_or_b32 v{cE}, v{cE}, v{cE + 1}\nv_or3_b32 v{cE}, v{cE}, v{cE + 2}, v{cE + 3}\nv_cmp_ne_u32 vcc, 0, v{cE}')


P(f's_add_u32 s14, s{sPA}, 4096\ns_add_u32 s15, s{sPA + 1}, 4096')


def fetch(rd):
    spoll(f'L_cx{rd}', f's_buffer_load_dword s4, {srd(SWS)}, s{sXH} offset:{4096 * rd} glc', 1)
    stamp(3) if rd else None
    pload(rd)


if not OPT['xo']:
    fetch(0)
    fetch(1)
for rd in range(2):
    if OPT['xo'] == 2 and rd:
        P(f's_cmp_eq_u32 s5, s{sTAG}\ns_cbranch_scc1 L_gotb')
    if OPT['xo']:
        fetch(rd)
    if OPT['xo'] == 2 and rd:
        P.label('L_gotb')
    lds_poll(f'L_cg{rd}', cF, cSY, 0, 15 + 2 * rd, OPT['cgs'] if rd else 1)
    jitter()
    stamp(12) if rd else None
    dump_reads(rd)
    g = cG + 8 * rd
    P('s_waitcnt lgkmcnt(4)')
    for r in range(8):
        P(f'v_add_f32 v{cD + r}, v{cD + r}, v{cD + 8 + r}')
    P('s_waitcnt lgkmcnt(0)')
    for r in range(8):
        P(f'v_add_f32 v{cD + 16 + r}, v{cD + 16 + r}, v{cD + 24 + r}')
    for r in range(8):
        P(f'v_add_f32 v{cD + r}, v{cD + r}, v{cD + 16 + r}')
    if OPT['xo'] == 2 and rd == 0:
        P(f's_buffer_load_dword s5, {srd(SWS)}, s{sXH} offset:4096 glc')
    if XF:
        P(f's_waitcnt vmcnt({(1 - rd) if not OPT["xo"] else 0})')
    else:
        pchk(rd, (2 - 2 * rd) if not OPT['xo'] else 0)
        P(f's_cbranch_vccz L_px{rd}_ok')
        P.label(f'L_px{rd}')
        spin_guard(f'L_px{rd}_ok')
        P('s_sleep 1')
        pload(rd)
        pchk(rd, 0)
        P(f's_cbranch_vccnz L_px{rd}')
        P.label(f'L_px{rd}_ok')
    if rd == 0:
        for r2 in range(2):
            st = cSt + 2 * r2
            P(f'v_rcp_f32 v{st + 1}, v{st}\nv_mul_f32 v{st + 1}, 0xbfb8aa3b, v{st + 1}')
    for n in range(4):
        pp = cPp + 8 * rd + (n if XF else 2 * n)
        P(f'v_lshlrev_b32 v{g + 2 * n}, 16, v{pp}\nv_and_b32 v{g + 2 * n + 1}, 0xffff0000, v{pp}')
    for r in range(8):
        P(f'v_add_f32 v{g + r}, v{g + r}, v{cD + r}')
    for r in range(8):
        P(f'v_mul_f32 v{cE + r}, v{cSt + 2 * rd + 1}, v{g + r}')
    for r in range(8):
        P(f'v_exp_f32 v{cE + r}, v{cE + r}')
    for r in range(8):
        P(f'v_fma_f32 v{cE + r}, v{cE + r}, v{cSt + 2 * rd}, v{cSt + 2 * rd}')
    for r in range(8):
        P(f'v_rcp_f32 v{cE + r}, v{cE + r}')
    if OPT['xo'] == 2 and rd == 0:
        P(f's_waitcnt lgkmcnt(0)\ns_cmp_lg_u32 s5, s{sTAG}\ns_cbranch_scc1 L_nob')
        pload(1)
        P.label('L_nob')
    for r in range(8):
        P(f'v_mul_f32 v{g + r}, v{g + r}, v{cE + r}')
        if OPT.get('pert'):
            import struct
            P(f'v_mul_f32 v{g + r}, {struct.unpack("<I", struct.pack("<f", 1 + OPT["pert"] / 1000))[0]:#x}, v{g + r}')
stamp(14)
P('s_barrier')
stamp(6) if OPT['ds'] == 4 else None
for rd in range(2):
    P(f'ds_read_b128 {vr(cX + 4 * rd)}, v{cSA} offset:{4096 * rd}')
for rd in range(2):
    P(f's_waitcnt lgkmcnt({1 - rd})')
    for n in range(4):
        P(f'v_lshlrev_b32 v{cD + 2 * n}, 16, v{cX + 4 * rd + n}\nv_and_b32 v{cD + 2 * n + 1}, 0xffff0000, v{cX + 4 * rd + n}')
    for n in range(4):
        a = cXu + 8 * rd + 2 * n
        P(f'v_pk_fma_f32 {vr(a, 2)}, {vr(cD + 2 * n, 2)}, {vr(cG + 8 * rd + 2 * n, 2)}, {vr(a, 2)}')
    for n in range(4):
        P(f'v_cvt_pk_bf16_f32 v{cE + 4 * rd + n}, v{cXu + 8 * rd + 2 * n}, v{cXu + 8 * rd + 2 * n + 1}')
    P(f'buffer_store_dwordx4 {vr(cE + 4 * rd)}, v{cXO}, {srd(SOUT)}, s{sXR + rd} offen' + ('', ' sc1', ' nt', ' sc0 sc1', ' sc1 nt')[OPT['osc1']])
stamp(7) if OPT['ds'] == 4 else None
P.label('L_EXIT')
if DIAG:
    P('s_waitcnt vmcnt(0)')
    stamp(15)
    diag_dump()
P.label('L_END')
P('s_endpgm')

if OPT['hop']:
    for w_ in range(4):
        P.label(f'L_hop{w_}')
body = P.finalize()
if OPT['hop']:
    import subprocess
    import os
    from asmlib import Ins
    del P.ins[-4:]

    def addresses():
        txt = f'.amdgcn_target "amdgcn-amd-amdhsa--gfx950"\n.text\n.fill 192, 4, 0\n{NAME}_kernel:\n'
        for i_, x in enumerate(P.ins):
            if x.kind not in ('label', 'dir'):
                txt += f'LX{i_}:\n'
            txt += ('s_nop 0' if 'L_hop' in x.text and x.kind != 'label' else x.text) + '\n'
        tmp = sys.argv[1] + '.tmp'
        open(tmp + '.s', 'w').write(txt)
        subprocess.check_call(['clang', '-x', 'assembler', '-target', 'amdgcn-amd-amdhsa', '-mcpu=gfx950',
                               '-c', tmp + '.s', '-o', tmp + '.o'])
        o = subprocess.check_output(['llvm-readelf', '-s', '-W', tmp + '.o']).decode()
        os.remove(tmp + '.s')
        os.remove(tmp + '.o')
        return {int(l.split()[-1][2:]): int(l.split()[1], 16) for l in o.split('\n') if l.split() and l.split()[-1].startswith('LX')}
    nh = 0
    page = 1
    while True:
        ad = addresses()
        if max(ad.values()) < 4096 * page:
            break
        for j_ in range(OPT['hop'] - 1, -1, -1):
            c_ = [i_ for i_, a_ in ad.items() if 4096 * page + 64 * j_ <= a_ + 4 * j_ < 4096 * (page + 1)]
            if c_:
                i_ = min(c_)
                P.ins[i_:i_] = [Ins('HOPL:'), Ins('s_cbranch_execz L_hopX')]
                P.ins[i_].text = f'HL{page}_{j_}:'
        page += 1
    hops = [i_ for i_, x in enumerate(P.ins) if x.text.startswith('s_cbranch_execz L_hopX')]
    lab = {x.label: i_ for i_, x in enumerate(P.ins) if x.kind == 'label'}
    assert not any(lab['L_warm'] <= i_ <= lab['L_CH'] for i_ in hops) and len(hops) >= 4
    for n_, i_ in enumerate(hops):
        P.ins[i_ - 1].text = f'L_hop{n_}:'
        P.ins[i_].text = 's_cbranch_execz ' + (f'L_hop{n_ + 4}' if n_ + 4 < len(hops) else 'L_wret')
    body = '\n'.join(('' if x.kind == 'label' else '    ') + x.text for x in P.ins) + '\n'
ref = open('cdna_kernels/%s.s.ref' % NAME).read()
hdr = [l for l in ref.split('\n') if l.startswith(';') and '@launch' not in l]
out = '\n'.join(hdr) + '\n; @launch grid=(256,1,1) block=(512,1,1) lds=%d\n' % LDS_BYTES
out += f'''.amdgcn_target "amdgcn-amd-amdhsa--gfx950"
; One persistent launch, 256 workgroups x 8 waves (waves 0-3 "L": loaders / phase-2 GEMM, waves 4-7 "C": phase-1 GEMM, epilogues).
; Phase 1: raw x @ [w1 | wqkv] tiles of 128 rows; LayerNorm is applied afterwards (mean * column-sum correction as one
;          extra MFMA step, 1/sd on the outputs); relu / windowed attention; h and o go to d_ws in MFMA fragment order.
; Phase 2: 64x64 output tiles, K of h @ w2 split over a pair of workgroups, s = o @ wo, out = x + s * silu(f).
; Hand-offs carry a per-launch tag (derived from word 0 of d_ws, which is advanced once every workgroup has read it).
.text
.globl {NAME}_kernel
.p2align 8
.type {NAME}_kernel,@function
{NAME}_kernel:
{body}.section .rodata,"a"
.p2align 6
.amdhsa_kernel {NAME}_kernel
  .amdhsa_next_free_vgpr 256
  .amdhsa_next_free_sgpr {102 if DIAG else OPT['nsg']}
  .amdhsa_accum_offset 256
  .amdhsa_group_segment_fixed_size 0
  .amdhsa_kernarg_size 72
  .amdhsa_user_sgpr_count 2
  .amdhsa_user_sgpr_kernarg_segment_ptr 1
  .amdhsa_system_sgpr_workgroup_id_x 1
.end_amdhsa_kernel
'''
open(sys.argv[1], 'w').write(out)
print('instructions', len(P.ins), 'nops inserted', P.nops_inserted)
```
